```python
import torch

def _softmax(x, axis=-1):
    return torch.softmax(x, dim=axis)
def _gelu(x):
    return torch.nn.functional.gelu(x, approximate="tanh")
def _silu(x):
    return torch.nn.functional.silu(x)
def _sigmoid(x):
    return torch.sigmoid(x)
def _layernorm(x, axis=-1, eps=1e-5):
    m = x.mean(dim=axis, keepdim=True)
    v = x.var(dim=axis, keepdim=True, unbiased=False)
    return (x - m) / torch.sqrt(v + eps)
def _scatter_add(tgt, idx, src, axis=0):
    return tgt.clone().index_add_(axis, idx, src)
def _segment_sum(src, seg, n):
    out = torch.zeros((n,) + src.shape[1:], dtype=src.dtype)
    return out.index_add_(0, seg, src)
def _pad(x, pw):
    flat = tuple(v for pair in reversed(pw) for v in pair)
    return torch.nn.functional.pad(x, flat)

kernel_name = 'parallel_sum__gqa_block_cached__mixer_token_mlp__decode'

def setup_inputs():

    _w = (lambda a: (lambda t: t.to(torch.bfloat16) if t.is_floating_point() else t)(torch.as_tensor(a)))
    def _A_setup():
        B, Sq, D = 2, 1, 576
        Hq, Hkv, Sk, Dh = 32, 16, 32768, 128
        assert Hq % Hkv == 0, (Hq, Hkv)
        return {
            "x": _w((lambda *s: torch.randn(*s, dtype=torch.bfloat16) * 0.05)(B, Sq, D)),
            "k_cache": _w((lambda *s: torch.randn(*s, dtype=torch.bfloat16) * 3.2)(B, Hkv, Sk, Dh)),
            "v_cache": _w((lambda *s: torch.randn(*s, dtype=torch.bfloat16) * 0.8)(B, Hkv, Sk, Dh)),
            "wq": _w((lambda *s: torch.randn(*s, dtype=torch.bfloat16) * 3.2)(D, Hq * Dh) * (D ** -0.5)),
            "wo": _w((lambda *s: torch.randn(*s, dtype=torch.bfloat16) * 0.8)(Hq * Dh, D) * ((Hq * Dh) ** -0.5)),
        }
    _A_in = _A_setup()

    def _B_setup():
        B, S, D, F = 2, 1, 576, 4608
        return {
            "x": _w((lambda *s: torch.randn(*s, dtype=torch.bfloat16) * 0.05)(B, S, D)),
            "w1": _w((lambda *s: torch.randn(*s, dtype=torch.bfloat16) * 3.2)(S, F) * (S ** -0.5)),
            "b1": _w((lambda *s: torch.randn(*s, dtype=torch.bfloat16) * 3.2)(F) * 0.02),
            "w2": _w((lambda *s: torch.randn(*s, dtype=torch.bfloat16) * 0.8)(F, S) * (F ** -0.5)),
            "b2": _w((lambda *s: torch.randn(*s, dtype=torch.bfloat16) * 0.8)(S) * 0.02),
        }
    _B_in = _B_setup()

    return {
        "A_x": _A_in["x"],
        "A_k_cache": _A_in["k_cache"],
        "A_v_cache": _A_in["v_cache"],
        "A_wq": _A_in["wq"],
        "A_wo": _A_in["wo"],
        "B_x": _B_in["x"],
        "B_w1": _B_in["w1"],
        "B_b1": _B_in["b1"],
        "B_w2": _B_in["w2"],
        "B_b2": _B_in["b2"],
    }

def reference(A_x, A_k_cache, A_v_cache, A_wq, A_wo, B_x, B_w1, B_b1, B_w2, B_b2):
    def _A_ref(x, k_cache, v_cache, wq, wo):
        B, Sq, D = x.shape
        Hq, Dh = 32, 128
        Hkv = k_cache.shape[1]
        rep = Hq // Hkv
        q = (lambda x, *d: x.permute(*d))((x @ wq).reshape(B, Sq, Hq, Dh), 0, 2, 1, 3)
        k = (lambda x, n, axis: torch.repeat_interleave(x, n, dim=axis))(k_cache, rep, axis=1)
        v = (lambda x, n, axis: torch.repeat_interleave(x, n, dim=axis))(v_cache, rep, axis=1)
        scores = torch.einsum("bhqd,bhkd->bhqk", q, k) * (Dh ** -0.5)
        p = _softmax(scores, axis=-1)
        o = torch.einsum("bhqk,bhkd->bhqd", p, v)
        return (lambda x, *d: x.permute(*d))(o, 0, 2, 1, 3).reshape(B, Sq, Hq * Dh) @ wo

    def _B_ref(x, w1, b1, w2, b2):
        B, S, D = x.shape
        h = _layernorm(x, axis=-1)
        u = torch.einsum("bsd,sf->bdf", h, w1) + b1
        u = _gelu(u)
        y = torch.einsum("bdf,fs->bds", u, w2) + b2
        return (lambda x, *d: x.permute(*d))(y, 0, 2, 1)

    x = A_x
    xn = _layernorm(x, axis=-1)
    return x + _A_ref(xn, A_k_cache, A_v_cache, A_wq, A_wo) + _B_ref(xn, B_w1, B_b1, B_w2, B_b2)
```

```python
import struct, sys, math

KN = 'parallel_sum__gqa_block_cached__mixer_token_mlp__decode'


def f32(x):
    return '0x%08x' % struct.unpack('<I', struct.pack('<f', x))[0]


HEADER = open('cdna_kernels/' + KN + '.s.ref').read().split('; Override launch')[0]

LOG2E = 1.4426950408889634
INBOX = 16384
L1ML = 4096
L2A = 8192
L2B = 12288
STAMP_OFF = 8 << 20
SPIN_MAX = 200000


class Asm:
    def __init__(self):
        self.L = []

    def __call__(self, s):
        self.L.append('  ' + s)

    def label(self, s):
        self.L.append(s + ':')

    def nop(self, n):
        while n > 0:
            k = min(n, 16)
            self('s_nop %d' % (k - 1))
            n -= k

    def text(self):
        return '\n'.join(self.L) + '\n'


DPP = 'row_mask:0xf bank_mask:0xf'


def gen(npreA=0, npreB=4, wgmap='xcd', kvpol='nt', wqpol='nt', wopol='nt', stamp=False, first_wq=16):
    A = Asm()
    A.L.append(HEADER.rstrip('\n'))
    A.L.append('; @launch grid=(256,1,1) block=(512,1,1) lds=12288')
    A.L.append('.amdgcn_target "amdgcn-amd-amdhsa--gfx950"')
    A.L.append('.text')
    A.L.append(f'.globl {KN}_kernel')
    A.L.append('.p2align 8')
    A.L.append(f'.type {KN}_kernel,@function')
    A.label(f'{KN}_kernel')

    nstamp = [0]

    def stampit(k):
        if stamp:
            A(f's_memrealtime s[{84 + 2 * k}:{85 + 2 * k}]')

    def stamp_store():
        if not stamp:
            return
        A('s_waitcnt lgkmcnt(0) vmcnt(0)')
        A('s_getreg_b32 s64, hwreg(HW_REG_XCC_ID)')
        A('s_lshl_b32 s65, s2, 3')
        A('s_add_u32 s65, s65, s30')
        A('s_lshl_b32 s65, s65, 5')
        A(f's_add_u32 s65, s65, {STAMP_OFF}')
        A('s_mov_b64 exec, 1')
        A('v_mov_b32 v4, 0')
        for k in range(7):
            A(f'v_mov_b32 v5, s{84 + 2 * k}')
            A(f'buffer_store_dword v5, v4, s[48:51], s65 offen offset:{4 * k}')
        A('v_mov_b32 v5, s64')
        A(f'buffer_store_dword v5, v4, s[48:51], s65 offen offset:28')
        A('s_waitcnt vmcnt(0)')

    A('s_cmp_ge_u32 s2, 256')
    A('s_cbranch_scc1 L_end')
    if stamp:
        for k in range(7):
            A(f's_mov_b64 s[{84 + 2 * k}:{85 + 2 * k}], 0')
    stampit(0)
    A('s_load_dwordx16 s[4:19], s[0:1], 0')
    A('s_load_dwordx8 s[20:27], s[0:1], 64')
    A('s_load_dwordx2 s[28:29], s[0:1], 96')
    A('v_lshrrev_b32 v1, 6, v0')
    A('v_and_b32 v2, 15, v0')
    A('v_readfirstlane_b32 s30, v1')
    A('v_and_b32 v1, 63, v0')
    A('v_lshrrev_b32 v3, 4, v1')
    if wgmap == 'xcd':
        A('s_and_b32 s31, s2, 7')
        A('s_lshr_b32 s64, s2, 3')
        A('s_and_b32 s32, s64, 7')
        A('s_and_b32 s64, s64, 24')
        A('s_add_u32 s31, s31, s64')
    else:
        A('s_lshr_b32 s31, s2, 3')
        A('s_and_b32 s32, s2, 7')
    A('s_lshr_b32 s33, s31, 4')
    A('s_and_b32 s34, s31, 15')
    A('s_lshl_b32 s35, s34, 3')
    A('s_add_u32 s35, s35, s32')
    A('s_lshl_b32 s36, s31, 3')
    A('s_add_u32 s36, s36, s32')
    SELH, SELS = 32, 40
    SEL = 40
    A('v_and_b32 v4, 7, v2')
    A('v_lshrrev_b32 v5, 1, v4')
    A('v_and_b32 v6, 1, v4')
    A('v_mov_b32 v7, 0x0c0c0100')
    A('v_mov_b32 v8, 0x01000c0c')
    A('v_cmp_eq_u32 vcc, 1, v6')
    A('v_mov_b32 v9, 0x0c0c0302')
    A('v_mov_b32 v10, 0x03020c0c')
    A('v_cndmask_b32 v7, v7, v8, vcc')
    A('v_cndmask_b32 v9, v9, v10, vcc')
    A('v_mov_b32 v8, 0x0c0c0c0c')
    for d in range(4):
        A(f'v_cmp_eq_u32 vcc, {d}, v5')
        A.nop(2)
        A(f'v_cndmask_b32 v{SEL + d}, v8, v7, vcc')
        A(f'v_cndmask_b32 v{SEL + 4 + d}, v8, v9, vcc')
    A('s_waitcnt lgkmcnt(0)')
    A('s_mov_b32 s48, s28')
    A('s_mov_b32 s49, s29')
    A(f's_mov_b32 s50, {(STAMP_OFF + 65536) if stamp else 256 * INBOX}')
    A('s_mov_b32 s51, 0x20000')
    A('s_cmp_lt_u32 s30, 4')
    A('s_cbranch_scc1 L_helper')

    def build_b(dst, src, odd):
        for d in range(4):
            A(f'v_perm_b32 v{dst + d}, v{src}, v{src}, v{SEL + 4 * odd + d}')

    RING = 64
    Q = 48
    BS = 32
    S = 24
    ACC = 20
    PK = 16
    VK0, VK1, VV0, VV1 = 12, 13, 14, 15
    M2, LS, AL, T0, T1, PUB = 4, 5, 6, 7, 8, 9
    A('s_sub_u32 s37, s30, 4')
    A('s_lshl_b32 s64, s36, 20')
    A('s_add_u32 s40, s6, s64')
    A('s_addc_u32 s41, s7, 0')
    A('s_mov_b32 s42, 0x100000')
    A('s_mov_b32 s43, 0x20000')
    A('s_add_u32 s44, s8, s64')
    A('s_addc_u32 s45, s9, 0')
    A('s_mov_b32 s46, 0x100000')
    A('s_mov_b32 s47, 0x20000')
    A('s_lshl_b32 s38, s37, 13')
    A('s_mov_b32 s39, s38')
    A(f'v_and_b32 v{T0}, 3, v2')
    A(f'v_lshlrev_b32 v{T0}, 10, v{T0}')
    A(f'v_lshrrev_b32 v{T1}, 2, v2')
    A(f'v_lshl_add_u32 v{T0}, v{T1}, 8, v{T0}')
    A(f'v_lshl_add_u32 v{VK0}, v3, 4, v{T0}')
    A(f'v_add_u32 v{VK1}, 0x1000, v{VK0}')
    A(f'v_lshlrev_b32 v{VV0}, 4, v1')
    A(f'v_add_u32 v{VV1}, 0x1000, v{VV0}')

    def kreg(slot, u, s):
        return RING + slot * 64 + (u * 4 + s) * 4

    def vreg(slot, u, r):
        return RING + slot * 64 + 32 + (u * 4 + r) * 4

    def kloads(slot):
        for u in range(2):
            for s in range(4):
                r = kreg(slot, u, s)
                A(f'buffer_load_dwordx4 v[{r}:{r + 3}], v{VK0 + u}, s[40:43], s38 offen offset:{s * 64} {kvpol}')
        A('s_add_u32 s38, s38, 0x8000')

    def vloads(slot):
        for u in range(2):
            for rr in range(4):
                r = vreg(slot, u, rr)
                A(f'buffer_load_dwordx4 v[{r}:{r + 3}], v{VV0 + u}, s[44:47], s39 offen offset:{rr * 1024} {kvpol}')
        A('s_add_u32 s39, s39, 0x8000')

    def ring_part(lo, hi):
        for n in range(lo, hi):
            (kloads if n % 2 == 0 else vloads)(n // 2)

    def pro(npre):
        ring_part(0, npre)
        A('s_barrier')
        A('s_barrier')
        ring_part(npre, 6)

    if npreA == npreB:
        pro(npreA)
    else:
        A('s_bitcmp1_b32 s2, 3')
        A('s_cbranch_scc1 L_spB')
        pro(npreA)
        A('s_branch L_spJ')
        A.label('L_spB')
        pro(npreB)
        A.label('L_spJ')
    for r in range(4):
        A(f'v_mov_b32 v{ACC + r}, 0')
    A(f'v_mov_b32 v{LS}, 0')
    A(f'v_mov_b32 v{M2}, {f32(-3.0e38)}')
    A(f's_mov_b32 s66, {f32(128 ** -0.5)}')
    A(f's_mov_b32 s67, {f32(LOG2E)}')
    A(f'v_lshrrev_b32 v{T0}, 3, v2')
    A(f'v_lshl_add_u32 v{T0}, v{T0}, 2, v3')
    A(f'v_lshlrev_b32 v{T0}, 14, v{T0}')
    A(f'v_and_b32 v{T1}, 7, v2')
    A(f'v_lshl_add_u32 v{PUB}, v{T1}, 4, v{T0}')
    A('s_lshl_b32 s68, s31, 17')
    A('s_lshl_b32 s64, s32, 2')
    A('s_add_u32 s64, s64, s37')
    A('s_lshl_b32 s65, s64, 3')
    A('s_add_u32 s69, s68, s65')
    A(f's_add_u32 s69, s69, {L1ML}')
    A('s_lshl_b32 s65, s64, 7')
    A('s_add_u32 s68, s68, s65')
    A(f'v_lshrrev_b32 v{T0}, 3, v2')
    A(f'v_lshlrev_b32 v{T0}, 8, v{T0}')
    A(f'v_lshl_add_u32 v{T0}, v3, 4, v{T0}')
    stampit(1)
    A('s_barrier')
    for s in range(4):
        A(f'ds_read_b128 v[{Q + 4 * s}:{Q + 4 * s + 3}], v{T0} offset:{64 * s}')
    stampit(2)
    A('s_waitcnt lgkmcnt(0)')

    def allred_g(op, v, t):
        for sw in ('v_permlane16_swap_b32', 'v_permlane32_swap_b32'):
            A(f'v_mov_b32 v{t}, v{v}')
            A.nop(2)
            A(f'{sw} v{v}, v{t}')
            A(f'{op} v{v}, v{v}, v{t}')

    def tile(slot, wk, wv, loads=True, last=False):
        A(f's_waitcnt vmcnt({wk})')
        for s in range(4):
            for u in range(2):
                k = kreg(slot, u, s)
                c = '0' if s == 0 else f'v[{S + 4 * u}:{S + 4 * u + 3}]'
                A(f'v_mfma_f32_16x16x32_bf16 v[{S + 4 * u}:{S + 4 * u + 3}], v[{k}:{k + 3}], v[{Q + 4 * s}:{Q + 4 * s + 3}], {c}')
        if loads:
            kloads(slot)
        else:
            A.nop(8)
        for n in range(8):
            A(f'v_cvt_pk_bf16_f32 v{S + n}, 0, v{S + n}')
        for n in range(8):
            A(f'v_mul_f32 v{S + n}, s66, v{S + n}')
        for n in range(8):
            A(f'v_cvt_pk_bf16_f32 v{S + n}, 0, v{S + n}')
        A(f'v_max3_f32 v{T0}, v{S}, v{S + 1}, v{S + 2}')
        A(f'v_max3_f32 v{T1}, v{S + 3}, v{S + 4}, v{S + 5}')
        A(f'v_max3_f32 v{T0}, v{T0}, v{S + 6}, v{S + 7}')
        A(f'v_max_f32 v{T0}, v{T0}, v{T1}')
        allred_g('v_max_f32', T0, T1)
        A(f'v_mul_f32 v{T0}, s67, v{T0}')
        A(f'v_max_f32 v{T0}, v{T0}, v{M2}')
        A(f'v_sub_f32 v{AL}, v{M2}, v{T0}')
        A(f'v_mov_b32 v{M2}, v{T0}')
        A(f'v_exp_f32 v{AL}, v{AL}')
        for n in range(8):
            A(f'v_fma_f32 v{S + n}, v{S + n}, s67, -v{M2}')
        for n in range(8):
            A(f'v_exp_f32 v{S + n}, v{S + n}')
        for r in range(4):
            A(f'v_mul_f32 v{ACC + r}, v{AL}, v{ACC + r}')
        A(f'v_fma_f32 v{LS}, v{LS}, v{AL}, v{S}')
        for n in range(4):
            A(f'v_cvt_pk_bf16_f32 v{PK + n}, v{S + 2 * n}, v{S + 2 * n + 1}')
        A(f'v_add_f32 v{T0}, v{S + 1}, v{S + 2}')
        A(f'v_add_f32 v{T1}, v{S + 3}, v{S + 4}')
        A(f'v_add_f32 v{LS}, v{LS}, v{S + 5}')
        A(f'v_add_f32 v{T0}, v{T0}, v{S + 6}')
        A(f'v_add_f32 v{T1}, v{T1}, v{S + 7}')
        A(f'v_add_f32 v{LS}, v{LS}, v{T0}')
        A(f'v_add_f32 v{LS}, v{LS}, v{T1}')
        extra = 0
        if last:
            allred_g('v_add_f32', LS, T1)
            stampit(3)
            A('s_barrier')
            A(f'v_min_u32 v{M2}, -2, v{M2}')
            A(f'v_min_u32 v{LS}, -2, v{LS}')
            A('s_mov_b32 exec_lo, 0x01010101')
            A('s_mov_b32 exec_hi, 0x01010101')
            A(f'buffer_store_dwordx2 v[{M2}:{M2 + 1}], v{PUB}, s[48:51], s69 offen sc1')
            A('s_mov_b64 exec, -1')
            extra = 1
        build_b(BS, PK, 0)
        if not last:
            A(f's_waitcnt vmcnt({wv})')
        for n in range(8):
            if n + 1 < 8:
                build_b(BS + 4 * ((n + 1) & 1), PK + (n + 1) // 2, (n + 1) & 1)
            else:
                A.nop(1)
            if last:
                A(f's_waitcnt vmcnt({7 - n + extra})')
            v = vreg(slot, n // 4, n % 4)
            b = BS + 4 * (n & 1)
            A(f'v_mfma_f32_16x16x32_bf16 v[{ACC}:{ACC + 3}], v[{v}:{v + 3}], v[{b}:{b + 3}], v[{ACC}:{ACC + 3}]')
        if loads:
            vloads(slot)

    A('s_mov_b32 s70, 10')
    A.label('L_sloop')
    tile(0, 40, 40)
    tile(1, 40, 40)
    A('s_sub_u32 s70, s70, 1')
    A('s_cmp_eq_u32 s70, 0')
    A('s_cbranch_scc1 L_stail')
    tile(2, 40, 40)
    A('s_branch L_sloop')
    A.label('L_stail')
    tile(2, 40, 32, loads=False)
    tile(0, 24, 16, loads=False)
    tile(1, 8, 0, loads=False, last=True)
    A.nop(8)
    for r in range(4):
        A(f'v_min_u32 v{ACC + r}, -2, v{ACC + r}')
    A(f'buffer_store_dwordx4 v[{ACC}:{ACC + 3}], v{PUB}, s[48:51], s68 offen sc1')
    stampit(4)
    stamp_store()
    A('s_endpgm')

    A.label('L_helper')
    A('s_setprio 2')
    HB = 48
    XNB = 64
    HACC = 100
    WQ = 104
    NS = 38
    X = 24
    HP = 32
    E = 200
    A('s_mul_i32 s64, s33, 1152')
    A('s_add_u32 s40, s4, s64')
    A('s_addc_u32 s41, s5, 0')
    A('s_mov_b32 s42, 1152')
    A('s_mov_b32 s43, 0x20000')
    A('v_lshlrev_b32 v4, 2, v1')
    for k in range(5):
        A(f'buffer_load_dword v{X + k}, v4, s[40:43], 0 offen offset:{256 * k}')
    A('s_mov_b32 s44, s10')
    A('s_mov_b32 s45, s11')
    A(f's_mov_b32 s46, {576 * 8192}')
    A('s_mov_b32 s47, 0x20000')
    A('v_lshrrev_b32 v5, 3, v2')
    A('v_lshl_add_u32 v5, v5, 2, v3')
    A(f's_mov_b32 s64, {72 * 8192}')
    A('v_mul_lo_u32 v6, v5, s64')
    A('v_and_b32 v7, 7, v2')
    A('v_lshl_add_u32 v6, v7, 4, v6')
    A('s_lshl_b32 s38, s34, 9')
    A('s_lshl_b32 s64, s30, 7')
    A('s_add_u32 s38, s38, s64')
    A('s_mov_b32 s72, -1')
    A('s_mov_b32 s73, 0')
    A('s_barrier')

    def wqload(t):
        r = WQ + (t % NS) * 4
        A(f'buffer_load_dwordx4 v[{r}:{r + 3}], v6, s[44:47], s38 offen {wqpol}')
        A('s_add_u32 s38, s38, 0x2000')

    for t in range(first_wq):
        wqload(t)

    def allred64(v, t):
        for m in ('quad_perm:[1,0,3,2]', 'quad_perm:[2,3,0,1]', 'row_half_mirror', 'row_mirror'):
            A.nop(2)
            A(f'v_add_f32_dpp v{v}, v{v}, v{v} {m} {DPP}')
        allred_g('v_add_f32', v, t)

    def layernorm(src, dst, E):
        D = E + 10
        a, b, c = E + 20, E + 21, E + 22
        for k in range(5):
            A(f'v_lshlrev_b32 v{E + 2 * k}, 16, v{src + k}')
            A(f'v_and_b32 v{E + 2 * k + 1}, 0xffff0000, v{src + k}')
        A(f'v_add_f32 v{a}, v{E}, v{E + 1}')
        A(f'v_add_f32 v{b}, v{E + 2}, v{E + 3}')
        for n in range(4, 10, 2):
            A(f'v_add_f32 v{a}, v{a}, v{E + n}')
            A(f'v_add_f32 v{b}, v{b}, v{E + n + 1}')
        A(f'v_add_f32 v{a}, v{a}, v{b}')
        allred64(a, b)
        A(f'v_mul_f32 v{a}, {f32(1.0 / 576)}, v{a}')
        for n in range(10):
            A(f'v_sub_f32 v{D + n}, v{E + n}, v{a}')
        A(f'v_cndmask_b32 v{D + 8}, 0, v{D + 8}, s[72:73]')
        A(f'v_cndmask_b32 v{D + 9}, 0, v{D + 9}, s[72:73]')
        A(f'v_mul_f32 v{b}, v{D}, v{D}')
        A(f'v_mul_f32 v{c}, v{D + 1}, v{D + 1}')
        for n in range(2, 10, 2):
            A(f'v_fmac_f32 v{b}, v{D + n}, v{D + n}')
            A(f'v_fmac_f32 v{c}, v{D + n + 1}, v{D + n + 1}')
        A(f'v_add_f32 v{b}, v{b}, v{c}')
        allred64(b, c)
        A(f'v_mul_f32 v{b}, {f32(1.0 / 576)}, v{b}')
        A(f'v_cvt_pk_bf16_f32 v{b}, 0, v{b}')
        A(f'v_add_f32 v{b}, {f32(1e-5)}, v{b}')
        A(f'v_cvt_pk_bf16_f32 v{b}, 0, v{b}')
        A(f'v_sqrt_f32 v{b}, v{b}')
        A(f'v_cvt_pk_bf16_f32 v{a}, 0, v{a}')
        A(f'v_cvt_pk_bf16_f32 v{b}, 0, v{b}')
        A(f'v_rcp_f32 v{b}, v{b}')
        for n in range(10):
            A(f'v_sub_f32 v{D + n}, v{E + n}, v{a}')
        for n in range(10):
            A(f'v_cvt_pk_bf16_f32 v{D + n}, 0, v{D + n}')
        for n in range(10):
            A(f'v_mul_f32 v{D + n}, v{D + n}, v{b}')
        for k in range(5):
            A(f'v_cvt_pk_bf16_f32 v{dst + k}, v{D + 2 * k}, v{D + 2 * k + 1}')
        A(f'v_cndmask_b32 v{dst + 4}, 0, v{dst + 4}, s[72:73]')

    A(f's_waitcnt vmcnt({first_wq})')
    layernorm(X, X, E)
    A('s_mul_i32 s64, s30, 1280')
    A('s_add_u32 s64, s64, 1024')
    A('v_add_u32 v8, s64, v4')
    for k in range(5):
        A(f'ds_write_b32 v8, v{X + k} offset:{256 * k}')
    A('v_mul_u32_u24 v9, 144, v5')
    A('v_add_u32 v9, s64, v9')
    A('s_waitcnt lgkmcnt(0)')
    for n in range(9):
        A(f'ds_read_b128 v[{XNB + 4 * n}:{XNB + 4 * n + 3}], v9 offset:{16 * n}')
    for t in range(first_wq, NS):
        wqload(t)
    A('s_waitcnt lgkmcnt(0)')
    build_b(HB, XNB, 0)
    for t in range(72):
        if t + 1 < 72:
            build_b(HB + 4 * ((t + 1) & 1), XNB + (t + 1) // 2, (t + 1) & 1)
        else:
            A.nop(1)
        issued = min(72, NS + t)
        A(f's_waitcnt vmcnt({issued - t - 1})')
        r = WQ + (t % NS) * 4
        b = HB + 4 * (t & 1)
        c = '0' if t == 0 else f'v[{HACC}:{HACC + 3}]'
        A(f'v_mfma_f32_16x16x32_bf16 v[{HACC}:{HACC + 3}], v[{r}:{r + 3}], v[{b}:{b + 3}], {c}')
        if t + NS < 72:
            wqload(t + NS)
            if t + NS == 71:
                stampit(1)
                A('s_barrier')
    A('v_lshlrev_b32 v10, 6, v3')
    A('v_lshl_add_u32 v10, v7, 1, v10')
    A('s_lshl_b32 s64, s30, 7')
    A('v_add_u32 v10, s64, v10')
    A.nop(4)
    for r in range(4):
        A(f'v_permlane32_swap_b32 v{HACC + r}, v{HB + r}')
    A.nop(1)
    for r in range(4):
        A(f'v_add_f32_dpp v{HACC + r}, v{HB + r}, v{HACC + r} row_ror:8 {DPP}')
    for r in range(4):
        A(f'v_cvt_pk_bf16_f32 v{HACC + r}, v{HACC + r}, v{HACC + r}')
    A('s_mov_b64 exec, 0x00ff00ff')
    for r in range(4):
        A(f'ds_write_b16 v10, v{HACC + r} offset:{16 * r}')
    A('s_mov_b64 exec, -1')
    A('s_waitcnt lgkmcnt(0)')
    stampit(2)
    A('s_barrier')

    A('s_mov_b32 s60, s26')
    A('s_mov_b32 s61, s27')
    A('s_mov_b32 s62, 256')
    A('s_mov_b32 s63, 0x20000')
    A('s_lshl_b32 s74, s36, 14')
    A('v_lshlrev_b32 v11, 4, v1')
    A('v_mov_b32 v12, 0')
    A('s_cmp_lg_u32 s30, 3')
    A('s_cbranch_scc1 L_noreset')
    for r in range(4):
        A(f'v_mov_b32 v{HB + r}, -1')
    for n in range(4):
        A(f'buffer_store_dwordx4 v[{HB}:{HB + 3}], v11, s[48:51], s74 offen offset:{1024 * n} sc1')
    A(f's_add_u32 s64, s74, {L1ML}')
    A('s_mov_b64 exec, 0xffff')
    A(f'buffer_store_dwordx4 v[{HB}:{HB + 3}], v11, s[48:51], s64 offen sc1')
    A('s_mov_b64 exec, -1')
    A('s_cmp_ge_u32 s35, 72')
    A('s_cbranch_scc1 L_reset_done')
    for reg in (L2A, L2B):
        A(f's_add_u32 s64, s74, {reg}')
        for n in range(4):
            A(f'buffer_store_dwordx4 v[{HB}:{HB + 3}], v11, s[48:51], s64 offen offset:{1024 * n} sc1')
    A.label('L_reset_done')
    A('v_mov_b32 v13, 1')
    A('s_waitcnt vmcnt(0)')
    A('s_mov_b64 exec, 1')
    A('buffer_atomic_add v13, v12, s[60:63], 0 offen sc1')
    A('s_mov_b64 exec, -1')
    A.label('L_noreset')

    WO = 104
    A('s_mov_b32 s52, s12')
    A('s_mov_b32 s53, s13')
    A(f's_mov_b32 s54, {4096 * 1152}')
    A('s_mov_b32 s55, 0x20000')
    A('v_mul_u32_u24 v13, 1152, v5')
    A('v_lshl_add_u32 v13, v7, 4, v13')
    A(f's_mul_i32 s64, s35, {32 * 1152}')
    A('s_lshl_b32 s65, s30, 8')
    A('s_add_u32 s65, s65, s64')
    for t in range(4):
        for bl in range(2):
            r = WO + bl * 16 + t * 4
            A(f'buffer_load_dwordx4 v[{r}:{r + 3}], v13, s[52:55], s65 offen offset:{128 * bl} {wopol}')
        if t < 3:
            A(f's_add_u32 s65, s65, {8 * 1152}')
    A('s_cmp_lg_u32 s30, 0')
    A('s_cbranch_scc1 L_nowo8')
    for t in range(4):
        r = WO + 32 + t * 4
        A(f'buffer_load_dwordx4 v[{r}:{r + 3}], v13, s[52:55], s64 offen offset:1024 {wopol}')
        if t < 3:
            A(f's_add_u32 s64, s64, {8 * 1152}')
    A.label('L_nowo8')

    layernorm(X, HP, E)
    A('s_mul_i32 s64, s30, 1280')
    A('s_add_u32 s64, s64, 6144')
    A('v_add_u32 v8, s64, v4')
    for k in range(5):
        A(f'ds_write_b32 v8, v{HP + k} offset:{256 * k}')
    A('s_mul_i32 s65, s30, 36')
    A('v_min_u32 v14, 35, v1')
    A('v_add_u32 v14, s65, v14')
    A('v_lshrrev_b32 v15, 3, v14')
    A('v_lshlrev_b32 v15, 6, v15')
    A('v_and_b32 v16, 7, v14')
    A('v_lshl_add_u32 v15, v16, 1, v15')
    A('v_add_u32 v15, s64, v15')
    H = 160
    BA = 164
    U = 168
    A('s_waitcnt lgkmcnt(0)')
    for r in range(4):
        A(f'ds_read_u16 v{H + r}, v15 offset:{16 * r}')
    c0 = -2.0 * math.sqrt(2.0 / math.pi) * LOG2E
    A(f'v_mov_b32 v{U + 16}, {f32(c0)}')
    A(f'v_mov_b32 v{U + 17}, {f32(c0 * 0.044715)}')
    for r in range(4):
        A(f'v_mov_b32 v{BA + r}, 0')
    A('s_mul_i32 s75, s35, 72')
    A('s_mov_b32 s70, 9')
    A('s_waitcnt lgkmcnt(0)')
    for r in range(4):
        A(f'v_lshlrev_b32 v{H + r}, 16, v{H + r}')
    A.label('L_bloop')
    A('s_load_dwordx2 s[76:77], s[16:17], s75')
    A('s_load_dwordx2 s[78:79], s[18:19], s75')
    A('s_load_dwordx2 s[80:81], s[20:21], s75')
    A('s_add_u32 s75, s75, 8')
    A('s_waitcnt lgkmcnt(0)')
    for f in range(4):
        for k, base in enumerate((76, 78, 80)):
            src = base + f // 2
            if f % 2 == 0:
                A(f's_lshl_b32 s{64 + k}, s{src}, 16')
            else:
                A(f's_and_b32 s{64 + k}, s{src}, 0xffff0000')
        for r in range(4):
            A(f'v_mul_f32 v{U + r}, s64, v{H + r}')
        for r in range(4):
            A(f'v_cvt_pk_bf16_f32 v{U + r}, 0, v{U + r}')
        for r in range(4):
            A(f'v_add_f32 v{U + r}, s65, v{U + r}')
        for r in range(4):
            A(f'v_cvt_pk_bf16_f32 v{U + r}, 0, v{U + r}')
        for r in range(4):
            A(f'v_mul_f32 v{U + 4 + r}, v{U + r}, v{U + r}')
        for r in range(4):
            A(f'v_fma_f32 v{U + 4 + r}, v{U + 4 + r}, v{U + 17}, v{U + 16}')
        for r in range(4):
            A(f'v_mul_f32 v{U + 4 + r}, v{U + 4 + r}, v{U + r}')
        for r in range(4):
            A(f'v_exp_f32 v{U + 4 + r}, v{U + 4 + r}')
        for r in range(4):
            A(f'v_add_f32 v{U + 4 + r}, 1.0, v{U + 4 + r}')
        for r in range(4):
            A(f'v_rcp_f32 v{U + 4 + r}, v{U + 4 + r}')
        for r in range(4):
            A(f'v_mul_f32 v{U + r}, v{U + r}, v{U + 4 + r}')
        for r in range(4):
            A(f'v_cvt_pk_bf16_f32 v{U + r}, 0, v{U + r}')
        for r in range(4):
            A(f'v_fmac_f32 v{BA + r}, s66, v{U + r}')
    A('s_sub_u32 s70, s70, 1')
    A('s_cmp_lg_u32 s70, 0')
    A('s_cbranch_scc1 L_bloop')
    for r in range(4):
        A(f'v_min_u32 v{BA + r}, -2, v{BA + r}')
    A('v_lshrrev_b32 v15, 1, v14')
    A('v_lshlrev_b32 v15, 14, v15')
    A('v_and_b32 v16, 1, v14')
    A('v_lshl_add_u32 v15, v16, 4, v15')
    A('s_lshl_b32 s82, s33, 21')
    A('s_lshl_b32 s64, s35, 5')
    A('s_add_u32 s82, s82, s64')
    A(f's_mov_b32 s70, {SPIN_MAX}')
    A.label('L_cnt')
    A('buffer_load_dword v17, v12, s[60:63], 0 offen sc1')
    A('s_waitcnt vmcnt(0)')
    A('v_readfirstlane_b32 s64, v17')
    A('s_sub_u32 s70, s70, 1')
    A('s_cmp_eq_u32 s70, 0')
    A('s_cbranch_scc1 L_cnt_done')
    A('s_cmp_ge_u32 s64, 256')
    A('s_cbranch_scc1 L_cnt_done')
    A('s_sleep 16')
    A('s_branch L_cnt')
    A.label('L_cnt_done')
    A(f's_add_u32 s64, s82, {L2B}')
    A('s_mov_b32 exec_lo, -1')
    A('s_mov_b32 exec_hi, 0xf')
    A(f'buffer_store_dwordx4 v[{BA}:{BA + 3}], v15, s[48:51], s64 offen sc1')
    A('s_mov_b64 exec, -1')

    G = 176
    FB, FX, FO = 192, 193, 194

    def gather128(reg_off, lab, sleep):
        A(f's_add_u32 s64, s74, {reg_off}')
        A(f's_mov_b32 s70, {SPIN_MAX}')
        A.label(lab)
        for k in range(4):
            A(f'buffer_load_dwordx4 v[{G + 4 * k}:{G + 4 * k + 3}], v11, s[48:51], s64 offen offset:{1024 * k} sc1')
        A('s_sub_u32 s70, s70, 1')
        A('s_cmp_eq_u32 s70, 0')
        A('s_waitcnt vmcnt(0)')
        A(f's_cbranch_scc1 {lab}_done')
        A(f'v_max3_u32 v17, v{G}, v{G + 1}, v{G + 2}')
        A(f'v_max3_u32 v18, v{G + 3}, v{G + 4}, v{G + 5}')
        for n in range(6, 14, 4):
            A(f'v_max3_u32 v17, v17, v{G + n}, v{G + n + 1}')
            A(f'v_max3_u32 v18, v18, v{G + n + 2}, v{G + n + 3}')
        A(f'v_max3_u32 v17, v17, v{G + 14}, v{G + 15}')
        A('v_max_u32 v17, v17, v18')
        A('v_cmp_eq_u32 vcc, -1, v17')
        A(f's_cbranch_vccz {lab}_done')
        if sleep:
            A(f's_sleep {sleep}')
        A(f's_branch {lab}')
        A.label(lab + '_done')
        for r in range(4):
            A(f'v_add_f32 v{G + r}, v{G + r}, v{G + 4 + r}')
            A(f'v_add_f32 v{G + 8 + r}, v{G + 8 + r}, v{G + 12 + r}')
        for r in range(4):
            A(f'v_add_f32 v{G + r}, v{G + r}, v{G + 8 + r}')
        A.nop(1)
        A(f'v_permlane32_swap_b32 v{G}, v{G + 1}')
        A(f'v_permlane32_swap_b32 v{G + 2}, v{G + 3}')
        A(f'v_add_f32 v{G}, v{G}, v{G + 1}')
        A(f'v_add_f32 v{G + 2}, v{G + 2}, v{G + 3}')
        A.nop(2)
        A(f'v_permlane16_swap_b32 v{G}, v{G + 2}')
        A(f'v_add_f32 v{G}, v{G}, v{G + 2}')
        for sh in (8, 4, 2):
            A.nop(2)
            A(f'v_add_f32_dpp v{G}, v{G}, v{G} row_ror:{sh} {DPP}')

    A('s_mov_b32 s83, 0')
    A('s_cmp_lg_u32 s30, 1')
    A('s_cbranch_scc1 L_nofin1')
    A('s_cmp_ge_u32 s35, 72')
    A('s_cbranch_scc1 L_nofin1')
    A('s_mov_b32 s83, 1')
    A('v_and_b32 v17, 1, v3')
    A('v_lshrrev_b32 v18, 1, v3')
    A('v_lshl_add_u32 v17, v17, 1, v18')
    A('v_and_b32 v18, 1, v1')
    A('v_lshl_add_u32 v17, v17, 3, v18')
    A('s_lshr_b32 s64, s35, 2')
    A('s_lshl_b32 s64, s64, 5')
    A('s_and_b32 s65, s35, 3')
    A('s_lshl_b32 s65, s65, 1')
    A('s_add_u32 s64, s64, s65')
    A('v_add_u32 v17, s64, v17')
    A(f'v_lshlrev_b32 v{FO}, 1, v17')
    A(f'buffer_load_ushort v{FX}, v{FO}, s[40:43], 0 offen')
    A(f'global_load_ushort v{FB}, v12, s[22:23]')
    gather128(L2B, 'L_gb', 32)
    A(f'v_lshlrev_b32 v{FX}, 16, v{FX}')
    A(f'v_lshlrev_b32 v{FB}, 16, v{FB}')
    A(f'v_cvt_pk_bf16_f32 v{G}, 0, v{G}')
    A(f'v_add_f32 v{FB}, v{G}, v{FB}')
    A(f'v_cvt_pk_bf16_f32 v{FB}, 0, v{FB}')
    A.label('L_nofin1')
    A('s_mul_i32 s64, s33, 1152')
    A('s_add_u32 s56, s24, s64')
    A('s_addc_u32 s57, s25, 0')
    A('s_mov_b32 s58, 1152')
    A('s_mov_b32 s59, 0x20000')
    A('v_lshlrev_b32 v19, 9, v7')
    A('v_lshl_add_u32 v19, v5, 4, v19')
    A('v_lshlrev_b32 v20, 5, v7')
    A(f's_add_u32 s75, s74, {L1ML}')
    A('v_lshrrev_b32 v21, 1, v7')
    A('v_lshl_add_u32 v21, v3, 2, v21')
    A('v_lshlrev_b32 v21, 14, v21')
    A('v_and_b32 v22, 1, v2')
    A('v_lshl_add_u32 v21, v22, 4, v21')
    A(f's_add_u32 s82, s82, {L2A}')
    A('s_lshl_b32 s64, s30, 18')
    A('s_add_u32 s76, s82, s64')
    A(f's_add_u32 s77, s82, {64 * INBOX}')
    A('s_waitcnt vmcnt(0)')
    stampit(3)
    A('s_barrier')

    O = 200
    ML = 216
    W = 224
    A(f's_mov_b32 s70, {SPIN_MAX}')
    A.label('L_p1')
    for n in range(2):
        A(f'buffer_load_dwordx4 v[{ML + 4 * n}:{ML + 4 * n + 3}], v20, s[48:51], s75 offen offset:{16 * n} sc1')
    for n in range(4):
        A(f'buffer_load_dwordx4 v[{O + 4 * n}:{O + 4 * n + 3}], v19, s[48:51], s74 offen offset:{128 * n} sc1')
    A('s_sub_u32 s70, s70, 1')
    A('s_cmp_eq_u32 s70, 0')
    A('s_waitcnt vmcnt(0)')
    A('s_cbranch_scc1 L_p1_done')
    A(f'v_max3_u32 v17, v{O}, v{O + 1}, v{O + 2}')
    A(f'v_max3_u32 v18, v{O + 3}, v{O + 4}, v{O + 5}')
    for n in range(6, 22, 4):
        A(f'v_max3_u32 v17, v17, v{O + n}, v{O + n + 1}')
        A(f'v_max3_u32 v18, v18, v{O + n + 2}, v{O + n + 3}')
    A(f'v_max3_u32 v17, v17, v{O + 22}, v{O + 23}')
    A('v_max_u32 v17, v17, v18')
    A('v_cmp_eq_u32 vcc, -1, v17')
    A('s_cbranch_vccnz L_p1')
    A.label('L_p1_done')
    stampit(4)
    A(f'v_max_f32 v17, v{ML}, v{ML + 2}')
    A(f'v_max3_f32 v17, v17, v{ML + 4}, v{ML + 6}')
    for m in ('quad_perm:[1,0,3,2]', 'quad_perm:[2,3,0,1]', 'row_half_mirror'):
        A.nop(2)
        A(f'v_max_f32_dpp v17, v17, v17 {m} {DPP}')
    for n in range(4):
        A(f'v_sub_f32 v{W + n}, v{ML + 2 * n}, v17')
    for n in range(4):
        A(f'v_exp_f32 v{W + n}, v{W + n}')
    R = W + 4
    A(f'v_mul_f32 v{R + 4}, v{W}, v{ML + 1}')
    for t in range(4):
        A(f'v_mul_f32 v{R + t}, v{W}, v{O + t}')
    for n in range(1, 4):
        A(f'v_fmac_f32 v{R + 4}, v{W + n}, v{ML + 2 * n + 1}')
        for t in range(4):
            A(f'v_fmac_f32 v{R + t}, v{W + n}, v{O + 4 * n + t}')
    for m in ('quad_perm:[1,0,3,2]', 'quad_perm:[2,3,0,1]', 'row_half_mirror'):
        for q in (4, 0, 1, 2, 3):
            A(f'v_add_f32_dpp v{R + q}, v{R + q}, v{R + q} {m} {DPP}')
    A(f'v_rcp_f32 v{R + 4}, v{R + 4}')
    A.nop(1)
    for t in range(4):
        A(f'v_mul_f32 v{R + t}, v{R + t}, v{R + 4}')
    A(f'v_cvt_pk_bf16_f32 v{W}, v{R}, v{R + 1}')
    A(f'v_cvt_pk_bf16_f32 v{W + 1}, v{R + 2}, v{R + 3}')
    for t in range(4):
        build_b(HB + 4 * t, W + t // 2, t & 1)
    DX, DY, DZ = 236, 240, 244
    A.nop(1)
    for t in range(4):
        for bl, D in ((0, DX), (1, DY)):
            r = WO + bl * 16 + t * 4
            c = '0' if t == 0 else f'v[{D}:{D + 3}]'
            A(f'v_mfma_f32_16x16x32_bf16 v[{D}:{D + 3}], v[{r}:{r + 3}], v[{HB + 4 * t}:{HB + 4 * t + 3}], {c}')
    A('s_cmp_lg_u32 s30, 0')
    A('s_cbranch_scc1 L_nob8a')
    for t in range(4):
        r = WO + 32 + t * 4
        c = '0' if t == 0 else f'v[{DZ}:{DZ + 3}]'
        A(f'v_mfma_f32_16x16x32_bf16 v[{DZ}:{DZ + 3}], v[{r}:{r + 3}], v[{HB + 4 * t}:{HB + 4 * t + 3}], {c}')
    A.label('L_nob8a')
    A.nop(8)
    for r in range(4):
        A(f'v_permlane32_swap_b32 v{DX + r}, v{DY + r}')
    A.nop(1)
    for r in range(4):
        A(f'v_add_f32_dpp v{DX + r}, v{DY + r}, v{DX + r} row_ror:8 {DPP}')
    for r in range(4):
        A(f'v_min_u32 v{DX + r}, -2, v{DX + r}')
    A('s_mov_b32 exec_lo, 0x00ff00ff')
    A('s_mov_b32 exec_hi, 0x00ff00ff')
    A(f'buffer_store_dwordx4 v[{DX}:{DX + 3}], v21, s[48:51], s76 offen sc1')
    A('s_mov_b64 exec, -1')
    A('s_cmp_lg_u32 s30, 0')
    A('s_cbranch_scc1 L_nob8b')
    for r in range(4):
        A(f'v_permlane32_swap_b32 v{DZ + r}, v{DY + r}')
    A.nop(1)
    for r in range(4):
        A(f'v_add_f32_dpp v{DZ + r}, v{DY + r}, v{DZ + r} row_ror:8 {DPP}')
    for r in range(4):
        A(f'v_min_u32 v{DZ + r}, -2, v{DZ + r}')
    A('s_mov_b64 exec, 0x00ff00ff')
    A(f'buffer_store_dwordx4 v[{DZ}:{DZ + 3}], v21, s[48:51], s77 offen sc1')
    A('s_mov_b64 exec, -1')
    A.label('L_nob8b')
    stampit(5)
    A('s_cmp_eq_u32 s83, 0')
    A('s_cbranch_scc1 L_hend')
    gather128(L2A, 'L_ga', 0)
    A(f'v_cvt_pk_bf16_f32 v{G}, 0, v{G}')
    A(f'v_add_f32 v{G}, v{FX}, v{G}')
    A(f'v_cvt_pk_bf16_f32 v{G}, 0, v{G}')
    A(f'v_add_f32 v{G}, v{G}, v{FB}')
    A(f'v_cvt_pk_bf16_f32 v{G}, v{G}, v{G}')
    A('s_mov_b32 exec_lo, 0x00030003')
    A('s_mov_b32 exec_hi, 0x00030003')
    A(f'buffer_store_short v{G}, v{FO}, s[56:59], 0 offen')
    A('s_mov_b64 exec, -1')
    stampit(6)
    A.label('L_hend')
    stamp_store()
    A.label('L_end')
    A('s_endpgm')
    A.L.append('.section .rodata,"a"')
    A.L.append('.p2align 6')
    A.L.append(f'.amdhsa_kernel {KN}_kernel')
    A('.amdhsa_next_free_vgpr 256')
    A('.amdhsa_next_free_sgpr 102')
    A('.amdhsa_accum_offset 256')
    A('.amdhsa_group_segment_fixed_size 0')
    A('.amdhsa_kernarg_size 104')
    A('.amdhsa_user_sgpr_count 2')
    A('.amdhsa_user_sgpr_kernarg_segment_ptr 1')
    A('.amdhsa_system_sgpr_workgroup_id_x 1')
    A.L.append('.end_amdhsa_kernel')
    return A.text()


if __name__ == '__main__':
    out = sys.argv[1] if len(sys.argv) > 1 else 'cdna_kernels/' + KN + '.s'
    kw = {}
    for a in sys.argv[2:]:
        k, v = a.split('=')
        kw[k] = int(v) if v.lstrip('-').isdigit() else v
    open(out, 'w').write(gen(**kw))
    print('wrote', out)
```

```python
import struct, sys, math

KN = 'parallel_sum__gqa_block_cached__mixer_token_mlp__decode'


def f32(x):
    return '0x%08x' % struct.unpack('<I', struct.pack('<f', x))[0]


HEADER = open('cdna_kernels/' + KN + '.s.ref').read().split('; Override launch')[0]

LOG2E = 1.4426950408889634
INBOX = 16384
L1ML = 4096
L2A = 8192
L2B = 12288
STAMP_OFF = 8 << 20
SPIN_MAX = 200000


class Asm:
    def __init__(self):
        self.L = []

    def __call__(self, s):
        self.L.append('  ' + s)

    def label(self, s):
        self.L.append(s + ':')

    def nop(self, n):
        while n > 0:
            k = min(n, 16)
            self('s_nop %d' % (k - 1))
            n -= k

    def text(self):
        return '\n'.join(self.L) + '\n'


DPP = 'row_mask:0xf bank_mask:0xf'


def gen(npreA=0, npreB=4, wgmap='xcd', kvpol='nt', wqpol='nt', wopol='nt', stamp=False, first_wq=16, psleep=0, prog=False):
    A = Asm()
    A.L.append(HEADER.rstrip('\n'))
    A.L.append('; @launch grid=(256,1,1) block=(512,1,1) lds=12288')
    A.L.append('.amdgcn_target "amdgcn-amd-amdhsa--gfx950"')
    A.L.append('.text')
    A.L.append(f'.globl {KN}_kernel')
    A.L.append('.p2align 8')
    A.L.append(f'.type {KN}_kernel,@function')
    A.label(f'{KN}_kernel')

    nstamp = [0]

    def stampit(k):
        if stamp:
            A(f's_memrealtime s[{84 + 2 * k}:{85 + 2 * k}]')

    def stamp_store():
        if not stamp:
            return
        A('s_waitcnt lgkmcnt(0) vmcnt(0)')
        A('s_getreg_b32 s64, hwreg(HW_REG_XCC_ID)')
        A('s_lshl_b32 s65, s2, 3')
        A('s_add_u32 s65, s65, s30')
        A('s_lshl_b32 s65, s65, 5')
        A(f's_add_u32 s65, s65, {STAMP_OFF}')
        A('s_mov_b64 exec, 1')
        A('v_mov_b32 v4, 0')
        for k in range(7):
            A(f'v_mov_b32 v5, s{84 + 2 * k}')
            A(f'buffer_store_dword v5, v4, s[48:51], s65 offen offset:{4 * k}')
        A('v_mov_b32 v5, s64')
        A(f'buffer_store_dword v5, v4, s[48:51], s65 offen offset:28')
        A('s_waitcnt vmcnt(0)')

    A('s_cmp_ge_u32 s2, 256')
    A('s_cbranch_scc1 L_end')
    if stamp:
        for k in range(7):
            A(f's_mov_b64 s[{84 + 2 * k}:{85 + 2 * k}], 0')
    stampit(0)
    A('s_load_dwordx16 s[4:19], s[0:1], 0')
    A('s_load_dwordx8 s[20:27], s[0:1], 64')
    A('s_load_dwordx2 s[28:29], s[0:1], 96')
    A('v_lshrrev_b32 v1, 6, v0')
    A('v_and_b32 v2, 15, v0')
    A('v_readfirstlane_b32 s30, v1')
    A('v_and_b32 v1, 63, v0')
    A('v_lshrrev_b32 v3, 4, v1')
    if wgmap == 'xcd':
        A('s_and_b32 s31, s2, 7')
        A('s_lshr_b32 s64, s2, 3')
        A('s_and_b32 s32, s64, 7')
        A('s_and_b32 s64, s64, 24')
        A('s_add_u32 s31, s31, s64')
    else:
        A('s_lshr_b32 s31, s2, 3')
        A('s_and_b32 s32, s2, 7')
    A('s_lshr_b32 s33, s31, 4')
    A('s_and_b32 s34, s31, 15')
    A('s_lshl_b32 s35, s34, 3')
    A('s_add_u32 s35, s35, s32')
    A('s_lshl_b32 s36, s31, 3')
    A('s_add_u32 s36, s36, s32')
    SELH, SELS = 32, 40
    SEL = 40
    A('v_and_b32 v4, 7, v2')
    A('v_lshrrev_b32 v5, 1, v4')
    A('v_and_b32 v6, 1, v4')
    A('v_mov_b32 v7, 0x0c0c0100')
    A('v_mov_b32 v8, 0x01000c0c')
    A('v_cmp_eq_u32 vcc, 1, v6')
    A('v_mov_b32 v9, 0x0c0c0302')
    A('v_mov_b32 v10, 0x03020c0c')
    A('v_cndmask_b32 v7, v7, v8, vcc')
    A('v_cndmask_b32 v9, v9, v10, vcc')
    A('v_mov_b32 v8, 0x0c0c0c0c')
    for d in range(4):
        A(f'v_cmp_eq_u32 vcc, {d}, v5')
        A.nop(2)
        A(f'v_cndmask_b32 v{SEL + d}, v8, v7, vcc')
        A(f'v_cndmask_b32 v{SEL + 4 + d}, v8, v9, vcc')
    A('s_waitcnt lgkmcnt(0)')
    A('s_mov_b32 s48, s28')
    A('s_mov_b32 s49, s29')
    A(f's_mov_b32 s50, {(STAMP_OFF + 131072) if stamp else 256 * INBOX}')
    A('s_mov_b32 s51, 0x20000')
    A('s_cmp_lt_u32 s30, 4')
    A('s_cbranch_scc1 L_helper')

    def build_b(dst, src, odd):
        for d in range(4):
            A(f'v_perm_b32 v{dst + d}, v{src}, v{src}, v{SEL + 4 * odd + d}')

    RING = 64
    Q = 48
    BS = 32
    S = 24
    ACC = 20
    PK = 16
    VK0, VK1, VV0, VV1 = 12, 13, 14, 15
    M2, LS, AL, T0, T1, PUB = 4, 5, 6, 7, 8, 9
    A('s_sub_u32 s37, s30, 4')
    A('s_lshl_b32 s64, s36, 20')
    A('s_add_u32 s40, s6, s64')
    A('s_addc_u32 s41, s7, 0')
    A('s_mov_b32 s42, 0x100000')
    A('s_mov_b32 s43, 0x20000')
    A('s_add_u32 s44, s8, s64')
    A('s_addc_u32 s45, s9, 0')
    A('s_mov_b32 s46, 0x100000')
    A('s_mov_b32 s47, 0x20000')
    A('s_lshl_b32 s38, s37, 13')
    A('s_mov_b32 s39, s38')
    A(f'v_and_b32 v{T0}, 3, v2')
    A(f'v_lshlrev_b32 v{T0}, 10, v{T0}')
    A(f'v_lshrrev_b32 v{T1}, 2, v2')
    A(f'v_lshl_add_u32 v{T0}, v{T1}, 8, v{T0}')
    A(f'v_lshl_add_u32 v{VK0}, v3, 4, v{T0}')
    A(f'v_add_u32 v{VK1}, 0x1000, v{VK0}')
    A(f'v_lshlrev_b32 v{VV0}, 4, v1')
    A(f'v_add_u32 v{VV1}, 0x1000, v{VV0}')

    def kreg(slot, u, s):
        return RING + slot * 64 + (u * 4 + s) * 4

    def vreg(slot, u, r):
        return RING + slot * 64 + 32 + (u * 4 + r) * 4

    def kloads(slot):
        for u in range(2):
            for s in range(4):
                r = kreg(slot, u, s)
                A(f'buffer_load_dwordx4 v[{r}:{r + 3}], v{VK0 + u}, s[40:43], s38 offen offset:{s * 64} {kvpol}')
        A('s_add_u32 s38, s38, 0x8000')

    def vloads(slot):
        for u in range(2):
            for rr in range(4):
                r = vreg(slot, u, rr)
                A(f'buffer_load_dwordx4 v[{r}:{r + 3}], v{VV0 + u}, s[44:47], s39 offen offset:{rr * 1024} {kvpol}')
        A('s_add_u32 s39, s39, 0x8000')

    def ring_part(lo, hi):
        for n in range(lo, hi):
            (kloads if n % 2 == 0 else vloads)(n // 2)

    def pro(npre):
        ring_part(0, npre)
        A('s_barrier')
        A('s_barrier')
        ring_part(npre, 6)

    if npreA == npreB:
        pro(npreA)
    else:
        A('s_bitcmp1_b32 s2, 3')
        A('s_cbranch_scc1 L_spB')
        pro(npreA)
        A('s_branch L_spJ')
        A.label('L_spB')
        pro(npreB)
        A.label('L_spJ')
    for r in range(4):
        A(f'v_mov_b32 v{ACC + r}, 0')
    A(f'v_mov_b32 v{LS}, 0')
    A(f'v_mov_b32 v{M2}, {f32(-3.0e38)}')
    A(f's_mov_b32 s66, {f32(128 ** -0.5)}')
    A(f's_mov_b32 s67, {f32(LOG2E)}')
    A(f'v_lshrrev_b32 v{T0}, 3, v2')
    A(f'v_lshl_add_u32 v{T0}, v{T0}, 2, v3')
    A(f'v_lshlrev_b32 v{T0}, 14, v{T0}')
    A(f'v_and_b32 v{T1}, 7, v2')
    A(f'v_lshl_add_u32 v{PUB}, v{T1}, 4, v{T0}')
    A('s_lshl_b32 s68, s31, 17')
    A('s_lshl_b32 s64, s32, 2')
    A('s_add_u32 s64, s64, s37')
    A('s_lshl_b32 s65, s64, 3')
    A('s_add_u32 s69, s68, s65')
    A(f's_add_u32 s69, s69, {L1ML}')
    A('s_lshl_b32 s65, s64, 7')
    A('s_add_u32 s68, s68, s65')
    A(f'v_lshrrev_b32 v{T0}, 3, v2')
    A(f'v_lshlrev_b32 v{T0}, 8, v{T0}')
    A(f'v_lshl_add_u32 v{T0}, v3, 4, v{T0}')
    stampit(1)
    A('s_barrier')
    for s in range(4):
        A(f'ds_read_b128 v[{Q + 4 * s}:{Q + 4 * s + 3}], v{T0} offset:{64 * s}')
    stampit(2)
    A('s_waitcnt lgkmcnt(0)')

    def allred_g(op, v, t):
        for sw in ('v_permlane16_swap_b32', 'v_permlane32_swap_b32'):
            A(f'v_mov_b32 v{t}, v{v}')
            A.nop(2)
            A(f'{sw} v{v}, v{t}')
            A(f'{op} v{v}, v{v}, v{t}')

    def tile(slot, wk, wv, loads=True, last=False):
        A(f's_waitcnt vmcnt({wk})')
        for s in range(4):
            for u in range(2):
                k = kreg(slot, u, s)
                c = '0' if s == 0 else f'v[{S + 4 * u}:{S + 4 * u + 3}]'
                A(f'v_mfma_f32_16x16x32_bf16 v[{S + 4 * u}:{S + 4 * u + 3}], v[{k}:{k + 3}], v[{Q + 4 * s}:{Q + 4 * s + 3}], {c}')
        if loads:
            kloads(slot)
        else:
            A.nop(8)
        for n in range(8):
            A(f'v_cvt_pk_bf16_f32 v{S + n}, 0, v{S + n}')
        for n in range(8):
            A(f'v_mul_f32 v{S + n}, s66, v{S + n}')
        for n in range(8):
            A(f'v_cvt_pk_bf16_f32 v{S + n}, 0, v{S + n}')
        A(f'v_max3_f32 v{T0}, v{S}, v{S + 1}, v{S + 2}')
        A(f'v_max3_f32 v{T1}, v{S + 3}, v{S + 4}, v{S + 5}')
        A(f'v_max3_f32 v{T0}, v{T0}, v{S + 6}, v{S + 7}')
        A(f'v_max_f32 v{T0}, v{T0}, v{T1}')
        allred_g('v_max_f32', T0, T1)
        A(f'v_mul_f32 v{T0}, s67, v{T0}')
        A(f'v_max_f32 v{T0}, v{T0}, v{M2}')
        A(f'v_sub_f32 v{AL}, v{M2}, v{T0}')
        A(f'v_mov_b32 v{M2}, v{T0}')
        A(f'v_exp_f32 v{AL}, v{AL}')
        for n in range(8):
            A(f'v_fma_f32 v{S + n}, v{S + n}, s67, -v{M2}')
        for n in range(8):
            A(f'v_exp_f32 v{S + n}, v{S + n}')
        for r in range(4):
            A(f'v_mul_f32 v{ACC + r}, v{AL}, v{ACC + r}')
        A(f'v_fma_f32 v{LS}, v{LS}, v{AL}, v{S}')
        for n in range(4):
            A(f'v_cvt_pk_bf16_f32 v{PK + n}, v{S + 2 * n}, v{S + 2 * n + 1}')
        A(f'v_add_f32 v{T0}, v{S + 1}, v{S + 2}')
        A(f'v_add_f32 v{T1}, v{S + 3}, v{S + 4}')
        A(f'v_add_f32 v{LS}, v{LS}, v{S + 5}')
        A(f'v_add_f32 v{T0}, v{T0}, v{S + 6}')
        A(f'v_add_f32 v{T1}, v{T1}, v{S + 7}')
        A(f'v_add_f32 v{LS}, v{LS}, v{T0}')
        A(f'v_add_f32 v{LS}, v{LS}, v{T1}')
        extra = 0
        if last:
            allred_g('v_add_f32', LS, T1)
            stampit(3)
            A('s_barrier')
            A(f'v_min_u32 v{M2}, -2, v{M2}')
            A(f'v_min_u32 v{LS}, -2, v{LS}')
            A('s_mov_b32 exec_lo, 0x01010101')
            A('s_mov_b32 exec_hi, 0x01010101')
            A(f'buffer_store_dwordx2 v[{M2}:{M2 + 1}], v{PUB}, s[48:51], s69 offen sc1')
            A('s_mov_b64 exec, -1')
            extra = 1
        build_b(BS, PK, 0)
        if not last:
            A(f's_waitcnt vmcnt({wv})')
        for n in range(8):
            if n + 1 < 8:
                build_b(BS + 4 * ((n + 1) & 1), PK + (n + 1) // 2, (n + 1) & 1)
            else:
                A.nop(1)
            if last:
                A(f's_waitcnt vmcnt({7 - n + extra})')
            v = vreg(slot, n // 4, n % 4)
            b = BS + 4 * (n & 1)
            A(f'v_mfma_f32_16x16x32_bf16 v[{ACC}:{ACC + 3}], v[{v}:{v + 3}], v[{b}:{b + 3}], v[{ACC}:{ACC + 3}]')
        if loads:
            vloads(slot)

    A('s_mov_b32 s70, 10')
    A.label('L_sloop')
    if prog:
        A('s_memrealtime s[98:99]')
        A('s_waitcnt lgkmcnt(0)')
        A('v_writelane_b32 v10, s98, s70')
    tile(0, 40, 40)
    tile(1, 40, 40)
    A('s_sub_u32 s70, s70, 1')
    A('s_cmp_eq_u32 s70, 0')
    A('s_cbranch_scc1 L_stail')
    tile(2, 40, 40)
    A('s_branch L_sloop')
    A.label('L_stail')
    tile(2, 40, 32, loads=False)
    tile(0, 24, 16, loads=False)
    tile(1, 8, 0, loads=False, last=True)
    A.nop(8)
    for r in range(4):
        A(f'v_min_u32 v{ACC + r}, -2, v{ACC + r}')
    A(f'buffer_store_dwordx4 v[{ACC}:{ACC + 3}], v{PUB}, s[48:51], s68 offen sc1')
    stampit(4)
    if prog:
        A('s_lshl_b32 s65, s2, 2')
        A('s_add_u32 s65, s65, s37')
        A('s_lshl_b32 s65, s65, 6')
        A(f's_add_u32 s65, s65, {STAMP_OFF + 65536}')
        A('v_lshlrev_b32 v11, 2, v1')
        A('s_mov_b64 exec, 0xffff')
        A('buffer_store_dword v10, v11, s[48:51], s65 offen')
        A('s_mov_b64 exec, -1')
    stamp_store()
    A('s_endpgm')

    A.label('L_helper')
    A('s_setprio 2')
    HB = 48
    XNB = 64
    HACC = 100
    WQ = 104
    NS = 38
    X = 24
    HP = 32
    E = 200
    A('s_mul_i32 s64, s33, 1152')
    A('s_add_u32 s40, s4, s64')
    A('s_addc_u32 s41, s5, 0')
    A('s_mov_b32 s42, 1152')
    A('s_mov_b32 s43, 0x20000')
    A('v_lshlrev_b32 v4, 2, v1')
    for k in range(5):
        A(f'buffer_load_dword v{X + k}, v4, s[40:43], 0 offen offset:{256 * k}')
    A('s_mov_b32 s44, s10')
    A('s_mov_b32 s45, s11')
    A(f's_mov_b32 s46, {576 * 8192}')
    A('s_mov_b32 s47, 0x20000')
    A('v_lshrrev_b32 v5, 3, v2')
    A('v_lshl_add_u32 v5, v5, 2, v3')
    A(f's_mov_b32 s64, {72 * 8192}')
    A('v_mul_lo_u32 v6, v5, s64')
    A('v_and_b32 v7, 7, v2')
    A('v_lshl_add_u32 v6, v7, 4, v6')
    A('s_lshl_b32 s38, s34, 9')
    A('s_lshl_b32 s64, s30, 7')
    A('s_add_u32 s38, s38, s64')
    A('s_mov_b32 s72, -1')
    A('s_mov_b32 s73, 0')
    A('s_barrier')

    def wqload(t):
        r = WQ + (t % NS) * 4
        A(f'buffer_load_dwordx4 v[{r}:{r + 3}], v6, s[44:47], s38 offen {wqpol}')
        A('s_add_u32 s38, s38, 0x2000')

    for t in range(first_wq):
        wqload(t)

    def allred64(v, t):
        for m in ('quad_perm:[1,0,3,2]', 'quad_perm:[2,3,0,1]', 'row_half_mirror', 'row_mirror'):
            A.nop(2)
            A(f'v_add_f32_dpp v{v}, v{v}, v{v} {m} {DPP}')
        allred_g('v_add_f32', v, t)

    def layernorm(src, dst, E):
        D = E + 10
        a, b, c = E + 20, E + 21, E + 22
        for k in range(5):
            A(f'v_lshlrev_b32 v{E + 2 * k}, 16, v{src + k}')
            A(f'v_and_b32 v{E + 2 * k + 1}, 0xffff0000, v{src + k}')
        A(f'v_add_f32 v{a}, v{E}, v{E + 1}')
        A(f'v_add_f32 v{b}, v{E + 2}, v{E + 3}')
        for n in range(4, 10, 2):
            A(f'v_add_f32 v{a}, v{a}, v{E + n}')
            A(f'v_add_f32 v{b}, v{b}, v{E + n + 1}')
        A(f'v_add_f32 v{a}, v{a}, v{b}')
        allred64(a, b)
        A(f'v_mul_f32 v{a}, {f32(1.0 / 576)}, v{a}')
        for n in range(10):
            A(f'v_sub_f32 v{D + n}, v{E + n}, v{a}')
        A(f'v_cndmask_b32 v{D + 8}, 0, v{D + 8}, s[72:73]')
        A(f'v_cndmask_b32 v{D + 9}, 0, v{D + 9}, s[72:73]')
        A(f'v_mul_f32 v{b}, v{D}, v{D}')
        A(f'v_mul_f32 v{c}, v{D + 1}, v{D + 1}')
        for n in range(2, 10, 2):
            A(f'v_fmac_f32 v{b}, v{D + n}, v{D + n}')
            A(f'v_fmac_f32 v{c}, v{D + n + 1}, v{D + n + 1}')
        A(f'v_add_f32 v{b}, v{b}, v{c}')
        allred64(b, c)
        A(f'v_mul_f32 v{b}, {f32(1.0 / 576)}, v{b}')
        A(f'v_cvt_pk_bf16_f32 v{b}, 0, v{b}')
        A(f'v_add_f32 v{b}, {f32(1e-5)}, v{b}')
        A(f'v_cvt_pk_bf16_f32 v{b}, 0, v{b}')
        A(f'v_sqrt_f32 v{b}, v{b}')
        A(f'v_cvt_pk_bf16_f32 v{a}, 0, v{a}')
        A(f'v_cvt_pk_bf16_f32 v{b}, 0, v{b}')
        A(f'v_rcp_f32 v{b}, v{b}')
        for n in range(10):
            A(f'v_sub_f32 v{D + n}, v{E + n}, v{a}')
        for n in range(10):
            A(f'v_cvt_pk_bf16_f32 v{D + n}, 0, v{D + n}')
        for n in range(10):
            A(f'v_mul_f32 v{D + n}, v{D + n}, v{b}')
        for k in range(5):
            A(f'v_cvt_pk_bf16_f32 v{dst + k}, v{D + 2 * k}, v{D + 2 * k + 1}')
        A(f'v_cndmask_b32 v{dst + 4}, 0, v{dst + 4}, s[72:73]')

    A(f's_waitcnt vmcnt({first_wq})')
    layernorm(X, X, E)
    A('s_mul_i32 s64, s30, 1280')
    A('s_add_u32 s64, s64, 1024')
    A('v_add_u32 v8, s64, v4')
    for k in range(5):
        A(f'ds_write_b32 v8, v{X + k} offset:{256 * k}')
    A('v_mul_u32_u24 v9, 144, v5')
    A('v_add_u32 v9, s64, v9')
    A('s_waitcnt lgkmcnt(0)')
    for n in range(9):
        A(f'ds_read_b128 v[{XNB + 4 * n}:{XNB + 4 * n + 3}], v9 offset:{16 * n}')
    for t in range(first_wq, NS):
        wqload(t)
    A('s_waitcnt lgkmcnt(0)')
    build_b(HB, XNB, 0)
    for t in range(72):
        if t + 1 < 72:
            build_b(HB + 4 * ((t + 1) & 1), XNB + (t + 1) // 2, (t + 1) & 1)
        else:
            A.nop(1)
        issued = min(72, NS + t)
        A(f's_waitcnt vmcnt({issued - t - 1})')
        r = WQ + (t % NS) * 4
        b = HB + 4 * (t & 1)
        c = '0' if t == 0 else f'v[{HACC}:{HACC + 3}]'
        A(f'v_mfma_f32_16x16x32_bf16 v[{HACC}:{HACC + 3}], v[{r}:{r + 3}], v[{b}:{b + 3}], {c}')
        if t + NS < 72:
            wqload(t + NS)
            if t + NS == 71:
                stampit(1)
                A('s_barrier')
    A('v_lshlrev_b32 v10, 6, v3')
    A('v_lshl_add_u32 v10, v7, 1, v10')
    A('s_lshl_b32 s64, s30, 7')
    A('v_add_u32 v10, s64, v10')
    A.nop(4)
    for r in range(4):
        A(f'v_permlane32_swap_b32 v{HACC + r}, v{HB + r}')
    A.nop(1)
    for r in range(4):
        A(f'v_add_f32_dpp v{HACC + r}, v{HB + r}, v{HACC + r} row_ror:8 {DPP}')
    for r in range(4):
        A(f'v_cvt_pk_bf16_f32 v{HACC + r}, v{HACC + r}, v{HACC + r}')
    A('s_mov_b64 exec, 0x00ff00ff')
    for r in range(4):
        A(f'ds_write_b16 v10, v{HACC + r} offset:{16 * r}')
    A('s_mov_b64 exec, -1')
    A('s_waitcnt lgkmcnt(0)')
    stampit(2)
    A('s_barrier')

    A('s_mov_b32 s60, s26')
    A('s_mov_b32 s61, s27')
    A('s_mov_b32 s62, 256')
    A('s_mov_b32 s63, 0x20000')
    A('s_lshl_b32 s74, s36, 14')
    A('v_lshlrev_b32 v11, 4, v1')
    A('v_mov_b32 v12, 0')
    A('s_cmp_lg_u32 s30, 3')
    A('s_cbranch_scc1 L_noreset')
    for r in range(4):
        A(f'v_mov_b32 v{HB + r}, -1')
    for n in range(4):
        A(f'buffer_store_dwordx4 v[{HB}:{HB + 3}], v11, s[48:51], s74 offen offset:{1024 * n} sc1')
    A(f's_add_u32 s64, s74, {L1ML}')
    A('s_mov_b64 exec, 0xffff')
    A(f'buffer_store_dwordx4 v[{HB}:{HB + 3}], v11, s[48:51], s64 offen sc1')
    A('s_mov_b64 exec, -1')
    A('s_cmp_ge_u32 s35, 72')
    A('s_cbranch_scc1 L_reset_done')
    for reg in (L2A, L2B):
        A(f's_add_u32 s64, s74, {reg}')
        for n in range(4):
            A(f'buffer_store_dwordx4 v[{HB}:{HB + 3}], v11, s[48:51], s64 offen offset:{1024 * n} sc1')
    A.label('L_reset_done')
    A('v_mov_b32 v13, 1')
    A('s_waitcnt vmcnt(0)')
    A('s_mov_b64 exec, 1')
    A('buffer_atomic_add v13, v12, s[60:63], 0 offen sc1')
    A('s_mov_b64 exec, -1')
    A.label('L_noreset')

    WO = 104
    A('s_mov_b32 s52, s12')
    A('s_mov_b32 s53, s13')
    A(f's_mov_b32 s54, {4096 * 1152}')
    A('s_mov_b32 s55, 0x20000')
    A('v_mul_u32_u24 v13, 1152, v5')
    A('v_lshl_add_u32 v13, v7, 4, v13')
    A(f's_mul_i32 s64, s35, {32 * 1152}')
    A('s_lshl_b32 s65, s30, 8')
    A('s_add_u32 s65, s65, s64')
    for t in range(4):
        for bl in range(2):
            r = WO + bl * 16 + t * 4
            A(f'buffer_load_dwordx4 v[{r}:{r + 3}], v13, s[52:55], s65 offen offset:{128 * bl} {wopol}')
        if t < 3:
            A(f's_add_u32 s65, s65, {8 * 1152}')
    A('s_cmp_lg_u32 s30, 0')
    A('s_cbranch_scc1 L_nowo8')
    for t in range(4):
        r = WO + 32 + t * 4
        A(f'buffer_load_dwordx4 v[{r}:{r + 3}], v13, s[52:55], s64 offen offset:1024 {wopol}')
        if t < 3:
            A(f's_add_u32 s64, s64, {8 * 1152}')
    A.label('L_nowo8')

    layernorm(X, HP, E)
    A('s_mul_i32 s64, s30, 1280')
    A('s_add_u32 s64, s64, 6144')
    A('v_add_u32 v8, s64, v4')
    for k in range(5):
        A(f'ds_write_b32 v8, v{HP + k} offset:{256 * k}')
    A('s_mul_i32 s65, s30, 36')
    A('v_min_u32 v14, 35, v1')
    A('v_add_u32 v14, s65, v14')
    A('v_lshrrev_b32 v15, 3, v14')
    A('v_lshlrev_b32 v15, 6, v15')
    A('v_and_b32 v16, 7, v14')
    A('v_lshl_add_u32 v15, v16, 1, v15')
    A('v_add_u32 v15, s64, v15')
    H = 160
    BA = 164
    U = 168
    A('s_waitcnt lgkmcnt(0)')
    for r in range(4):
        A(f'ds_read_u16 v{H + r}, v15 offset:{16 * r}')
    c0 = -2.0 * math.sqrt(2.0 / math.pi) * LOG2E
    A(f'v_mov_b32 v{U + 16}, {f32(c0)}')
    A(f'v_mov_b32 v{U + 17}, {f32(c0 * 0.044715)}')
    for r in range(4):
        A(f'v_mov_b32 v{BA + r}, 0')
    A('s_mul_i32 s75, s35, 72')
    A('s_mov_b32 s70, 9')
    A('s_waitcnt lgkmcnt(0)')
    for r in range(4):
        A(f'v_lshlrev_b32 v{H + r}, 16, v{H + r}')
    A.label('L_bloop')
    A('s_load_dwordx2 s[76:77], s[16:17], s75')
    A('s_load_dwordx2 s[78:79], s[18:19], s75')
    A('s_load_dwordx2 s[80:81], s[20:21], s75')
    A('s_add_u32 s75, s75, 8')
    A('s_waitcnt lgkmcnt(0)')
    for f in range(4):
        for k, base in enumerate((76, 78, 80)):
            src = base + f // 2
            if f % 2 == 0:
                A(f's_lshl_b32 s{64 + k}, s{src}, 16')
            else:
                A(f's_and_b32 s{64 + k}, s{src}, 0xffff0000')
        for r in range(4):
            A(f'v_mul_f32 v{U + r}, s64, v{H + r}')
        for r in range(4):
            A(f'v_cvt_pk_bf16_f32 v{U + r}, 0, v{U + r}')
        for r in range(4):
            A(f'v_add_f32 v{U + r}, s65, v{U + r}')
        for r in range(4):
            A(f'v_cvt_pk_bf16_f32 v{U + r}, 0, v{U + r}')
        for r in range(4):
            A(f'v_mul_f32 v{U + 4 + r}, v{U + r}, v{U + r}')
        for r in range(4):
            A(f'v_fma_f32 v{U + 4 + r}, v{U + 4 + r}, v{U + 17}, v{U + 16}')
        for r in range(4):
            A(f'v_mul_f32 v{U + 4 + r}, v{U + 4 + r}, v{U + r}')
        for r in range(4):
            A(f'v_exp_f32 v{U + 4 + r}, v{U + 4 + r}')
        for r in range(4):
            A(f'v_add_f32 v{U + 4 + r}, 1.0, v{U + 4 + r}')
        for r in range(4):
            A(f'v_rcp_f32 v{U + 4 + r}, v{U + 4 + r}')
        for r in range(4):
            A(f'v_mul_f32 v{U + r}, v{U + r}, v{U + 4 + r}')
        for r in range(4):
            A(f'v_cvt_pk_bf16_f32 v{U + r}, 0, v{U + r}')
        for r in range(4):
            A(f'v_fmac_f32 v{BA + r}, s66, v{U + r}')
    A('s_sub_u32 s70, s70, 1')
    A('s_cmp_lg_u32 s70, 0')
    A('s_cbranch_scc1 L_bloop')
    for r in range(4):
        A(f'v_min_u32 v{BA + r}, -2, v{BA + r}')
    A('v_lshrrev_b32 v15, 1, v14')
    A('v_lshlrev_b32 v15, 14, v15')
    A('v_and_b32 v16, 1, v14')
    A('v_lshl_add_u32 v15, v16, 4, v15')
    A('s_lshl_b32 s82, s33, 21')
    A('s_lshl_b32 s64, s35, 5')
    A('s_add_u32 s82, s82, s64')
    A(f's_mov_b32 s70, {SPIN_MAX}')
    A.label('L_cnt')
    A('buffer_load_dword v17, v12, s[60:63], 0 offen sc1')
    A('s_waitcnt vmcnt(0)')
    A('v_readfirstlane_b32 s64, v17')
    A('s_sub_u32 s70, s70, 1')
    A('s_cmp_eq_u32 s70, 0')
    A('s_cbranch_scc1 L_cnt_done')
    A('s_cmp_ge_u32 s64, 256')
    A('s_cbranch_scc1 L_cnt_done')
    A('s_sleep 16')
    A('s_branch L_cnt')
    A.label('L_cnt_done')
    A(f's_add_u32 s64, s82, {L2B}')
    A('s_mov_b32 exec_lo, -1')
    A('s_mov_b32 exec_hi, 0xf')
    A(f'buffer_store_dwordx4 v[{BA}:{BA + 3}], v15, s[48:51], s64 offen sc1')
    A('s_mov_b64 exec, -1')

    G = 176
    FB, FX, FO = 192, 193, 194

    def gather128(reg_off, lab, sleep):
        A(f's_add_u32 s64, s74, {reg_off}')
        A(f's_mov_b32 s70, {SPIN_MAX}')
        A.label(lab)
        for k in range(4):
            A(f'buffer_load_dwordx4 v[{G + 4 * k}:{G + 4 * k + 3}], v11, s[48:51], s64 offen offset:{1024 * k} sc1')
        A('s_sub_u32 s70, s70, 1')
        A('s_cmp_eq_u32 s70, 0')
        A('s_waitcnt vmcnt(0)')
        A(f's_cbranch_scc1 {lab}_done')
        A(f'v_max3_u32 v17, v{G}, v{G + 1}, v{G + 2}')
        A(f'v_max3_u32 v18, v{G + 3}, v{G + 4}, v{G + 5}')
        for n in range(6, 14, 4):
            A(f'v_max3_u32 v17, v17, v{G + n}, v{G + n + 1}')
            A(f'v_max3_u32 v18, v18, v{G + n + 2}, v{G + n + 3}')
        A(f'v_max3_u32 v17, v17, v{G + 14}, v{G + 15}')
        A('v_max_u32 v17, v17, v18')
        A('v_cmp_eq_u32 vcc, -1, v17')
        A(f's_cbranch_vccz {lab}_done')
        if sleep:
            A(f's_sleep {sleep}')
        A(f's_branch {lab}')
        A.label(lab + '_done')
        for r in range(4):
            A(f'v_add_f32 v{G + r}, v{G + r}, v{G + 4 + r}')
            A(f'v_add_f32 v{G + 8 + r}, v{G + 8 + r}, v{G + 12 + r}')
        for r in range(4):
            A(f'v_add_f32 v{G + r}, v{G + r}, v{G + 8 + r}')
        A.nop(1)
        A(f'v_permlane32_swap_b32 v{G}, v{G + 1}')
        A(f'v_permlane32_swap_b32 v{G + 2}, v{G + 3}')
        A(f'v_add_f32 v{G}, v{G}, v{G + 1}')
        A(f'v_add_f32 v{G + 2}, v{G + 2}, v{G + 3}')
        A.nop(2)
        A(f'v_permlane16_swap_b32 v{G}, v{G + 2}')
        A(f'v_add_f32 v{G}, v{G}, v{G + 2}')
        for sh in (8, 4, 2):
            A.nop(2)
            A(f'v_add_f32_dpp v{G}, v{G}, v{G} row_ror:{sh} {DPP}')

    A('s_mov_b32 s83, 0')
    A('s_cmp_lg_u32 s30, 1')
    A('s_cbranch_scc1 L_nofin1')
    A('s_cmp_ge_u32 s35, 72')
    A('s_cbranch_scc1 L_nofin1')
    A('s_mov_b32 s83, 1')
    A('v_and_b32 v17, 1, v3')
    A('v_lshrrev_b32 v18, 1, v3')
    A('v_lshl_add_u32 v17, v17, 1, v18')
    A('v_and_b32 v18, 1, v1')
    A('v_lshl_add_u32 v17, v17, 3, v18')
    A('s_lshr_b32 s64, s35, 2')
    A('s_lshl_b32 s64, s64, 5')
    A('s_and_b32 s65, s35, 3')
    A('s_lshl_b32 s65, s65, 1')
    A('s_add_u32 s64, s64, s65')
    A('v_add_u32 v17, s64, v17')
    A(f'v_lshlrev_b32 v{FO}, 1, v17')
    A(f'buffer_load_ushort v{FX}, v{FO}, s[40:43], 0 offen')
    A(f'global_load_ushort v{FB}, v12, s[22:23]')
    gather128(L2B, 'L_gb', 32)
    A(f'v_lshlrev_b32 v{FX}, 16, v{FX}')
    A(f'v_lshlrev_b32 v{FB}, 16, v{FB}')
    A(f'v_cvt_pk_bf16_f32 v{G}, 0, v{G}')
    A(f'v_add_f32 v{FB}, v{G}, v{FB}')
    A(f'v_cvt_pk_bf16_f32 v{FB}, 0, v{FB}')
    A.label('L_nofin1')
    A('s_mul_i32 s64, s33, 1152')
    A('s_add_u32 s56, s24, s64')
    A('s_addc_u32 s57, s25, 0')
    A('s_mov_b32 s58, 1152')
    A('s_mov_b32 s59, 0x20000')
    A('v_lshlrev_b32 v19, 9, v7')
    A('v_lshl_add_u32 v19, v5, 4, v19')
    A('v_lshlrev_b32 v20, 5, v7')
    A(f's_add_u32 s75, s74, {L1ML}')
    A('v_lshrrev_b32 v21, 1, v7')
    A('v_lshl_add_u32 v21, v3, 2, v21')
    A('v_lshlrev_b32 v21, 14, v21')
    A('v_and_b32 v22, 1, v2')
    A('v_lshl_add_u32 v21, v22, 4, v21')
    A(f's_add_u32 s82, s82, {L2A}')
    A('s_lshl_b32 s64, s30, 18')
    A('s_add_u32 s76, s82, s64')
    A(f's_add_u32 s77, s82, {64 * INBOX}')
    A('s_waitcnt vmcnt(0)')
    stampit(3)
    A('s_barrier')

    O = 200
    ML = 216
    W = 224
    A(f's_mov_b32 s70, {SPIN_MAX}')
    A.label('L_p1')
    for n in range(2):
        A(f'buffer_load_dwordx4 v[{ML + 4 * n}:{ML + 4 * n + 3}], v20, s[48:51], s75 offen offset:{16 * n} sc1')
    for n in range(4):
        A(f'buffer_load_dwordx4 v[{O + 4 * n}:{O + 4 * n + 3}], v19, s[48:51], s74 offen offset:{128 * n} sc1')
    A('s_sub_u32 s70, s70, 1')
    A('s_cmp_eq_u32 s70, 0')
    A('s_waitcnt vmcnt(0)')
    A('s_cbranch_scc1 L_p1_done')
    A(f'v_max3_u32 v17, v{O}, v{O + 1}, v{O + 2}')
    A(f'v_max3_u32 v18, v{O + 3}, v{O + 4}, v{O + 5}')
    for n in range(6, 22, 4):
        A(f'v_max3_u32 v17, v17, v{O + n}, v{O + n + 1}')
        A(f'v_max3_u32 v18, v18, v{O + n + 2}, v{O + n + 3}')
    A(f'v_max3_u32 v17, v17, v{O + 22}, v{O + 23}')
    A('v_max_u32 v17, v17, v18')
    A('v_cmp_eq_u32 vcc, -1, v17')
    if psleep:
        A('s_cbranch_vccz L_p1_done')
        A(f's_sleep {psleep}')
        A('s_branch L_p1')
    else:
        A('s_cbranch_vccnz L_p1')
    A.label('L_p1_done')
    stampit(4)
    A(f'v_max_f32 v17, v{ML}, v{ML + 2}')
    A(f'v_max3_f32 v17, v17, v{ML + 4}, v{ML + 6}')
    for m in ('quad_perm:[1,0,3,2]', 'quad_perm:[2,3,0,1]', 'row_half_mirror'):
        A.nop(2)
        A(f'v_max_f32_dpp v17, v17, v17 {m} {DPP}')
    for n in range(4):
        A(f'v_sub_f32 v{W + n}, v{ML + 2 * n}, v17')
    for n in range(4):
        A(f'v_exp_f32 v{W + n}, v{W + n}')
    R = W + 4
    A(f'v_mul_f32 v{R + 4}, v{W}, v{ML + 1}')
    for t in range(4):
        A(f'v_mul_f32 v{R + t}, v{W}, v{O + t}')
    for n in range(1, 4):
        A(f'v_fmac_f32 v{R + 4}, v{W + n}, v{ML + 2 * n + 1}')
        for t in range(4):
            A(f'v_fmac_f32 v{R + t}, v{W + n}, v{O + 4 * n + t}')
    for m in ('quad_perm:[1,0,3,2]', 'quad_perm:[2,3,0,1]', 'row_half_mirror'):
        for q in (4, 0, 1, 2, 3):
            A(f'v_add_f32_dpp v{R + q}, v{R + q}, v{R + q} {m} {DPP}')
    A(f'v_rcp_f32 v{R + 4}, v{R + 4}')
    A.nop(1)
    for t in range(4):
        A(f'v_mul_f32 v{R + t}, v{R + t}, v{R + 4}')
    A(f'v_cvt_pk_bf16_f32 v{W}, v{R}, v{R + 1}')
    A(f'v_cvt_pk_bf16_f32 v{W + 1}, v{R + 2}, v{R + 3}')
    for t in range(4):
        build_b(HB + 4 * t, W + t // 2, t & 1)
    DX, DY, DZ = 236, 240, 244
    A.nop(1)
    for t in range(4):
        for bl, D in ((0, DX), (1, DY)):
            r = WO + bl * 16 + t * 4
            c = '0' if t == 0 else f'v[{D}:{D + 3}]'
            A(f'v_mfma_f32_16x16x32_bf16 v[{D}:{D + 3}], v[{r}:{r + 3}], v[{HB + 4 * t}:{HB + 4 * t + 3}], {c}')
    A('s_cmp_lg_u32 s30, 0')
    A('s_cbranch_scc1 L_nob8a')
    for t in range(4):
        r = WO + 32 + t * 4
        c = '0' if t == 0 else f'v[{DZ}:{DZ + 3}]'
        A(f'v_mfma_f32_16x16x32_bf16 v[{DZ}:{DZ + 3}], v[{r}:{r + 3}], v[{HB + 4 * t}:{HB + 4 * t + 3}], {c}')
    A.label('L_nob8a')
    A.nop(8)
    for r in range(4):
        A(f'v_permlane32_swap_b32 v{DX + r}, v{DY + r}')
    A.nop(1)
    for r in range(4):
        A(f'v_add_f32_dpp v{DX + r}, v{DY + r}, v{DX + r} row_ror:8 {DPP}')
    for r in range(4):
        A(f'v_min_u32 v{DX + r}, -2, v{DX + r}')
    A('s_mov_b32 exec_lo, 0x00ff00ff')
    A('s_mov_b32 exec_hi, 0x00ff00ff')
    A(f'buffer_store_dwordx4 v[{DX}:{DX + 3}], v21, s[48:51], s76 offen sc1')
    A('s_mov_b64 exec, -1')
    A('s_cmp_lg_u32 s30, 0')
    A('s_cbranch_scc1 L_nob8b')
    for r in range(4):
        A(f'v_permlane32_swap_b32 v{DZ + r}, v{DY + r}')
    A.nop(1)
    for r in range(4):
        A(f'v_add_f32_dpp v{DZ + r}, v{DY + r}, v{DZ + r} row_ror:8 {DPP}')
    for r in range(4):
        A(f'v_min_u32 v{DZ + r}, -2, v{DZ + r}')
    A('s_mov_b64 exec, 0x00ff00ff')
    A(f'buffer_store_dwordx4 v[{DZ}:{DZ + 3}], v21, s[48:51], s77 offen sc1')
    A('s_mov_b64 exec, -1')
    A.label('L_nob8b')
    stampit(5)
    A('s_cmp_eq_u32 s83, 0')
    A('s_cbranch_scc1 L_hend')
    gather128(L2A, 'L_ga', psleep)
    A(f'v_cvt_pk_bf16_f32 v{G}, 0, v{G}')
    A(f'v_add_f32 v{G}, v{FX}, v{G}')
    A(f'v_cvt_pk_bf16_f32 v{G}, 0, v{G}')
    A(f'v_add_f32 v{G}, v{G}, v{FB}')
    A(f'v_cvt_pk_bf16_f32 v{G}, v{G}, v{G}')
    A('s_mov_b32 exec_lo, 0x00030003')
    A('s_mov_b32 exec_hi, 0x00030003')
    A(f'buffer_store_short v{G}, v{FO}, s[56:59], 0 offen')
    A('s_mov_b64 exec, -1')
    stampit(6)
    A.label('L_hend')
    stamp_store()
    A.label('L_end')
    A('s_endpgm')
    A.L.append('.section .rodata,"a"')
    A.L.append('.p2align 6')
    A.L.append(f'.amdhsa_kernel {KN}_kernel')
    A('.amdhsa_next_free_vgpr 256')
    A('.amdhsa_next_free_sgpr 102')
    A('.amdhsa_accum_offset 256')
    A('.amdhsa_group_segment_fixed_size 0')
    A('.amdhsa_kernarg_size 104')
    A('.amdhsa_user_sgpr_count 2')
    A('.amdhsa_user_sgpr_kernarg_segment_ptr 1')
    A('.amdhsa_system_sgpr_workgroup_id_x 1')
    A.L.append('.end_amdhsa_kernel')
    return A.text()


if __name__ == '__main__':
    out = sys.argv[1] if len(sys.argv) > 1 else 'cdna_kernels/' + KN + '.s'
    kw = {}
    for a in sys.argv[2:]:
        k, v = a.split('=')
        kw[k] = int(v) if v.lstrip('-').isdigit() else v
    open(out, 'w').write(gen(**kw))
    print('wrote', out)
```

```python
import struct, sys, math

KN = 'parallel_sum__gqa_block_cached__mixer_token_mlp__decode'


def f32(x):
    return '0x%08x' % struct.unpack('<I', struct.pack('<f', x))[0]


HEADER = open('cdna_kernels/' + KN + '.s.ref').read().split('; Override launch')[0]

LOG2E = 1.4426950408889634
INBOX = 16384
L1ML = 4096
L2A = 8192
L2B = 12288
STAMP_OFF = 8 << 20
SPIN_MAX = 200000


class Asm:
    def __init__(self):
        self.L = []

    def __call__(self, s):
        self.L.append('  ' + s)

    def label(self, s):
        self.L.append(s + ':')

    def nop(self, n):
        while n > 0:
            k = min(n, 16)
            self('s_nop %d' % (k - 1))
            n -= k

    def text(self):
        return '\n'.join(self.L) + '\n'


DPP = 'row_mask:0xf bank_mask:0xf'


def gen(npreA=0, npreB=4, wgmap='xcd', kvpol='nt', wqpol='nt', wopol='nt', stamp=False, first_wq=16, psleep=0, prog=False, xpol='', hst=0, m1=7, m2=4, dbgtime=0):
    A = Asm()
    A.L.append(HEADER.rstrip('\n'))
    A.L.append('; @launch grid=(256,1,1) block=(512,1,1) lds=12288')
    A.L.append('.amdgcn_target "amdgcn-amd-amdhsa--gfx950"')
    A.L.append('.text')
    A.L.append(f'.globl {KN}_kernel')
    A.L.append('.p2align 8')
    A.L.append(f'.type {KN}_kernel,@function')
    A.label(f'{KN}_kernel')

    nstamp = [0]

    def stampit(k):
        if stamp:
            A(f's_memrealtime s[{84 + 2 * k}:{85 + 2 * k}]')

    def stamp_store():
        if not stamp:
            return
        A('s_waitcnt lgkmcnt(0) vmcnt(0)')
        A('s_getreg_b32 s64, hwreg(HW_REG_XCC_ID)')
        A('s_lshl_b32 s65, s2, 3')
        A('s_add_u32 s65, s65, s30')
        A('s_lshl_b32 s65, s65, 5')
        A(f's_add_u32 s65, s65, {STAMP_OFF}')
        A('s_mov_b64 exec, 1')
        A('v_mov_b32 v4, 0')
        for k in range(7):
            A(f'v_mov_b32 v5, s{84 + 2 * k}')
            A(f'buffer_store_dword v5, v4, s[48:51], s65 offen offset:{4 * k}')
        A('v_mov_b32 v5, s64')
        A(f'buffer_store_dword v5, v4, s[48:51], s65 offen offset:28')
        A('s_waitcnt vmcnt(0)')

    A('s_cmp_ge_u32 s2, 256')
    A('s_cbranch_scc1 L_end')
    if stamp:
        for k in range(7):
            A(f's_mov_b64 s[{84 + 2 * k}:{85 + 2 * k}], 0')
    stampit(0)
    if dbgtime:
        A('s_memrealtime s[98:99]')
    A('s_load_dwordx16 s[4:19], s[0:1], 0')
    A('s_load_dwordx8 s[20:27], s[0:1], 64')
    A('s_load_dwordx2 s[28:29], s[0:1], 96')
    A('v_lshrrev_b32 v1, 6, v0')
    A('v_and_b32 v2, 15, v0')
    A('v_readfirstlane_b32 s30, v1')
    A('v_and_b32 v1, 63, v0')
    A('v_lshrrev_b32 v3, 4, v1')
    if wgmap == 'xcd':
        A('s_and_b32 s31, s2, 7')
        A('s_lshr_b32 s64, s2, 3')
        A('s_and_b32 s32, s64, 7')
        A('s_and_b32 s64, s64, 24')
        A('s_add_u32 s31, s31, s64')
    else:
        A('s_lshr_b32 s31, s2, 3')
        A('s_and_b32 s32, s2, 7')
    A('s_lshr_b32 s33, s31, 4')
    A('s_and_b32 s34, s31, 15')
    A('s_lshl_b32 s35, s34, 3')
    A('s_add_u32 s35, s35, s32')
    A('s_lshl_b32 s36, s31, 3')
    A('s_add_u32 s36, s36, s32')
    SELH, SELS = 32, 40
    SEL = 40
    A('v_and_b32 v4, 7, v2')
    A('v_lshrrev_b32 v5, 1, v4')
    A('v_and_b32 v6, 1, v4')
    A('v_mov_b32 v7, 0x0c0c0100')
    A('v_mov_b32 v8, 0x01000c0c')
    A('v_cmp_eq_u32 vcc, 1, v6')
    A('v_mov_b32 v9, 0x0c0c0302')
    A('v_mov_b32 v10, 0x03020c0c')
    A('v_cndmask_b32 v7, v7, v8, vcc')
    A('v_cndmask_b32 v9, v9, v10, vcc')
    A('v_mov_b32 v8, 0x0c0c0c0c')
    for d in range(4):
        A(f'v_cmp_eq_u32 vcc, {d}, v5')
        A.nop(2)
        A(f'v_cndmask_b32 v{SEL + d}, v8, v7, vcc')
        A(f'v_cndmask_b32 v{SEL + 4 + d}, v8, v9, vcc')
    A('s_waitcnt lgkmcnt(0)')
    A('s_mov_b32 s48, s28')
    A('s_mov_b32 s49, s29')
    A(f's_mov_b32 s50, {(STAMP_OFF + 131072) if stamp else 256 * INBOX}')
    A('s_mov_b32 s51, 0x20000')
    A('s_cmp_lt_u32 s30, 4')
    A('s_cbranch_scc1 L_helper')

    def build_b(dst, src, odd):
        for d in range(4):
            A(f'v_perm_b32 v{dst + d}, v{src}, v{src}, v{SEL + 4 * odd + d}')

    RING = 64
    Q = 48
    BS = 32
    S = 24
    ACC = 20
    PK = 16
    VK0, VK1, VV0, VV1 = 12, 13, 14, 15
    M2, LS, AL, T0, T1, PUB = 4, 5, 6, 7, 8, 9
    A('s_sub_u32 s37, s30, 4')
    A('s_lshl_b32 s64, s36, 20')
    A('s_add_u32 s40, s6, s64')
    A('s_addc_u32 s41, s7, 0')
    A('s_mov_b32 s42, 0x100000')
    A('s_mov_b32 s43, 0x20000')
    A('s_add_u32 s44, s8, s64')
    A('s_addc_u32 s45, s9, 0')
    A('s_mov_b32 s46, 0x100000')
    A('s_mov_b32 s47, 0x20000')
    A('s_lshl_b32 s38, s37, 13')
    A('s_mov_b32 s39, s38')
    A(f'v_and_b32 v{T0}, 3, v2')
    A(f'v_lshlrev_b32 v{T0}, 10, v{T0}')
    A(f'v_lshrrev_b32 v{T1}, 2, v2')
    A(f'v_lshl_add_u32 v{T0}, v{T1}, 8, v{T0}')
    A(f'v_lshl_add_u32 v{VK0}, v3, 4, v{T0}')
    A(f'v_add_u32 v{VK1}, 0x1000, v{VK0}')
    A(f'v_lshlrev_b32 v{VV0}, 4, v1')
    A(f'v_add_u32 v{VV1}, 0x1000, v{VV0}')

    def kreg(slot, u, s):
        return RING + slot * 64 + (u * 4 + s) * 4

    def vreg(slot, u, r):
        return RING + slot * 64 + 32 + (u * 4 + r) * 4

    def kloads(slot):
        for u in range(2):
            for s in range(4):
                r = kreg(slot, u, s)
                A(f'buffer_load_dwordx4 v[{r}:{r + 3}], v{VK0 + u}, s[40:43], s38 offen offset:{s * 64} {kvpol}')
        A('s_add_u32 s38, s38, 0x8000')

    def vloads(slot):
        for u in range(2):
            for rr in range(4):
                r = vreg(slot, u, rr)
                A(f'buffer_load_dwordx4 v[{r}:{r + 3}], v{VV0 + u}, s[44:47], s39 offen offset:{rr * 1024} {kvpol}')
        A('s_add_u32 s39, s39, 0x8000')

    def ring_part(lo, hi):
        for n in range(lo, hi):
            (kloads if n % 2 == 0 else vloads)(n // 2)

    def pro(npre):
        ring_part(0, npre)
        A('s_barrier')
        A('s_barrier')
        ring_part(npre, 6)

    if npreA == npreB:
        pro(npreA)
    else:
        A('s_bitcmp1_b32 s2, 3')
        A('s_cbranch_scc1 L_spB')
        pro(npreA)
        A('s_branch L_spJ')
        A.label('L_spB')
        pro(npreB)
        A.label('L_spJ')
    for r in range(4):
        A(f'v_mov_b32 v{ACC + r}, 0')
    A(f'v_mov_b32 v{LS}, 0')
    A(f'v_mov_b32 v{M2}, {f32(-3.0e38)}')
    A(f's_mov_b32 s66, {f32(128 ** -0.5)}')
    A(f's_mov_b32 s67, {f32(LOG2E)}')
    A(f'v_lshrrev_b32 v{T0}, 3, v2')
    A(f'v_lshl_add_u32 v{T0}, v{T0}, 2, v3')
    A(f'v_lshlrev_b32 v{T0}, 14, v{T0}')
    A(f'v_and_b32 v{T1}, 7, v2')
    A(f'v_lshl_add_u32 v{PUB}, v{T1}, 4, v{T0}')
    A('s_lshl_b32 s68, s31, 17')
    A('s_lshl_b32 s64, s32, 2')
    A('s_add_u32 s64, s64, s37')
    A('s_lshl_b32 s65, s64, 3')
    A('s_add_u32 s69, s68, s65')
    A(f's_add_u32 s69, s69, {L1ML}')
    A('s_lshl_b32 s65, s64, 7')
    A('s_add_u32 s68, s68, s65')
    A(f'v_lshrrev_b32 v{T0}, 3, v2')
    A(f'v_lshlrev_b32 v{T0}, 8, v{T0}')
    A(f'v_lshl_add_u32 v{T0}, v3, 4, v{T0}')
    stampit(1)
    A('s_barrier')
    for s in range(4):
        A(f'ds_read_b128 v[{Q + 4 * s}:{Q + 4 * s + 3}], v{T0} offset:{64 * s}')
    stampit(2)
    A('s_waitcnt lgkmcnt(0)')

    def allred_g(op, v, t):
        for sw in ('v_permlane16_swap_b32', 'v_permlane32_swap_b32'):
            A(f'v_mov_b32 v{t}, v{v}')
            A.nop(2)
            A(f'{sw} v{v}, v{t}')
            A(f'{op} v{v}, v{v}, v{t}')

    def tile(slot, wk, wv, loads=True, last=False):
        A(f's_waitcnt vmcnt({wk})')
        for s in range(4):
            for u in range(2):
                k = kreg(slot, u, s)
                c = '0' if s == 0 else f'v[{S + 4 * u}:{S + 4 * u + 3}]'
                A(f'v_mfma_f32_16x16x32_bf16 v[{S + 4 * u}:{S + 4 * u + 3}], v[{k}:{k + 3}], v[{Q + 4 * s}:{Q + 4 * s + 3}], {c}')
        if loads:
            kloads(slot)
        else:
            A.nop(8)
        for n in range(8):
            A(f'v_cvt_pk_bf16_f32 v{S + n}, 0, v{S + n}')
        for n in range(8):
            A(f'v_mul_f32 v{S + n}, s66, v{S + n}')
        for n in range(8):
            A(f'v_cvt_pk_bf16_f32 v{S + n}, 0, v{S + n}')
        A(f'v_max3_f32 v{T0}, v{S}, v{S + 1}, v{S + 2}')
        A(f'v_max3_f32 v{T1}, v{S + 3}, v{S + 4}, v{S + 5}')
        A(f'v_max3_f32 v{T0}, v{T0}, v{S + 6}, v{S + 7}')
        A(f'v_max_f32 v{T0}, v{T0}, v{T1}')
        allred_g('v_max_f32', T0, T1)
        A(f'v_mul_f32 v{T0}, s67, v{T0}')
        A(f'v_max_f32 v{T0}, v{T0}, v{M2}')
        A(f'v_sub_f32 v{AL}, v{M2}, v{T0}')
        A(f'v_mov_b32 v{M2}, v{T0}')
        A(f'v_exp_f32 v{AL}, v{AL}')
        for n in range(8):
            A(f'v_fma_f32 v{S + n}, v{S + n}, s67, -v{M2}')
        for n in range(8):
            A(f'v_exp_f32 v{S + n}, v{S + n}')
        for r in range(4):
            A(f'v_mul_f32 v{ACC + r}, v{AL}, v{ACC + r}')
        A(f'v_fma_f32 v{LS}, v{LS}, v{AL}, v{S}')
        for n in range(4):
            A(f'v_cvt_pk_bf16_f32 v{PK + n}, v{S + 2 * n}, v{S + 2 * n + 1}')
        A(f'v_add_f32 v{T0}, v{S + 1}, v{S + 2}')
        A(f'v_add_f32 v{T1}, v{S + 3}, v{S + 4}')
        A(f'v_add_f32 v{LS}, v{LS}, v{S + 5}')
        A(f'v_add_f32 v{T0}, v{T0}, v{S + 6}')
        A(f'v_add_f32 v{T1}, v{T1}, v{S + 7}')
        A(f'v_add_f32 v{LS}, v{LS}, v{T0}')
        A(f'v_add_f32 v{LS}, v{LS}, v{T1}')
        extra = 0
        if last:
            allred_g('v_add_f32', LS, T1)
            stampit(3)
            A('s_barrier')
            A(f'v_min_u32 v{M2}, -2, v{M2}')
            A(f'v_min_u32 v{LS}, -2, v{LS}')
            A('s_mov_b32 exec_lo, 0x01010101')
            A('s_mov_b32 exec_hi, 0x01010101')
            A(f'buffer_store_dwordx2 v[{M2}:{M2 + 1}], v{PUB}, s[48:51], s69 offen sc1')
            A('s_mov_b64 exec, -1')
            extra = 1
        build_b(BS, PK, 0)
        if not last:
            A(f's_waitcnt vmcnt({wv})')
        for n in range(8):
            if n + 1 < 8:
                build_b(BS + 4 * ((n + 1) & 1), PK + (n + 1) // 2, (n + 1) & 1)
            else:
                A.nop(1)
            if last:
                A(f's_waitcnt vmcnt({7 - n + extra})')
            v = vreg(slot, n // 4, n % 4)
            b = BS + 4 * (n & 1)
            A(f'v_mfma_f32_16x16x32_bf16 v[{ACC}:{ACC + 3}], v[{v}:{v + 3}], v[{b}:{b + 3}], v[{ACC}:{ACC + 3}]')
        if loads:
            vloads(slot)

    A('s_mov_b32 s70, 10')
    A.label('L_sloop')
    A(f's_cmp_eq_u32 s70, {m1}')
    A('s_cbranch_scc1 L_sbar')
    A(f's_cmp_eq_u32 s70, {m2}')
    A('s_cbranch_scc0 L_snobar')
    A.label('L_sbar')
    A('s_barrier')
    A.label('L_snobar')
    if prog:
        A('s_memrealtime s[98:99]')
        A('s_waitcnt lgkmcnt(0)')
        A('s_mov_b32 m0, s70')
        A('v_writelane_b32 v10, s98, m0')
    tile(0, 40, 40)
    tile(1, 40, 40)
    A('s_sub_u32 s70, s70, 1')
    A('s_cmp_eq_u32 s70, 0')
    A('s_cbranch_scc1 L_stail')
    tile(2, 40, 40)
    A('s_branch L_sloop')
    A.label('L_stail')
    tile(2, 40, 32, loads=False)
    tile(0, 24, 16, loads=False)
    tile(1, 8, 0, loads=False, last=True)
    A.nop(8)
    for r in range(4):
        A(f'v_min_u32 v{ACC + r}, -2, v{ACC + r}')
    A(f'buffer_store_dwordx4 v[{ACC}:{ACC + 3}], v{PUB}, s[48:51], s68 offen sc1')
    stampit(4)
    if prog:
        A('s_lshl_b32 s65, s2, 2')
        A('s_add_u32 s65, s65, s37')
        A('s_lshl_b32 s65, s65, 6')
        A(f's_add_u32 s65, s65, {STAMP_OFF + 65536}')
        A('v_lshlrev_b32 v11, 2, v1')
        A('s_mov_b64 exec, 0xffff')
        A('buffer_store_dword v10, v11, s[48:51], s65 offen')
        A('s_mov_b64 exec, -1')
    stamp_store()
    A('s_endpgm')

    A.label('L_helper')
    A('s_setprio 2')
    HB = 48
    XNB = 64
    HACC = 100
    WQ = 104
    NS = 38
    X = 24
    HP = 32
    E = 200
    A('s_mul_i32 s64, s33, 1152')
    A('s_add_u32 s40, s4, s64')
    A('s_addc_u32 s41, s5, 0')
    A('s_mov_b32 s42, 1152')
    A('s_mov_b32 s43, 0x20000')
    A('v_lshlrev_b32 v4, 2, v1')
    for k in range(5):
        A(f'buffer_load_dword v{X + k}, v4, s[40:43], 0 offen offset:{256 * k} {xpol}')
    A('s_mov_b32 s44, s10')
    A('s_mov_b32 s45, s11')
    A(f's_mov_b32 s46, {576 * 8192}')
    A('s_mov_b32 s47, 0x20000')
    A('v_lshrrev_b32 v5, 3, v2')
    A('v_lshl_add_u32 v5, v5, 2, v3')
    A(f's_mov_b32 s64, {72 * 8192}')
    A('v_mul_lo_u32 v6, v5, s64')
    A('v_and_b32 v7, 7, v2')
    A('v_lshl_add_u32 v6, v7, 4, v6')
    A('s_lshl_b32 s38, s34, 9')
    A('s_lshl_b32 s64, s30, 7')
    A('s_add_u32 s38, s38, s64')
    A('s_mov_b32 s72, -1')
    A('s_mov_b32 s73, 0')
    A('s_barrier')

    def wqload(t):
        r = WQ + (t % NS) * 4
        A(f'buffer_load_dwordx4 v[{r}:{r + 3}], v6, s[44:47], s38 offen {wqpol}')
        A('s_add_u32 s38, s38, 0x2000')

    for t in range(first_wq):
        wqload(t)

    def allred64(v, t):
        for m in ('quad_perm:[1,0,3,2]', 'quad_perm:[2,3,0,1]', 'row_half_mirror', 'row_mirror'):
            A.nop(2)
            A(f'v_add_f32_dpp v{v}, v{v}, v{v} {m} {DPP}')
        allred_g('v_add_f32', v, t)

    def layernorm(src, dst, E):
        D = E + 10
        a, b, c = E + 20, E + 21, E + 22
        for k in range(5):
            A(f'v_lshlrev_b32 v{E + 2 * k}, 16, v{src + k}')
            A(f'v_and_b32 v{E + 2 * k + 1}, 0xffff0000, v{src + k}')
        A(f'v_add_f32 v{a}, v{E}, v{E + 1}')
        A(f'v_add_f32 v{b}, v{E + 2}, v{E + 3}')
        for n in range(4, 10, 2):
            A(f'v_add_f32 v{a}, v{a}, v{E + n}')
            A(f'v_add_f32 v{b}, v{b}, v{E + n + 1}')
        A(f'v_add_f32 v{a}, v{a}, v{b}')
        allred64(a, b)
        A(f'v_mul_f32 v{a}, {f32(1.0 / 576)}, v{a}')
        for n in range(10):
            A(f'v_sub_f32 v{D + n}, v{E + n}, v{a}')
        A(f'v_cndmask_b32 v{D + 8}, 0, v{D + 8}, s[72:73]')
        A(f'v_cndmask_b32 v{D + 9}, 0, v{D + 9}, s[72:73]')
        A(f'v_mul_f32 v{b}, v{D}, v{D}')
        A(f'v_mul_f32 v{c}, v{D + 1}, v{D + 1}')
        for n in range(2, 10, 2):
            A(f'v_fmac_f32 v{b}, v{D + n}, v{D + n}')
            A(f'v_fmac_f32 v{c}, v{D + n + 1}, v{D + n + 1}')
        A(f'v_add_f32 v{b}, v{b}, v{c}')
        allred64(b, c)
        A(f'v_mul_f32 v{b}, {f32(1.0 / 576)}, v{b}')
        A(f'v_cvt_pk_bf16_f32 v{b}, 0, v{b}')
        A(f'v_add_f32 v{b}, {f32(1e-5)}, v{b}')
        A(f'v_cvt_pk_bf16_f32 v{b}, 0, v{b}')
        A(f'v_sqrt_f32 v{b}, v{b}')
        A(f'v_cvt_pk_bf16_f32 v{a}, 0, v{a}')
        A(f'v_cvt_pk_bf16_f32 v{b}, 0, v{b}')
        A(f'v_rcp_f32 v{b}, v{b}')
        for n in range(10):
            A(f'v_sub_f32 v{D + n}, v{E + n}, v{a}')
        for n in range(10):
            A(f'v_cvt_pk_bf16_f32 v{D + n}, 0, v{D + n}')
        for n in range(10):
            A(f'v_mul_f32 v{D + n}, v{D + n}, v{b}')
        for k in range(5):
            A(f'v_cvt_pk_bf16_f32 v{dst + k}, v{D + 2 * k}, v{D + 2 * k + 1}')
        A(f'v_cndmask_b32 v{dst + 4}, 0, v{dst + 4}, s[72:73]')

    A(f's_waitcnt vmcnt({first_wq})')
    if hst: stampit(4)
    layernorm(X, X, E)
    if hst: stampit(5)
    A('s_mul_i32 s64, s30, 1280')
    A('s_add_u32 s64, s64, 1024')
    A('v_add_u32 v8, s64, v4')
    for k in range(5):
        A(f'ds_write_b32 v8, v{X + k} offset:{256 * k}')
    A('v_mul_u32_u24 v9, 144, v5')
    A('v_add_u32 v9, s64, v9')
    A('s_waitcnt lgkmcnt(0)')
    for n in range(9):
        A(f'ds_read_b128 v[{XNB + 4 * n}:{XNB + 4 * n + 3}], v9 offset:{16 * n}')
    for t in range(first_wq, NS):
        wqload(t)
    A('s_waitcnt lgkmcnt(0)')
    build_b(HB, XNB, 0)
    for t in range(72):
        if t + 1 < 72:
            build_b(HB + 4 * ((t + 1) & 1), XNB + (t + 1) // 2, (t + 1) & 1)
        else:
            A.nop(1)
        issued = min(72, NS + t)
        A(f's_waitcnt vmcnt({issued - t - 1})')
        if hst and t == 0: stampit(6)
        r = WQ + (t % NS) * 4
        b = HB + 4 * (t & 1)
        c = '0' if t == 0 else f'v[{HACC}:{HACC + 3}]'
        A(f'v_mfma_f32_16x16x32_bf16 v[{HACC}:{HACC + 3}], v[{r}:{r + 3}], v[{b}:{b + 3}], {c}')
        if t + NS < 72:
            wqload(t + NS)
            if t + NS == 71:
                stampit(1)
                A('s_barrier')
    A('v_lshlrev_b32 v10, 6, v3')
    A('v_lshl_add_u32 v10, v7, 1, v10')
    A('s_lshl_b32 s64, s30, 7')
    A('v_add_u32 v10, s64, v10')
    A.nop(4)
    for r in range(4):
        A(f'v_permlane32_swap_b32 v{HACC + r}, v{HB + r}')
    A.nop(1)
    for r in range(4):
        A(f'v_add_f32_dpp v{HACC + r}, v{HB + r}, v{HACC + r} row_ror:8 {DPP}')
    for r in range(4):
        A(f'v_cvt_pk_bf16_f32 v{HACC + r}, v{HACC + r}, v{HACC + r}')
    A('s_mov_b64 exec, 0x00ff00ff')
    for r in range(4):
        A(f'ds_write_b16 v10, v{HACC + r} offset:{16 * r}')
    A('s_mov_b64 exec, -1')
    A('s_waitcnt lgkmcnt(0)')
    stampit(2)
    A('s_barrier')

    A('s_mov_b32 s60, s26')
    A('s_mov_b32 s61, s27')
    A('s_mov_b32 s62, 256')
    A('s_mov_b32 s63, 0x20000')
    A('s_lshl_b32 s74, s36, 14')
    A('v_lshlrev_b32 v11, 4, v1')
    A('v_mov_b32 v12, 0')
    A('s_cmp_lg_u32 s30, 3')
    A('s_cbranch_scc1 L_noreset')
    for r in range(4):
        A(f'v_mov_b32 v{HB + r}, -1')
    for n in range(4):
        A(f'buffer_store_dwordx4 v[{HB}:{HB + 3}], v11, s[48:51], s74 offen offset:{1024 * n} sc1')
    A(f's_add_u32 s64, s74, {L1ML}')
    A('s_mov_b64 exec, 0xffff')
    A(f'buffer_store_dwordx4 v[{HB}:{HB + 3}], v11, s[48:51], s64 offen sc1')
    A('s_mov_b64 exec, -1')
    A('s_cmp_ge_u32 s35, 72')
    A('s_cbranch_scc1 L_reset_done')
    for reg in (L2A, L2B):
        A(f's_add_u32 s64, s74, {reg}')
        for n in range(4):
            A(f'buffer_store_dwordx4 v[{HB}:{HB + 3}], v11, s[48:51], s64 offen offset:{1024 * n} sc1')
    A.label('L_reset_done')
    A('v_mov_b32 v13, 1')
    A('s_waitcnt vmcnt(0)')
    A('s_mov_b64 exec, 1')
    A('buffer_atomic_add v13, v12, s[60:63], 0 offen sc1')
    A('s_mov_b64 exec, -1')
    A.label('L_noreset')

    WO = 104
    A('s_mov_b32 s52, s12')
    A('s_mov_b32 s53, s13')
    A(f's_mov_b32 s54, {4096 * 1152}')
    A('s_mov_b32 s55, 0x20000')
    A('v_mul_u32_u24 v13, 1152, v5')
    A('v_lshl_add_u32 v13, v7, 4, v13')
    A(f's_mul_i32 s64, s35, {32 * 1152}')
    A('s_lshl_b32 s65, s30, 8')
    A('s_add_u32 s65, s65, s64')
    for t in range(4):
        for bl in range(2):
            r = WO + bl * 16 + t * 4
            A(f'buffer_load_dwordx4 v[{r}:{r + 3}], v13, s[52:55], s65 offen offset:{128 * bl} {wopol}')
        if t < 3:
            A(f's_add_u32 s65, s65, {8 * 1152}')
    A('s_cmp_lg_u32 s30, 0')
    A('s_cbranch_scc1 L_nowo8')
    for t in range(4):
        r = WO + 32 + t * 4
        A(f'buffer_load_dwordx4 v[{r}:{r + 3}], v13, s[52:55], s64 offen offset:1024 {wopol}')
        if t < 3:
            A(f's_add_u32 s64, s64, {8 * 1152}')
    A.label('L_nowo8')

    layernorm(X, HP, E)
    A('s_mul_i32 s64, s30, 1280')
    A('s_add_u32 s64, s64, 6144')
    A('v_add_u32 v8, s64, v4')
    for k in range(5):
        A(f'ds_write_b32 v8, v{HP + k} offset:{256 * k}')
    A('s_mul_i32 s65, s30, 36')
    A('v_min_u32 v14, 35, v1')
    A('v_add_u32 v14, s65, v14')
    A('v_lshrrev_b32 v15, 3, v14')
    A('v_lshlrev_b32 v15, 6, v15')
    A('v_and_b32 v16, 7, v14')
    A('v_lshl_add_u32 v15, v16, 1, v15')
    A('v_add_u32 v15, s64, v15')
    H = 160
    BA = 164
    U = 168
    A('s_waitcnt lgkmcnt(0)')
    for r in range(4):
        A(f'ds_read_u16 v{H + r}, v15 offset:{16 * r}')
    c0 = -2.0 * math.sqrt(2.0 / math.pi) * LOG2E
    A(f'v_mov_b32 v{U + 16}, {f32(c0)}')
    A(f'v_mov_b32 v{U + 17}, {f32(c0 * 0.044715)}')
    for r in range(4):
        A(f'v_mov_b32 v{BA + r}, 0')
    A('s_mul_i32 s75, s35, 72')
    A('s_mov_b32 s70, 9')
    A('s_waitcnt lgkmcnt(0)')
    for r in range(4):
        A(f'v_lshlrev_b32 v{H + r}, 16, v{H + r}')
    A.label('L_bloop')
    A('s_load_dwordx2 s[76:77], s[16:17], s75')
    A('s_load_dwordx2 s[78:79], s[18:19], s75')
    A('s_load_dwordx2 s[80:81], s[20:21], s75')
    A('s_add_u32 s75, s75, 8')
    A('s_waitcnt lgkmcnt(0)')
    for f in range(4):
        for k, base in enumerate((76, 78, 80)):
            src = base + f // 2
            if f % 2 == 0:
                A(f's_lshl_b32 s{64 + k}, s{src}, 16')
            else:
                A(f's_and_b32 s{64 + k}, s{src}, 0xffff0000')
        for r in range(4):
            A(f'v_mul_f32 v{U + r}, s64, v{H + r}')
        for r in range(4):
            A(f'v_cvt_pk_bf16_f32 v{U + r}, 0, v{U + r}')
        for r in range(4):
            A(f'v_add_f32 v{U + r}, s65, v{U + r}')
        for r in range(4):
            A(f'v_cvt_pk_bf16_f32 v{U + r}, 0, v{U + r}')
        for r in range(4):
            A(f'v_mul_f32 v{U + 4 + r}, v{U + r}, v{U + r}')
        for r in range(4):
            A(f'v_fma_f32 v{U + 4 + r}, v{U + 4 + r}, v{U + 17}, v{U + 16}')
        for r in range(4):
            A(f'v_mul_f32 v{U + 4 + r}, v{U + 4 + r}, v{U + r}')
        for r in range(4):
            A(f'v_exp_f32 v{U + 4 + r}, v{U + 4 + r}')
        for r in range(4):
            A(f'v_add_f32 v{U + 4 + r}, 1.0, v{U + 4 + r}')
        for r in range(4):
            A(f'v_rcp_f32 v{U + 4 + r}, v{U + 4 + r}')
        for r in range(4):
            A(f'v_mul_f32 v{U + r}, v{U + r}, v{U + 4 + r}')
        for r in range(4):
            A(f'v_cvt_pk_bf16_f32 v{U + r}, 0, v{U + r}')
        for r in range(4):
            A(f'v_fmac_f32 v{BA + r}, s66, v{U + r}')
    A('s_sub_u32 s70, s70, 1')
    A('s_cmp_lg_u32 s70, 0')
    A('s_cbranch_scc1 L_bloop')
    for r in range(4):
        A(f'v_min_u32 v{BA + r}, -2, v{BA + r}')
    A('v_lshrrev_b32 v15, 1, v14')
    A('v_lshlrev_b32 v15, 14, v15')
    A('v_and_b32 v16, 1, v14')
    A('v_lshl_add_u32 v15, v16, 4, v15')
    A('s_lshl_b32 s82, s33, 21')
    A('s_lshl_b32 s64, s35, 5')
    A('s_add_u32 s82, s82, s64')
    A('s_barrier')
    A(f's_mov_b32 s70, {SPIN_MAX}')
    A.label('L_cnt')
    A('buffer_load_dword v17, v12, s[60:63], 0 offen sc1')
    A('s_waitcnt vmcnt(0)')
    A('v_readfirstlane_b32 s64, v17')
    A('s_sub_u32 s70, s70, 1')
    A('s_cmp_eq_u32 s70, 0')
    A('s_cbranch_scc1 L_cnt_done')
    A('s_cmp_ge_u32 s64, 256')
    A('s_cbranch_scc1 L_cnt_done')
    A('s_sleep 64')
    A('s_branch L_cnt')
    A.label('L_cnt_done')
    A(f's_add_u32 s64, s82, {L2B}')
    A('s_mov_b32 exec_lo, -1')
    A('s_mov_b32 exec_hi, 0xf')
    A(f'buffer_store_dwordx4 v[{BA}:{BA + 3}], v15, s[48:51], s64 offen sc1')
    A('s_mov_b64 exec, -1')

    G = 176
    FB, FX, FO = 192, 193, 194

    def gather128(reg_off, lab, sleep):
        A(f's_add_u32 s64, s74, {reg_off}')
        A(f's_mov_b32 s70, {SPIN_MAX}')
        A.label(lab)
        for k in range(4):
            A(f'buffer_load_dwordx4 v[{G + 4 * k}:{G + 4 * k + 3}], v11, s[48:51], s64 offen offset:{1024 * k} sc1')
        A('s_sub_u32 s70, s70, 1')
        A('s_cmp_eq_u32 s70, 0')
        A('s_waitcnt vmcnt(0)')
        A(f's_cbranch_scc1 {lab}_done')
        A(f'v_max3_u32 v17, v{G}, v{G + 1}, v{G + 2}')
        A(f'v_max3_u32 v18, v{G + 3}, v{G + 4}, v{G + 5}')
        for n in range(6, 14, 4):
            A(f'v_max3_u32 v17, v17, v{G + n}, v{G + n + 1}')
            A(f'v_max3_u32 v18, v18, v{G + n + 2}, v{G + n + 3}')
        A(f'v_max3_u32 v17, v17, v{G + 14}, v{G + 15}')
        A('v_max_u32 v17, v17, v18')
        A('v_cmp_eq_u32 vcc, -1, v17')
        A(f's_cbranch_vccz {lab}_done')
        if sleep:
            A(f's_sleep {sleep}')
        A(f's_branch {lab}')
        A.label(lab + '_done')
        for r in range(4):
            A(f'v_add_f32 v{G + r}, v{G + r}, v{G + 4 + r}')
            A(f'v_add_f32 v{G + 8 + r}, v{G + 8 + r}, v{G + 12 + r}')
        for r in range(4):
            A(f'v_add_f32 v{G + r}, v{G + r}, v{G + 8 + r}')
        A.nop(1)
        A(f'v_permlane32_swap_b32 v{G}, v{G + 1}')
        A(f'v_permlane32_swap_b32 v{G + 2}, v{G + 3}')
        A(f'v_add_f32 v{G}, v{G}, v{G + 1}')
        A(f'v_add_f32 v{G + 2}, v{G + 2}, v{G + 3}')
        A.nop(2)
        A(f'v_permlane16_swap_b32 v{G}, v{G + 2}')
        A(f'v_add_f32 v{G}, v{G}, v{G + 2}')
        for sh in (8, 4, 2):
            A.nop(2)
            A(f'v_add_f32_dpp v{G}, v{G}, v{G} row_ror:{sh} {DPP}')

    A('s_barrier')
    A('s_mov_b32 s83, 0')
    A('s_cmp_lg_u32 s30, 1')
    A('s_cbranch_scc1 L_nofin1')
    A('s_cmp_ge_u32 s35, 72')
    A('s_cbranch_scc1 L_nofin1')
    A('s_mov_b32 s83, 1')
    A('v_and_b32 v17, 1, v3')
    A('v_lshrrev_b32 v18, 1, v3')
    A('v_lshl_add_u32 v17, v17, 1, v18')
    A('v_and_b32 v18, 1, v1')
    A('v_lshl_add_u32 v17, v17, 3, v18')
    A('s_lshr_b32 s64, s35, 2')
    A('s_lshl_b32 s64, s64, 5')
    A('s_and_b32 s65, s35, 3')
    A('s_lshl_b32 s65, s65, 1')
    A('s_add_u32 s64, s64, s65')
    A('v_add_u32 v17, s64, v17')
    A(f'v_lshlrev_b32 v{FO}, 1, v17')
    A(f'buffer_load_ushort v{FX}, v{FO}, s[40:43], 0 offen')
    A(f'global_load_ushort v{FB}, v12, s[22:23]')
    gather128(L2B, 'L_gb', 64)
    A(f'v_lshlrev_b32 v{FX}, 16, v{FX}')
    A(f'v_lshlrev_b32 v{FB}, 16, v{FB}')
    A(f'v_cvt_pk_bf16_f32 v{G}, 0, v{G}')
    A(f'v_add_f32 v{FB}, v{G}, v{FB}')
    A(f'v_cvt_pk_bf16_f32 v{FB}, 0, v{FB}')
    A.label('L_nofin1')
    A('s_mul_i32 s64, s33, 1152')
    A('s_add_u32 s56, s24, s64')
    A('s_addc_u32 s57, s25, 0')
    A('s_mov_b32 s58, 1152')
    A('s_mov_b32 s59, 0x20000')
    A('v_lshlrev_b32 v19, 9, v7')
    A('v_lshl_add_u32 v19, v5, 4, v19')
    A('v_lshlrev_b32 v20, 5, v7')
    A(f's_add_u32 s75, s74, {L1ML}')
    A('v_lshrrev_b32 v21, 1, v7')
    A('v_lshl_add_u32 v21, v3, 2, v21')
    A('v_lshlrev_b32 v21, 14, v21')
    A('v_and_b32 v22, 1, v2')
    A('v_lshl_add_u32 v21, v22, 4, v21')
    A(f's_add_u32 s82, s82, {L2A}')
    A('s_lshl_b32 s64, s30, 18')
    A('s_add_u32 s76, s82, s64')
    A(f's_add_u32 s77, s82, {64 * INBOX}')
    A('s_waitcnt vmcnt(0)')
    stampit(3)
    A('s_barrier')
    if dbgtime > 1:
        A('s_memrealtime s[96:97]')
        A('s_waitcnt lgkmcnt(0)')
        A('s_sub_u32 s96, s96, s98')
        A('v_mov_b32 v13, s96')
        A('s_mov_b64 exec, 1')
        A('buffer_atomic_umax v13, v12, s[60:63], 0 offen offset:12 sc1')
        A('buffer_atomic_add v13, v12, s[60:63], 0 offen offset:16 sc1')
        A('s_mov_b64 exec, -1')

    O = 200
    ML = 216
    W = 224
    A(f's_mov_b32 s70, {SPIN_MAX}')
    A.label('L_p1')
    for n in range(2):
        A(f'buffer_load_dwordx4 v[{ML + 4 * n}:{ML + 4 * n + 3}], v20, s[48:51], s75 offen offset:{16 * n} sc1')
    for n in range(4):
        A(f'buffer_load_dwordx4 v[{O + 4 * n}:{O + 4 * n + 3}], v19, s[48:51], s74 offen offset:{128 * n} sc1')
    A('s_sub_u32 s70, s70, 1')
    A('s_cmp_eq_u32 s70, 0')
    A('s_waitcnt vmcnt(0)')
    A('s_cbranch_scc1 L_p1_done')
    A(f'v_max3_u32 v17, v{O}, v{O + 1}, v{O + 2}')
    A(f'v_max3_u32 v18, v{O + 3}, v{O + 4}, v{O + 5}')
    for n in range(6, 22, 4):
        A(f'v_max3_u32 v17, v17, v{O + n}, v{O + n + 1}')
        A(f'v_max3_u32 v18, v18, v{O + n + 2}, v{O + n + 3}')
    A(f'v_max3_u32 v17, v17, v{O + 22}, v{O + 23}')
    A('v_max_u32 v17, v17, v18')
    A('v_cmp_eq_u32 vcc, -1, v17')
    if psleep:
        A('s_cbranch_vccz L_p1_done')
        A(f's_sleep {psleep}')
        A('s_branch L_p1')
    else:
        A('s_cbranch_vccnz L_p1')
    A.label('L_p1_done')
    if not hst: stampit(4)
    A(f'v_max_f32 v17, v{ML}, v{ML + 2}')
    A(f'v_max3_f32 v17, v17, v{ML + 4}, v{ML + 6}')
    for m in ('quad_perm:[1,0,3,2]', 'quad_perm:[2,3,0,1]', 'row_half_mirror'):
        A.nop(2)
        A(f'v_max_f32_dpp v17, v17, v17 {m} {DPP}')
    for n in range(4):
        A(f'v_sub_f32 v{W + n}, v{ML + 2 * n}, v17')
    for n in range(4):
        A(f'v_exp_f32 v{W + n}, v{W + n}')
    R = W + 4
    A(f'v_mul_f32 v{R + 4}, v{W}, v{ML + 1}')
    for t in range(4):
        A(f'v_mul_f32 v{R + t}, v{W}, v{O + t}')
    for n in range(1, 4):
        A(f'v_fmac_f32 v{R + 4}, v{W + n}, v{ML + 2 * n + 1}')
        for t in range(4):
            A(f'v_fmac_f32 v{R + t}, v{W + n}, v{O + 4 * n + t}')
    for m in ('quad_perm:[1,0,3,2]', 'quad_perm:[2,3,0,1]', 'row_half_mirror'):
        for q in (4, 0, 1, 2, 3):
            A(f'v_add_f32_dpp v{R + q}, v{R + q}, v{R + q} {m} {DPP}')
    A(f'v_rcp_f32 v{R + 4}, v{R + 4}')
    A.nop(1)
    for t in range(4):
        A(f'v_mul_f32 v{R + t}, v{R + t}, v{R + 4}')
    A(f'v_cvt_pk_bf16_f32 v{W}, v{R}, v{R + 1}')
    A(f'v_cvt_pk_bf16_f32 v{W + 1}, v{R + 2}, v{R + 3}')
    for t in range(4):
        build_b(HB + 4 * t, W + t // 2, t & 1)
    DX, DY, DZ = 236, 240, 244
    A.nop(1)
    for t in range(4):
        for bl, D in ((0, DX), (1, DY)):
            r = WO + bl * 16 + t * 4
            c = '0' if t == 0 else f'v[{D}:{D + 3}]'
            A(f'v_mfma_f32_16x16x32_bf16 v[{D}:{D + 3}], v[{r}:{r + 3}], v[{HB + 4 * t}:{HB + 4 * t + 3}], {c}')
    A('s_cmp_lg_u32 s30, 0')
    A('s_cbranch_scc1 L_nob8a')
    for t in range(4):
        r = WO + 32 + t * 4
        c = '0' if t == 0 else f'v[{DZ}:{DZ + 3}]'
        A(f'v_mfma_f32_16x16x32_bf16 v[{DZ}:{DZ + 3}], v[{r}:{r + 3}], v[{HB + 4 * t}:{HB + 4 * t + 3}], {c}')
    A.label('L_nob8a')
    A.nop(8)
    for r in range(4):
        A(f'v_permlane32_swap_b32 v{DX + r}, v{DY + r}')
    A.nop(1)
    for r in range(4):
        A(f'v_add_f32_dpp v{DX + r}, v{DY + r}, v{DX + r} row_ror:8 {DPP}')
    for r in range(4):
        A(f'v_min_u32 v{DX + r}, -2, v{DX + r}')
    A('s_mov_b32 exec_lo, 0x00ff00ff')
    A('s_mov_b32 exec_hi, 0x00ff00ff')
    A(f'buffer_store_dwordx4 v[{DX}:{DX + 3}], v21, s[48:51], s76 offen sc1')
    A('s_mov_b64 exec, -1')
    A('s_cmp_lg_u32 s30, 0')
    A('s_cbranch_scc1 L_nob8b')
    for r in range(4):
        A(f'v_permlane32_swap_b32 v{DZ + r}, v{DY + r}')
    A.nop(1)
    for r in range(4):
        A(f'v_add_f32_dpp v{DZ + r}, v{DY + r}, v{DZ + r} row_ror:8 {DPP}')
    for r in range(4):
        A(f'v_min_u32 v{DZ + r}, -2, v{DZ + r}')
    A('s_mov_b64 exec, 0x00ff00ff')
    A(f'buffer_store_dwordx4 v[{DZ}:{DZ + 3}], v21, s[48:51], s77 offen sc1')
    A('s_mov_b64 exec, -1')
    A.label('L_nob8b')
    if not hst: stampit(5)
    A('s_cmp_eq_u32 s83, 0')
    A('s_cbranch_scc1 L_hend')
    gather128(L2A, 'L_ga', psleep)
    A(f'v_cvt_pk_bf16_f32 v{G}, 0, v{G}')
    A(f'v_add_f32 v{G}, v{FX}, v{G}')
    A(f'v_cvt_pk_bf16_f32 v{G}, 0, v{G}')
    A(f'v_add_f32 v{G}, v{G}, v{FB}')
    A(f'v_cvt_pk_bf16_f32 v{G}, v{G}, v{G}')
    A('s_mov_b32 exec_lo, 0x00030003')
    A('s_mov_b32 exec_hi, 0x00030003')
    A(f'buffer_store_short v{G}, v{FO}, s[56:59], 0 offen')
    A('s_mov_b64 exec, -1')
    if not hst: stampit(6)
    if dbgtime:
        A('s_memrealtime s[96:97]')
        A('s_waitcnt lgkmcnt(0)')
        A('s_sub_u32 s96, s96, s98')
        A('v_mov_b32 v13, s96')
        A('s_mov_b64 exec, 1')
        A('buffer_atomic_umax v13, v12, s[60:63], 0 offen offset:8 sc1')
    A.label('L_hend')
    stamp_store()
    A.label('L_end')
    A('s_endpgm')
    A.L.append('.section .rodata,"a"')
    A.L.append('.p2align 6')
    A.L.append(f'.amdhsa_kernel {KN}_kernel')
    A('.amdhsa_next_free_vgpr 256')
    A('.amdhsa_next_free_sgpr 102')
    A('.amdhsa_accum_offset 256')
    A('.amdhsa_group_segment_fixed_size 0')
    A('.amdhsa_kernarg_size 104')
    A('.amdhsa_user_sgpr_count 2')
    A('.amdhsa_user_sgpr_kernarg_segment_ptr 1')
    A('.amdhsa_system_sgpr_workgroup_id_x 1')
    A.L.append('.end_amdhsa_kernel')
    return A.text()


if __name__ == '__main__':
    out = sys.argv[1] if len(sys.argv) > 1 else 'cdna_kernels/' + KN + '.s'
    kw = {}
    for a in sys.argv[2:]:
        k, v = a.split('=')
        kw[k] = int(v) if v.lstrip('-').isdigit() else v
    open(out, 'w').write(gen(**kw))
    print('wrote', out)
```

```python
import struct, sys, math

KN = 'parallel_sum__gqa_block_cached__mixer_token_mlp__decode'


def f32(x):
    return '0x%08x' % struct.unpack('<I', struct.pack('<f', x))[0]


HEADER = open('cdna_kernels/' + KN + '.s.ref').read().split('; Override launch')[0]

LOG2E = 1.4426950408889634
INBOX = 16384
L1ML = 4096
POOL = 4608
L2A = 8192
QX = 256 * INBOX
EPOCH = QX + 65536
WS_SIZE = EPOCH + 256
STAMP_OFF = 8 << 20
SPIN_MAX = 200000
KVOOB = 0x100000
L_Q, L_XN, L_H, L_BP, L_CNT, L_WQ, L_SIZE = 0, 512, 2816, 5120, 5376, 6144, 6144 + 73728


class Asm:
    def __init__(self):
        self.L = []

    def __call__(self, s):
        self.L.append('  ' + s)

    def label(self, s):
        self.L.append(s + ':')

    def nop(self, n):
        while n > 0:
            k = min(n, 16)
            self('s_nop %d' % (k - 1))
            n -= k

    def text(self):
        return '\n'.join(self.L) + '\n'


DPP = 'row_mask:0xf bank_mask:0xf'


def gen(wgmap='lin', kvpol='nt', wqpol='nt', wopol='nt', stamp=0, prog=0, psleep=4, infl=8, infl0=8,
        c1=31, c2=16, qsleep=8, qdelay=40, bpol='', boostp=12, boostf=3, endfree=6, hpace=3, npoll=4):
    ns = 64
    assert (ns - 9 - c1) % 3 == 0 and (ns - 9 - c2) % 3 == 0 and c1 > c2 > 0
    A = Asm()
    A.L.append(HEADER.rstrip('\n'))
    A.L.append(f'; @launch grid=(256,1,1) block=(512,1,1) lds={L_SIZE}')
    A.L.append('.amdgcn_target "amdgcn-amd-amdhsa--gfx950"')
    A.L.append('.text')
    A.L.append(f'.globl {KN}_kernel')
    A.L.append('.p2align 8')
    A.L.append(f'.type {KN}_kernel,@function')
    A.label(f'{KN}_kernel')
    ws_size = (STAMP_OFF + 65536 + 131072) if stamp else WS_SIZE

    def stampit(k):
        if stamp:
            A(f's_memrealtime s[{84 + 2 * k}:{85 + 2 * k}]')

    def stamp_store():
        if not stamp:
            return
        A('s_waitcnt lgkmcnt(0) vmcnt(0)')
        A('s_getreg_b32 s64, hwreg(HW_REG_XCC_ID)')
        A('s_lshl_b32 s65, s2, 3')
        A('s_add_u32 s65, s65, s30')
        A('s_lshl_b32 s65, s65, 5')
        A(f's_add_u32 s65, s65, {STAMP_OFF}')
        A('s_mov_b64 exec, 1')
        A('v_mov_b32 v4, 0')
        for k in range(7):
            A(f'v_mov_b32 v5, s{84 + 2 * k}')
            A(f'buffer_store_dword v5, v4, s[48:51], s65 offen offset:{4 * k}')
        A('v_mov_b32 v5, s64')
        A(f'buffer_store_dword v5, v4, s[48:51], s65 offen offset:28')
        A('s_waitcnt vmcnt(0)')

    SEL = 40

    def make_sel():
        A('v_and_b32 v4, 7, v2')
        A('v_lshrrev_b32 v5, 1, v4')
        A('v_and_b32 v6, 1, v4')
        A('v_mov_b32 v7, 0x0c0c0100')
        A('v_mov_b32 v8, 0x01000c0c')
        A('v_cmp_eq_u32 vcc, 1, v6')
        A('v_mov_b32 v9, 0x0c0c0302')
        A('v_mov_b32 v10, 0x03020c0c')
        A('v_cndmask_b32 v7, v7, v8, vcc')
        A('v_cndmask_b32 v9, v9, v10, vcc')
        A('v_mov_b32 v8, 0x0c0c0c0c')
        for d in range(4):
            A(f'v_cmp_eq_u32 vcc, {d}, v5')
            A.nop(2)
            A(f'v_cndmask_b32 v{SEL + d}, v8, v7, vcc')
            A(f'v_cndmask_b32 v{SEL + 4 + d}, v8, v9, vcc')

    def build_b(dst, src, odd):
        for d in range(4):
            A(f'v_perm_b32 v{dst + d}, v{src}, v{src}, v{SEL + 4 * odd + d}')

    def swapred(sw, op, v, t):
        A(f'v_mov_b32 v{t}, v{v}')
        A.nop(2)
        A(f'{sw} v{v}, v{t}')
        A(f'{op} v{v}, v{v}, v{t}')

    def allred_g(op, v, t):
        swapred('v_permlane16_swap_b32', op, v, t)
        swapred('v_permlane32_swap_b32', op, v, t)

    def allred_row(v):
        for m in ('quad_perm:[1,0,3,2]', 'quad_perm:[2,3,0,1]', 'row_half_mirror', 'row_mirror'):
            A.nop(2)
            A(f'v_add_f32_dpp v{v}, v{v}, v{v} {m} {DPP}')

    A('s_cmp_ge_u32 s2, 256')
    A('s_cbranch_scc1 L_end')
    if stamp:
        for k in range(7):
            A(f's_mov_b64 s[{84 + 2 * k}:{85 + 2 * k}], 0')
    stampit(0)
    A('s_load_dwordx16 s[4:19], s[0:1], 0')
    A('s_load_dwordx8 s[20:27], s[0:1], 64')
    A('s_load_dwordx2 s[28:29], s[0:1], 96')
    A('v_lshrrev_b32 v1, 6, v0')
    A('v_and_b32 v2, 15, v0')
    A('v_readfirstlane_b32 s30, v1')
    A('v_and_b32 v1, 63, v0')
    A('v_lshrrev_b32 v3, 4, v1')
    if wgmap == 'xcd':
        A('s_and_b32 s31, s2, 7')
        A('s_lshr_b32 s64, s2, 3')
        A('s_and_b32 s32, s64, 7')
        A('s_and_b32 s64, s64, 24')
        A('s_add_u32 s31, s31, s64')
    else:
        A('s_lshr_b32 s31, s2, 3')
        A('s_and_b32 s32, s2, 7')
    A('s_lshr_b32 s33, s31, 4')
    A('s_and_b32 s34, s31, 15')
    A('s_lshl_b32 s35, s34, 3')
    A('s_add_u32 s35, s35, s32')
    A('s_lshl_b32 s36, s31, 3')
    A('s_add_u32 s36, s36, s32')
    A('s_sub_u32 s64, s32, s31')
    A('s_and_b32 s64, s64, 7')
    A('s_lshr_b32 s65, s64, 2')
    A('s_lshl_b32 s72, s31, 1')
    A('s_add_u32 s72, s72, s65')
    A('s_sub_u32 s66, s64, s65')
    A('s_sub_u32 s66, s66, 1')
    A('s_and_b32 s67, s34, 1')
    A('s_lshr_b32 s73, s34, 1')
    A('s_mul_i32 s73, s73, 9')
    A('s_lshl_b32 s68, s67, 2')
    A('s_add_u32 s73, s73, s68')
    A('s_add_u32 s73, s73, s66')
    A('s_add_u32 s67, s67, 4')
    A('s_cmp_lt_u32 s66, s67')
    A('s_cselect_b32 s3, 2, 0')
    A('s_and_b32 s64, s64, 3')
    A('s_cmp_eq_u32 s64, 0')
    A('s_cselect_b32 s3, 1, s3')
    A(f's_mov_b32 s50, {ws_size}')
    A('s_mov_b32 s51, 0x20000')
    A('s_cmp_lt_u32 s30, 4')
    A('s_cbranch_scc1 L_helper')

    RING, Q, BS, S, ACC, PK = 64, 48, 32, 24, 20, 16
    VK, VV = 12, 13
    M2, LS, AL, T0, T1, PUB = 4, 5, 6, 7, 8, 9
    SOFF = (52, 53, 54)
    SSTAT, SCNT, SRANGE = 38, 39, 55
    A('s_sub_u32 s37, s30, 4')
    A('s_lshl_b32 s64, s36, 20')
    A(f's_lshl_b32 s{SSTAT}, s37, 12')
    A(f's_mov_b32 s42, {KVOOB}')
    A('s_mov_b32 s43, 0x20000')
    A(f's_mov_b32 s46, {KVOOB}')
    A('s_mov_b32 s47, 0x20000')
    A(f'v_and_b32 v{T0}, 3, v2')
    A(f'v_lshlrev_b32 v{T0}, 10, v{T0}')
    A(f'v_lshrrev_b32 v{T1}, 2, v2')
    A(f'v_lshl_add_u32 v{T0}, v{T1}, 8, v{T0}')
    A(f'v_lshl_add_u32 v{VK}, v3, 4, v{T0}')
    A(f'v_lshlrev_b32 v{VV}, 4, v1')
    A('s_waitcnt lgkmcnt(0)')
    A('s_add_u32 s40, s6, s64')
    A('s_addc_u32 s41, s7, 0')
    A('s_add_u32 s44, s8, s64')
    A('s_addc_u32 s45, s9, 0')
    A('s_mov_b32 s48, s28')
    A('s_mov_b32 s49, s29')
    A('s_barrier')

    def kloads(slot, so):
        for s in range(4):
            r = RING + slot * 32 + s * 4
            A(f'buffer_load_dwordx4 v[{r}:{r + 3}], v{VK}, s[40:43], s{so} offen offset:{s * 64} {kvpol}')

    def vloads(slot, so):
        for s in range(4):
            r = RING + slot * 32 + 16 + s * 4
            A(f'buffer_load_dwordx4 v[{r}:{r + 3}], v{VV}, s[44:47], s{so} offen offset:{s * 1024} {kvpol}')

    order0 = (0, 3, 1, 4, 2, 5)
    n = 0
    for slot in order0:
        for f in (kloads, vloads):
            if n + 4 > infl0:
                A(f's_waitcnt vmcnt({infl0 - 4})')
            f(slot, SSTAT)
            n += 4
            if n == 8:
                make_sel()
                for r in range(4):
                    A(f'v_mov_b32 v{ACC + r}, 0')
                A(f'v_mov_b32 v{LS}, 0')
                A(f'v_mov_b32 v{M2}, {f32(-3.0e38)}')
                A(f's_mov_b32 s66, {f32(128 ** -0.5)}')
                A(f's_mov_b32 s67, {f32(LOG2E)}')
                A(f'v_lshrrev_b32 v{T0}, 3, v2')
                A(f'v_lshl_add_u32 v{T0}, v{T0}, 2, v3')
                A(f'v_lshlrev_b32 v{T0}, 14, v{T0}')
                A(f'v_and_b32 v{T1}, 7, v2')
                A(f'v_lshl_add_u32 v{PUB}, v{T1}, 4, v{T0}')
                A('s_lshl_b32 s68, s31, 17')
                A('s_lshl_b32 s64, s32, 2')
                A('s_add_u32 s64, s64, s37')
                A('s_lshl_b32 s65, s64, 3')
                A('s_add_u32 s69, s68, s65')
                A(f's_add_u32 s69, s69, {L1ML}')
                A('s_lshl_b32 s65, s64, 7')
                A('s_add_u32 s68, s68, s65')
                A(f's_mov_b32 s{SCNT}, {ns - 6}')
                A('s_cmp_eq_u32 s3, 2')
                A(f's_cselect_b32 s{SRANGE}, {ns - 6 - boostf - endfree}, {ns - 6 - endfree}')
                A('s_cmp_eq_u32 s3, 1')
                A(f's_cselect_b32 s{SRANGE}, {ns - 6 - boostp - endfree}, s{SRANGE}')
                A('s_mov_b32 s71, 0')
                A(f'v_lshrrev_b32 v{T0}, 3, v2')
                A(f'v_lshlrev_b32 v{T0}, 8, v{T0}')
                A(f'v_lshl_add_u32 v{T0}, v3, 4, v{T0}')
        A(f's_add_u32 s{SSTAT}, s{SSTAT}, 0x4000')
    stampit(1)
    A('s_barrier')
    for s in range(4):
        A(f'ds_read_b128 v[{Q + 4 * s}:{Q + 4 * s + 3}], v{T0} offset:{L_Q + 64 * s}')
    stampit(2)
    A('s_waitcnt lgkmcnt(0)')

    def qk(slot, wk):
        A(f's_waitcnt vmcnt({wk})')
        for s in range(4):
            k = RING + slot * 32 + s * 4
            c = '0' if s == 0 else f'v[{S}:{S + 3}]'
            A(f'v_mfma_f32_16x16x32_bf16 v[{S}:{S + 3}], v[{k}:{k + 3}], v[{Q + 4 * s}:{Q + 4 * s + 3}], {c}')

    def softmax_pv(slot, wv):
        for n in range(4):
            A(f'v_cvt_pk_bf16_f32 v{S + n}, 0, v{S + n}')
        for n in range(4):
            A(f'v_mul_f32 v{S + n}, s66, v{S + n}')
        for n in range(4):
            A(f'v_cvt_pk_bf16_f32 v{S + n}, 0, v{S + n}')
        A(f'v_max3_f32 v{T0}, v{S}, v{S + 1}, v{S + 2}')
        A(f'v_max_f32 v{T0}, v{T0}, v{S + 3}')
        allred_g('v_max_f32', T0, T1)
        A(f'v_mul_f32 v{T0}, s67, v{T0}')
        A(f'v_max_f32 v{T0}, v{T0}, v{M2}')
        A(f'v_sub_f32 v{AL}, v{M2}, v{T0}')
        A(f'v_mov_b32 v{M2}, v{T0}')
        A(f'v_exp_f32 v{AL}, v{AL}')
        for n in range(4):
            A(f'v_fma_f32 v{S + n}, v{S + n}, s67, -v{M2}')
        for n in range(4):
            A(f'v_exp_f32 v{S + n}, v{S + n}')
        for r in range(4):
            A(f'v_mul_f32 v{ACC + r}, v{AL}, v{ACC + r}')
        A(f'v_cvt_pk_bf16_f32 v{PK}, v{S}, v{S + 1}')
        A(f'v_cvt_pk_bf16_f32 v{PK + 1}, v{S + 2}, v{S + 3}')
        build_b(BS, PK, 0)
        A(f'v_fma_f32 v{LS}, v{LS}, v{AL}, v{S}')
        A(f'v_add_f32 v{T0}, v{S + 1}, v{S + 2}')
        for n in range(4):
            if n + 1 < 4:
                build_b(BS + 4 * ((n + 1) & 1), PK + (n + 1) // 2, (n + 1) & 1)
            else:
                A(f'v_add_f32 v{LS}, v{LS}, v{S + 3}')
                A(f'v_add_f32 v{LS}, v{LS}, v{T0}')
            A(f's_waitcnt vmcnt({wv + 3 - n})')
            v = RING + slot * 32 + 16 + n * 4
            b = BS + 4 * (n & 1)
            A(f'v_mfma_f32_16x16x32_bf16 v[{ACC}:{ACC + 3}], v[{v}:{v + 3}], v[{b}:{b + 3}], v[{ACC}:{ACC + 3}]')

    lab = [0]

    def depth_wait():
        lab[0] += 1
        A(f's_sub_u32 s64, s{SCNT}, {endfree + 1}')
        A(f's_cmp_lt_u32 s64, s{SRANGE}')
        A(f's_cbranch_scc0 L_dw{lab[0]}')
        A(f's_waitcnt vmcnt({infl - 4})')
        A.label(f'L_dw{lab[0]}')

    def next_tile(so):
        A(f's_cmp_eq_u32 s{SCNT}, 0')
        A(f's_cselect_b32 s{so}, {KVOOB}, s{SSTAT}')
        A('s_cselect_b32 s64, 0, 1')
        A(f's_sub_u32 s{SCNT}, s{SCNT}, s64')
        A(f's_add_u32 s{SSTAT}, s{SSTAT}, 0x4000')

    outst = []
    for slot in order0:
        outst += [('K', slot, 0)] * 4 + [('V', slot, 0)] * 4

    def younger(tag):
        last = max(i for i, t in enumerate(outst) if t == tag)
        return len(outst) - 1 - last

    for slot in order0:
        qk(slot, younger(('K', slot, 0)))
        if slot < 3:
            next_tile(SOFF[slot])
            depth_wait()
            kloads(slot, SOFF[slot])
            outst += [('K', slot, 1)] * 4
        else:
            A.nop(8)
        softmax_pv(slot, younger(('V', slot, 0)))
        if slot < 3:
            depth_wait()
            vloads(slot, SOFF[slot])
            outst += [('V', slot, 1)] * 4
    assert younger(('K', 0, 1)) == 20

    A.label('L_sloop')
    A(f's_cmp_eq_u32 s{SCNT}, {c1}')
    A('s_cbranch_scc1 L_sbar')
    A(f's_cmp_eq_u32 s{SCNT}, {c2}')
    A('s_cbranch_scc0 L_snobar')
    A.label('L_sbar')
    A('s_barrier')
    A.label('L_snobar')
    if prog:
        A('s_memrealtime s[98:99]')
        A('s_mov_b32 m0, s71')
        A('s_add_u32 s71, s71, 1')
        A('s_waitcnt lgkmcnt(0)')
        A('v_writelane_b32 v10, s98, m0')
    for k in range(3):
        qk(k, 20)
        so = SOFF[k]
        next_tile(so)
        depth_wait()
        kloads(k, so)
        softmax_pv(k, 20)
        A(f's_cmp_eq_u32 s{SOFF[(k + 1) % 3]}, {KVOOB}')
        A('s_cbranch_scc1 L_sdone')
        depth_wait()
        vloads(k, so)
    A('s_branch L_sloop')
    A.label('L_sdone')
    stampit(3)
    allred_g('v_add_f32', LS, T1)
    for r in range(4):
        A(f'v_min_u32 v{ACC + r}, -2, v{ACC + r}')
    A(f'buffer_store_dwordx4 v[{ACC}:{ACC + 3}], v{PUB}, s[48:51], s68 offen sc1')
    A(f'v_min_u32 v{M2}, -2, v{M2}')
    A(f'v_min_u32 v{LS}, -2, v{LS}')
    A('s_mov_b32 exec_lo, 0x01010101')
    A('s_mov_b32 exec_hi, 0x01010101')
    A(f'buffer_store_dwordx2 v[{M2}:{M2 + 1}], v{PUB}, s[48:51], s69 offen sc1')
    A('s_mov_b64 exec, -1')
    stampit(4)
    A('s_barrier')
    if prog:
        A('s_mov_b32 m0, 31')
        A('s_nop 0')
        A('v_writelane_b32 v10, s71, m0')
        A('s_lshl_b32 s65, s2, 2')
        A('s_add_u32 s65, s65, s37')
        A('s_lshl_b32 s65, s65, 7')
        A(f's_add_u32 s65, s65, {STAMP_OFF + 65536}')
        A('v_lshlrev_b32 v11, 2, v1')
        A('s_mov_b32 exec_hi, 0')
        A('buffer_store_dword v10, v11, s[48:51], s65 offen')
        A('s_mov_b64 exec, -1')
    stamp_store()
    A('s_endpgm')

    A.label('L_helper')
    A('s_setprio 2')
    HB = 48
    X, E = 64, 80
    A('v_lshlrev_b32 v11, 4, v1')
    A('v_mov_b32 v12, 0')
    A(f'ds_write_b32 v12, v12 offset:{L_CNT}')
    A('v_mul_u32_u24 v13, 36, v1')
    A('s_mov_b32 s42, 2304')
    A('s_mov_b32 s43, 0x20000')
    A(f's_mov_b32 s46, {576 * 8192}')
    A('s_mov_b32 s47, 0x20000')
    A('v_lshrrev_b32 v14, 3, v1')
    A('v_lshlrev_b32 v14, 13, v14')
    A('v_and_b32 v15, 7, v1')
    A('v_lshl_add_u32 v14, v15, 4, v14')
    A(f's_mul_i32 s38, s30, {144 * 8192}')
    A('s_lshl_b32 s64, s72, 7')
    A('s_add_u32 s38, s38, s64')
    A(f's_mul_i32 s37, s30, {144 * 128}')
    A(f's_add_u32 s37, s37, {L_WQ}')
    A('s_lshl_b32 s64, s30, 2')
    A('s_add_u32 s64, s64, s3')
    A('s_cmp_eq_u32 s64, 2')
    A('s_cselect_b32 s70, 1, 0')
    A('s_cmp_eq_u32 s3, 1')
    A('s_cselect_b32 s70, 1, s70')
    A('s_waitcnt lgkmcnt(0)')
    A('s_mov_b32 s48, s28')
    A('s_mov_b32 s49, s29')
    A('s_mov_b32 s40, s4')
    A('s_mov_b32 s41, s5')
    A('s_mov_b32 s44, s10')
    A('s_mov_b32 s45, s11')
    A(f's_mov_b32 s64, {EPOCH}')
    A('s_load_dwordx2 s[78:79], s[28:29], s64')
    A('s_cmp_eq_u32 s70, 0')
    A('s_cbranch_scc1 L_h_x')
    A(f'buffer_load_dwordx4 v[{X}:{X + 3}], v13, s[40:43], 0 offen')
    A(f'buffer_load_dwordx4 v[{X + 4}:{X + 7}], v13, s[40:43], 0 offen offset:16')
    A(f'buffer_load_dword v{X + 8}, v13, s[40:43], 0 offen offset:32')
    A('s_cmp_lg_u32 s3, 1')
    A('s_cbranch_scc1 L_h_x')
    for n in range(18):
        A('s_mov_b32 m0, s37')
        A('s_add_u32 s37, s37, 1024')
        A(f'buffer_load_dwordx4 v14, s[44:47], s38 offen {wqpol} lds')
        A('s_add_u32 s38, s38, 0x10000')
    A.label('L_h_x')
    A('s_barrier')
    A('s_cmp_eq_u32 s70, 0')
    A('s_cbranch_scc1 L_h_noln')

    def layernorm(src, dst):
        D = E + 18
        a, b, c = E + 36, E + 37, E + 38
        for k in range(9):
            A(f'v_lshlrev_b32 v{E + 2 * k}, 16, v{src + k}')
            A(f'v_and_b32 v{E + 2 * k + 1}, 0xffff0000, v{src + k}')
        A(f'v_add_f32 v{a}, v{E}, v{E + 1}')
        A(f'v_add_f32 v{b}, v{E + 2}, v{E + 3}')
        for n in range(4, 18, 2):
            A(f'v_add_f32 v{a}, v{a}, v{E + n}')
            A(f'v_add_f32 v{b}, v{b}, v{E + n + 1}')
        A(f'v_add_f32 v{a}, v{a}, v{b}')
        allred_row(a)
        swapred('v_permlane16_swap_b32', 'v_add_f32', a, b)
        A(f'v_mul_f32 v{a}, {f32(1.0 / 576)}, v{a}')
        for n in range(18):
            A(f'v_sub_f32 v{D + n}, v{E + n}, v{a}')
        A(f'v_mul_f32 v{b}, v{D}, v{D}')
        A(f'v_mul_f32 v{c}, v{D + 1}, v{D + 1}')
        for n in range(2, 18, 2):
            A(f'v_fmac_f32 v{b}, v{D + n}, v{D + n}')
            A(f'v_fmac_f32 v{c}, v{D + n + 1}, v{D + n + 1}')
        A(f'v_add_f32 v{b}, v{b}, v{c}')
        A(f'v_cvt_pk_bf16_f32 v{a}, 0, v{a}')
        allred_row(b)
        swapred('v_permlane16_swap_b32', 'v_add_f32', b, c)
        A(f'v_mul_f32 v{b}, {f32(1.0 / 576)}, v{b}')
        A(f'v_cvt_pk_bf16_f32 v{b}, 0, v{b}')
        A(f'v_add_f32 v{b}, {f32(1e-5)}, v{b}')
        A(f'v_cvt_pk_bf16_f32 v{b}, 0, v{b}')
        A(f'v_sqrt_f32 v{b}, v{b}')
        A(f'v_sub_f32 v{D}, v{E}, v{a}')
        A(f'v_cvt_pk_bf16_f32 v{b}, 0, v{b}')
        A(f'v_rcp_f32 v{b}, v{b}')
        for n in range(1, 18):
            A(f'v_sub_f32 v{D + n}, v{E + n}, v{a}')
        for n in range(18):
            A(f'v_cvt_pk_bf16_f32 v{D + n}, 0, v{D + n}')
        for n in range(18):
            A(f'v_mul_f32 v{D + n}, v{D + n}, v{b}')
        for k in range(9):
            A(f'v_cvt_pk_bf16_f32 v{dst + k}, v{D + 2 * k}, v{D + 2 * k + 1}')

    A('v_and_b32 v15, 1, v2')
    A('v_mul_u32_u24 v15, 1152, v15')
    A('v_lshl_add_u32 v15, v3, 4, v15')
    A('v_lshrrev_b32 v16, 2, v2')
    A('v_lshl_add_u32 v16, v3, 3, v16')
    A('v_lshlrev_b32 v16, 7, v16')
    A('v_and_b32 v17, 3, v1')
    A('v_lshl_add_u32 v16, v17, 3, v16')
    A('s_lshl_b32 s64, s30, 5')
    A('v_add_u32 v16, s64, v16')
    A('v_add_u32 v20, 0x8000, v16')
    A('v_lshlrev_b32 v17, 3, v2')
    A('v_lshl_add_u32 v17, v3, 15, v17')
    A('s_lshl_b32 s39, s72, 9')
    A('s_lshl_b32 s64, s30, 7')
    A('s_add_u32 s39, s39, s64')
    A(f's_add_u32 s39, s39, {QX}')
    A('s_cmp_eq_u32 s3, 1')
    A('s_cbranch_scc1 L_h_wx')
    A('s_waitcnt vmcnt(0)')
    A.label('L_h_wx')
    A('s_waitcnt vmcnt(18)')
    stampit(4)
    layernorm(X, X)
    A('s_cmp_lg_u32 s3, 1')
    A('s_cbranch_scc1 L_h_ln2')
    for k in range(9):
        A(f'ds_write_b32 v13, v{X + k} offset:{L_XN + 4 * k}')
    QA, QB, QD = 120, 192, 76
    A('s_waitcnt lgkmcnt(0)')
    for t in range(18):
        A(f'ds_read_b128 v[{QA + 4 * t}:{QA + 4 * t + 3}], v15 offset:{L_XN + 64 * t}')
        if t == 8:
            A('s_waitcnt lgkmcnt(0)')
    A('v_mov_b32 v18, 1')
    stampit(5)
    A('s_waitcnt vmcnt(0)')
    A('s_mov_b64 exec, 1')
    A(f'ds_add_u32 v12, v18 offset:{L_CNT}')
    A('s_mov_b64 exec, -1')
    A.label('L_h_sync')
    A(f'ds_read_b32 v18, v12 offset:{L_CNT}')
    A('s_waitcnt lgkmcnt(0)')
    A('v_readfirstlane_b32 s64, v18')
    A('s_nop 0')
    A('s_cmp_lt_u32 s64, 4')
    A('s_cbranch_scc1 L_h_sync')
    stampit(6)
    if stamp:
        A('s_waitcnt lgkmcnt(0)')
    for t0 in (0, 6, 12):
        for t in range(t0, t0 + 6):
            r = QB + 4 * (t % 12)
            for h in range(2):
                off = L_WQ + 4096 * t + 512 * h
                base, off = (16, off) if off < 32768 else (20, off - 32768)
                A(f'ds_read_b64_tr_b16 v[{r + 2 * h}:{r + 2 * h + 1}], v{base} offset:{off}')
        for t in range(t0, t0 + 6):
            r = QB + 4 * (t % 12)
            A(f's_waitcnt lgkmcnt({2 * (t0 + 5 - t)})')
            c = '0' if t == 0 else f'v[{QD}:{QD + 3}]'
            A(f'v_mfma_f32_16x16x32_bf16 v[{QD}:{QD + 3}], v[{QA + 4 * t}:{QA + 4 * t + 3}], v[{r}:{r + 3}], {c}')
    A('s_add_u32 s64, s79, 1')
    A('s_and_b32 s65, s78, 0xffff0000')
    A('v_cmp_eq_u32 vcc, 1, v3')
    A('v_mov_b32 v19, s64')
    A.nop(6)
    A(f'v_cndmask_b32 v18, v{QD}, v{QD + 1}, vcc')
    A('v_cvt_pk_bf16_f32 v18, v18, 0')
    A('v_or_b32 v18, s65, v18')
    A('s_mov_b32 exec_hi, 0')
    A('buffer_store_dwordx2 v[18:19], v17, s[48:51], s39 offen sc1')
    A('s_mov_b64 exec, -1')
    stampit(1)
    A('s_branch L_h_q')
    A.label('L_h_ln2')
    layernorm(X, X)
    for k in range(9):
        A(f'ds_write_b32 v13, v{X + k} offset:{L_H + 4 * k}')
    A('s_branch L_h_join')

    A.label('L_h_noln')
    A('s_cmp_eq_u32 s30, 1')
    A('s_cbranch_scc0 L_h_join')
    if qdelay:
        A(f's_sleep {qdelay}')
    A.label('L_h_q')
    A('s_cmp_eq_u32 s30, 1')
    A('s_cbranch_scc0 L_h_join')
    A('s_lshl_b32 s39, s31, 11')
    A(f's_add_u32 s39, s39, {QX}')
    A('v_lshlrev_b32 v13, 2, v1')
    A('s_waitcnt lgkmcnt(0)')
    A('s_add_u32 s79, s79, 1')
    A('s_and_b32 s78, s78, 0xffff0000')
    A(f's_mov_b32 s70, {SPIN_MAX}')
    PB = 64
    NPOLL = npoll
    A.label('L_qp')
    for p in range(NPOLL):
        for k in range(2):
            r = PB + 8 * p + 4 * k
            A(f'buffer_load_dwordx4 v[{r}:{r + 3}], v11, s[48:51], s39 offen offset:{1024 * k} sc1')
        if p + 1 < NPOLL:
            A(f's_sleep {qsleep}')
    for p in range(NPOLL):
        r = PB + 8 * p
        A(f's_waitcnt vmcnt({2 * (NPOLL - 1 - p)})')
        A(f'v_xor_b32 v14, s79, v{r + 1}')
        A(f'v_xor_b32 v15, s79, v{r + 3}')
        A(f'v_xor_b32 v16, s79, v{r + 5}')
        A(f'v_xor_b32 v17, s79, v{r + 7}')
        A('v_or3_b32 v14, v14, v15, v16')
        A(f'v_xor_b32 v15, s78, v{r}')
        A(f'v_xor_b32 v16, s78, v{r + 2}')
        A(f'v_xor_b32 v18, s78, v{r + 4}')
        A(f'v_xor_b32 v19, s78, v{r + 6}')
        A('v_or3_b32 v20, v15, v16, v18')
        A('v_or_b32 v20, v20, v19')
        A('v_lshrrev_b32 v20, 16, v20')
        A('v_or3_b32 v14, v14, v17, v20')
        A('v_cmp_ne_u32 vcc, 0, v14')
        A('s_cbranch_vccz L_qp_done')
    A('s_sub_u32 s70, s70, 1')
    A('s_cmp_lg_u32 s70, 0')
    A('s_cbranch_scc1 L_qp')
    A.label('L_qp_done')
    A('v_lshl_or_b32 v15, v16, 16, v15')
    A('v_lshl_or_b32 v18, v19, 16, v18')
    A(f'ds_write_b32 v13, v15 offset:{L_Q}')
    A(f'ds_write_b32 v13, v18 offset:{L_Q + 256}')
    stampit(1)

    A.label('L_h_join')
    make_sel()
    A('v_lshrrev_b32 v5, 3, v2')
    A('v_lshl_add_u32 v5, v5, 2, v3')
    A('v_and_b32 v7, 7, v2')
    A('s_mov_b32 s60, s26')
    A('s_mov_b32 s61, s27')
    A('s_mov_b32 s62, 256')
    A('s_mov_b32 s63, 0x20000')
    A('s_lshl_b32 s74, s36, 14')
    A('s_waitcnt lgkmcnt(0)')
    stampit(2)
    A('s_barrier')

    pc = [0]

    def paced(ins):
        if pc[0] >= hpace:
            A(f's_waitcnt vmcnt({hpace - 1})')
        A(ins)
        pc[0] += 1

    A('s_lshl_b32 s81, s33, 7')
    A('s_add_u32 s81, s81, s73')
    A('s_lshl_b32 s81, s81, 14')
    A(f's_add_u32 s81, s81, {L2A}')
    A('s_cmp_lg_u32 s30, 3')
    A('s_cbranch_scc1 L_noreset')
    for r in range(4):
        A(f'v_mov_b32 v{HB + r}, -1')
    for n in range(4):
        paced(f'buffer_store_dwordx4 v[{HB}:{HB + 3}], v11, s[48:51], s74 offen offset:{1024 * n} sc1')
    A(f's_add_u32 s64, s74, {L1ML}')
    A('s_mov_b64 exec, 0xffff')
    paced(f'buffer_store_dwordx4 v[{HB}:{HB + 3}], v11, s[48:51], s64 offen sc1')
    A('s_mov_b64 exec, -1')
    A('s_cmp_lg_u32 s3, 2')
    A('s_cbranch_scc1 L_reset_done')
    for n in range(4):
        paced(f'buffer_store_dwordx4 v[{HB}:{HB + 3}], v11, s[48:51], s81 offen offset:{1024 * n} sc1')
    A.label('L_reset_done')
    A('v_mov_b32 v13, 1')
    A('s_waitcnt vmcnt(0)')
    A('s_mov_b64 exec, 1')
    A('buffer_atomic_add v13, v12, s[60:63], 0 offen sc1')
    A('s_mov_b64 exec, -1')
    A.label('L_noreset')

    WO = 104
    A('s_mov_b32 s52, s12')
    A('s_mov_b32 s53, s13')
    A(f's_mov_b32 s54, {4096 * 1152}')
    A('s_mov_b32 s55, 0x20000')
    A('v_mul_u32_u24 v14, 1152, v5')
    A('v_lshl_add_u32 v14, v7, 4, v14')
    A(f's_mul_i32 s64, s35, {32 * 1152}')
    A('s_lshl_b32 s65, s30, 8')
    A('s_add_u32 s65, s65, s64')
    for t in range(4):
        for bl in range(2):
            r = WO + bl * 16 + t * 4
            paced(f'buffer_load_dwordx4 v[{r}:{r + 3}], v14, s[52:55], s65 offen offset:{128 * bl} {wopol}')
        if t < 3:
            A(f's_add_u32 s65, s65, {8 * 1152}')
    A('s_cmp_lg_u32 s30, 0')
    A('s_cbranch_scc1 L_nowo8')
    for t in range(4):
        r = WO + 32 + t * 4
        paced(f'buffer_load_dwordx4 v[{r}:{r + 3}], v14, s[52:55], s64 offen offset:1024 {wopol}')
        if t < 3:
            A(f's_add_u32 s64, s64, {8 * 1152}')
    A.label('L_nowo8')

    A('s_lshr_b32 s64, s73, 2')
    A('s_lshl_b32 s64, s64, 5')
    A('s_and_b32 s65, s73, 3')
    A('s_lshl_b32 s65, s65, 1')
    A('s_add_u32 s80, s64, s65')
    A('s_mul_i32 s64, s33, 576')
    A('s_add_u32 s80, s80, s64')
    A('s_cmp_lg_u32 s3, 2')
    A('s_cbranch_scc1 L_nob')
    PW = 64
    W1, B1, W2 = 152, 170, 188
    U = 206
    A('s_mul_i32 s64, s30, 2304')
    A('v_add_u32 v15, s64, v11')
    A('v_lshlrev_b32 v16, 2, v1')
    A('v_add_u32 v16, s64, v16')
    for k, base in enumerate((16, 18, 20)):
        r = PW + 12 * k
        paced(f'global_load_dwordx4 v[{r}:{r + 3}], v15, s[{base}:{base + 1}] {bpol}')
        paced(f'global_load_dwordx4 v[{r + 4}:{r + 7}], v15, s[{base}:{base + 1}] offset:1024 {bpol}')
        paced(f'global_load_dword v{r + 8}, v16, s[{base}:{base + 1}] offset:2048 {bpol}')
    c0 = -2.0 * math.sqrt(2.0 / math.pi) * LOG2E
    A(f's_mov_b32 s66, {f32(c0 * 0.044715)}')
    A(f'v_mov_b32 v17, {f32(c0)}')
    A('s_lshl_b32 s64, s80, 1')
    A(f's_add_u32 s64, s64, {L_H}')
    A('v_mov_b32 v18, s64')
    A('s_lshl_b32 s64, s30, 5')
    A(f's_add_u32 s64, s64, {L_BP}')
    A('v_mov_b32 v19, s64')
    A('s_waitcnt vmcnt(0)')
    for k, dst in enumerate((W1, B1, W2)):
        for n in range(9):
            A(f'v_lshlrev_b32 v{dst + 2 * n}, 16, v{PW + 12 * k + n}')
            A(f'v_and_b32 v{dst + 2 * n + 1}, 0xffff0000, v{PW + 12 * k + n}')
    A('s_mov_b32 s70, 0')
    A.label('L_bloop')
    A('ds_read_u16 v20, v18')
    A('s_and_b32 s64, s70, 1')
    A('s_cmp_eq_u32 s64, 0')
    A('s_cselect_b32 s64, 2, 14')
    A('v_add_u32 v18, s64, v18')
    A('s_waitcnt lgkmcnt(0)')
    A('v_lshlrev_b32 v20, 16, v20')
    V2 = U + 18
    for n in range(18): A(f'v_mul_f32 v{U + n}, v20, v{W1 + n}')
    for n in range(18): A(f'v_cvt_pk_bf16_f32 v{U + n}, 0, v{U + n}')
    for n in range(18): A(f'v_add_f32 v{U + n}, v{U + n}, v{B1 + n}')
    for n in range(18): A(f'v_cvt_pk_bf16_f32 v{U + n}, 0, v{U + n}')
    for n in range(18): A(f'v_mul_f32 v{V2 + n}, v{U + n}, v{U + n}')
    for n in range(18): A(f'v_fma_f32 v{V2 + n}, v{V2 + n}, s66, v17')
    for n in range(18): A(f'v_mul_f32 v{V2 + n}, v{V2 + n}, v{U + n}')
    for n in range(18): A(f'v_exp_f32 v{V2 + n}, v{V2 + n}')
    for n in range(18): A(f'v_add_f32 v{V2 + n}, 1.0, v{V2 + n}')
    for n in range(18): A(f'v_rcp_f32 v{V2 + n}, v{V2 + n}')
    for n in range(18): A(f'v_mul_f32 v{U + n}, v{U + n}, v{V2 + n}')
    for n in range(18): A(f'v_cvt_pk_bf16_f32 v{U + n}, 0, v{U + n}')
    A(f'v_mul_f32 v21, v{U}, v{W2}')
    A(f'v_mul_f32 v22, v{U + 1}, v{W2 + 1}')
    for n in range(2, 18, 2):
        A(f'v_fmac_f32 v21, v{U + n}, v{W2 + n}')
        A(f'v_fmac_f32 v22, v{U + n + 1}, v{W2 + n + 1}')
    A('v_add_f32 v21, v21, v22')
    allred_row(21)
    allred_g('v_add_f32', 21, 22)
    A('ds_write_b32 v19, v21')
    A('v_add_u32 v19, 4, v19')
    A('s_add_u32 s70, s70, 1')
    A('s_cmp_lt_u32 s70, 8')
    A('s_cbranch_scc1 L_bloop')
    A.label('L_nob')
    A('s_waitcnt lgkmcnt(0)')
    A('s_barrier')
    A('s_cmp_lg_u32 s30, 2')
    A('s_cbranch_scc1 L_cnt_done')
    A(f's_mov_b32 s70, {SPIN_MAX}')
    A.label('L_cnt')
    A('buffer_load_dword v17, v12, s[60:63], 0 offen sc1')
    A('s_waitcnt vmcnt(0)')
    A('v_readfirstlane_b32 s64, v17')
    A('s_sub_u32 s70, s70, 1')
    A('s_cmp_eq_u32 s70, 0')
    A('s_cbranch_scc1 L_cnt_ok')
    A('s_cmp_ge_u32 s64, 256')
    A('s_cbranch_scc1 L_cnt_ok')
    A('s_sleep 64')
    A('s_branch L_cnt')
    A.label('L_cnt_ok')
    A('s_cmp_lg_u32 s36, 0')
    A('s_cbranch_scc1 L_cnt_done')
    A('s_add_u32 s79, s79, 1')
    A('v_mov_b32 v17, s79')
    A(f's_mov_b32 s64, {EPOCH + 4}')
    A('s_mov_b64 exec, 1')
    A('buffer_store_dword v17, v12, s[48:51], s64 offen sc1')
    A('s_mov_b64 exec, -1')
    A.label('L_cnt_done')

    G = 176
    FB, FX, FO = 192, 193, 194
    A('s_mov_b32 s83, 0')
    A('s_cmp_lg_u32 s30, 1')
    A('s_cbranch_scc1 L_nofin1')
    A('s_cmp_lg_u32 s3, 2')
    A('s_cbranch_scc1 L_nofin1')
    A('s_mov_b32 s83, 1')
    A('v_and_b32 v17, 1, v3')
    A('v_lshrrev_b32 v18, 1, v3')
    A('v_lshl_add_u32 v17, v17, 1, v18')
    A('v_and_b32 v18, 1, v1')
    A('v_lshl_add_u32 v19, v17, 1, v18')
    A('v_lshlrev_b32 v19, 2, v19')
    A('v_lshl_add_u32 v17, v17, 3, v18')
    A('v_add_u32 v17, s80, v17')
    A(f'v_lshlrev_b32 v{FO}, 1, v17')
    A(f'buffer_load_ushort v{FX}, v{FO}, s[40:43], 0 offen')
    A(f'global_load_ushort v{FB}, v12, s[22:23]')
    for w in range(4):
        A(f'ds_read_b32 v{G + w}, v19 offset:{L_BP + 32 * w}')
    A('s_waitcnt vmcnt(0) lgkmcnt(0)')
    A(f'v_add_f32 v{G}, v{G}, v{G + 1}')
    A(f'v_add_f32 v{G + 2}, v{G + 2}, v{G + 3}')
    A(f'v_add_f32 v{G}, v{G}, v{G + 2}')
    A(f'v_lshlrev_b32 v{FX}, 16, v{FX}')
    A(f'v_lshlrev_b32 v{FB}, 16, v{FB}')
    A(f'v_cvt_pk_bf16_f32 v{G}, 0, v{G}')
    A(f'v_add_f32 v{FB}, v{G}, v{FB}')
    A(f'v_cvt_pk_bf16_f32 v{FB}, 0, v{FB}')
    A.label('L_nofin1')
    A('s_mov_b32 s56, s24')
    A('s_mov_b32 s57, s25')
    A('s_mov_b32 s58, 2304')
    A('s_mov_b32 s59, 0x20000')
    A('v_lshlrev_b32 v19, 9, v7')
    A('v_lshl_add_u32 v19, v5, 4, v19')
    A('v_lshlrev_b32 v20, 5, v7')
    A(f's_add_u32 s75, s74, {L1ML}')
    A('v_lshrrev_b32 v21, 1, v7')
    A('v_lshl_add_u32 v21, v3, 2, v21')
    A('v_lshlrev_b32 v21, 14, v21')
    A('v_and_b32 v22, 1, v2')
    A('v_lshl_add_u32 v21, v22, 4, v21')
    A('s_lshl_b32 s82, s33, 21')
    A('s_lshl_b32 s64, s35, 5')
    A('s_add_u32 s82, s82, s64')
    A(f's_add_u32 s82, s82, {L2A}')
    A('s_lshl_b32 s64, s30, 18')
    A('s_add_u32 s76, s82, s64')
    A(f's_add_u32 s77, s82, {64 * INBOX}')
    A('s_waitcnt vmcnt(0)')
    A('s_barrier')
    A('s_barrier')
    stampit(3)

    O, ML, W = 200, 216, 224
    A(f's_mov_b32 s70, {SPIN_MAX}')
    A.label('L_p1')
    for n in range(2):
        A(f'buffer_load_dwordx4 v[{ML + 4 * n}:{ML + 4 * n + 3}], v20, s[48:51], s75 offen offset:{16 * n} sc1')
    for n in range(4):
        A(f'buffer_load_dwordx4 v[{O + 4 * n}:{O + 4 * n + 3}], v19, s[48:51], s74 offen offset:{128 * n} sc1')
    A('s_sub_u32 s70, s70, 1')
    A('s_cmp_eq_u32 s70, 0')
    A('s_waitcnt vmcnt(0)')
    A('s_cbranch_scc1 L_p1_done')
    A(f'v_max3_u32 v17, v{O}, v{O + 1}, v{O + 2}')
    A(f'v_max3_u32 v18, v{O + 3}, v{O + 4}, v{O + 5}')
    for n in range(6, 22, 4):
        A(f'v_max3_u32 v17, v17, v{O + n}, v{O + n + 1}')
        A(f'v_max3_u32 v18, v18, v{O + n + 2}, v{O + n + 3}')
    A(f'v_max3_u32 v17, v17, v{O + 22}, v{O + 23}')
    A('v_max_u32 v17, v17, v18')
    A('v_cmp_eq_u32 vcc, -1, v17')
    if psleep:
        A('s_cbranch_vccz L_p1_done')
        A(f's_sleep {psleep}')
        A('s_branch L_p1')
    else:
        A('s_cbranch_vccnz L_p1')
    A.label('L_p1_done')
    if stamp == 1:
        stampit(4)
    A(f'v_max_f32 v17, v{ML}, v{ML + 2}')
    A(f'v_max3_f32 v17, v17, v{ML + 4}, v{ML + 6}')
    for m in ('quad_perm:[1,0,3,2]', 'quad_perm:[2,3,0,1]', 'row_half_mirror'):
        A.nop(2)
        A(f'v_max_f32_dpp v17, v17, v17 {m} {DPP}')
    for n in range(4):
        A(f'v_sub_f32 v{W + n}, v{ML + 2 * n}, v17')
    for n in range(4):
        A(f'v_exp_f32 v{W + n}, v{W + n}')
    R = W + 4
    A(f'v_mul_f32 v{R + 4}, v{W}, v{ML + 1}')
    for t in range(4):
        A(f'v_mul_f32 v{R + t}, v{W}, v{O + t}')
    for n in range(1, 4):
        A(f'v_fmac_f32 v{R + 4}, v{W + n}, v{ML + 2 * n + 1}')
        for t in range(4):
            A(f'v_fmac_f32 v{R + t}, v{W + n}, v{O + 4 * n + t}')
    for m in ('quad_perm:[1,0,3,2]', 'quad_perm:[2,3,0,1]', 'row_half_mirror'):
        for q in (4, 0, 1, 2, 3):
            A(f'v_add_f32_dpp v{R + q}, v{R + q}, v{R + q} {m} {DPP}')
    A(f'v_rcp_f32 v{R + 4}, v{R + 4}')
    A.nop(1)
    for t in range(4):
        A(f'v_mul_f32 v{R + t}, v{R + t}, v{R + 4}')
    A(f'v_cvt_pk_bf16_f32 v{W}, v{R}, v{R + 1}')
    A(f'v_cvt_pk_bf16_f32 v{W + 1}, v{R + 2}, v{R + 3}')
    for t in range(4):
        build_b(HB + 4 * t, W + t // 2, t & 1)
    DX, DY, DZ = 236, 240, 244
    A.nop(1)
    for t in range(4):
        for bl, D in ((0, DX), (1, DY)):
            r = WO + bl * 16 + t * 4
            c = '0' if t == 0 else f'v[{D}:{D + 3}]'
            A(f'v_mfma_f32_16x16x32_bf16 v[{D}:{D + 3}], v[{r}:{r + 3}], v[{HB + 4 * t}:{HB + 4 * t + 3}], {c}')
    A('s_cmp_lg_u32 s30, 0')
    A('s_cbranch_scc1 L_nob8a')
    for t in range(4):
        r = WO + 32 + t * 4
        c = '0' if t == 0 else f'v[{DZ}:{DZ + 3}]'
        A(f'v_mfma_f32_16x16x32_bf16 v[{DZ}:{DZ + 3}], v[{r}:{r + 3}], v[{HB + 4 * t}:{HB + 4 * t + 3}], {c}')
    A.label('L_nob8a')
    A.nop(8)
    for r in range(4):
        A(f'v_permlane32_swap_b32 v{DX + r}, v{DY + r}')
    A.nop(1)
    for r in range(4):
        A(f'v_add_f32_dpp v{DX + r}, v{DY + r}, v{DX + r} row_ror:8 {DPP}')
    for r in range(4):
        A(f'v_min_u32 v{DX + r}, -2, v{DX + r}')
    A('s_mov_b32 exec_lo, 0x00ff00ff')
    A('s_mov_b32 exec_hi, 0x00ff00ff')
    A(f'buffer_store_dwordx4 v[{DX}:{DX + 3}], v21, s[48:51], s76 offen sc1')
    A('s_mov_b64 exec, -1')
    A('s_cmp_lg_u32 s30, 0')
    A('s_cbranch_scc1 L_nob8b')
    for r in range(4):
        A(f'v_permlane32_swap_b32 v{DZ + r}, v{DY + r}')
    A.nop(1)
    for r in range(4):
        A(f'v_add_f32_dpp v{DZ + r}, v{DY + r}, v{DZ + r} row_ror:8 {DPP}')
    for r in range(4):
        A(f'v_min_u32 v{DZ + r}, -2, v{DZ + r}')
    A('s_mov_b64 exec, 0x00ff00ff')
    A(f'buffer_store_dwordx4 v[{DZ}:{DZ + 3}], v21, s[48:51], s77 offen sc1')
    A('s_mov_b64 exec, -1')
    A.label('L_nob8b')
    if stamp == 1:
        stampit(5)
    A('s_cmp_eq_u32 s83, 0')
    A('s_cbranch_scc1 L_hend')
    A('s_mov_b32 s64, s81')
    A(f's_mov_b32 s70, {SPIN_MAX}')
    A.label('L_ga')
    for k in range(4):
        A(f'buffer_load_dwordx4 v[{G + 4 * k}:{G + 4 * k + 3}], v11, s[48:51], s64 offen offset:{1024 * k} sc1')
    A('s_sub_u32 s70, s70, 1')
    A('s_cmp_eq_u32 s70, 0')
    A('s_waitcnt vmcnt(0)')
    A('s_cbranch_scc1 L_ga_done')
    A(f'v_max3_u32 v17, v{G}, v{G + 1}, v{G + 2}')
    A(f'v_max3_u32 v18, v{G + 3}, v{G + 4}, v{G + 5}')
    for n in range(6, 14, 4):
        A(f'v_max3_u32 v17, v17, v{G + n}, v{G + n + 1}')
        A(f'v_max3_u32 v18, v18, v{G + n + 2}, v{G + n + 3}')
    A(f'v_max3_u32 v17, v17, v{G + 14}, v{G + 15}')
    A('v_max_u32 v17, v17, v18')
    A('v_cmp_eq_u32 vcc, -1, v17')
    if psleep:
        A('s_cbranch_vccz L_ga_done')
        A(f's_sleep {psleep}')
        A('s_branch L_ga')
    else:
        A('s_cbranch_vccnz L_ga')
    A.label('L_ga_done')
    for r in range(4):
        A(f'v_add_f32 v{G + r}, v{G + r}, v{G + 4 + r}')
        A(f'v_add_f32 v{G + 8 + r}, v{G + 8 + r}, v{G + 12 + r}')
    for r in range(4):
        A(f'v_add_f32 v{G + r}, v{G + r}, v{G + 8 + r}')
    A.nop(1)
    A(f'v_permlane32_swap_b32 v{G}, v{G + 1}')
    A(f'v_permlane32_swap_b32 v{G + 2}, v{G + 3}')
    A(f'v_add_f32 v{G}, v{G}, v{G + 1}')
    A(f'v_add_f32 v{G + 2}, v{G + 2}, v{G + 3}')
    A.nop(2)
    A(f'v_permlane16_swap_b32 v{G}, v{G + 2}')
    A(f'v_add_f32 v{G}, v{G}, v{G + 2}')
    for sh in (8, 4, 2):
        A.nop(2)
        A(f'v_add_f32_dpp v{G}, v{G}, v{G} row_ror:{sh} {DPP}')
    A(f'v_cvt_pk_bf16_f32 v{G}, 0, v{G}')
    A(f'v_add_f32 v{G}, v{FX}, v{G}')
    A(f'v_cvt_pk_bf16_f32 v{G}, 0, v{G}')
    A(f'v_add_f32 v{G}, v{G}, v{FB}')
    A(f'v_cvt_pk_bf16_f32 v{G}, v{G}, v{G}')
    A('s_mov_b32 exec_lo, 0x00030003')
    A('s_mov_b32 exec_hi, 0x00030003')
    A(f'buffer_store_short v{G}, v{FO}, s[56:59], 0 offen')
    A('s_mov_b64 exec, -1')
    if stamp == 1:
        stampit(6)
    A.label('L_hend')
    stamp_store()
    A.label('L_end')
    A('s_endpgm')
    A.L.append('.section .rodata,"a"')
    A.L.append('.p2align 6')
    A.L.append(f'.amdhsa_kernel {KN}_kernel')
    A('.amdhsa_next_free_vgpr 256')
    A('.amdhsa_next_free_sgpr 102')
    A('.amdhsa_accum_offset 256')
    A('.amdhsa_group_segment_fixed_size 0')
    A('.amdhsa_kernarg_size 104')
    A('.amdhsa_user_sgpr_count 2')
    A('.amdhsa_user_sgpr_kernarg_segment_ptr 1')
    A('.amdhsa_system_sgpr_workgroup_id_x 1')
    A.L.append('.end_amdhsa_kernel')
    return A.text()


if __name__ == '__main__':
    out = sys.argv[1] if len(sys.argv) > 1 else 'cdna_kernels/' + KN + '.s'
    kw = {}
    for a in sys.argv[2:]:
        k, v = a.split('=')
        kw[k] = int(v) if v.lstrip('-').isdigit() else v
    open(out, 'w').write(gen(**kw))
    print('wrote', out)
```

```python
import struct, sys, math

KN = 'parallel_sum__gqa_block_cached__mixer_token_mlp__decode'


def f32(x):
    return '0x%08x' % struct.unpack('<I', struct.pack('<f', x))[0]


HEADER = open('cdna_kernels/' + KN + '.s.ref').read().split('; Override launch')[0]

LOG2E = 1.4426950408889634
INBOX = 2048
IB = 11
L1ML = 1024
POOL = 1280
L2A = 256 * INBOX
QX = L2A + 36 * 16384
EPOCH = QX + 65536
WS_SIZE = EPOCH + 256
STAMP_OFF = 8 << 20
SPIN_MAX = 200000
KVOOB = 0x800000
L_Q = 0
L_FLAG, L_TAG, L_CNT, L_HF, L_TK, L_FIN, L_BC, L_OF, L_F2 = 512, 516, 520, 524, 528, 532, 536, 540, 544
L_QT = 576
L_ZEND = 1280
L_BP = 1280
L_OW = 1792
L_P2 = 2304
L_XN = 3328
L_H = 5632
L_MG = 7936
L_WQ = 14336
L_SIZE = L_WQ + 73728


class Asm:
    def __init__(self):
        self.L = []

    def __call__(self, s):
        self.L.append('  ' + s)

    def label(self, s):
        self.L.append(s + ':')

    def nop(self, n):
        while n > 0:
            k = min(n, 16)
            self('s_nop %d' % (k - 1))
            n -= k

    def text(self):
        return '\n'.join(self.L) + '\n'


DPP = 'row_mask:0xf bank_mask:0xf'


def gen(kvpol='nt', wqpol='nt', wopol='nt', stamp=0, prog=0, infl=8, infl0=8, ns=58, npre=2, theta=3, big=8, small=2,
        qsleep=6, qdelay=48, bpol='', hpace=3, npoll=4, ps1=0, ps2=0, dsleep=1, warm=1, outpol=''):
    LIM = (64 - ns - npre) * 4
    assert 0 < LIM <= 64 and npre * 4 + 8 * LIM + 8 <= 176
    A = Asm()
    A.L.append(HEADER.rstrip('\n'))
    A.L.append(f'; @launch grid=(256,1,1) block=(512,1,1) lds={L_SIZE}')
    A.L.append('.amdgcn_target "amdgcn-amd-amdhsa--gfx950"')
    A.L.append('.text')
    A.L.append(f'.globl {KN}_kernel')
    A.L.append('.p2align 8')
    A.L.append(f'.type {KN}_kernel,@function')
    A.label(f'{KN}_kernel')
    ws_size = (STAMP_OFF + 65536 + 131072) if stamp else WS_SIZE

    def stampit(k):
        if stamp:
            A(f's_memrealtime s[{84 + 2 * k}:{85 + 2 * k}]')

    def stamp_store():
        if not stamp:
            return
        A('s_waitcnt lgkmcnt(0) vmcnt(0)')
        A('s_getreg_b32 s64, hwreg(HW_REG_XCC_ID)')
        A('s_lshl_b32 s65, s2, 3')
        A('s_add_u32 s65, s65, s30')
        A('s_lshl_b32 s65, s65, 5')
        A(f's_add_u32 s65, s65, {STAMP_OFF}')
        A('s_mov_b64 exec, 1')
        A('v_mov_b32 v4, 0')
        for k in range(7):
            A(f'v_mov_b32 v5, s{84 + 2 * k}')
            A(f'buffer_store_dword v5, v4, s[48:51], s65 offen offset:{4 * k}')
        A('v_mov_b32 v5, s64')
        A(f'buffer_store_dword v5, v4, s[48:51], s65 offen offset:28')
        A('s_waitcnt vmcnt(0)')

    SEL = 40

    def make_sel():
        A('v_and_b32 v4, 7, v2')
        A('v_lshrrev_b32 v5, 1, v4')
        A('v_and_b32 v6, 1, v4')
        A('v_mov_b32 v7, 0x0c0c0100')
        A('v_mov_b32 v8, 0x01000c0c')
        A('v_cmp_eq_u32 vcc, 1, v6')
        A('v_mov_b32 v9, 0x0c0c0302')
        A('v_mov_b32 v10, 0x03020c0c')
        A('v_cndmask_b32 v7, v7, v8, vcc')
        A('v_cndmask_b32 v9, v9, v10, vcc')
        A('v_mov_b32 v8, 0x0c0c0c0c')
        for d in range(4):
            A(f'v_cmp_eq_u32 vcc, {d}, v5')
            A.nop(2)
            A(f'v_cndmask_b32 v{SEL + d}, v8, v7, vcc')
            A(f'v_cndmask_b32 v{SEL + 4 + d}, v8, v9, vcc')

    def build_b(dst, src, odd):
        for d in range(4):
            A(f'v_perm_b32 v{dst + d}, v{src}, v{src}, v{SEL + 4 * odd + d}')

    def swapred(sw, op, v, t):
        A(f'v_mov_b32 v{t}, v{v}')
        A.nop(2)
        A(f'{sw} v{v}, v{t}')
        A(f'{op} v{v}, v{v}, v{t}')

    def allred_g(op, v, t):
        swapred('v_permlane16_swap_b32', op, v, t)
        swapred('v_permlane32_swap_b32', op, v, t)

    def allred_row(v):
        for m in ('quad_perm:[1,0,3,2]', 'quad_perm:[2,3,0,1]', 'row_half_mirror', 'row_mirror'):
            A.nop(2)
            A(f'v_add_f32_dpp v{v}, v{v}, v{v} {m} {DPP}')

    def lds_wait(lab, off, cmp, val, vt, vz, sleep):
        A.label(lab)
        A(f'ds_read_b32 v{vt}, v{vz} offset:{off}')
        A('s_waitcnt lgkmcnt(0)')
        A(f'v_readfirstlane_b32 s64, v{vt}')
        A('s_nop 0')
        A(f'{cmp} s64, {val}')
        if sleep:
            A(f's_cbranch_scc0 {lab}_ok')
            A(f's_sleep {sleep}')
            A(f's_branch {lab}')
            A.label(lab + '_ok')
        else:
            A(f's_cbranch_scc1 {lab}')

    A('s_cmp_ge_u32 s2, 256')
    A('s_cbranch_scc1 L_end')
    if stamp:
        for k in range(7):
            A(f's_mov_b64 s[{84 + 2 * k}:{85 + 2 * k}], 0')
    stampit(0)
    A('s_load_dwordx16 s[4:19], s[0:1], 0')
    A('s_load_dwordx8 s[20:27], s[0:1], 64')
    A('s_load_dwordx2 s[28:29], s[0:1], 96')
    A('v_lshrrev_b32 v1, 6, v0')
    A('v_and_b32 v2, 15, v0')
    A('v_readfirstlane_b32 s30, v1')
    A('v_and_b32 v1, 63, v0')
    A('v_lshrrev_b32 v3, 4, v1')
    A('s_lshr_b32 s31, s2, 3')
    A('s_and_b32 s32, s2, 7')
    A(f's_mov_b32 s50, {ws_size}')
    A('s_mov_b32 s51, 0x20000')
    A('s_cmp_lt_u32 s30, 4')
    A('s_cbranch_scc1 L_helper')

    RING, Q, BS, S, ACC, PK = 64, 48, 32, 24, 20, 16
    VK, VV, VZ, VONE = 12, 13, 14, 15
    M2, LS, AL, T0, T1, PUB = 4, 5, 6, 7, 8, 9
    SOFF = (52, 53, 54)
    SSTAT, SCNT, SDONE, STAG = 38, 39, 55, 56
    A('s_sub_u32 s37, s30, 4')
    A('s_lshl_b32 s64, s31, 23')
    A(f's_lshl_b32 s{SSTAT}, s32, 20')
    A('s_lshl_b32 s65, s37, 12')
    A(f's_add_u32 s{SSTAT}, s{SSTAT}, s65')
    A(f's_mov_b32 s42, {KVOOB}')
    A('s_mov_b32 s43, 0x20000')
    A(f's_mov_b32 s46, {KVOOB}')
    A('s_mov_b32 s47, 0x20000')
    A(f'v_and_b32 v{T0}, 3, v2')
    A(f'v_lshlrev_b32 v{T0}, 10, v{T0}')
    A(f'v_lshrrev_b32 v{T1}, 2, v2')
    A(f'v_lshl_add_u32 v{T0}, v{T1}, 8, v{T0}')
    A(f'v_lshl_add_u32 v{VK}, v3, 4, v{T0}')
    A(f'v_lshlrev_b32 v{VV}, 4, v1')
    A('s_waitcnt lgkmcnt(0)')
    A('s_add_u32 s40, s6, s64')
    A('s_addc_u32 s41, s7, 0')
    A('s_add_u32 s44, s8, s64')
    A('s_addc_u32 s45, s9, 0')
    A('s_mov_b32 s48, s28')
    A('s_mov_b32 s49, s29')
    A('s_barrier')

    def kloads(slot, so):
        for s in range(4):
            r = RING + slot * 32 + s * 4
            A(f'buffer_load_dwordx4 v[{r}:{r + 3}], v{VK}, s[40:43], s{so} offen offset:{s * 64} {kvpol}')

    def vloads(slot, so):
        for s in range(4):
            r = RING + slot * 32 + 16 + s * 4
            A(f'buffer_load_dwordx4 v[{r}:{r + 3}], v{VV}, s[44:47], s{so} offen offset:{s * 1024} {kvpol}')

    order0 = (0, 3, 1, 4, 2, 5)
    n = 0
    for slot in order0:
        for f in (kloads, vloads):
            if n + 4 > infl0:
                A(f's_waitcnt vmcnt({infl0 - 4})')
            f(slot, SSTAT)
            n += 4
            if n == 8:
                make_sel()
                for r in range(4):
                    A(f'v_mov_b32 v{ACC + r}, 0')
                A(f'v_mov_b32 v{LS}, 0')
                A(f'v_mov_b32 v{M2}, {f32(-3.0e38)}')
                A(f'v_mov_b32 v{VZ}, 0')
                A(f'v_mov_b32 v{VONE}, 1')
                A(f's_mov_b32 s66, {f32(128 ** -0.5)}')
                A(f's_mov_b32 s67, {f32(LOG2E)}')
                A(f'v_lshrrev_b32 v{T0}, 3, v2')
                A(f'v_lshl_add_u32 v{T0}, v{T0}, 2, v3')
                A(f'v_lshlrev_b32 v{T0}, {IB}, v{T0}')
                A(f'v_and_b32 v{T1}, 7, v2')
                A(f'v_lshl_add_u32 v{PUB}, v{T1}, 4, v{T0}')
                A(f's_lshl_b32 s68, s31, {IB + 3}')
                A('s_lshl_b32 s65, s32, 4')
                A('s_add_u32 s69, s68, s65')
                A(f's_add_u32 s69, s69, {L1ML}')
                A('s_lshl_b32 s65, s32, 7')
                A('s_add_u32 s68, s68, s65')
                A(f's_mov_b32 s{SCNT}, {ns - 6}')
                A(f's_mov_b32 s{SDONE}, 0')
                A('s_mov_b32 s71, 0')
                A(f'v_lshrrev_b32 v{T0}, 3, v2')
                A(f'v_lshlrev_b32 v{T0}, 8, v{T0}')
                A(f'v_lshl_add_u32 v{T0}, v3, 4, v{T0}')
        A(f's_add_u32 s{SSTAT}, s{SSTAT}, 0x4000')
    stampit(1)
    A.label('L_qw')
    A(f'ds_read_b64 v[{PK}:{PK + 1}], v{VZ} offset:{L_FLAG}')
    for s in range(4):
        A(f'ds_read_b128 v[{Q + 4 * s}:{Q + 4 * s + 3}], v{T0} offset:{L_Q + 64 * s}')
    A('s_waitcnt lgkmcnt(0)')
    A(f'v_readfirstlane_b32 s64, v{PK}')
    A(f'v_readfirstlane_b32 s{STAG}, v{PK + 1}')
    A('s_cmp_eq_u32 s64, 0')
    A('s_cbranch_scc1 L_qw')
    stampit(2)

    def qk(slot, wk):
        A(f's_waitcnt vmcnt({wk})')
        for s in range(4):
            k = RING + slot * 32 + s * 4
            c = '0' if s == 0 else f'v[{S}:{S + 3}]'
            A(f'v_mfma_f32_16x16x32_bf16 v[{S}:{S + 3}], v[{k}:{k + 3}], v[{Q + 4 * s}:{Q + 4 * s + 3}], {c}')

    def softmax_pv(slot, wv):
        for n in range(4):
            A(f'v_cvt_pk_bf16_f32 v{S + n}, 0, v{S + n}')
        for n in range(4):
            A(f'v_mul_f32 v{S + n}, s66, v{S + n}')
        for n in range(4):
            A(f'v_cvt_pk_bf16_f32 v{S + n}, 0, v{S + n}')
        A(f'v_max3_f32 v{T0}, v{S}, v{S + 1}, v{S + 2}')
        A(f'v_max_f32 v{T0}, v{T0}, v{S + 3}')
        allred_g('v_max_f32', T0, T1)
        A(f'v_mul_f32 v{T0}, s67, v{T0}')
        A(f'v_max_f32 v{T0}, v{T0}, v{M2}')
        A(f'v_sub_f32 v{AL}, v{M2}, v{T0}')
        A(f'v_mov_b32 v{M2}, v{T0}')
        A(f'v_exp_f32 v{AL}, v{AL}')
        for n in range(4):
            A(f'v_fma_f32 v{S + n}, v{S + n}, s67, -v{M2}')
        for n in range(4):
            A(f'v_exp_f32 v{S + n}, v{S + n}')
        for r in range(4):
            A(f'v_mul_f32 v{ACC + r}, v{AL}, v{ACC + r}')
        A(f'v_cvt_pk_bf16_f32 v{PK}, v{S}, v{S + 1}')
        A(f'v_cvt_pk_bf16_f32 v{PK + 1}, v{S + 2}, v{S + 3}')
        build_b(BS, PK, 0)
        A(f'v_fma_f32 v{LS}, v{LS}, v{AL}, v{S}')
        A(f'v_add_f32 v{T0}, v{S + 1}, v{S + 2}')
        for n in range(4):
            if n + 1 < 4:
                build_b(BS + 4 * ((n + 1) & 1), PK + (n + 1) // 2, (n + 1) & 1)
            else:
                A(f'v_add_f32 v{LS}, v{LS}, v{S + 3}')
                A(f'v_add_f32 v{LS}, v{LS}, v{T0}')
            A(f's_waitcnt vmcnt({wv + 3 - n})')
            v = RING + slot * 32 + 16 + n * 4
            b = BS + 4 * (n & 1)
            A(f'v_mfma_f32_16x16x32_bf16 v[{ACC}:{ACC + 3}], v[{v}:{v + 3}], v[{b}:{b + 3}], v[{ACC}:{ACC + 3}]')

    def static_tile(so):
        A(f's_mov_b32 s{so}, s{SSTAT}')
        A(f's_add_u32 s{SSTAT}, s{SSTAT}, 0x4000')
        A(f's_sub_u32 s{SCNT}, s{SCNT}, 1')

    outst = []
    for slot in order0:
        outst += [('K', slot, 0)] * 4 + [('V', slot, 0)] * 4

    def younger(tag):
        last = max(i for i, t in enumerate(outst) if t == tag)
        return len(outst) - 1 - last

    for slot in order0:
        qk(slot, younger(('K', slot, 0)))
        if slot < 3:
            static_tile(SOFF[slot])
            A(f's_waitcnt vmcnt({infl - 4})')
            kloads(slot, SOFF[slot])
            outst += [('K', slot, 1)] * 4
        else:
            A.nop(8)
        softmax_pv(slot, younger(('V', slot, 0)))
        if slot < 3:
            A(f's_waitcnt vmcnt({infl - 4})')
            vloads(slot, SOFF[slot])
            outst += [('V', slot, 1)] * 4
    assert younger(('K', 0, 1)) == 20

    A.label('L_sloop')
    if prog:
        A('s_memrealtime s[98:99]')
        A('s_mov_b32 m0, s71')
        A('s_add_u32 s71, s71, 1')
        A('s_waitcnt lgkmcnt(0)')
        A('v_writelane_b32 v10, s98, m0')
    for k in range(3):
        qk(k, 20)
        so = SOFF[k]
        A(f's_cmp_eq_u32 s{SCNT}, 0')
        A(f's_cbranch_scc1 L_dyn{k}')
        static_tile(so)
        A(f's_waitcnt vmcnt({infl - 4})')
        A(f's_branch L_iss{k}')
        A.label(f'L_dyn{k}')
        A(f's_mov_b32 s{so}, {KVOOB}')
        A(f's_cmp_lg_u32 s{SDONE}, 0')
        A(f's_cbranch_scc1 L_iss{k}')
        A(f's_waitcnt vmcnt({infl - 4})')
        A('s_mov_b64 exec, 1')
        A(f'ds_add_rtn_u32 v{T0}, v{VZ}, v{VONE} offset:{L_TK}')
        A('s_waitcnt lgkmcnt(0)')
        A(f'v_lshlrev_b32 v{T1}, 2, v{T0}')
        A.label(f'L_qt{k}')
        A(f'ds_read_b32 v{AL}, v{T1} offset:{L_QT}')
        A('s_waitcnt lgkmcnt(0)')
        A(f'v_readfirstlane_b32 s64, v{AL}')
        A('s_nop 0')
        A('s_cmp_eq_u32 s64, 0')
        A(f's_cbranch_scc1 L_qt{k}')
        A('s_mov_b64 exec, -1')
        A(f's_cmp_eq_u32 s64, {KVOOB}')
        A(f's_cselect_b32 s{SDONE}, 1, 0')
        A(f's_mov_b32 s{so}, s64')
        A.label(f'L_iss{k}')
        kloads(k, so)
        softmax_pv(k, 20)
        A(f's_cmp_eq_u32 s{SOFF[(k + 1) % 3]}, {KVOOB}')
        A('s_cbranch_scc1 L_sdone')
        A(f's_cmp_lg_u32 s{SDONE}, 0')
        A(f's_cbranch_scc1 L_isv{k}')
        A(f's_waitcnt vmcnt({infl - 4})')
        A.label(f'L_isv{k}')
        vloads(k, so)
    A('s_branch L_sloop')

    A.label('L_sdone')
    stampit(3)
    A(f'v_lshlrev_b32 v{T1}, 3, v1')
    A('s_lshl_b32 s64, s37, 9')
    A(f'v_add_u32 v{AL}, s64, v{T1}')
    A(f'ds_write_b64 v{AL}, v[{M2}:{M2 + 1}] offset:{L_MG + 4096}')
    A('s_lshl_b32 s64, s37, 10')
    A(f'v_add_u32 v{AL}, s64, v{VV}')
    A.nop(2)
    A(f'ds_write_b128 v{AL}, v[{ACC}:{ACC + 3}] offset:{L_MG}')
    A('s_mov_b64 exec, 1')
    A(f'ds_add_rtn_u32 v{T0}, v{VZ}, v{VONE} offset:{L_FIN}')
    A('s_mov_b64 exec, -1')
    for w in range(4):
        A(f'ds_read_b64 v[{BS + 2 * w}:{BS + 2 * w + 1}], v{T1} offset:{L_MG + 4096 + 512 * w}')
    for w in range(4):
        A(f'ds_read_b128 v[{Q + 4 * w}:{Q + 4 * w + 3}], v{VV} offset:{L_MG + 1024 * w}')
    A('s_waitcnt lgkmcnt(4)' if not stamp else 's_waitcnt lgkmcnt(0)')
    A(f'v_readfirstlane_b32 s64, v{T0}')
    A(f'v_max_f32 v{M2}, v{BS}, v{BS + 2}')
    A('s_cmp_lg_u32 s64, 3')
    A('s_cbranch_scc1 L_send')
    A(f'v_max3_f32 v{M2}, v{M2}, v{BS + 4}, v{BS + 6}')
    for w in range(4):
        A(f'v_sub_f32 v{S + w}, v{BS + 2 * w}, v{M2}')
    for w in range(4):
        A(f'v_exp_f32 v{S + w}, v{S + w}')
    A(f's_and_b32 s64, s{STAG}, 0xff')
    A('s_movk_i32 s65, 0xff')
    A(f'v_mul_f32 v{AL}, v{S}, v{BS + 1}')
    for w in range(1, 4):
        A(f'v_fmac_f32 v{AL}, v{S + w}, v{BS + 2 * w + 1}')
    A(f'v_mov_b32 v{T1}, s64')
    A('s_waitcnt lgkmcnt(0)')
    for r in range(4):
        A(f'v_mul_f32 v{ACC + r}, v{S}, v{Q + r}')
    for w in range(1, 4):
        for r in range(4):
            A(f'v_fmac_f32 v{ACC + r}, v{S + w}, v{Q + 4 * w + r}')
    for r in range(4):
        A(f'v_bfi_b32 v{ACC + r}, s65, v{T1}, v{ACC + r}')
    A(f'buffer_store_dwordx4 v[{ACC}:{ACC + 3}], v{PUB}, s[48:51], s68 offen sc1')
    allred_g('v_add_f32', AL, T1)
    A(f'v_mov_b32 v{LS}, s{STAG}')
    A(f'v_mov_b32 v{T0}, s{STAG}')
    A('s_mov_b32 exec_lo, 0x01010101')
    A('s_mov_b32 exec_hi, 0x01010101')
    A(f'buffer_store_dwordx4 v[{M2}:{M2 + 3}], v{PUB}, s[48:51], s69 offen sc1')
    A('s_mov_b64 exec, -1')
    stampit(4)
    if stamp:
        A.label('L_send')
        A('s_barrier')
        for _ in range(2): A('s_sleep 127')
    else:
        A('s_barrier')
        A.label('L_send')
    if prog:
        A('s_mov_b32 m0, 31')
        A('s_nop 0')
        A('v_writelane_b32 v10, s71, m0')
        A('s_lshl_b32 s65, s2, 2')
        A('s_add_u32 s65, s65, s37')
        A('s_lshl_b32 s65, s65, 7')
        A(f's_add_u32 s65, s65, {STAMP_OFF + 65536}')
        A('v_lshlrev_b32 v11, 2, v1')
        A('s_mov_b32 exec_hi, 0')
        A('buffer_store_dword v10, v11, s[48:51], s65 offen')
        A('s_mov_b64 exec, -1')
    stamp_store()
    A('s_endpgm')

    A.label('L_helper')
    A('s_setprio 2')
    HB = 48
    X, E = 64, 80
    A('v_lshlrev_b32 v11, 4, v1')
    A('v_mov_b32 v12, 0')
    A('v_lshlrev_b32 v23, 2, v1')
    for z in range(L_FLAG, L_ZEND, 256):
        A(f'ds_write_b32 v23, v12 offset:{z}')
    A('s_lshr_b32 s33, s31, 4')
    A('s_and_b32 s34, s31, 15')
    A('s_and_b32 s35, s2, 127')
    A('s_sub_u32 s64, s32, s31')
    A('s_and_b32 s64, s64, 7')
    A('s_lshr_b32 s65, s64, 2')
    A('s_lshl_b32 s72, s31, 1')
    A('s_add_u32 s72, s72, s65')
    A('s_lshl_b32 s73, s65, 4')
    A('s_add_u32 s73, s73, s34')
    A('s_and_b32 s64, s64, 3')
    A('s_cmp_lt_u32 s73, 18')
    A('s_cselect_b32 s3, 2, 0')
    A('s_cmp_eq_u32 s64, 2')
    A('s_cselect_b32 s3, s3, 0')
    A('s_cmp_eq_u32 s64, 0')
    A('s_cselect_b32 s3, 1, s3')
    A('v_mul_u32_u24 v13, 36, v1')
    A('s_mov_b32 s42, 2304')
    A('s_mov_b32 s43, 0x20000')
    A(f's_mov_b32 s46, {576 * 8192}')
    A('s_mov_b32 s47, 0x20000')
    A('v_lshrrev_b32 v14, 3, v1')
    A('v_lshlrev_b32 v14, 13, v14')
    A('v_and_b32 v15, 7, v1')
    A('v_lshl_add_u32 v14, v15, 4, v14')
    A(f's_mul_i32 s38, s30, {144 * 8192}')
    A('s_lshl_b32 s64, s72, 7')
    A('s_add_u32 s38, s38, s64')
    A(f's_mul_i32 s37, s30, {144 * 128}')
    A(f's_add_u32 s37, s37, {L_WQ}')
    A('s_lshl_b32 s64, s30, 2')
    A('s_add_u32 s64, s64, s3')
    A('s_cmp_eq_u32 s64, 2')
    A('s_cselect_b32 s70, 1, 0')
    A('s_cmp_eq_u32 s3, 1')
    A('s_cselect_b32 s70, 1, s70')
    A('s_waitcnt lgkmcnt(0)')
    A('s_mov_b32 s48, s28')
    A('s_mov_b32 s49, s29')
    A('s_mov_b32 s40, s4')
    A('s_mov_b32 s41, s5')
    A('s_mov_b32 s44, s10')
    A('s_mov_b32 s45, s11')
    A(f's_mov_b32 s64, {EPOCH}')
    A('s_load_dwordx2 s[78:79], s[28:29], s64')
    A('s_cmp_eq_u32 s70, 0')
    A('s_cbranch_scc1 L_h_x')
    A(f'buffer_load_dwordx4 v[{X}:{X + 3}], v13, s[40:43], 0 offen')
    A(f'buffer_load_dwordx4 v[{X + 4}:{X + 7}], v13, s[40:43], 0 offen offset:16')
    A(f'buffer_load_dword v{X + 8}, v13, s[40:43], 0 offen offset:32')
    A('s_cmp_lg_u32 s3, 1')
    A('s_cbranch_scc1 L_h_x')
    for n in range(18):
        A('s_mov_b32 m0, s37')
        A('s_add_u32 s37, s37, 1024')
        A(f'buffer_load_dwordx4 v14, s[44:47], s38 offen {wqpol} lds')
        A('s_add_u32 s38, s38, 0x10000')
    A.label('L_h_x')
    A('s_barrier')
    A('s_cmp_eq_u32 s70, 0')
    A('s_cbranch_scc1 L_h_noln')

    def layernorm(src, dst):
        D = E + 18
        a, b, c = E + 36, E + 37, E + 38
        for k in range(9):
            A(f'v_lshlrev_b32 v{E + 2 * k}, 16, v{src + k}')
            A(f'v_and_b32 v{E + 2 * k + 1}, 0xffff0000, v{src + k}')
        A(f'v_add_f32 v{a}, v{E}, v{E + 1}')
        A(f'v_add_f32 v{b}, v{E + 2}, v{E + 3}')
        for n in range(4, 18, 2):
            A(f'v_add_f32 v{a}, v{a}, v{E + n}')
            A(f'v_add_f32 v{b}, v{b}, v{E + n + 1}')
        A(f'v_add_f32 v{a}, v{a}, v{b}')
        allred_row(a)
        swapred('v_permlane16_swap_b32', 'v_add_f32', a, b)
        A(f'v_mul_f32 v{a}, {f32(1.0 / 576)}, v{a}')
        for n in range(18):
            A(f'v_sub_f32 v{D + n}, v{E + n}, v{a}')
        A(f'v_mul_f32 v{b}, v{D}, v{D}')
        A(f'v_mul_f32 v{c}, v{D + 1}, v{D + 1}')
        for n in range(2, 18, 2):
            A(f'v_fmac_f32 v{b}, v{D + n}, v{D + n}')
            A(f'v_fmac_f32 v{c}, v{D + n + 1}, v{D + n + 1}')
        A(f'v_add_f32 v{b}, v{b}, v{c}')
        A(f'v_cvt_pk_bf16_f32 v{a}, 0, v{a}')
        allred_row(b)
        swapred('v_permlane16_swap_b32', 'v_add_f32', b, c)
        A(f'v_mul_f32 v{b}, {f32(1.0 / 576)}, v{b}')
        A(f'v_cvt_pk_bf16_f32 v{b}, 0, v{b}')
        A(f'v_add_f32 v{b}, {f32(1e-5)}, v{b}')
        A(f'v_cvt_pk_bf16_f32 v{b}, 0, v{b}')
        A(f'v_sqrt_f32 v{b}, v{b}')
        A(f'v_sub_f32 v{D}, v{E}, v{a}')
        A(f'v_cvt_pk_bf16_f32 v{b}, 0, v{b}')
        A(f'v_rcp_f32 v{b}, v{b}')
        for n in range(1, 18):
            A(f'v_sub_f32 v{D + n}, v{E + n}, v{a}')
        for n in range(18):
            A(f'v_cvt_pk_bf16_f32 v{D + n}, 0, v{D + n}')
        for n in range(18):
            A(f'v_mul_f32 v{D + n}, v{D + n}, v{b}')
        for k in range(9):
            A(f'v_cvt_pk_bf16_f32 v{dst + k}, v{D + 2 * k}, v{D + 2 * k + 1}')

    A('v_and_b32 v15, 1, v2')
    A('v_mul_u32_u24 v15, 1152, v15')
    A('v_lshl_add_u32 v15, v3, 4, v15')
    A('v_lshrrev_b32 v16, 2, v2')
    A('v_lshl_add_u32 v16, v3, 3, v16')
    A('v_lshlrev_b32 v16, 7, v16')
    A('v_and_b32 v17, 3, v1')
    A('v_lshl_add_u32 v16, v17, 3, v16')
    A('s_lshl_b32 s64, s30, 5')
    A('v_add_u32 v16, s64, v16')
    A('v_add_u32 v20, 0x8000, v16')
    A('v_lshlrev_b32 v17, 3, v2')
    A('v_lshl_add_u32 v17, v3, 15, v17')
    A('s_lshl_b32 s39, s72, 9')
    A('s_lshl_b32 s64, s30, 7')
    A('s_add_u32 s39, s39, s64')
    A(f's_add_u32 s39, s39, {QX}')
    A('s_cmp_eq_u32 s3, 1')
    A('s_cbranch_scc1 L_h_wx')
    A('s_waitcnt vmcnt(0)')
    A.label('L_h_wx')
    A('s_waitcnt vmcnt(18)')
    if stamp == 2: stampit(4)
    layernorm(X, X)
    A('v_mov_b32 v18, 1')
    A('s_cmp_lg_u32 s3, 1')
    A('s_cbranch_scc1 L_h_ln2')
    for k in range(9):
        A(f'ds_write_b32 v13, v{X + k} offset:{L_XN + 4 * k}')
    QA, QB, QD = 120, 192, 76
    A('s_waitcnt lgkmcnt(0)')
    for t in range(18):
        A(f'ds_read_b128 v[{QA + 4 * t}:{QA + 4 * t + 3}], v15 offset:{L_XN + 64 * t}')
        if t == 8:
            A('s_waitcnt lgkmcnt(0)')
    if stamp == 2: stampit(5)
    A('s_waitcnt vmcnt(0)')
    A('s_mov_b64 exec, 1')
    A(f'ds_add_u32 v12, v18 offset:{L_CNT}')
    A('s_mov_b64 exec, -1')
    lds_wait('L_h_sync', L_CNT, 's_cmp_lt_u32', 4, 18, 12, 0)
    if stamp == 2:
        stampit(6)
        A('s_waitcnt lgkmcnt(0)')
    for t0 in (0, 6, 12):
        for t in range(t0, t0 + 6):
            r = QB + 4 * (t % 12)
            for h in range(2):
                off = L_WQ + 4096 * t + 512 * h
                base, off = (16, off) if off < 32768 else (20, off - 32768)
                A(f'ds_read_b64_tr_b16 v[{r + 2 * h}:{r + 2 * h + 1}], v{base} offset:{off}')
        for t in range(t0, t0 + 6):
            r = QB + 4 * (t % 12)
            A(f's_waitcnt lgkmcnt({2 * (t0 + 5 - t)})')
            c = '0' if t == 0 else f'v[{QD}:{QD + 3}]'
            A(f'v_mfma_f32_16x16x32_bf16 v[{QD}:{QD + 3}], v[{QA + 4 * t}:{QA + 4 * t + 3}], v[{r}:{r + 3}], {c}')
    A('s_add_u32 s64, s79, 1')
    A('s_and_b32 s65, s78, 0xffff0000')
    A('v_cmp_eq_u32 vcc, 1, v3')
    A('v_mov_b32 v19, s64')
    A.nop(6)
    A(f'v_cndmask_b32 v18, v{QD}, v{QD + 1}, vcc')
    A('v_cvt_pk_bf16_f32 v18, v18, 0')
    A('v_or_b32 v18, s65, v18')
    A('s_mov_b32 exec_hi, 0')
    A('buffer_store_dwordx2 v[18:19], v17, s[48:51], s39 offen sc1')
    A('s_mov_b64 exec, -1')
    stampit(1)
    A('s_branch L_h_q')
    A.label('L_h_ln2')
    layernorm(X, X)
    for k in range(9):
        A(f'ds_write_b32 v13, v{X + k} offset:{L_H + 4 * k}')
    A(f'ds_write_b32 v12, v18 offset:{L_HF}')
    A('s_branch L_h_join')

    A.label('L_h_noln')
    A('s_cmp_eq_u32 s30, 1')
    A('s_cbranch_scc0 L_h_join')
    if qdelay:
        A(f's_sleep {qdelay}')
    A.label('L_h_q')
    A('s_cmp_eq_u32 s30, 1')
    A('s_cbranch_scc0 L_h_join')
    A('s_lshl_b32 s39, s31, 11')
    A(f's_add_u32 s39, s39, {QX}')
    A('s_waitcnt lgkmcnt(0)')
    A('s_add_u32 s79, s79, 1')
    A('s_and_b32 s78, s78, 0xffff0000')
    A(f's_mov_b32 s70, {SPIN_MAX}')
    PB = 64

    def qpoll(p):
        for k in range(2):
            r = PB + 8 * p + 4 * k
            A(f'buffer_load_dwordx4 v[{r}:{r + 3}], v11, s[48:51], s39 offen offset:{1024 * k} sc1')
    for p in range(npoll - 1):
        qpoll(p)
        A(f's_sleep {qsleep}')
    A.label('L_qp')
    for p in range(npoll):
        qpoll((p + npoll - 1) % npoll)
        r = PB + 8 * p
        A(f's_waitcnt vmcnt({2 * (npoll - 1)})')
        A(f'v_xor_b32 v14, s79, v{r + 1}')
        A(f'v_xor_b32 v15, s79, v{r + 3}')
        A(f'v_xor_b32 v16, s79, v{r + 5}')
        A(f'v_xor_b32 v17, s79, v{r + 7}')
        A('v_or3_b32 v14, v14, v15, v16')
        A(f'v_xor_b32 v15, s78, v{r}')
        A(f'v_xor_b32 v16, s78, v{r + 2}')
        A(f'v_xor_b32 v18, s78, v{r + 4}')
        A(f'v_xor_b32 v19, s78, v{r + 6}')
        A('v_or3_b32 v20, v15, v16, v18')
        A('v_or_b32 v20, v20, v19')
        A('v_lshrrev_b32 v20, 16, v20')
        A('v_or3_b32 v14, v14, v17, v20')
        A('v_cmp_ne_u32 vcc, 0, v14')
        A('s_cbranch_vccz L_qp_done')
    A('s_sub_u32 s70, s70, 1')
    A('s_cmp_lg_u32 s70, 0')
    A('s_cbranch_scc1 L_qp')
    A.label('L_qp_done')
    A('v_lshl_or_b32 v15, v16, 16, v15')
    A('v_lshl_or_b32 v18, v19, 16, v18')
    A(f'ds_write_b32 v23, v15 offset:{L_Q}')
    A(f'ds_write_b32 v23, v18 offset:{L_Q + 256}')
    A('v_mov_b32 v14, 1')
    A('v_mov_b32 v15, s79')
    A(f'ds_write_b64 v12, v[14:15] offset:{L_FLAG}')
    A('s_mov_b32 s64, 1')
    A('s_atomic_add s64, s[26:27], 0 glc')
    stampit(1)

    A.label('L_h_join')
    make_sel()
    A('v_lshrrev_b32 v5, 3, v2')
    A('v_lshl_add_u32 v5, v5, 2, v3')
    A('v_and_b32 v7, 7, v2')
    A(f's_lshl_b32 s74, s2, {IB}')
    lds_wait('L_h_qf', L_FLAG, 's_cmp_eq_u32', 0, 14, 12, 8)
    A(f'ds_read_b32 v14, v12 offset:{L_TAG}')
    A('s_waitcnt lgkmcnt(0)')
    A('v_readfirstlane_b32 s79, v14')
    stampit(2)

    pc = [0]

    def paced(ins):
        if pc[0] >= hpace:
            A(f's_waitcnt vmcnt({hpace - 1})')
        A(ins)
        pc[0] += 1

    A(f's_lshl_b32 s64, s31, {IB + 3}')
    A(f's_add_u32 s36, s64, {POOL}')
    A('s_add_u32 s60, s28, s36')
    A('s_addc_u32 s61, s29, 0')
    A('s_lshl_b32 s64, s32, 2')
    A('s_add_u32 s64, s64, s30')
    A('s_cmp_lg_u32 s64, 3')
    A('s_cbranch_scc1 L_nopool')
    A(f'v_mov_b32 v14, {(128 - LIM) * 0x01010101}')
    A(f'v_mov_b32 v15, {(128 - LIM) * 0x01010101}')
    A('v_mov_b32 v16, s79')
    A('s_mov_b64 exec, 1')
    A('buffer_store_dwordx2 v[14:15], v12, s[48:51], s36 offen sc1')
    A('s_waitcnt vmcnt(0)')
    A('buffer_store_dword v16, v12, s[48:51], s36 offen offset:8 sc1')
    A('s_mov_b64 exec, -1')
    A.label('L_nopool')

    WO = 104
    W8 = 3
    A('s_mov_b32 s52, s12')
    A('s_mov_b32 s53, s13')
    A(f's_mov_b32 s54, {4096 * 1152}')
    A('s_mov_b32 s55, 0x20000')
    A('v_mul_u32_u24 v17, 1152, v5')
    A('v_lshl_add_u32 v17, v7, 4, v17')
    A(f's_mul_i32 s64, s35, {32 * 1152}')
    A('s_lshl_b32 s65, s30, 8')
    A('s_add_u32 s65, s65, s64')
    for t in range(4):
        for bl in range(2):
            r = WO + bl * 16 + t * 4
            paced(f'buffer_load_dwordx4 v[{r}:{r + 3}], v17, s[52:55], s65 offen offset:{128 * bl} {wopol}')
        if t < 3:
            A(f's_add_u32 s65, s65, {8 * 1152}')
    A(f's_cmp_lg_u32 s30, {W8}')
    A('s_cbranch_scc1 L_nowo8')
    for t in range(4):
        r = WO + 32 + t * 4
        paced(f'buffer_load_dwordx4 v[{r}:{r + 3}], v17, s[52:55], s64 offen offset:1024 {wopol}')
        if t < 3:
            A(f's_add_u32 s64, s64, {8 * 1152}')
    A.label('L_nowo8')

    A('s_lshl_b32 s80, s73, 5')
    A('s_mul_i32 s64, s33, 576')
    A('s_add_u32 s80, s80, s64')
    G = 176
    A('v_and_b32 v17, 1, v3')
    A('v_lshrrev_b32 v18, 1, v3')
    A('v_lshl_add_u32 v17, v17, 1, v18')
    A('v_lshl_add_u32 v17, v17, 3, v7')
    A('v_lshlrev_b32 v24, 2, v17')
    A('v_add_u32 v17, s80, v17')
    A('v_lshlrev_b32 v25, 1, v17')
    A('s_cmp_lg_u32 s3, 2')
    A('s_cbranch_scc1 L_nob')
    PW = 64
    W1, B1, W2 = 152, 170, 188
    U = 206
    A('s_mul_i32 s64, s30, 2304')
    A('v_add_u32 v15, s64, v11')
    A('v_add_u32 v16, s64, v23')
    for k, base in enumerate((16, 18, 20)):
        r = PW + 12 * k
        paced(f'global_load_dwordx4 v[{r}:{r + 3}], v15, s[{base}:{base + 1}] {bpol}')
        paced(f'global_load_dwordx4 v[{r + 4}:{r + 7}], v15, s[{base}:{base + 1}] offset:1024 {bpol}')
        paced(f'global_load_dword v{r + 8}, v16, s[{base}:{base + 1}] offset:2048 {bpol}')
    paced('buffer_load_ushort v26, v25, s[40:43], 0 offen')
    paced('global_load_ushort v27, v12, s[22:23]')
    lds_wait('L_h_hf', L_HF, 's_cmp_eq_u32', 0, 14, 12, 8)
    c0 = -2.0 * math.sqrt(2.0 / math.pi) * LOG2E
    A(f's_mov_b32 s66, {f32(c0 * 0.044715)}')
    A(f'v_mov_b32 v17, {f32(c0)}')
    A('s_lshl_b32 s64, s80, 1')
    A(f's_add_u32 s64, s64, {L_H}')
    A('v_mov_b32 v18, s64')
    A('s_lshl_b32 s64, s30, 7')
    A(f's_add_u32 s64, s64, {L_BP}')
    A('v_mov_b32 v19, s64')
    A('s_waitcnt vmcnt(0)')
    for k, dst in enumerate((W1, B1, W2)):
        for n in range(9):
            A(f'v_lshlrev_b32 v{dst + 2 * n}, 16, v{PW + 12 * k + n}')
            A(f'v_and_b32 v{dst + 2 * n + 1}, 0xffff0000, v{PW + 12 * k + n}')
    A('s_mov_b32 s70, 0')
    A.label('L_bloop')
    A('ds_read_u16 v20, v18')
    A('v_add_u32 v18, 2, v18')
    A('s_waitcnt lgkmcnt(0)')
    A('v_lshlrev_b32 v20, 16, v20')
    V2 = U + 18
    for n in range(18): A(f'v_mul_f32 v{U + n}, v20, v{W1 + n}')
    for n in range(18): A(f'v_cvt_pk_bf16_f32 v{U + n}, 0, v{U + n}')
    for n in range(18): A(f'v_add_f32 v{U + n}, v{U + n}, v{B1 + n}')
    for n in range(18): A(f'v_cvt_pk_bf16_f32 v{U + n}, 0, v{U + n}')
    for n in range(18): A(f'v_mul_f32 v{V2 + n}, v{U + n}, v{U + n}')
    for n in range(18): A(f'v_fma_f32 v{V2 + n}, v{V2 + n}, s66, v17')
    for n in range(18): A(f'v_mul_f32 v{V2 + n}, v{V2 + n}, v{U + n}')
    for n in range(18): A(f'v_exp_f32 v{V2 + n}, v{V2 + n}')
    for n in range(18): A(f'v_add_f32 v{V2 + n}, 1.0, v{V2 + n}')
    for n in range(18): A(f'v_rcp_f32 v{V2 + n}, v{V2 + n}')
    for n in range(18): A(f'v_mul_f32 v{U + n}, v{U + n}, v{V2 + n}')
    for n in range(18): A(f'v_cvt_pk_bf16_f32 v{U + n}, 0, v{U + n}')
    A(f'v_mul_f32 v21, v{U}, v{W2}')
    A(f'v_mul_f32 v22, v{U + 1}, v{W2 + 1}')
    for n in range(2, 18, 2):
        A(f'v_fmac_f32 v21, v{U + n}, v{W2 + n}')
        A(f'v_fmac_f32 v22, v{U + n + 1}, v{W2 + n + 1}')
    A('v_add_f32 v21, v21, v22')
    allred_row(21)
    allred_g('v_add_f32', 21, 22)
    A('ds_write_b32 v19, v21')
    A('v_add_u32 v19, 4, v19')
    A('s_add_u32 s70, s70, 1')
    A('s_cmp_lt_u32 s70, 32')
    A('s_cbranch_scc1 L_bloop')
    A('v_mov_b32 v14, 1')
    A('s_mov_b64 exec, 1')
    A(f'ds_add_u32 v12, v14 offset:{L_BC}')
    A('s_mov_b64 exec, -1')
    lds_wait('L_h_bc', L_BC, 's_cmp_lt_u32', 4, 14, 12, 8)
    for w in range(4):
        A(f'ds_read_b32 v{G + w}, v24 offset:{L_BP + 128 * w}')
    A('s_waitcnt lgkmcnt(0)')
    A(f'v_add_f32 v{G}, v{G}, v{G + 1}')
    A(f'v_add_f32 v{G + 2}, v{G + 2}, v{G + 3}')
    A(f'v_add_f32 v{G}, v{G}, v{G + 2}')
    A('v_lshlrev_b32 v26, 16, v26')
    A('v_lshlrev_b32 v27, 16, v27')
    A(f'v_cvt_pk_bf16_f32 v{G}, 0, v{G}')
    A(f'v_add_f32 v27, v{G}, v27')
    A('v_cvt_pk_bf16_f32 v27, 0, v27')
    A.label('L_nob')

    A('s_lshl_b32 s64, s2, 2')
    A('s_add_u32 s64, s64, s30')
    A('s_cmp_lg_u32 s64, 3')
    A('s_cbranch_scc1 L_noep')
    A(f's_mov_b32 s70, {SPIN_MAX}')
    A.label('L_cnt')
    A('s_mov_b32 s64, 0')
    A('s_atomic_add s64, s[26:27], 0 glc')
    A('s_sub_u32 s70, s70, 1')
    A('s_waitcnt lgkmcnt(0)')
    A('s_cmp_eq_u32 s70, 0')
    A('s_cbranch_scc1 L_cnt_ok')
    A('s_cmp_ge_u32 s64, 256')
    A('s_cbranch_scc1 L_cnt_ok')
    A('s_sleep 64')
    A('s_branch L_cnt')
    A.label('L_cnt_ok')
    A('v_mov_b32 v17, s79')
    A(f's_mov_b32 s64, {EPOCH + 4}')
    A('s_mov_b64 exec, 1')
    A('buffer_store_dword v17, v12, s[48:51], s64 offen sc1')
    A('s_mov_b64 exec, -1')
    A.label('L_noep')

    A('s_mov_b32 s56, s24')
    A('s_mov_b32 s57, s25')
    A('s_mov_b32 s58, 2304')
    A('s_mov_b32 s59, 0x20000')
    A('v_lshlrev_b32 v19, 7, v7')
    A('v_lshl_add_u32 v19, v5, 4, v19')
    A('v_lshlrev_b32 v20, 4, v7')
    A('v_lshl_add_u32 v21, v3, 14, v20')
    A('v_lshlrev_b32 v22, 3, v1')
    A(f's_mul_i32 s82, s33, {18 * 16384}')
    A(f's_add_u32 s82, s82, {L2A}')
    A('s_lshl_b32 s81, s73, 14')
    A('s_add_u32 s81, s81, s82')
    A('s_lshl_b32 s64, s30, 12')
    A('s_add_u32 s81, s81, s64')
    A('s_lshl_b32 s64, s35, 7')
    A('s_add_u32 s82, s82, s64')
    A('s_lshl_b32 s64, s30, 16')
    A('s_add_u32 s76, s82, s64')
    A(f's_add_u32 s77, s82, {16 * 16384}')
    A('s_and_b32 s78, s79, 0xff')
    A('s_movk_i32 s75, 0xff')
    A('v_mov_b32 v28, s78')
    A('v_mov_b32 v29, 1')
    if warm:
        A('s_cmp_lg_u32 s30, 3')
        A('s_cbranch_scc1 L_nowarm1')
        A('buffer_load_dwordx4 v[200:203], v11, s[48:51], s74 offen sc1')
        A(f'buffer_load_dwordx4 v[204:207], v20, s[48:51], s74 offen offset:{L1ML} sc1')
        A.label('L_nowarm1')
        A('s_cmp_lg_u32 s3, 2')
        A('s_cbranch_scc1 L_nowarm2')
        for k in range(4):
            A(f'buffer_load_dwordx4 v[{208 + 4 * k}:{211 + 4 * k}], v11, s[48:51], s81 offen offset:{1024 * k} sc1')
        A.label('L_nowarm2')

    A('s_cmp_lg_u32 s30, 2')
    A('s_cbranch_scc1 L_nodisp')
    SC, SF, SOWN, SOWNC, SN, SZ = 66, 68, 69, 70, 71, 37
    A('v_lshlrev_b32 v16, 12, v1')
    A('s_lshl_b32 s64, s32, 20')
    A(f's_add_u32 s64, s64, {ns * 16384}')
    A('v_add_u32 v14, s64, v16')
    A(f's_mov_b64 exec, {(1 << (4 * npre)) - 1}')
    A(f'ds_write_b32 v23, v14 offset:{L_QT}')
    A('s_mov_b64 exec, -1')
    A(f's_mov_b32 s{SN}, {4 * npre}')
    A(f's_mov_b32 s83, {SPIN_MAX}')
    A.label('L_prdy')
    A('s_mov_b32 s64, 0')
    A('s_atomic_add s64, s[60:61], 8 glc')
    A('s_sub_u32 s83, s83, 1')
    A('s_waitcnt lgkmcnt(0)')
    A('s_cmp_eq_u32 s83, 0')
    A('s_cbranch_scc1 L_dend')
    A('s_cmp_eq_u32 s64, s79')
    A('s_cbranch_scc1 L_prdy_ok')
    A('s_sleep 64')
    A('s_branch L_prdy')
    A.label('L_prdy_ok')
    A(f's_lshl_b32 s{SOWN}, s32, 3')
    A(f's_mov_b32 s{SF}, s{SOWN}')
    A(f's_sub_u32 s{SOWNC}, 64, s{SOWN}')
    A('s_mov_b32 s62, 0x80808080')
    A('s_mov_b32 s63, 0x80808080')
    A(f's_mov_b32 s{SZ}, {4 if LIM > big else small}')
    lds_wait('L_dw0', L_TK, 's_cmp_eq_u32', 0, 14, 12, 16)
    A.label('L_dloop')
    A(f's_sub_u32 s83, s{SN}, {theta}')
    lds_wait('L_dw', L_TK, 's_cmp_lt_u32', 's83', 14, 12, dsleep)
    A.label('L_drty')
    A(f's_mov_b32 s38, s{SZ}')
    A('s_mov_b32 s39, 0')
    A(f's_lshl_b64 s[38:39], s[38:39], s{SF}')
    A(f's_mov_b64 s[{SC}:{SC + 1}], s[38:39]')
    A(f's_atomic_add_x2 s[{SC}:{SC + 1}], s[60:61], 0 glc')
    A(f's_lshl_b32 s83, s{SF}, 17')
    A(f's_lshl_b32 s64, s{SN}, 2')
    A('v_add_u32 v15, s64, v23')
    A('s_waitcnt lgkmcnt(0)')
    A(f's_lshr_b64 s[64:65], s[{SC}:{SC + 1}], s{SF}')
    A('s_and_b32 s64, s64, 0xff')
    A('s_cmp_ge_u32 s64, 128')
    A('s_cbranch_scc1 L_dfail')
    A('s_lshl_b32 s65, s64, 12')
    A('s_add_u32 s65, s65, s83')
    A(f's_add_u32 s65, s65, {((ns + npre) * 16384 - (128 - LIM) * 4096) & 0xffffffff}')
    A('v_add_u32 v14, s65, v16')
    A('s_sub_u32 s65, 128, s64')
    A(f's_min_u32 s65, s65, s{SZ}')
    A('s_bfm_b64 exec, s65, 0')
    A(f'ds_write_b32 v15, v14 offset:{L_QT}')
    A('s_mov_b64 exec, -1')
    A(f's_add_u32 s{SN}, s{SN}, s65')
    A.label('L_dfail')
    A(f's_add_u32 s{SC}, s38, s{SC}')
    A(f's_addc_u32 s{SC + 1}, s39, s{SC + 1}')
    A(f's_andn2_b64 s[38:39], s[62:63], s[{SC}:{SC + 1}]')
    A(f's_lshr_b64 s[44:45], s[38:39], s{SOWN}')
    A(f's_lshl_b64 s[38:39], s[38:39], s{SOWNC}')
    A('s_or_b64 s[38:39], s[38:39], s[44:45]')
    A('s_cbranch_scc0 L_dend')
    A('s_ff1_i32_b64 s65, s[38:39]')
    A(f's_add_u32 s65, s65, s{SOWN}')
    A(f's_and_b32 s{SF}, s65, 56')
    A(f's_lshr_b64 s[38:39], s[{SC}:{SC + 1}], s{SF}')
    A('s_and_b32 s38, s38, 0xff')
    A(f's_cmp_lt_u32 s38, {128 - big}')
    A(f's_cselect_b32 s{SZ}, 4, {small}')
    A('s_cmp_ge_u32 s64, 128')
    A('s_cbranch_scc1 L_drty')
    A(f's_cmp_lt_u32 s{SN}, 168')
    A('s_cbranch_scc1 L_dloop')
    A.label('L_dend')
    A(f's_lshl_b32 s64, s{SN}, 2')
    A('v_add_u32 v15, s64, v23')
    A(f'v_mov_b32 v14, {KVOOB}')
    A('s_mov_b64 exec, 15')
    A(f'ds_write_b32 v15, v14 offset:{L_QT}')
    A('s_mov_b64 exec, -1')
    A.label('L_nodisp')
    A('s_waitcnt vmcnt(0) lgkmcnt(0)')
    A('s_barrier')
    stampit(3)

    P1, O, W = 200, 232, 236
    A('s_cmp_lg_u32 s30, 3')
    A('s_cbranch_scc1 L_ow')
    A(f's_mov_b32 s70, {SPIN_MAX}')
    A.label('L_p1')
    A(f'buffer_load_dwordx4 v[{P1}:{P1 + 3}], v20, s[48:51], s74 offen offset:{L1ML} sc1')
    A(f'buffer_load_dwordx4 v[{P1 + 4}:{P1 + 7}], v19, s[48:51], s74 offen sc1')
    A('s_sub_u32 s70, s70, 1')
    A('s_cmp_eq_u32 s70, 0')
    A('s_waitcnt vmcnt(0)')
    A('s_cbranch_scc1 L_p1_done')
    for t in range(4):
        A(f'v_xor_b32 v{O + t}, s78, v{P1 + 4 + t}')
    A(f'v_xor_b32 v17, s79, v{P1 + 1}')
    A(f'v_xor_b32 v18, s79, v{P1 + 3}')
    A(f'v_or3_b32 v14, v{O}, v{O + 1}, v{O + 2}')
    A(f'v_or_b32 v14, v14, v{O + 3}')
    A('v_and_b32 v14, 0xff, v14')
    A('v_or3_b32 v14, v14, v17, v18')
    A('v_cmp_ne_u32 vcc, 0, v14')
    A('s_cbranch_vccz L_p1_done')
    A('s_mov_b64 exec, vcc')
    if ps1:
        A(f's_sleep {ps1}')
    A('s_branch L_p1')
    A.label('L_p1_done')
    A('s_mov_b64 exec, -1')
    if stamp == 1:
        stampit(4)
    A(f'v_max_f32_dpp v17, v{P1}, v{P1} quad_perm:[1,0,3,2] {DPP}')
    for m in ('quad_perm:[2,3,0,1]', 'row_half_mirror'):
        A.nop(2)
        A(f'v_max_f32_dpp v17, v17, v17 {m} {DPP}')
    A(f'v_sub_f32 v15, v{P1}, v17')
    A('v_exp_f32 v15, v15')
    A.nop(1)
    A(f'v_mul_f32 v16, v15, v{P1 + 2}')
    for t in range(4):
        A(f'v_mul_f32 v{O + t}, v15, v{O + t}')
    for m in ('quad_perm:[1,0,3,2]', 'quad_perm:[2,3,0,1]', 'row_half_mirror'):
        for q in (16, O, O + 1, O + 2, O + 3):
            A(f'v_add_f32_dpp v{q}, v{q}, v{q} {m} {DPP}')
    A('v_rcp_f32 v16, v16')
    A.nop(1)
    for t in range(4):
        A(f'v_mul_f32 v{O + t}, v{O + t}, v16')
    A(f'v_cvt_pk_bf16_f32 v{W}, v{O}, v{O + 1}')
    A(f'v_cvt_pk_bf16_f32 v{W + 1}, v{O + 2}, v{O + 3}')
    A(f'ds_write_b64 v22, v[{W}:{W + 1}] offset:{L_OW}')
    A(f'ds_write_b32 v12, v29 offset:{L_OF}')
    A('s_branch L_proj')
    A.label('L_ow')
    A(f'ds_read_b32 v14, v12 offset:{L_OF}')
    A(f'ds_read_b64 v[{W}:{W + 1}], v22 offset:{L_OW}')
    A('s_waitcnt lgkmcnt(0)')
    A('v_cmp_eq_u32 vcc, 0, v14')
    A('s_cbranch_vccnz L_ow')
    if stamp == 1:
        stampit(4)
    A.label('L_proj')
    DX, DY, DZ = 240, 244, 248
    build_b(HB, W, 0)
    for t in range(4):
        if t < 3:
            build_b(HB + 4 * (t + 1), W + (t + 1) // 2, (t + 1) & 1)
        for bl, D in ((0, DX), (1, DY)):
            r = WO + bl * 16 + t * 4
            c = '0' if t == 0 else f'v[{D}:{D + 3}]'
            A(f'v_mfma_f32_16x16x32_bf16 v[{D}:{D + 3}], v[{r}:{r + 3}], v[{HB + 4 * t}:{HB + 4 * t + 3}], {c}')
    A(f's_cmp_lg_u32 s30, {W8}')
    A('s_cbranch_scc1 L_nob8a')
    for t in range(4):
        r = WO + 32 + t * 4
        c = '0' if t == 0 else f'v[{DZ}:{DZ + 3}]'
        A(f'v_mfma_f32_16x16x32_bf16 v[{DZ}:{DZ + 3}], v[{r}:{r + 3}], v[{HB + 4 * t}:{HB + 4 * t + 3}], {c}')
    A.label('L_nob8a')
    A.nop(6)
    for r in range(4):
        A(f'v_permlane32_swap_b32 v{DX + r}, v{DY + r}')
    A.nop(1)
    for r in range(4):
        A(f'v_add_f32_dpp v{DX + r}, v{DY + r}, v{DX + r} row_ror:8 {DPP}')
    for r in range(4):
        A(f'v_bfi_b32 v{DX + r}, s75, v28, v{DX + r}')
    A('s_mov_b32 exec_lo, 0x00ff00ff')
    A('s_mov_b32 exec_hi, 0x00ff00ff')
    A(f'buffer_store_dwordx4 v[{DX}:{DX + 3}], v21, s[48:51], s76 offen sc1')
    A('s_mov_b64 exec, -1')
    A(f's_cmp_lg_u32 s30, {W8}')
    A('s_cbranch_scc1 L_nob8b')
    for r in range(4):
        A(f'v_permlane32_swap_b32 v{DZ + r}, v{DY + r}')
    A.nop(1)
    for r in range(4):
        A(f'v_add_f32_dpp v{DZ + r}, v{DY + r}, v{DZ + r} row_ror:8 {DPP}')
    for r in range(4):
        A(f'v_bfi_b32 v{DZ + r}, s75, v28, v{DZ + r}')
    A('s_mov_b64 exec, 0x00ff00ff')
    A(f'buffer_store_dwordx4 v[{DZ}:{DZ + 3}], v21, s[48:51], s77 offen sc1')
    A('s_mov_b64 exec, -1')
    A.label('L_nob8b')
    if stamp == 1:
        stampit(5)
    A('s_cmp_lg_u32 s3, 2')
    A('s_cbranch_scc1 L_hend')
    P2 = 104
    A(f's_mov_b32 s70, {SPIN_MAX}')
    for k in range(4):
        A(f's_mov_b64 s[{60 + 2 * k}:{61 + 2 * k}], -1')
    A.label('L_ga')
    for k in range(4):
        A(f's_mov_b64 exec, s[{60 + 2 * k}:{61 + 2 * k}]')
        A(f's_cbranch_execz L_gs{k}')
        A(f'buffer_load_dwordx4 v[{P2 + 4 * k}:{P2 + 4 * k + 3}], v11, s[48:51], s81 offen offset:{1024 * k} sc1')
        A.label(f'L_gs{k}')
    A('s_mov_b64 exec, -1')
    A('s_sub_u32 s70, s70, 1')
    A('s_cmp_eq_u32 s70, 0')
    A('s_waitcnt vmcnt(0)')
    A('s_cbranch_scc1 L_ga_done')
    for k in range(4):
        for r in range(4):
            A(f'v_xor_b32 v{G + 4 * k + r}, s78, v{P2 + 4 * k + r}')
        A(f'v_or3_b32 v17, v{G + 4 * k}, v{G + 4 * k + 1}, v{G + 4 * k + 2}')
        A(f'v_or_b32 v17, v17, v{G + 4 * k + 3}')
        A('v_and_b32 v17, 0xff, v17')
        A(f'v_cmp_ne_u32 s[{60 + 2 * k}:{61 + 2 * k}], 0, v17')
    for r in range(4):
        A(f'v_add_f32 v{G + r}, v{G + r}, v{G + 4 + r}')
        A(f'v_add_f32 v{G + 8 + r}, v{G + 8 + r}, v{G + 12 + r}')
    A('s_or_b64 s[38:39], s[60:61], s[62:63]')
    A('s_or_b64 s[44:45], s[64:65], s[66:67]')
    A('s_or_b64 s[38:39], s[38:39], s[44:45]')
    if ps2:
        A('s_cbranch_scc0 L_ga_done')
        A(f's_sleep {ps2}')
        A('s_branch L_ga')
    else:
        A('s_cbranch_scc1 L_ga')
    A.label('L_ga_done')
    for r in range(4):
        A(f'v_add_f32 v{G + r}, v{G + r}, v{G + 8 + r}')
    A('s_lshl_b32 s64, s30, 8')
    A(f'v_permlane32_swap_b32 v{G}, v{G + 1}')
    A(f'v_permlane32_swap_b32 v{G + 2}, v{G + 3}')
    A(f'v_add_f32 v{G}, v{G}, v{G + 1}')
    A(f'v_add_f32 v{G + 2}, v{G + 2}, v{G + 3}')
    A('v_add_u32 v17, s64, v23')
    A.nop(1)
    A(f'v_permlane16_swap_b32 v{G}, v{G + 2}')
    A(f'v_add_f32 v{G}, v{G}, v{G + 2}')
    A.nop(2)
    A(f'v_add_f32_dpp v{G}, v{G}, v{G} row_ror:8 {DPP}')
    A(f'ds_write_b32 v17, v{G} offset:{L_P2}')
    A('s_mov_b64 exec, 1')
    A(f'ds_add_rtn_u32 v14, v12, v29 offset:{L_F2}')
    A('s_mov_b64 exec, -1')
    for w in range(4):
        A(f'ds_read_b32 v{G + 4 + w}, v23 offset:{L_P2 + 256 * w}')
    A('s_waitcnt lgkmcnt(0)')
    A('v_readfirstlane_b32 s64, v14')
    A(f'v_add_f32 v{G}, v{G + 4}, v{G + 5}')
    A(f'v_add_f32 v{G + 1}, v{G + 6}, v{G + 7}')
    A('s_cmp_lg_u32 s64, 3')
    A('s_cbranch_scc1 L_hend')
    A(f'v_add_f32 v{G}, v{G}, v{G + 1}')
    A(f'v_cvt_pk_bf16_f32 v{G}, 0, v{G}')
    A(f'v_add_f32 v{G}, v26, v{G}')
    A(f'v_cvt_pk_bf16_f32 v{G}, 0, v{G}')
    A(f'v_add_f32 v{G}, v{G}, v27')
    A(f'v_cvt_pk_bf16_f32 v{G}, v{G}, v{G}')
    A('s_mov_b32 exec_lo, 0x00ff00ff')
    A('s_mov_b32 exec_hi, 0x00ff00ff')
    A(f'buffer_store_short v{G}, v25, s[56:59], 0 offen {outpol}')
    A('s_mov_b64 exec, -1')
    if stamp == 1:
        stampit(6)
    A.label('L_hend')
    if stamp:
        for _ in range(2): A('s_sleep 127')
    stamp_store()
    A.label('L_end')
    A('s_endpgm')
    A.L.append('.section .rodata,"a"')
    A.L.append('.p2align 6')
    A.L.append(f'.amdhsa_kernel {KN}_kernel')
    A('.amdhsa_next_free_vgpr 256')
    A('.amdhsa_next_free_sgpr 102')
    A('.amdhsa_accum_offset 256')
    A('.amdhsa_group_segment_fixed_size 0')
    A('.amdhsa_kernarg_size 104')
    A('.amdhsa_user_sgpr_count 2')
    A('.amdhsa_user_sgpr_kernarg_segment_ptr 1')
    A('.amdhsa_system_sgpr_workgroup_id_x 1')
    A.L.append('.end_amdhsa_kernel')
    return A.text()


if __name__ == '__main__':
    out = sys.argv[1] if len(sys.argv) > 1 else 'cdna_kernels/' + KN + '.s'
    kw = {}
    for a in sys.argv[2:]:
        k, v = a.split('=')
        kw[k] = int(v) if v.lstrip('-').isdigit() else v
    open(out, 'w').write(gen(**kw))
    print('wrote', out)
```

```python
import struct, sys, math

KN = 'parallel_sum__gqa_block_cached__mixer_token_mlp__decode'


def f32(x):
    return '0x%08x' % struct.unpack('<I', struct.pack('<f', x))[0]


HEADER = open('cdna_kernels/' + KN + '.s.ref').read().split('; Override launch')[0]

LOG2E = 1.4426950408889634
INBOX = 2048
IB = 11
L1ML = 1024
POOL = 1280
L2A = 256 * INBOX
QX = L2A + 36 * 16384
EPOCH = QX + 32768
WS_SIZE = EPOCH + 256
STAMP_OFF = 8 << 20
SPIN_MAX = 200000
KVOOB = 0x800000
L_Q = 0
L_FLAG, L_TAG, L_CNT, L_HF, L_TK, L_FIN, L_BC, L_OF, L_F2 = 512, 516, 520, 524, 528, 532, 536, 540, 544
L_QT = 576
L_ZEND = 1280
L_BP = 1280
L_OW = 1792
L_P2 = 2304
L_XN = 3328
L_H = 5632
L_MG = 7936
L_WQ = 14336
L_SIZE = L_WQ + 73728


class Asm:
    def __init__(self):
        self.L = []

    def __call__(self, s):
        self.L.append('  ' + s)

    def label(self, s):
        self.L.append(s + ':')

    def nop(self, n):
        while n > 0:
            k = min(n, 16)
            self('s_nop %d' % (k - 1))
            n -= k

    def text(self):
        return '\n'.join(self.L) + '\n'


DPP = 'row_mask:0xf bank_mask:0xf'


def gen(kvpol='nt', wqpol='nt', wopol='nt', stamp=0, prog=0, infl=8, infl0=8, ns=58, npre=2, theta=2, big=8, small=2,
        qsleep=20, qdelay=127, qdelay2=20, bpol='', hpace=3, npoll=2, ps1=6, ps2=6, np1=2, np2=2, dsleep=1, warm=1, outpol='', leak=0, lbase=0, late=0, lead=2, whole=0, gate=4, free0=8, early=1):
    LIM = (64 - ns - npre) * 4
    assert 0 < LIM <= 64 and npre * 4 + 8 * LIM + 8 <= 176
    A = Asm()
    A.L.append(HEADER.rstrip('\n'))
    if leak:
        A.L.append(f'; @launch kernel={KN}_kernel grid=(256,1,1) block=(512,1,1) lds={L_SIZE}')
        A.L.append('; @launch kernel=post_kernel grid=(1,1,1) block=(64,1,1) lds=0')
    else:
        A.L.append(f'; @launch grid=(256,1,1) block=(512,1,1) lds={L_SIZE}')
    A.L.append('.amdgcn_target "amdgcn-amd-amdhsa--gfx950"')
    A.L.append('.text')
    A.L.append(f'.globl {KN}_kernel')
    A.L.append('.p2align 8')
    A.L.append(f'.type {KN}_kernel,@function')
    A.label(f'{KN}_kernel')
    ws_size = (STAMP_OFF + 65536 + 131072) if stamp else WS_SIZE

    def stampit(k):
        if stamp:
            A(f's_memrealtime s[{84 + 2 * k}:{85 + 2 * k}]')

    def stamp_store():
        if not stamp:
            return
        A('s_waitcnt lgkmcnt(0) vmcnt(0)')
        A('s_getreg_b32 s64, hwreg(HW_REG_XCC_ID)')
        A('s_lshl_b32 s65, s2, 3')
        A('s_add_u32 s65, s65, s30')
        A('s_lshl_b32 s65, s65, 5')
        A(f's_add_u32 s65, s65, {STAMP_OFF}')
        A('s_mov_b64 exec, 1')
        A('v_mov_b32 v4, 0')
        for k in range(7):
            A(f'v_mov_b32 v5, s{84 + 2 * k}')
            A(f'buffer_store_dword v5, v4, s[48:51], s65 offen offset:{4 * k}')
        A('v_mov_b32 v5, s64')
        A(f'buffer_store_dword v5, v4, s[48:51], s65 offen offset:28')
        A('s_waitcnt vmcnt(0)')

    lk = [0]

    def leakit(k, wave=None):
        if leak != k:
            return
        lk[0] += 1
        A('s_cmp_lg_u32 s2, 2')
        A(f's_cbranch_scc1 L_lk{lk[0]}')
        if wave is not None:
            A(f's_cmp_lg_u32 s30, {wave}')
            A(f's_cbranch_scc1 L_lk{lk[0]}')
        A('s_memrealtime s[96:97]')
        A('s_waitcnt lgkmcnt(0)')
        A('s_sub_u32 s96, s96, s100')
        A('v_mov_b32 v30, s96')
        A('v_mov_b32 v31, 0')
        A(f's_mov_b32 s96, {EPOCH + 64}')
        A('s_mov_b64 exec, 1')
        A('buffer_store_dword v30, v31, s[48:51], s96 offen')
        A('s_mov_b64 exec, -1')
        A('s_waitcnt vmcnt(0)')
        A.label(f'L_lk{lk[0]}')

    SEL = 40

    def make_sel():
        A('v_and_b32 v4, 7, v2')
        A('v_lshrrev_b32 v5, 1, v4')
        A('v_and_b32 v6, 1, v4')
        A('v_mov_b32 v7, 0x0c0c0100')
        A('v_mov_b32 v8, 0x01000c0c')
        A('v_cmp_eq_u32 vcc, 1, v6')
        A('v_mov_b32 v9, 0x0c0c0302')
        A('v_mov_b32 v10, 0x03020c0c')
        A('v_cndmask_b32 v7, v7, v8, vcc')
        A('v_cndmask_b32 v9, v9, v10, vcc')
        A('v_mov_b32 v8, 0x0c0c0c0c')
        for d in range(4):
            A(f'v_cmp_eq_u32 vcc, {d}, v5')
            A.nop(2)
            A(f'v_cndmask_b32 v{SEL + d}, v8, v7, vcc')
            A(f'v_cndmask_b32 v{SEL + 4 + d}, v8, v9, vcc')

    def build_b(dst, src, odd):
        for d in range(4):
            A(f'v_perm_b32 v{dst + d}, v{src}, v{src}, v{SEL + 4 * odd + d}')

    def swapred(sw, op, v, t):
        A(f'v_mov_b32 v{t}, v{v}')
        A.nop(2)
        A(f'{sw} v{v}, v{t}')
        A(f'{op} v{v}, v{v}, v{t}')

    def allred_g(op, v, t):
        swapred('v_permlane16_swap_b32', op, v, t)
        swapred('v_permlane32_swap_b32', op, v, t)

    def allred_row(v):
        for m in ('quad_perm:[1,0,3,2]', 'quad_perm:[2,3,0,1]', 'row_half_mirror', 'row_mirror'):
            A.nop(2)
            A(f'v_add_f32_dpp v{v}, v{v}, v{v} {m} {DPP}')

    def lds_wait(lab, off, cmp, val, vt, vz, sleep):
        A.label(lab)
        A(f'ds_read_b32 v{vt}, v{vz} offset:{off}')
        A('s_waitcnt lgkmcnt(0)')
        A(f'v_readfirstlane_b32 s64, v{vt}')
        A('s_nop 0')
        A(f'{cmp} s64, {val}')
        if sleep:
            A(f's_cbranch_scc0 {lab}_ok')
            A(f's_sleep {sleep}')
            A(f's_branch {lab}')
            A.label(lab + '_ok')
        else:
            A(f's_cbranch_scc1 {lab}')

    A('s_cmp_ge_u32 s2, 256')
    A('s_cbranch_scc1 L_end')
    if stamp:
        for k in range(7):
            A(f's_mov_b64 s[{84 + 2 * k}:{85 + 2 * k}], 0')
    stampit(0)
    if leak:
        A('s_memrealtime s[100:101]')
    A('s_load_dwordx16 s[4:19], s[0:1], 0')
    A('s_load_dwordx8 s[20:27], s[0:1], 64')
    A('s_load_dwordx2 s[28:29], s[0:1], 96')
    A('v_lshrrev_b32 v1, 6, v0')
    A('v_and_b32 v2, 15, v0')
    A('v_readfirstlane_b32 s30, v1')
    A('v_and_b32 v1, 63, v0')
    A('v_lshrrev_b32 v3, 4, v1')
    A('s_lshr_b32 s31, s2, 3')
    A('s_and_b32 s32, s2, 7')
    A(f's_mov_b32 s50, {ws_size}')
    A('s_mov_b32 s51, 0x20000')
    A('s_cmp_lt_u32 s30, 4')
    A('s_cbranch_scc1 L_helper')

    RING, Q, BS, S, ACC, PK = 64, 48, 32, 24, 20, 16
    VK, VV, VZ, VONE = 12, 13, 14, 15
    M2, LS, AL, T0, T1, PUB = 4, 5, 6, 7, 8, 9
    SOFF = (52, 53, 54)
    SSTAT, SCNT, SDONE, STAG = 38, 39, 55, 56
    A('s_sub_u32 s37, s30, 4')
    A('s_lshl_b32 s64, s31, 23')
    A(f's_lshl_b32 s{SSTAT}, s32, 20')
    A('s_lshl_b32 s65, s37, 12')
    A(f's_add_u32 s{SSTAT}, s{SSTAT}, s65')
    A(f's_mov_b32 s42, {KVOOB}')
    A('s_mov_b32 s43, 0x20000')
    A(f's_mov_b32 s46, {KVOOB}')
    A('s_mov_b32 s47, 0x20000')
    A(f'v_and_b32 v{T0}, 3, v2')
    A(f'v_lshlrev_b32 v{T0}, 10, v{T0}')
    A(f'v_lshrrev_b32 v{T1}, 2, v2')
    A(f'v_lshl_add_u32 v{T0}, v{T1}, 8, v{T0}')
    A(f'v_lshl_add_u32 v{VK}, v3, 4, v{T0}')
    A(f'v_lshlrev_b32 v{VV}, 4, v1')
    A('s_waitcnt lgkmcnt(0)')
    A('s_add_u32 s40, s6, s64')
    A('s_addc_u32 s41, s7, 0')
    A('s_add_u32 s44, s8, s64')
    A('s_addc_u32 s45, s9, 0')
    A('s_mov_b32 s48, s28')
    A('s_mov_b32 s49, s29')
    if early:
        A('s_sub_u32 s65, s32, s31')
        A('s_and_b32 s65, s65, 3')
        A('s_cmp_eq_u32 s65, 0')
        A('s_cbranch_scc0 L_nobx0')
        A('s_barrier')
        A.label('L_nobx0')
    else:
        A('s_barrier')

    def kloads(slot, so):
        for s in range(4):
            r = RING + slot * 32 + s * 4
            A(f'buffer_load_dwordx4 v[{r}:{r + 3}], v{VK}, s[40:43], s{so} offen offset:{s * 64} {kvpol}')

    def vloads(slot, so):
        for s in range(4):
            r = RING + slot * 32 + 16 + s * 4
            A(f'buffer_load_dwordx4 v[{r}:{r + 3}], v{VV}, s[44:47], s{so} offen offset:{s * 1024} {kvpol}')

    order0 = (0, 2, 3, 1, 4, 5)
    n = 0
    for slot in order0:
        for f in (kloads, vloads):
            if n + 4 > max(infl0, free0):
                A(f's_waitcnt vmcnt({infl0 - 4})')
            if prog == 3:
                A(f's_memrealtime s[{72 + (n // 4 % 6) * 2}:{73 + (n // 4 % 6) * 2}]')
            f(slot, SSTAT)
            n += 4
            if prog == 3 and n in (24, 48):
                A('s_waitcnt lgkmcnt(0)')
                for z in range(6):
                    A(f'v_writelane_b32 v10, s{72 + 2 * z}, {n // 4 - 6 + z}')
                A('s_mov_b32 s71, 12')
            if n == 8 and early:
                A('s_cbranch_scc1 L_nobx')
                A('s_barrier')
                A.label('L_nobx')
            if n == 8:
                make_sel()
                for r in range(4):
                    A(f'v_mov_b32 v{ACC + r}, 0')
                A(f'v_mov_b32 v{LS}, 0')
                A(f'v_mov_b32 v{M2}, {f32(-3.0e38)}')
                A(f'v_mov_b32 v{VZ}, 0')
                A(f'v_mov_b32 v{VONE}, 1')
                A(f's_mov_b32 s66, {f32(128 ** -0.5)}')
                A(f's_mov_b32 s67, {f32(LOG2E)}')
                A(f'v_lshrrev_b32 v{T0}, 3, v2')
                A(f'v_lshl_add_u32 v{T0}, v{T0}, 2, v3')
                A(f'v_lshlrev_b32 v{T0}, {IB}, v{T0}')
                A(f'v_and_b32 v{T1}, 7, v2')
                A(f'v_lshl_add_u32 v{PUB}, v{T1}, 4, v{T0}')
                A(f's_lshl_b32 s68, s31, {IB + 3}')
                A('s_lshl_b32 s65, s32, 4')
                A('s_add_u32 s69, s68, s65')
                A(f's_add_u32 s69, s69, {L1ML}')
                A('s_lshl_b32 s65, s32, 7')
                A('s_add_u32 s68, s68, s65')
                A(f's_mov_b32 s{SCNT}, {ns - 6}')
                A(f's_mov_b32 s{SDONE}, 0')
                A('s_mov_b32 s71, 0')
                A('v_lshlrev_b32 v11, 3, v1')
                A('s_lshl_b32 s64, s37, 9')
                A('v_add_u32 v18, s64, v11')
                A('s_lshl_b32 s64, s37, 10')
                A(f'v_add_u32 v19, s64, v{VV}')
                A(f'v_lshrrev_b32 v{T0}, 3, v2')
                A(f'v_lshlrev_b32 v{T0}, 8, v{T0}')
                A(f'v_lshl_add_u32 v{T0}, v3, 4, v{T0}')
        A(f's_add_u32 s{SSTAT}, s{SSTAT}, 0x4000')
    stampit(1)
    A.label('L_qw')
    A(f'ds_read_b64 v[{PK}:{PK + 1}], v{VZ} offset:{L_FLAG}')
    for s in range(4):
        A(f'ds_read_b128 v[{Q + 4 * s}:{Q + 4 * s + 3}], v{T0} offset:{L_Q + 64 * s}')
    A('s_waitcnt lgkmcnt(0)')
    A(f'v_readfirstlane_b32 s64, v{PK}')
    A(f'v_readfirstlane_b32 s{STAG}, v{PK + 1}')
    A('s_cmp_eq_u32 s64, 0')
    A('s_cbranch_scc1 L_qw')
    stampit(2)
    leakit(2, 4)

    def qk(slot, wk):
        A(f's_waitcnt vmcnt({wk})')
        for s in range(4):
            k = RING + slot * 32 + s * 4
            c = '0' if s == 0 else f'v[{S}:{S + 3}]'
            A(f'v_mfma_f32_16x16x32_bf16 v[{S}:{S + 3}], v[{k}:{k + 3}], v[{Q + 4 * s}:{Q + 4 * s + 3}], {c}')

    def softmax_pv(slot, wv, mid=None, prepv=None):
        for n in range(4):
            A(f'v_cvt_pk_bf16_f32 v{S + n}, 0, v{S + n}')
        for n in range(4):
            A(f'v_mul_f32 v{S + n}, s66, v{S + n}')
        for n in range(4):
            A(f'v_cvt_pk_bf16_f32 v{S + n}, 0, v{S + n}')
        A(f'v_max3_f32 v{T0}, v{S}, v{S + 1}, v{S + 2}')
        A(f'v_max_f32 v{T0}, v{T0}, v{S + 3}')
        allred_g('v_max_f32', T0, T1)
        A(f'v_mul_f32 v{T0}, s67, v{T0}')
        A(f'v_max_f32 v{T0}, v{T0}, v{M2}')
        A(f'v_sub_f32 v{AL}, v{M2}, v{T0}')
        A(f'v_mov_b32 v{M2}, v{T0}')
        A(f'v_exp_f32 v{AL}, v{AL}')
        for n in range(4):
            A(f'v_fma_f32 v{S + n}, v{S + n}, s67, -v{M2}')
        for n in range(4):
            A(f'v_exp_f32 v{S + n}, v{S + n}')
        for r in range(4):
            A(f'v_mul_f32 v{ACC + r}, v{AL}, v{ACC + r}')
        A(f'v_cvt_pk_bf16_f32 v{PK}, v{S}, v{S + 1}')
        A(f'v_cvt_pk_bf16_f32 v{PK + 1}, v{S + 2}, v{S + 3}')
        if mid:
            mid()
        build_b(BS, PK, 0)
        A(f'v_fma_f32 v{LS}, v{LS}, v{AL}, v{S}')
        A(f'v_add_f32 v{T0}, v{S + 1}, v{S + 2}')
        for n in range(4):
            if n + 1 < 4:
                build_b(BS + 4 * ((n + 1) & 1), PK + (n + 1) // 2, (n + 1) & 1)
            else:
                A(f'v_add_f32 v{LS}, v{LS}, v{S + 3}')
                A(f'v_add_f32 v{LS}, v{LS}, v{T0}')
            if prepv is None:
                A(f's_waitcnt vmcnt({wv + 3 - n})')
            elif n == 0:
                prepv()
            v = RING + slot * 32 + 16 + n * 4
            b = BS + 4 * (n & 1)
            A(f'v_mfma_f32_16x16x32_bf16 v[{ACC}:{ACC + 3}], v[{v}:{v + 3}], v[{b}:{b + 3}], v[{ACC}:{ACC + 3}]')

    def static_tile(so):
        A(f's_mov_b32 s{so}, s{SSTAT}')
        A(f's_add_u32 s{SSTAT}, s{SSTAT}, 0x4000')
        A(f's_sub_u32 s{SCNT}, s{SCNT}, 1')

    outst = []
    for slot in order0:
        outst += [('K', slot, 0)] * 4 + [('V', slot, 0)] * 4

    def younger(tag):
        last = max(i for i, t in enumerate(outst) if t == tag)
        return len(outst) - 1 - last

    for slot in order0:
        qk(slot, younger(('K', slot, 0)))
        if slot < 2:
            static_tile(SOFF[slot])
            A(f's_waitcnt vmcnt({infl - 4})')
            kloads(slot, SOFF[slot])
            outst += [('K', slot, 1)] * 4
        else:
            A.nop(8)
        softmax_pv(slot, younger(('V', slot, 0)))
        if slot == 0 or (slot == 1 and lead == 2):
            A(f's_waitcnt vmcnt({infl - 4})')
            vloads(slot, SOFF[slot])
            outst += [('V', slot, 1)] * 4
    if lead == 3:
        assert younger(('K', 0, 1)) == 8
    else:
        qk(0, younger(('K', 0, 1)))
        static_tile(SOFF[0])
        A.nop(5)
        softmax_pv(0, younger(('V', 0, 1)))

    TK1, TK2 = 28, 29
    A.label('L_sloop')
    if leak == 3:
        A(f's_cmp_lg_u32 s{SCNT}, {ns - 8 - 24}')
        A('s_cbranch_scc1 L_lkx')
        leakit(3, 4)
        A.label('L_lkx')
    if prog == 1:
        A('s_memrealtime s[98:99]')
        A('s_lshr_b32 m0, s71, 1')
        A('s_add_u32 s71, s71, 1')
        A('s_waitcnt lgkmcnt(0)')
        A('v_writelane_b32 v10, s98, m0')
    def prog2(k, so):
        if prog in (2, 3):
            if prog == 2:
                A(f's_cmp_gt_u32 s{SCNT}, 5')
            else:
                A('s_cmp_gt_u32 s71, 29')
            A(f's_cbranch_scc1 L_pg{k}')
            A(f's_cmp_eq_u32 s{so}, {KVOOB}')
            A(f's_cbranch_scc1 L_pg{k}')
            A('s_memrealtime s[98:99]')
            A('s_mov_b32 m0, s71')
            A('s_add_u32 s71, s71, 1')
            A('s_waitcnt lgkmcnt(0)')
            A('v_writelane_b32 v10, s98, m0')
            A.label(f'L_pg{k}')

    for k in ((1, 0) if lead == 2 else ()):
        so, sn = SOFF[k], SOFF[1 - k]
        if late:
            A(f's_waitcnt vmcnt({gate})')
        A(f's_cmp_lg_u32 s{sn}, 0')
        A(f's_cbranch_scc1 L_iss{k}')
        A('s_mov_b64 exec, 1')
        if late:
            A(f'ds_add_rtn_u32 v{TK1}, v{VZ}, v{VONE} offset:{L_TK}')
        A('s_waitcnt lgkmcnt(0)')
        A(f'v_lshlrev_b32 v{TK1}, 2, v{TK1}')
        A.label(f'L_qt{k}')
        A(f'ds_read_b32 v{TK2}, v{TK1} offset:{L_QT}')
        A('s_waitcnt lgkmcnt(0)')
        A(f'v_readfirstlane_b32 s64, v{TK2}')
        A('s_nop 0')
        A('s_cmp_eq_u32 s64, 0')
        A(f's_cbranch_scc1 L_qt{k}')
        A('s_mov_b64 exec, -1')
        A(f's_mov_b32 s{sn}, s64')
        A.label(f'L_iss{k}')
        A(f's_waitcnt vmcnt({gate})')
        prog2(k, sn)
        kloads(1 - k, sn)
        if whole:
            vloads(1 - k, sn)
        qk(k, 12 if whole else 8)
        A(f's_cmp_eq_u32 s{SCNT}, 0')
        A(f's_cselect_b32 s{so}, 0, s{SSTAT}')
        A('s_cselect_b32 s64, 0, 1')
        A(f's_sub_u32 s{SCNT}, s{SCNT}, s64')
        A(f's_add_u32 s{SSTAT}, s{SSTAT}, 0x4000')
        A.nop(3)

        def prepv():
            A(f's_cmp_eq_u32 s{sn}, {KVOOB}')
            A('s_waitcnt vmcnt(4)')
            A(f's_cbranch_scc1 L_pv{k}')
            vloads(1 - k, sn)
            if not late:
                A(f's_cmp_lg_u32 s{so}, 0')
                A(f's_cbranch_scc1 L_pv{k}')
                A('s_mov_b64 exec, 1')
                A(f'ds_add_rtn_u32 v{TK1}, v{VZ}, v{VONE} offset:{L_TK}')
                A('s_mov_b64 exec, -1')
            A.label(f'L_pv{k}')
        def midw():
            if not late:
                A(f's_cmp_eq_u32 s{sn}, {KVOOB}')
                A(f's_cbranch_scc1 L_pv{k}')
                A(f's_cmp_lg_u32 s{so}, 0')
                A(f's_cbranch_scc1 L_pv{k}')
                A('s_mov_b64 exec, 1')
                A(f'ds_add_rtn_u32 v{TK1}, v{VZ}, v{VONE} offset:{L_TK}')
                A('s_mov_b64 exec, -1')
                A.label(f'L_pv{k}')
        if whole:
            softmax_pv(k, 8, midw)
        else:
            softmax_pv(k, 0, None, prepv)
        A(f's_cmp_eq_u32 s{sn}, {KVOOB}')
        A('s_cbranch_scc1 L_sdone')
    for k in (range(2) if lead == 3 else ()):
        so, sn = SOFF[k], SOFF[1 - k]
        qk(k, 8)
        vloads(1 - k, sn)
        A(f's_cmp_eq_u32 s{SCNT}, 0')
        A(f's_cbranch_scc1 L_dyn{k}')
        static_tile(so)
        A(f's_branch L_sm{k}')
        A.label(f'L_dyn{k}')
        A(f's_mov_b32 s{so}, {KVOOB}')
        A(f's_cmp_eq_u32 s{sn}, {KVOOB}')
        A(f's_cbranch_scc1 L_sm{k}')
        A(f's_mov_b32 s{so}, 0')
        if not late:
            A('s_mov_b64 exec, 1')
            A(f'ds_add_rtn_u32 v{TK1}, v{VZ}, v{VONE} offset:{L_TK}')
            A('s_mov_b64 exec, -1')
        A.label(f'L_sm{k}')

        def mid():
            A(f's_cmp_lg_u32 s{so}, 0')
            A(f's_cbranch_scc1 L_md{k}')
            if late:
                A('s_waitcnt vmcnt(11)')
                A('s_mov_b64 exec, 1')
                A(f'ds_add_rtn_u32 v{TK1}, v{VZ}, v{VONE} offset:{L_TK}')
                A('s_mov_b64 exec, -1')
            else:
                A('s_waitcnt lgkmcnt(0)')
                A(f'v_lshlrev_b32 v{TK1}, 2, v{TK1}')
                A('s_mov_b64 exec, 1')
                A(f'ds_read_b32 v{TK2}, v{TK1} offset:{L_QT}')
                A('s_mov_b64 exec, -1')
            A.label(f'L_md{k}')
        softmax_pv(k, 8, mid)
        A(f's_cmp_eq_u32 s{sn}, {KVOOB}')
        A('s_cbranch_scc1 L_sdone')
        A(f's_cmp_lg_u32 s{so}, 0')
        A(f's_cbranch_scc1 L_iss{k}')
        A('s_mov_b64 exec, 1')
        if late:
            A('s_waitcnt lgkmcnt(0)')
            A(f'v_lshlrev_b32 v{TK1}, 2, v{TK1}')
            A(f'ds_read_b32 v{TK2}, v{TK1} offset:{L_QT}')
        A.label(f'L_qt{k}')
        A('s_waitcnt lgkmcnt(0)')
        A(f'v_readfirstlane_b32 s64, v{TK2}')
        A(f'ds_read_b32 v{TK2}, v{TK1} offset:{L_QT}')
        A('s_cmp_eq_u32 s64, 0')
        A(f's_cbranch_scc1 L_qt{k}')
        A('s_mov_b64 exec, -1')
        A(f's_mov_b32 s{so}, s64')
        A.label(f'L_iss{k}')
        if prog == 2:
            A(f's_cmp_gt_u32 s{SCNT}, 5')
            A(f's_cbranch_scc1 L_pg{k}')
            A(f's_cmp_eq_u32 s{so}, {KVOOB}')
            A(f's_cbranch_scc1 L_pg{k}')
            A('s_memrealtime s[98:99]')
            A('s_mov_b32 m0, s71')
            A('s_add_u32 s71, s71, 1')
            A('s_waitcnt lgkmcnt(0)')
            A('v_writelane_b32 v10, s98, m0')
            A.label(f'L_pg{k}')
        kloads(k, so)
    A('s_branch L_sloop')

    A.label('L_sdone')
    stampit(3)
    allred_g('v_add_f32', LS, T1)
    A(f'ds_write_b64 v18, v[{M2}:{M2 + 1}] offset:{L_MG + 4096}')
    A(f'ds_write_b128 v19, v[{ACC}:{ACC + 3}] offset:{L_MG}')
    A('s_mov_b64 exec, 1')
    A(f'ds_add_rtn_u32 v{T1}, v{VZ}, v{VONE} offset:{L_FIN}')
    A('s_mov_b64 exec, -1')
    for w in range(4):
        A(f'ds_read_b64 v[{BS + 2 * w}:{BS + 2 * w + 1}], v11 offset:{L_MG + 4096 + 512 * w}')
    for w in range(4):
        A(f'ds_read_b128 v[{Q + 4 * w}:{Q + 4 * w + 3}], v{VV} offset:{L_MG + 1024 * w}')
    A(f's_and_b32 s64, s{STAG}, 0xff')
    A('s_movk_i32 s65, 0xff')
    A(f'v_mov_b32 v{PK}, s64')
    A(f'v_mov_b32 v{T0}, s{STAG}')
    A('s_waitcnt lgkmcnt(4)' if not stamp else 's_waitcnt lgkmcnt(0)')
    A(f'v_readfirstlane_b32 s64, v{T1}')
    A(f'v_max_f32 v{M2}, v{BS}, v{BS + 2}')
    A('s_cmp_lg_u32 s64, 3')
    A('s_cbranch_scc1 L_send')
    A(f'v_max3_f32 v{M2}, v{M2}, v{BS + 4}, v{BS + 6}')
    for w in range(4):
        A(f'v_sub_f32 v{S + w}, v{BS + 2 * w}, v{M2}')
    for w in range(4):
        A(f'v_exp_f32 v{S + w}, v{S + w}')
    A(f'v_mov_b32 v{LS}, s{STAG}')
    A(f'v_mul_f32 v{AL}, v{S}, v{BS + 1}')
    for w in range(1, 4):
        A(f'v_fmac_f32 v{AL}, v{S + w}, v{BS + 2 * w + 1}')
    A('s_mov_b32 exec_lo, 0x01010101')
    A('s_mov_b32 exec_hi, 0x01010101')
    A(f'buffer_store_dwordx4 v[{M2}:{M2 + 3}], v{PUB}, s[48:51], s69 offen sc1')
    A('s_mov_b64 exec, -1')
    A('s_waitcnt lgkmcnt(0)')
    for r in range(4):
        A(f'v_mul_f32 v{ACC + r}, v{S}, v{Q + r}')
    for w in range(1, 4):
        for r in range(4):
            A(f'v_fmac_f32 v{ACC + r}, v{S + w}, v{Q + 4 * w + r}')
    for r in range(4):
        A(f'v_bfi_b32 v{ACC + r}, s65, v{PK}, v{ACC + r}')
    A(f'buffer_store_dwordx4 v[{ACC}:{ACC + 3}], v{PUB}, s[48:51], s68 offen sc1')
    stampit(4)
    if stamp:
        A.label('L_send')
        A('s_barrier')
        for _ in range(2): A('s_sleep 127')
    else:
        A('s_barrier')
        A.label('L_send')
    if prog:
        A('s_mov_b32 m0, 31')
        A('s_nop 0')
        if prog == 1:
            A('s_lshr_b32 s71, s71, 1')
        A('v_writelane_b32 v10, s71, m0')
        A('s_lshl_b32 s65, s2, 2')
        A('s_add_u32 s65, s65, s37')
        A('s_lshl_b32 s65, s65, 7')
        A(f's_add_u32 s65, s65, {STAMP_OFF + 65536}')
        A('v_lshlrev_b32 v11, 2, v1')
        A('s_mov_b32 exec_hi, 0')
        A('buffer_store_dword v10, v11, s[48:51], s65 offen')
        A('s_mov_b64 exec, -1')
    stamp_store()
    A('s_endpgm')

    A.label('L_helper')
    A('s_setprio 2')
    HB = 48
    X, E = 64, 80
    A('v_lshlrev_b32 v11, 4, v1')
    A('v_mov_b32 v12, 0')
    A('v_lshlrev_b32 v23, 2, v1')
    for z in range(L_FLAG, L_ZEND, 256):
        A(f'ds_write_b32 v23, v12 offset:{z}')
    A('s_lshr_b32 s33, s31, 4')
    A('s_and_b32 s34, s31, 15')
    A('s_and_b32 s35, s2, 127')
    A('s_sub_u32 s64, s32, s31')
    A('s_and_b32 s64, s64, 7')
    A('s_lshr_b32 s65, s64, 2')
    A('s_lshl_b32 s72, s31, 1')
    A('s_add_u32 s72, s72, s65')
    A('s_lshl_b32 s73, s65, 4')
    A('s_add_u32 s73, s73, s34')
    A('s_and_b32 s64, s64, 3')
    A('s_cmp_lt_u32 s73, 18')
    A('s_cselect_b32 s3, 2, 0')
    A('s_cmp_eq_u32 s64, 2')
    A('s_cselect_b32 s3, s3, 0')
    A('s_cmp_eq_u32 s64, 0')
    A('s_cselect_b32 s3, 1, s3')
    A('v_mul_u32_u24 v13, 36, v1')
    A('s_mov_b32 s42, 2304')
    A('s_mov_b32 s43, 0x20000')
    A(f's_mov_b32 s46, {576 * 8192}')
    A('s_mov_b32 s47, 0x20000')
    A('v_lshrrev_b32 v14, 3, v1')
    A('v_lshlrev_b32 v14, 13, v14')
    A('v_and_b32 v15, 7, v1')
    A('v_lshl_add_u32 v14, v15, 4, v14')
    A(f's_mul_i32 s38, s30, {144 * 8192}')
    A('s_lshl_b32 s64, s72, 7')
    A('s_add_u32 s38, s38, s64')
    A(f's_mul_i32 s37, s30, {144 * 128}')
    A(f's_add_u32 s37, s37, {L_WQ}')
    A('s_lshl_b32 s64, s30, 2')
    A('s_add_u32 s64, s64, s3')
    A('s_cmp_eq_u32 s64, 2')
    A('s_cselect_b32 s70, 1, 0')
    A('s_cmp_eq_u32 s3, 1')
    A('s_cselect_b32 s70, 1, s70')
    A('s_waitcnt lgkmcnt(0)')
    A('s_mov_b32 s48, s28')
    A('s_mov_b32 s49, s29')
    A('s_mov_b32 s40, s4')
    A('s_mov_b32 s41, s5')
    A('s_mov_b32 s44, s10')
    A('s_mov_b32 s45, s11')
    A(f's_mov_b32 s64, {EPOCH}')
    A('s_load_dwordx2 s[78:79], s[28:29], s64')
    A('s_cmp_eq_u32 s70, 0')
    A('s_cbranch_scc1 L_h_x')
    A(f'buffer_load_dwordx4 v[{X}:{X + 3}], v13, s[40:43], 0 offen')
    A(f'buffer_load_dwordx4 v[{X + 4}:{X + 7}], v13, s[40:43], 0 offen offset:16')
    A(f'buffer_load_dword v{X + 8}, v13, s[40:43], 0 offen offset:32')
    A('s_cmp_lg_u32 s3, 1')
    A('s_cbranch_scc1 L_h_x')
    for n in range(18):
        A('s_mov_b32 m0, s37')
        A('s_add_u32 s37, s37, 1024')
        A(f'buffer_load_dwordx4 v14, s[44:47], s38 offen {wqpol} lds')
        A('s_add_u32 s38, s38, 0x10000')
    A.label('L_h_x')
    A('s_barrier')
    A('s_cmp_eq_u32 s70, 0')
    A('s_cbranch_scc1 L_h_noln')

    def layernorm(src, dst):
        D = E + 18
        a, b, c = E + 36, E + 37, E + 38
        for k in range(9):
            A(f'v_lshlrev_b32 v{E + 2 * k}, 16, v{src + k}')
            A(f'v_and_b32 v{E + 2 * k + 1}, 0xffff0000, v{src + k}')
        A(f'v_add_f32 v{a}, v{E}, v{E + 1}')
        A(f'v_add_f32 v{b}, v{E + 2}, v{E + 3}')
        for n in range(4, 18, 2):
            A(f'v_add_f32 v{a}, v{a}, v{E + n}')
            A(f'v_add_f32 v{b}, v{b}, v{E + n + 1}')
        A(f'v_add_f32 v{a}, v{a}, v{b}')
        allred_row(a)
        swapred('v_permlane16_swap_b32', 'v_add_f32', a, b)
        A(f'v_mul_f32 v{a}, {f32(1.0 / 576)}, v{a}')
        for n in range(18):
            A(f'v_sub_f32 v{D + n}, v{E + n}, v{a}')
        A(f'v_mul_f32 v{b}, v{D}, v{D}')
        A(f'v_mul_f32 v{c}, v{D + 1}, v{D + 1}')
        for n in range(2, 18, 2):
            A(f'v_fmac_f32 v{b}, v{D + n}, v{D + n}')
            A(f'v_fmac_f32 v{c}, v{D + n + 1}, v{D + n + 1}')
        A(f'v_add_f32 v{b}, v{b}, v{c}')
        A(f'v_cvt_pk_bf16_f32 v{a}, 0, v{a}')
        allred_row(b)
        swapred('v_permlane16_swap_b32', 'v_add_f32', b, c)
        A(f'v_mul_f32 v{b}, {f32(1.0 / 576)}, v{b}')
        A(f'v_cvt_pk_bf16_f32 v{b}, 0, v{b}')
        A(f'v_add_f32 v{b}, {f32(1e-5)}, v{b}')
        A(f'v_cvt_pk_bf16_f32 v{b}, 0, v{b}')
        A(f'v_sqrt_f32 v{b}, v{b}')
        A(f'v_sub_f32 v{D}, v{E}, v{a}')
        A(f'v_cvt_pk_bf16_f32 v{b}, 0, v{b}')
        A(f'v_rcp_f32 v{b}, v{b}')
        for n in range(1, 18):
            A(f'v_sub_f32 v{D + n}, v{E + n}, v{a}')
        for n in range(18):
            A(f'v_cvt_pk_bf16_f32 v{D + n}, 0, v{D + n}')
        for n in range(18):
            A(f'v_mul_f32 v{D + n}, v{D + n}, v{b}')
        for k in range(9):
            A(f'v_cvt_pk_bf16_f32 v{dst + k}, v{D + 2 * k}, v{D + 2 * k + 1}')

    A('v_and_b32 v15, 1, v2')
    A('v_mul_u32_u24 v15, 1152, v15')
    A('v_lshl_add_u32 v15, v3, 4, v15')
    A('v_lshrrev_b32 v16, 2, v2')
    A('v_lshl_add_u32 v16, v3, 3, v16')
    A('v_lshlrev_b32 v16, 7, v16')
    A('v_and_b32 v17, 3, v1')
    A('v_lshl_add_u32 v16, v17, 3, v16')
    A('s_lshl_b32 s64, s30, 5')
    A('v_add_u32 v16, s64, v16')
    A('v_add_u32 v20, 0x8000, v16')
    A('v_lshlrev_b32 v17, 2, v2')
    A('v_lshl_add_u32 v17, v3, 14, v17')
    A('s_lshl_b32 s39, s72, 8')
    A('s_lshl_b32 s64, s30, 6')
    A('s_add_u32 s39, s39, s64')
    A(f's_add_u32 s39, s39, {QX}')
    A('s_cmp_eq_u32 s3, 1')
    A('s_cbranch_scc1 L_h_wx')
    A('s_waitcnt vmcnt(0)')
    A.label('L_h_wx')
    A('s_waitcnt vmcnt(18)')
    if stamp == 2: stampit(4)
    layernorm(X, X)
    A('v_mov_b32 v18, 1')
    A('s_cmp_lg_u32 s3, 1')
    A('s_cbranch_scc1 L_h_ln2')
    for k in range(9):
        A(f'ds_write_b32 v13, v{X + k} offset:{L_XN + 4 * k}')
    QA, QB, QD = 120, 192, 76
    A('s_waitcnt lgkmcnt(0)')
    for t in range(18):
        A(f'ds_read_b128 v[{QA + 4 * t}:{QA + 4 * t + 3}], v15 offset:{L_XN + 64 * t}')
        if t == 8:
            A('s_waitcnt lgkmcnt(0)')
    if stamp == 2: stampit(5)
    A('s_waitcnt vmcnt(0)')
    A('s_mov_b64 exec, 1')
    A(f'ds_add_u32 v12, v18 offset:{L_CNT}')
    A('s_mov_b64 exec, -1')
    lds_wait('L_h_sync', L_CNT, 's_cmp_lt_u32', 4, 18, 12, 0)
    if stamp == 2:
        stampit(6)
        A('s_waitcnt lgkmcnt(0)')
    for t0 in (0, 6, 12):
        for t in range(t0, t0 + 6):
            r = QB + 4 * (t % 12)
            for h in range(2):
                off = L_WQ + 4096 * t + 512 * h
                base, off = (16, off) if off < 32768 else (20, off - 32768)
                A(f'ds_read_b64_tr_b16 v[{r + 2 * h}:{r + 2 * h + 1}], v{base} offset:{off}')
        for t in range(t0, t0 + 6):
            r = QB + 4 * (t % 12)
            A(f's_waitcnt lgkmcnt({2 * (t0 + 5 - t)})')
            c = '0' if t == 0 else f'v[{QD}:{QD + 3}]'
            A(f'v_mfma_f32_16x16x32_bf16 v[{QD}:{QD + 3}], v[{QA + 4 * t}:{QA + 4 * t + 3}], v[{r}:{r + 3}], {c}')
    A('s_add_u32 s64, s78, 1')
    A('s_add_u32 s65, s79, 1')
    A('v_cmp_eq_u32 vcc, 1, v3')
    A('v_mov_b32 v19, s64')
    A('v_mov_b32 v21, s65')
    A.nop(4)
    A('v_cndmask_b32 v19, v19, v21, vcc')
    A(f'v_cndmask_b32 v18, v{QD}, v{QD + 1}, vcc')
    A.nop(2)
    A(f'v_mov_b32_dpp v21, v18 quad_perm:[1,0,3,2] {DPP}')
    A('v_cvt_pk_bf16_f32 v18, v18, v21')
    A('s_mov_b64 exec, 0x55555555')
    A('buffer_store_dwordx2 v[18:19], v17, s[48:51], s39 offen sc1')
    A('s_mov_b64 exec, -1')
    stampit(1)
    A('s_branch L_h_q')
    A.label('L_h_ln2')
    layernorm(X, X)
    for k in range(9):
        A(f'ds_write_b32 v13, v{X + k} offset:{L_H + 4 * k}')
    A(f'ds_write_b32 v12, v18 offset:{L_HF}')
    A('s_branch L_h_join')

    A.label('L_h_noln')
    A('s_cmp_eq_u32 s30, 1')
    A('s_cbranch_scc0 L_h_join')
    A(f's_sleep {qdelay}')
    A.label('L_h_q')
    A('s_cmp_eq_u32 s30, 1')
    A('s_cbranch_scc0 L_h_join')
    A('s_lshl_b32 s39, s31, 10')
    A(f's_add_u32 s39, s39, {QX}')
    A('v_lshlrev_b32 v22, 3, v1')
    A('s_waitcnt lgkmcnt(0)')
    A('s_cmp_eq_u32 s33, 0')
    A('s_cselect_b32 s79, s78, s79')
    A('s_add_u32 s79, s79, 1')
    A(f's_mov_b32 s70, {SPIN_MAX}')
    if qdelay2:
        A(f's_sleep {qdelay2}')
    PB = 64

    def qpoll(p):
        A(f'buffer_load_dwordx4 v[{PB + 4 * p}:{PB + 4 * p + 3}], v11, s[48:51], s39 offen sc1')
    for p in range(npoll - 1):
        qpoll(p)
        A(f's_sleep {qsleep}')
    A.label('L_qp')
    for p in range(npoll):
        qpoll((p + npoll - 1) % npoll)
        r = PB + 4 * p
        A(f's_waitcnt vmcnt({npoll - 1})')
        A(f'v_xor_b32 v14, s79, v{r + 1}')
        A(f'v_xor_b32 v15, s79, v{r + 3}')
        A(f'v_mov_b32 v16, v{r}')
        A('v_or_b32 v14, v14, v15')
        A(f'v_mov_b32 v17, v{r + 2}')
        A('v_cmp_ne_u32 vcc, 0, v14')
        A('s_cbranch_vccz L_qp_done')
        A('s_mov_b64 exec, vcc')
    A('s_sub_u32 s70, s70, 1')
    A('s_cmp_lg_u32 s70, 0')
    A('s_cbranch_scc1 L_qp')
    A.label('L_qp_done')
    A('s_mov_b64 exec, -1')
    A(f'ds_write_b64 v22, v[16:17] offset:{L_Q}')
    A('v_mov_b32 v14, 1')
    A('v_mov_b32 v15, s79')
    A(f'ds_write_b64 v12, v[14:15] offset:{L_FLAG}')
    stampit(1)

    A.label('L_h_join')
    make_sel()
    A('v_lshrrev_b32 v5, 3, v2')
    A('v_lshl_add_u32 v5, v5, 2, v3')
    A('v_and_b32 v7, 7, v2')
    A(f's_lshl_b32 s74, s2, {IB}')
    lds_wait('L_h_qf', L_FLAG, 's_cmp_eq_u32', 0, 14, 12, 8)
    A(f'ds_read_b32 v14, v12 offset:{L_TAG}')
    A('s_waitcnt lgkmcnt(0)')
    A('v_readfirstlane_b32 s79, v14')
    stampit(2)

    pc = [0]

    def paced(ins):
        if pc[0] >= hpace:
            A(f's_waitcnt vmcnt({hpace - 1})')
        A(ins)
        pc[0] += 1

    A(f's_lshl_b32 s64, s31, {IB + 3}')
    A(f's_add_u32 s36, s64, {POOL}')
    A('s_add_u32 s60, s28, s36')
    A('s_addc_u32 s61, s29, 0')
    A('s_lshl_b32 s64, s32, 2')
    A('s_add_u32 s64, s64, s30')
    A('s_cmp_lg_u32 s64, 3')
    A('s_cbranch_scc1 L_nopool')
    A(f'v_mov_b32 v14, {(128 - LIM) * 0x01010101}')
    A(f'v_mov_b32 v15, {(128 - LIM) * 0x01010101}')
    A('v_mov_b32 v16, s79')
    A('s_mov_b64 exec, 1')
    A('buffer_store_dwordx2 v[14:15], v12, s[48:51], s36 offen sc1')
    A('s_waitcnt vmcnt(0)')
    A('buffer_store_dword v16, v12, s[48:51], s36 offen offset:8 sc1')
    A('s_mov_b64 exec, -1')
    A.label('L_nopool')

    WO = 104
    W8 = 3
    A('s_mov_b32 s52, s12')
    A('s_mov_b32 s53, s13')
    A(f's_mov_b32 s54, {4096 * 1152}')
    A('s_mov_b32 s55, 0x20000')
    A('v_mul_u32_u24 v17, 1152, v5')
    A('v_lshl_add_u32 v17, v7, 4, v17')
    A(f's_mul_i32 s64, s35, {32 * 1152}')
    A('s_lshl_b32 s65, s30, 8')
    A('s_add_u32 s65, s65, s64')
    for t in range(4):
        for bl in range(2):
            r = WO + bl * 16 + t * 4
            paced(f'buffer_load_dwordx4 v[{r}:{r + 3}], v17, s[52:55], s65 offen offset:{128 * bl} {wopol}')
        if t < 3:
            A(f's_add_u32 s65, s65, {8 * 1152}')
    A(f's_cmp_lg_u32 s30, {W8}')
    A('s_cbranch_scc1 L_nowo8')
    for t in range(4):
        r = WO + 32 + t * 4
        paced(f'buffer_load_dwordx4 v[{r}:{r + 3}], v17, s[52:55], s64 offen offset:1024 {wopol}')
        if t < 3:
            A(f's_add_u32 s64, s64, {8 * 1152}')
    A.label('L_nowo8')

    A('s_lshl_b32 s80, s73, 5')
    A('s_mul_i32 s64, s33, 576')
    A('s_add_u32 s80, s80, s64')
    G = 176
    A('v_and_b32 v17, 1, v3')
    A('v_lshrrev_b32 v18, 1, v3')
    A('v_lshl_add_u32 v17, v17, 1, v18')
    A('v_lshl_add_u32 v17, v17, 3, v7')
    A('v_lshlrev_b32 v24, 2, v17')
    A('v_add_u32 v17, s80, v17')
    A('v_lshlrev_b32 v25, 1, v17')
    A('s_cmp_lg_u32 s3, 2')
    A('s_cbranch_scc1 L_nob')
    PW = 64
    W1, B1, W2 = 152, 170, 188
    U = 206
    A('s_mul_i32 s64, s30, 2304')
    A('v_add_u32 v15, s64, v11')
    A('v_add_u32 v16, s64, v23')
    for k, base in enumerate((16, 18, 20)):
        r = PW + 12 * k
        paced(f'global_load_dwordx4 v[{r}:{r + 3}], v15, s[{base}:{base + 1}] {bpol}')
        paced(f'global_load_dwordx4 v[{r + 4}:{r + 7}], v15, s[{base}:{base + 1}] offset:1024 {bpol}')
        paced(f'global_load_dword v{r + 8}, v16, s[{base}:{base + 1}] offset:2048 {bpol}')
    paced('buffer_load_ushort v26, v25, s[40:43], 0 offen')
    paced('global_load_ushort v27, v12, s[22:23]')
    lds_wait('L_h_hf', L_HF, 's_cmp_eq_u32', 0, 14, 12, 8)
    c0 = -2.0 * math.sqrt(2.0 / math.pi) * LOG2E
    A(f's_mov_b32 s66, {f32(c0 * 0.044715)}')
    A(f'v_mov_b32 v17, {f32(c0)}')
    A('s_lshl_b32 s64, s80, 1')
    A(f's_add_u32 s64, s64, {L_H}')
    A('v_mov_b32 v18, s64')
    A('s_lshl_b32 s64, s30, 7')
    A(f's_add_u32 s64, s64, {L_BP}')
    A('v_mov_b32 v19, s64')
    A('s_waitcnt vmcnt(0)')
    for k, dst in enumerate((W1, B1, W2)):
        for n in range(9):
            A(f'v_lshlrev_b32 v{dst + 2 * n}, 16, v{PW + 12 * k + n}')
            A(f'v_and_b32 v{dst + 2 * n + 1}, 0xffff0000, v{PW + 12 * k + n}')
    A('s_mov_b32 s70, 0')
    A.label('L_bloop')
    A('ds_read_u16 v20, v18')
    A('v_add_u32 v18, 2, v18')
    A('s_waitcnt lgkmcnt(0)')
    A('v_lshlrev_b32 v20, 16, v20')
    V2 = U + 18
    for n in range(18): A(f'v_mul_f32 v{U + n}, v20, v{W1 + n}')
    for n in range(18): A(f'v_cvt_pk_bf16_f32 v{U + n}, 0, v{U + n}')
    for n in range(18): A(f'v_add_f32 v{U + n}, v{U + n}, v{B1 + n}')
    for n in range(18): A(f'v_cvt_pk_bf16_f32 v{U + n}, 0, v{U + n}')
    for n in range(18): A(f'v_mul_f32 v{V2 + n}, v{U + n}, v{U + n}')
    for n in range(18): A(f'v_fma_f32 v{V2 + n}, v{V2 + n}, s66, v17')
    for n in range(18): A(f'v_mul_f32 v{V2 + n}, v{V2 + n}, v{U + n}')
    for n in range(18): A(f'v_exp_f32 v{V2 + n}, v{V2 + n}')
    for n in range(18): A(f'v_add_f32 v{V2 + n}, 1.0, v{V2 + n}')
    for n in range(18): A(f'v_rcp_f32 v{V2 + n}, v{V2 + n}')
    for n in range(18): A(f'v_mul_f32 v{U + n}, v{U + n}, v{V2 + n}')
    for n in range(18): A(f'v_cvt_pk_bf16_f32 v{U + n}, 0, v{U + n}')
    A(f'v_mul_f32 v21, v{U}, v{W2}')
    A(f'v_mul_f32 v22, v{U + 1}, v{W2 + 1}')
    for n in range(2, 18, 2):
        A(f'v_fmac_f32 v21, v{U + n}, v{W2 + n}')
        A(f'v_fmac_f32 v22, v{U + n + 1}, v{W2 + n + 1}')
    A('v_add_f32 v21, v21, v22')
    allred_row(21)
    allred_g('v_add_f32', 21, 22)
    A('ds_write_b32 v19, v21')
    A('v_add_u32 v19, 4, v19')
    A('s_add_u32 s70, s70, 1')
    A('s_cmp_lt_u32 s70, 32')
    A('s_cbranch_scc1 L_bloop')
    A('v_mov_b32 v14, 1')
    A('s_mov_b64 exec, 1')
    A(f'ds_add_u32 v12, v14 offset:{L_BC}')
    A('s_mov_b64 exec, -1')
    lds_wait('L_h_bc', L_BC, 's_cmp_lt_u32', 4, 14, 12, 8)
    for w in range(4):
        A(f'ds_read_b32 v{G + w}, v24 offset:{L_BP + 128 * w}')
    A('s_waitcnt lgkmcnt(0)')
    A(f'v_add_f32 v{G}, v{G}, v{G + 1}')
    A(f'v_add_f32 v{G + 2}, v{G + 2}, v{G + 3}')
    A(f'v_add_f32 v{G}, v{G}, v{G + 2}')
    A('v_lshlrev_b32 v26, 16, v26')
    A('v_lshlrev_b32 v27, 16, v27')
    A(f'v_cvt_pk_bf16_f32 v{G}, 0, v{G}')
    A(f'v_add_f32 v27, v{G}, v27')
    A('v_cvt_pk_bf16_f32 v27, 0, v27')
    A.label('L_nob')

    A('s_mov_b32 s56, s24')
    A('s_mov_b32 s57, s25')
    A('s_mov_b32 s58, 2304')
    A('s_mov_b32 s59, 0x20000')
    A('v_lshlrev_b32 v19, 7, v7')
    A('v_lshl_add_u32 v19, v5, 4, v19')
    A('v_lshlrev_b32 v20, 4, v7')
    A('v_lshl_add_u32 v21, v3, 14, v20')
    A('v_lshlrev_b32 v22, 3, v1')
    A(f's_mul_i32 s82, s33, {18 * 16384}')
    A(f's_add_u32 s82, s82, {L2A}')
    A('s_lshl_b32 s81, s73, 14')
    A('s_add_u32 s81, s81, s82')
    A('s_lshl_b32 s64, s30, 12')
    A('s_add_u32 s81, s81, s64')
    A('s_lshl_b32 s64, s35, 7')
    A('s_add_u32 s82, s82, s64')
    A('s_lshl_b32 s64, s30, 16')
    A('s_add_u32 s76, s82, s64')
    A(f's_add_u32 s77, s82, {16 * 16384}')
    A('s_and_b32 s78, s79, 0xff')
    A('s_movk_i32 s75, 0xff')
    A('v_mov_b32 v28, s78')
    A('v_mov_b32 v29, 1')
    if warm:
        A('s_cmp_lg_u32 s30, 3')
        A('s_cbranch_scc1 L_nowarm1')
        A('buffer_load_dwordx4 v[200:203], v11, s[48:51], s74 offen sc1')
        A(f'buffer_load_dwordx4 v[204:207], v20, s[48:51], s74 offen offset:{L1ML} sc1')
        A.label('L_nowarm1')
        A('s_cmp_lg_u32 s3, 2')
        A('s_cbranch_scc1 L_nowarm2')
        for k in range(4):
            A(f'buffer_load_dwordx4 v[{208 + 4 * k}:{211 + 4 * k}], v11, s[48:51], s81 offen offset:{1024 * k} sc1')
        A.label('L_nowarm2')

    A('s_cmp_lg_u32 s30, 2')
    A('s_cbranch_scc1 L_nodisp')
    SC, SF, SOWN, SOWNC, SN, SZ = 66, 68, 69, 70, 71, 37
    A('v_lshlrev_b32 v16, 12, v1')
    A('s_lshl_b32 s64, s32, 20')
    A(f's_add_u32 s64, s64, {ns * 16384}')
    A('v_add_u32 v14, s64, v16')
    A(f's_mov_b64 exec, {(1 << (4 * npre)) - 1}')
    A(f'ds_write_b32 v23, v14 offset:{L_QT}')
    A('s_mov_b64 exec, -1')
    A(f's_mov_b32 s{SN}, {4 * npre}')
    A(f's_mov_b32 s83, {SPIN_MAX}')
    A.label('L_prdy')
    A('buffer_load_dword v14, v12, s[48:51], s36 offen offset:8 sc1')
    A('s_sub_u32 s83, s83, 1')
    A('s_waitcnt vmcnt(0)')
    A('v_readfirstlane_b32 s64, v14')
    A('s_cmp_eq_u32 s83, 0')
    A('s_cbranch_scc1 L_dend')
    A('s_cmp_eq_u32 s64, s79')
    A('s_cbranch_scc1 L_prdy_ok')
    A('s_sleep 64')
    A('s_branch L_prdy')
    A.label('L_prdy_ok')
    A(f's_lshl_b32 s{SOWN}, s32, 3')
    A(f's_mov_b32 s{SF}, s{SOWN}')
    A(f's_sub_u32 s{SOWNC}, 64, s{SOWN}')
    A('s_mov_b32 s62, 0x80808080')
    A('s_mov_b32 s63, 0x80808080')
    A(f's_mov_b32 s{SZ}, {4 if LIM > big else small}')
    lds_wait('L_dw0', L_TK, 's_cmp_eq_u32', 0, 14, 12, 16)
    A.label('L_dloop')
    A(f's_sub_u32 s83, s{SN}, {theta}')
    lds_wait('L_dw', L_TK, 's_cmp_lt_u32', 's83', 14, 12, dsleep)
    A.label('L_drty')
    A(f's_mov_b32 s38, s{SZ}')
    A('s_mov_b32 s39, 0')
    A(f's_lshl_b64 s[38:39], s[38:39], s{SF}')
    A(f's_mov_b64 s[{SC}:{SC + 1}], s[38:39]')
    A(f's_atomic_add_x2 s[{SC}:{SC + 1}], s[60:61], 0 glc')
    A(f's_lshl_b32 s83, s{SF}, 17')
    A(f's_lshl_b32 s64, s{SN}, 2')
    A('v_add_u32 v15, s64, v23')
    A('s_waitcnt lgkmcnt(0)')
    A(f's_lshr_b64 s[64:65], s[{SC}:{SC + 1}], s{SF}')
    A('s_and_b32 s64, s64, 0xff')
    A('s_cmp_ge_u32 s64, 128')
    A('s_cbranch_scc1 L_dfail')
    A('s_lshl_b32 s65, s64, 12')
    A('s_add_u32 s65, s65, s83')
    A(f's_add_u32 s65, s65, {((ns + npre) * 16384 - (128 - LIM) * 4096) & 0xffffffff}')
    A('v_add_u32 v14, s65, v16')
    A('s_sub_u32 s65, 128, s64')
    A(f's_min_u32 s65, s65, s{SZ}')
    A('s_bfm_b64 exec, s65, 0')
    A(f'ds_write_b32 v15, v14 offset:{L_QT}')
    A('s_mov_b64 exec, -1')
    A(f's_add_u32 s{SN}, s{SN}, s65')
    A.label('L_dfail')
    A(f's_add_u32 s{SC}, s38, s{SC}')
    A(f's_addc_u32 s{SC + 1}, s39, s{SC + 1}')
    A(f's_andn2_b64 s[38:39], s[62:63], s[{SC}:{SC + 1}]')
    A(f's_lshr_b64 s[44:45], s[38:39], s{SOWN}')
    A(f's_lshl_b64 s[38:39], s[38:39], s{SOWNC}')
    A('s_or_b64 s[38:39], s[38:39], s[44:45]')
    A('s_cbranch_scc0 L_dend')
    A('s_ff1_i32_b64 s65, s[38:39]')
    A(f's_add_u32 s65, s65, s{SOWN}')
    A(f's_and_b32 s{SF}, s65, 56')
    A(f's_lshr_b64 s[38:39], s[{SC}:{SC + 1}], s{SF}')
    A('s_and_b32 s38, s38, 0xff')
    A(f's_cmp_lt_u32 s38, {128 - big}')
    A(f's_cselect_b32 s{SZ}, 4, {small}')
    A('s_cmp_ge_u32 s64, 128')
    A('s_cbranch_scc1 L_drty')
    A(f's_cmp_lt_u32 s{SN}, 168')
    A('s_cbranch_scc1 L_dloop')
    A.label('L_dend')
    A(f's_lshl_b32 s64, s{SN}, 2')
    A('v_add_u32 v15, s64, v23')
    A(f'v_mov_b32 v14, {KVOOB}')
    A('s_mov_b64 exec, 15')
    A(f'ds_write_b32 v15, v14 offset:{L_QT}')
    A('s_mov_b64 exec, -1')
    A.label('L_nodisp')
    A('s_waitcnt vmcnt(0) lgkmcnt(0)')
    A('s_barrier')
    stampit(3)
    leakit(4, 0)

    P1, O, W = 200, 232, 236
    A('s_cmp_lg_u32 s30, 3')
    A('s_cbranch_scc1 L_ow')
    A(f's_mov_b32 s70, {SPIN_MAX}')
    def poll1(p):
        r = P1 + 8 * p
        A(f'buffer_load_dwordx4 v[{r}:{r + 3}], v20, s[48:51], s74 offen offset:{L1ML} sc1')
        A(f'buffer_load_dwordx4 v[{r + 4}:{r + 7}], v19, s[48:51], s74 offen sc1')
    assert np1 <= 4
    for p in range(np1 - 1):
        poll1(p)
        A(f's_sleep {ps1}')
    A.label('L_p1')
    for p in range(np1):
        poll1((p + np1 - 1) % np1)
        r = P1 + 8 * p
        A(f's_waitcnt vmcnt({2 * (np1 - 1)})')
        for t in range(4):
            A(f'v_xor_b32 v{O + t}, s78, v{r + 4 + t}')
        A(f'v_xor_b32 v17, s79, v{r + 1}')
        A(f'v_xor_b32 v18, s79, v{r + 3}')
        A(f'v_or3_b32 v14, v{O}, v{O + 1}, v{O + 2}')
        A(f'v_or_b32 v14, v14, v{O + 3}')
        A(f'v_mov_b32 v15, v{r}')
        A('v_and_b32 v14, 0xff, v14')
        A('v_or3_b32 v14, v14, v17, v18')
        A(f'v_mov_b32 v16, v{r + 2}')
        A('v_cmp_ne_u32 vcc, 0, v14')
        A('s_cbranch_vccz L_p1_done')
        A('s_mov_b64 exec, vcc')
    A('s_sub_u32 s70, s70, 1')
    A('s_cmp_lg_u32 s70, 0')
    A('s_cbranch_scc1 L_p1')
    A.label('L_p1_done')
    A('s_mov_b64 exec, -1')
    if stamp == 1:
        stampit(4)
    A(f'v_max_f32_dpp v17, v15, v15 quad_perm:[1,0,3,2] {DPP}')
    for m in ('quad_perm:[2,3,0,1]', 'row_half_mirror'):
        A.nop(2)
        A(f'v_max_f32_dpp v17, v17, v17 {m} {DPP}')
    A('v_sub_f32 v15, v15, v17')
    A('v_exp_f32 v15, v15')
    A.nop(1)
    A('v_mul_f32 v16, v15, v16')
    for t in range(4):
        A(f'v_mul_f32 v{O + t}, v15, v{O + t}')
    for m in ('quad_perm:[1,0,3,2]', 'quad_perm:[2,3,0,1]', 'row_half_mirror'):
        for q in (16, O, O + 1, O + 2, O + 3):
            A(f'v_add_f32_dpp v{q}, v{q}, v{q} {m} {DPP}')
    A('v_rcp_f32 v16, v16')
    A.nop(1)
    for t in range(4):
        A(f'v_mul_f32 v{O + t}, v{O + t}, v16')
    A(f'v_cvt_pk_bf16_f32 v{W}, v{O}, v{O + 1}')
    A(f'v_cvt_pk_bf16_f32 v{W + 1}, v{O + 2}, v{O + 3}')
    A(f'ds_write_b64 v22, v[{W}:{W + 1}] offset:{L_OW}')
    A(f'ds_write_b32 v12, v29 offset:{L_OF}')
    A('s_branch L_proj')
    A.label('L_ow')
    A(f'ds_read_b32 v14, v12 offset:{L_OF}')
    A(f'ds_read_b64 v[{W}:{W + 1}], v22 offset:{L_OW}')
    A('s_waitcnt lgkmcnt(0)')
    A('v_cmp_eq_u32 vcc, 0, v14')
    A('s_cbranch_vccnz L_ow')
    if stamp == 1:
        stampit(4)
    A.label('L_proj')
    DX, DY, DZ = 240, 244, 248
    build_b(HB, W, 0)
    for t in range(4):
        if t < 3:
            build_b(HB + 4 * (t + 1), W + (t + 1) // 2, (t + 1) & 1)
        for bl, D in ((0, DX), (1, DY)):
            r = WO + bl * 16 + t * 4
            c = '0' if t == 0 else f'v[{D}:{D + 3}]'
            A(f'v_mfma_f32_16x16x32_bf16 v[{D}:{D + 3}], v[{r}:{r + 3}], v[{HB + 4 * t}:{HB + 4 * t + 3}], {c}')
    A(f's_cmp_lg_u32 s30, {W8}')
    A('s_cbranch_scc1 L_nob8a')
    for t in range(4):
        r = WO + 32 + t * 4
        c = '0' if t == 0 else f'v[{DZ}:{DZ + 3}]'
        A(f'v_mfma_f32_16x16x32_bf16 v[{DZ}:{DZ + 3}], v[{r}:{r + 3}], v[{HB + 4 * t}:{HB + 4 * t + 3}], {c}')
    A.label('L_nob8a')
    A.nop(6)
    for r in range(4):
        A(f'v_permlane32_swap_b32 v{DX + r}, v{DY + r}')
    A.nop(1)
    for r in range(4):
        A(f'v_add_f32_dpp v{DX + r}, v{DY + r}, v{DX + r} row_ror:8 {DPP}')
    for r in range(4):
        A(f'v_bfi_b32 v{DX + r}, s75, v28, v{DX + r}')
    A('s_mov_b32 exec_lo, 0x00ff00ff')
    A('s_mov_b32 exec_hi, 0x00ff00ff')
    A(f'buffer_store_dwordx4 v[{DX}:{DX + 3}], v21, s[48:51], s76 offen sc1')
    A('s_mov_b64 exec, -1')
    A(f's_cmp_lg_u32 s30, {W8}')
    A('s_cbranch_scc1 L_nob8b')
    for r in range(4):
        A(f'v_permlane32_swap_b32 v{DZ + r}, v{DY + r}')
    A.nop(1)
    for r in range(4):
        A(f'v_add_f32_dpp v{DZ + r}, v{DY + r}, v{DZ + r} row_ror:8 {DPP}')
    for r in range(4):
        A(f'v_bfi_b32 v{DZ + r}, s75, v28, v{DZ + r}')
    A('s_mov_b64 exec, 0x00ff00ff')
    A(f'buffer_store_dwordx4 v[{DZ}:{DZ + 3}], v21, s[48:51], s77 offen sc1')
    A('s_mov_b64 exec, -1')
    A.label('L_nob8b')
    if stamp == 1:
        stampit(5)
    A('s_cmp_lg_u32 s3, 2')
    A('s_cbranch_scc1 L_hend')
    P2 = 104
    A(f's_mov_b32 s70, {SPIN_MAX}')
    for k in range(4):
        A(f's_mov_b64 s[{60 + 2 * k}:{61 + 2 * k}], -1')
    for p in range(np2 - 1):
        for k in range(4):
            A(f'buffer_load_dwordx4 v[{P2 + 4 * k}:{P2 + 4 * k + 3}], v11, s[48:51], s81 offen offset:{1024 * k} sc1')
        A(f's_sleep {ps2}')
    A.label('L_ga')
    for k in range(4):
        if np2 == 1:
            A(f's_mov_b64 exec, s[{60 + 2 * k}:{61 + 2 * k}]')
            A(f's_cbranch_execz L_gs{k}')
        else:
            A(f's_or_b64 exec, s[{60 + 2 * k}:{61 + 2 * k}], 1')
        A(f'buffer_load_dwordx4 v[{P2 + 4 * k}:{P2 + 4 * k + 3}], v11, s[48:51], s81 offen offset:{1024 * k} sc1')
        A.label(f'L_gs{k}')
    A('s_mov_b64 exec, -1')
    A('s_sub_u32 s70, s70, 1')
    A('s_cmp_eq_u32 s70, 0')
    A(f's_waitcnt vmcnt({4 * (np2 - 1)})')
    A('s_cbranch_scc1 L_ga_done')
    for k in range(4):
        for r in range(4):
            A(f'v_xor_b32 v{G + 4 * k + r}, s78, v{P2 + 4 * k + r}')
        A(f'v_or3_b32 v17, v{G + 4 * k}, v{G + 4 * k + 1}, v{G + 4 * k + 2}')
        A(f'v_or_b32 v17, v17, v{G + 4 * k + 3}')
        A('v_and_b32 v17, 0xff, v17')
        A(f'v_cmp_ne_u32 s[{60 + 2 * k}:{61 + 2 * k}], 0, v17')
    for r in range(4):
        A(f'v_add_f32 v{G + r}, v{G + r}, v{G + 4 + r}')
        A(f'v_add_f32 v{G + 8 + r}, v{G + 8 + r}, v{G + 12 + r}')
    A('s_or_b64 s[38:39], s[60:61], s[62:63]')
    A('s_or_b64 s[44:45], s[64:65], s[66:67]')
    A('s_or_b64 s[38:39], s[38:39], s[44:45]')
    A('s_cbranch_scc1 L_ga')
    A.label('L_ga_done')
    if stamp == 1:
        stampit(2)
    for r in range(4):
        A(f'v_add_f32 v{G + r}, v{G + r}, v{G + 8 + r}')
    A('s_lshl_b32 s64, s30, 8')
    A(f'v_permlane32_swap_b32 v{G}, v{G + 1}')
    A(f'v_permlane32_swap_b32 v{G + 2}, v{G + 3}')
    A(f'v_add_f32 v{G}, v{G}, v{G + 1}')
    A(f'v_add_f32 v{G + 2}, v{G + 2}, v{G + 3}')
    A('v_add_u32 v17, s64, v23')
    A.nop(1)
    A(f'v_permlane16_swap_b32 v{G}, v{G + 2}')
    A(f'v_add_f32 v{G}, v{G}, v{G + 2}')
    A.nop(2)
    A(f'v_add_f32_dpp v{G}, v{G}, v{G} row_ror:8 {DPP}')
    A(f'ds_write_b32 v17, v{G} offset:{L_P2}')
    A('s_mov_b64 exec, 1')
    A(f'ds_add_rtn_u32 v14, v12, v29 offset:{L_F2}')
    A('s_mov_b64 exec, -1')
    for w in range(4):
        A(f'ds_read_b32 v{G + 4 + w}, v23 offset:{L_P2 + 256 * w}')
    A('s_waitcnt lgkmcnt(0)')
    A('v_readfirstlane_b32 s64, v14')
    A(f'v_add_f32 v{G}, v{G + 4}, v{G + 5}')
    A(f'v_add_f32 v{G + 1}, v{G + 6}, v{G + 7}')
    A('s_cmp_lg_u32 s64, 3')
    A('s_cbranch_scc1 L_hend')
    A(f'v_add_f32 v{G}, v{G}, v{G + 1}')
    A(f'v_cvt_pk_bf16_f32 v{G}, 0, v{G}')
    A(f'v_add_f32 v{G}, v26, v{G}')
    A(f'v_cvt_pk_bf16_f32 v{G}, 0, v{G}')
    A(f'v_add_f32 v{G}, v{G}, v27')
    A(f'v_cvt_pk_bf16_f32 v{G}, v{G}, v{G}')
    A('s_mov_b32 exec_lo, 0x00ff00ff')
    A('s_mov_b32 exec_hi, 0x00ff00ff')
    A(f'buffer_store_short v{G}, v25, s[56:59], 0 offen {outpol}')
    A('s_cmp_lg_u32 s73, 0')
    A('s_cbranch_scc1 L_noep')
    A('v_mov_b32 v17, s79')
    A('s_lshl_b32 s64, s33, 2')
    A(f's_add_u32 s64, s64, {EPOCH}')
    A('s_mov_b64 exec, 1')
    A('buffer_store_dword v17, v12, s[48:51], s64 offen')
    A.label('L_noep')
    A('s_mov_b64 exec, -1')
    if stamp == 1:
        stampit(6)
    leakit(1)
    A.label('L_hend')
    if stamp:
        for _ in range(2): A('s_sleep 127')
    stamp_store()
    A.label('L_end')
    A('s_endpgm')
    if leak:
        A.L += ['.globl post_kernel', '.p2align 8', '.type post_kernel,@function', 'post_kernel:']
        A('s_cmp_ge_u32 s2, 1')
        A('s_cbranch_scc1 L_pend')
        A('s_load_dwordx2 s[4:5], s[0:1], 96')
        A('s_memrealtime s[8:9]')
        A(f's_mov_b32 s6, {EPOCH + 64}')
        A('s_waitcnt lgkmcnt(0)')
        A('s_load_dword s7, s[4:5], s6')
        A('s_waitcnt lgkmcnt(0)')
        A(f's_sub_u32 s7, s7, {lbase}')
        A('s_min_u32 s7, s7, 5000')
        A('s_mul_i32 s7, s7, 10')
        A.label('L_pspin')
        A('s_memrealtime s[10:11]')
        A('s_waitcnt lgkmcnt(0)')
        A('s_sub_u32 s10, s10, s8')
        A('s_cmp_lt_u32 s10, s7')
        A('s_cbranch_scc1 L_pspin')
        A.label('L_pend')
        A('s_endpgm')
    A.L.append('.section .rodata,"a"')
    A.L.append('.p2align 6')
    A.L.append(f'.amdhsa_kernel {KN}_kernel')
    A('.amdhsa_next_free_vgpr 256')
    A('.amdhsa_next_free_sgpr 102')
    A('.amdhsa_accum_offset 256')
    A('.amdhsa_group_segment_fixed_size 0')
    A('.amdhsa_kernarg_size 104')
    A('.amdhsa_user_sgpr_count 2')
    A('.amdhsa_user_sgpr_kernarg_segment_ptr 1')
    A('.amdhsa_system_sgpr_workgroup_id_x 1')
    A.L.append('.end_amdhsa_kernel')
    if leak:
        A.L += ['.p2align 6', '.amdhsa_kernel post_kernel', '  .amdhsa_next_free_vgpr 16', '  .amdhsa_next_free_sgpr 32', '  .amdhsa_accum_offset 16',
                '  .amdhsa_group_segment_fixed_size 0', '  .amdhsa_kernarg_size 104', '  .amdhsa_user_sgpr_count 2', '  .amdhsa_user_sgpr_kernarg_segment_ptr 1',
                '  .amdhsa_system_sgpr_workgroup_id_x 1', '.end_amdhsa_kernel']
    return A.text()


if __name__ == '__main__':
    out = sys.argv[1] if len(sys.argv) > 1 else 'cdna_kernels/' + KN + '.s'
    kw = {}
    for a in sys.argv[2:]:
        k, v = a.split('=')
        kw[k] = int(v) if v.lstrip('-').isdigit() else v
    open(out, 'w').write(gen(**kw))
    print('wrote', out)
```

```python
import struct, sys, math

KN = 'parallel_sum__gqa_block_cached__mixer_token_mlp__decode'


def f32(x):
    return '0x%08x' % struct.unpack('<I', struct.pack('<f', x))[0]


HEADER = open('cdna_kernels/' + KN + '.s.ref').read().split('; Override launch')[0]

LOG2E = 1.4426950408889634
S1 = 1280
L1ML = 1024
S2 = 2304
L2A = 256 * S1
POOLR = L2A + 256 * S2
SP = 768
QX = POOLR + 32 * SP
EPOCH = QX + 32768
WS_SIZE = EPOCH + 256
STAMP_OFF = 8 << 20
SPIN_MAX = 200000
KVOOB = 0x800000
L_Q = 0
L_FLAG, L_TAG, L_CNT, L_HF, L_TK, L_FIN, L_BC, L_OF, L_F2, L_EN, L_GO = 512, 516, 520, 524, 528, 548, 536, 540, 544, 532, 552
L_QT = 576
L_ZEND = 1280
L_BP = 1280
L_OW = 1792
L_P2 = 2304
L_XN = 3328
L_H = 5632
L_MG = 7936
L_WQ = 14336
L_SIZE = L_WQ + 73728


class Asm:
    def __init__(self):
        self.L = []

    def __call__(self, s):
        self.L.append('  ' + s)

    def label(self, s):
        self.L.append(s + ':')

    def nop(self, n):
        while n > 0:
            k = min(n, 16)
            self('s_nop %d' % (k - 1))
            n -= k

    def text(self):
        return '\n'.join(self.L) + '\n'


DPP = 'row_mask:0xf bank_mask:0xf'


def gen(kvpol='nt', wqpol='nt', wopol='nt', stamp=0, prog=0, infl=8, infl0=8, ns=60, npre=2, theta=2, big=12, small=2,
        qsleep=20, qdelay=127, qdelay2=40, bpol='', hpace=2, npoll=1, ps1=6, ps2=6, np1=2, np2=2, dsleep=1, warm=1, outpol='', leak=0, lbase=0, late=0, lead=2, whole=0, gate=4, free0=8, early=1, wolate=0, woearly=0, wooff=0, go=10, swz=1, ga2=1, st2=16384, prewr=0, pd=2, first=4, huge=99):
    LIM = (64 - ns - npre) * 4
    assert 0 < LIM + 4 * pd <= 56
    A = Asm()
    A.L.append(HEADER.rstrip('\n'))
    if leak:
        A.L.append(f'; @launch kernel={KN}_kernel grid=(256,1,1) block=(512,1,1) lds={L_SIZE}')
        A.L.append('; @launch kernel=post_kernel grid=(1,1,1) block=(64,1,1) lds=0')
    else:
        A.L.append(f'; @launch grid=(256,1,1) block=(512,1,1) lds={L_SIZE}')
    A.L.append('.amdgcn_target "amdgcn-amd-amdhsa--gfx950"')
    A.L.append('.text')
    A.L.append(f'.globl {KN}_kernel')
    A.L.append('.p2align 8')
    A.L.append(f'.type {KN}_kernel,@function')
    A.label(f'{KN}_kernel')
    ws_size = (STAMP_OFF + 65536 + 131072) if stamp else WS_SIZE

    def stampit(k):
        if stamp:
            A(f's_memrealtime s[{84 + 2 * k}:{85 + 2 * k}]')

    def stamp_store():
        if not stamp:
            return
        A('s_waitcnt lgkmcnt(0) vmcnt(0)')
        A('s_getreg_b32 s64, hwreg(HW_REG_XCC_ID)')
        A('s_lshl_b32 s65, s2, 3')
        A('s_add_u32 s65, s65, s30')
        A('s_lshl_b32 s65, s65, 5')
        A(f's_add_u32 s65, s65, {STAMP_OFF}')
        A('s_mov_b64 exec, 1')
        A('v_mov_b32 v4, 0')
        for k in range(7):
            A(f'v_mov_b32 v5, s{84 + 2 * k}')
            A(f'buffer_store_dword v5, v4, s[48:51], s65 offen offset:{4 * k}')
        A('v_mov_b32 v5, s64')
        A(f'buffer_store_dword v5, v4, s[48:51], s65 offen offset:28')
        A('s_waitcnt vmcnt(0)')

    lk = [0]

    def leakit(k, wave=None):
        if leak != k:
            return
        lk[0] += 1
        A('s_cmp_lg_u32 s2, 2')
        A(f's_cbranch_scc1 L_lk{lk[0]}')
        if wave is not None:
            A(f's_cmp_lg_u32 s30, {wave}')
            A(f's_cbranch_scc1 L_lk{lk[0]}')
        A('s_memrealtime s[96:97]')
        A('s_waitcnt lgkmcnt(0)')
        A('s_sub_u32 s96, s96, s100')
        A('v_mov_b32 v254, s96')
        A('v_mov_b32 v31, 0')
        A(f's_mov_b32 s96, {EPOCH + 64}')
        A('s_mov_b64 exec, 1')
        A('buffer_store_dword v254, v31, s[48:51], s96 offen')
        A('s_mov_b64 exec, -1')
        A('s_waitcnt vmcnt(0)')
        A.label(f'L_lk{lk[0]}')

    SEL = 40

    def make_sel():
        A('v_and_b32 v4, 7, v2')
        A('v_lshrrev_b32 v5, 1, v4')
        A('v_and_b32 v6, 1, v4')
        A('v_mov_b32 v7, 0x0c0c0100')
        A('v_mov_b32 v8, 0x01000c0c')
        A('v_cmp_eq_u32 vcc, 1, v6')
        A('v_mov_b32 v9, 0x0c0c0302')
        A('v_mov_b32 v10, 0x03020c0c')
        A('v_cndmask_b32 v7, v7, v8, vcc')
        A('v_cndmask_b32 v9, v9, v10, vcc')
        A('v_mov_b32 v8, 0x0c0c0c0c')
        for d in range(4):
            A(f'v_cmp_eq_u32 vcc, {d}, v5')
            A.nop(2)
            A(f'v_cndmask_b32 v{SEL + d}, v8, v7, vcc')
            A(f'v_cndmask_b32 v{SEL + 4 + d}, v8, v9, vcc')

    def build_b(dst, src, odd):
        for d in range(4):
            A(f'v_perm_b32 v{dst + d}, v{src}, v{src}, v{SEL + 4 * odd + d}')

    def swapred(sw, op, v, t):
        A(f'v_mov_b32 v{t}, v{v}')
        A.nop(2)
        A(f'{sw} v{v}, v{t}')
        A(f'{op} v{v}, v{v}, v{t}')

    def allred_g(op, v, t):
        swapred('v_permlane16_swap_b32', op, v, t)
        swapred('v_permlane32_swap_b32', op, v, t)

    def allred_row(v):
        for m in ('quad_perm:[1,0,3,2]', 'quad_perm:[2,3,0,1]', 'row_half_mirror', 'row_mirror'):
            A.nop(2)
            A(f'v_add_f32_dpp v{v}, v{v}, v{v} {m} {DPP}')

    def lds_wait(lab, off, cmp, val, vt, vz, sleep):
        A.label(lab)
        A(f'ds_read_b32 v{vt}, v{vz} offset:{off}')
        A('s_waitcnt lgkmcnt(0)')
        A(f'v_readfirstlane_b32 s64, v{vt}')
        A('s_nop 0')
        A(f'{cmp} s64, {val}')
        if sleep:
            A(f's_cbranch_scc0 {lab}_ok')
            A(f's_sleep {sleep}')
            A(f's_branch {lab}')
            A.label(lab + '_ok')
        else:
            A(f's_cbranch_scc1 {lab}')

    A('s_cmp_ge_u32 s2, 256')
    A('s_cbranch_scc1 L_end')
    if stamp:
        for k in range(7):
            A(f's_mov_b64 s[{84 + 2 * k}:{85 + 2 * k}], 0')
    stampit(0)
    if leak:
        A('s_memrealtime s[100:101]')
    A('s_load_dwordx16 s[4:19], s[0:1], 0')
    A('s_load_dwordx8 s[20:27], s[0:1], 64')
    A('s_load_dwordx2 s[28:29], s[0:1], 96')
    A('v_lshrrev_b32 v1, 6, v0')
    A('v_and_b32 v2, 15, v0')
    A('v_readfirstlane_b32 s30, v1')
    A('v_and_b32 v1, 63, v0')
    A('v_lshrrev_b32 v3, 4, v1')
    A('s_lshr_b32 s31, s2, 3')
    A('s_and_b32 s32, s2, 7')
    A(f's_mov_b32 s50, {ws_size}')
    A('s_mov_b32 s51, 0x20000')
    A('s_cmp_lt_u32 s30, 4')
    A('s_cbranch_scc1 L_helper')

    RING, Q, BS, S, ACC, PK = 64, 48, 32, 24, 20, 16
    VK, VV, VZ, VONE = 12, 13, 14, 15
    M2, LS, AL, T0, T1, PUB = 4, 5, 6, 7, 8, 9
    SOFF = (52, 53, 54)
    SSTAT, SCNT, SDONE, STAG = 38, 39, 55, 56
    A('s_sub_u32 s37, s30, 4')
    A('s_lshl_b32 s64, s31, 23')
    A(f's_lshl_b32 s{SSTAT}, s32, 20')
    A('s_lshl_b32 s65, s37, 12')
    A(f's_add_u32 s{SSTAT}, s{SSTAT}, s65')
    A(f's_mov_b32 s42, {KVOOB}')
    A('s_mov_b32 s43, 0x20000')
    A(f's_mov_b32 s46, {KVOOB}')
    A('s_mov_b32 s47, 0x20000')
    A(f'v_and_b32 v{T0}, 3, v2')
    A(f'v_lshlrev_b32 v{T0}, 10, v{T0}')
    A(f'v_lshrrev_b32 v{T1}, 2, v2')
    A(f'v_lshl_add_u32 v{T0}, v{T1}, 8, v{T0}')
    A(f'v_lshl_add_u32 v{VK}, v3, 4, v{T0}')
    A(f'v_lshlrev_b32 v{VV}, 4, v1')
    A('s_waitcnt lgkmcnt(0)')
    A('s_add_u32 s40, s6, s64')
    A('s_addc_u32 s41, s7, 0')
    A('s_add_u32 s44, s8, s64')
    A('s_addc_u32 s45, s9, 0')
    A('s_mov_b32 s48, s28')
    A('s_mov_b32 s49, s29')
    if early:
        A('s_sub_u32 s65, s32, s31')
        A('s_and_b32 s65, s65, 3')
        A('s_cmp_eq_u32 s65, 0')
        A('s_cbranch_scc0 L_nobx0')
        A('s_barrier')
        A.label('L_nobx0')
    else:
        A('s_barrier')

    def kloads(slot, so):
        for s in range(4):
            r = RING + slot * 32 + s * 4
            A(f'buffer_load_dwordx4 v[{r}:{r + 3}], v{VK}, s[40:43], s{so} offen offset:{s * 64} {kvpol}')

    def vloads(slot, so):
        for s in range(4):
            r = RING + slot * 32 + 16 + s * 4
            A(f'buffer_load_dwordx4 v[{r}:{r + 3}], v{VV}, s[44:47], s{so} offen offset:{s * 1024} {kvpol}')

    order0 = (0, 2, 3, 1, 4, 5)
    n = 0
    for slot in order0:
        for f in (kloads, vloads):
            if n + 4 > max(infl0, free0):
                A(f's_waitcnt vmcnt({infl0 - 4})')
            if prog == 3:
                A(f's_memrealtime s[{72 + (n // 4 % 6) * 2}:{73 + (n // 4 % 6) * 2}]')
            f(slot, SSTAT)
            n += 4
            if n == 4 * go:
                A(f'ds_write_b32 v{VZ}, v{VONE} offset:{L_GO}')
            if prog == 3 and n in (24, 48):
                A('s_waitcnt lgkmcnt(0)')
                for z in range(6):
                    A(f'v_writelane_b32 v10, s{72 + 2 * z}, {n // 4 - 6 + z}')
                A('s_mov_b32 s71, 12')
            if n == 8 and early:
                A('s_cbranch_scc1 L_nobx')
                A('s_barrier')
                A.label('L_nobx')
            if n == 8:
                make_sel()
                for r in range(4):
                    A(f'v_mov_b32 v{ACC + r}, 0')
                A(f'v_mov_b32 v{LS}, 0')
                A(f'v_mov_b32 v{M2}, {f32(-3.0e38)}')
                A(f'v_mov_b32 v{VZ}, 0')
                A(f'v_mov_b32 v{VONE}, 1')
                A(f's_mov_b32 s66, {f32(128 ** -0.5)}')
                A(f's_mov_b32 s67, {f32(LOG2E)}')
                A(f'v_lshrrev_b32 v{T0}, 3, v2')
                A(f'v_lshl_add_u32 v{T0}, v{T0}, 2, v3')
                A(f'v_lshlrev_b32 v{T0}, 7, v{T0}')
                A(f'v_and_b32 v{T1}, 7, v2')
                A(f'v_lshl_add_u32 v{PUB}, v{T1}, 4, v{T0}')
                A('v_lshlrev_b32 v30, 1, v2')
                A(f's_mul_i32 s68, s2, {S1}')
                A('s_sub_u32 s65, s32, s31')
                A('s_and_b32 s65, s65, 3')
                A('s_cmp_eq_u32 s65, 0')
                A(f's_cselect_b32 s{SCNT}, {ns - 6 - pd}, {ns - 6}')
                A(f's_mov_b32 s{SDONE}, 0')
                A('s_mov_b32 s71, 0')
                A('v_lshlrev_b32 v11, 3, v1')
                A('s_lshl_b32 s64, s37, 9')
                A('v_add_u32 v18, s64, v11')
                A('s_lshl_b32 s64, s37, 10')
                A(f'v_add_u32 v19, s64, v{VV}')
                A(f'v_lshrrev_b32 v{T0}, 3, v2')
                A(f'v_lshlrev_b32 v{T0}, 8, v{T0}')
                A(f'v_lshl_add_u32 v{T0}, v3, 4, v{T0}')
        A(f's_add_u32 s{SSTAT}, s{SSTAT}, 0x4000')
    stampit(1)
    A.label('L_qw')
    A(f'ds_read_b64 v[{PK}:{PK + 1}], v{VZ} offset:{L_FLAG}')
    for s in range(4):
        A(f'ds_read_b128 v[{Q + 4 * s}:{Q + 4 * s + 3}], v{T0} offset:{L_Q + 64 * s}')
    A('s_waitcnt lgkmcnt(0)')
    A(f'v_readfirstlane_b32 s64, v{PK}')
    A(f'v_readfirstlane_b32 s{STAG}, v{PK + 1}')
    A('s_cmp_eq_u32 s64, 0')
    A('s_cbranch_scc1 L_qw')
    stampit(2)
    leakit(2, 4)

    def qk(slot, wk):
        A(f's_waitcnt vmcnt({wk})')
        for s in range(4):
            k = RING + slot * 32 + s * 4
            c = '0' if s == 0 else f'v[{S}:{S + 3}]'
            A(f'v_mfma_f32_16x16x32_bf16 v[{S}:{S + 3}], v[{k}:{k + 3}], v[{Q + 4 * s}:{Q + 4 * s + 3}], {c}')

    def softmax_pv(slot, wv, mid=None, prepv=None):
        for n in range(4):
            A(f'v_cvt_pk_bf16_f32 v{S + n}, 0, v{S + n}')
        for n in range(4):
            A(f'v_mul_f32 v{S + n}, s66, v{S + n}')
        for n in range(4):
            A(f'v_cvt_pk_bf16_f32 v{S + n}, 0, v{S + n}')
        A(f'v_max3_f32 v{T0}, v{S}, v{S + 1}, v{S + 2}')
        A(f'v_max_f32 v{T0}, v{T0}, v{S + 3}')
        allred_g('v_max_f32', T0, T1)
        A(f'v_mul_f32 v{T0}, s67, v{T0}')
        A(f'v_max_f32 v{T0}, v{T0}, v{M2}')
        A(f'v_sub_f32 v{AL}, v{M2}, v{T0}')
        A(f'v_mov_b32 v{M2}, v{T0}')
        A(f'v_exp_f32 v{AL}, v{AL}')
        for n in range(4):
            A(f'v_fma_f32 v{S + n}, v{S + n}, s67, -v{M2}')
        for n in range(4):
            A(f'v_exp_f32 v{S + n}, v{S + n}')
        for r in range(4):
            A(f'v_mul_f32 v{ACC + r}, v{AL}, v{ACC + r}')
        A(f'v_cvt_pk_bf16_f32 v{PK}, v{S}, v{S + 1}')
        A(f'v_cvt_pk_bf16_f32 v{PK + 1}, v{S + 2}, v{S + 3}')
        if mid:
            mid()
        build_b(BS, PK, 0)
        A(f'v_fma_f32 v{LS}, v{LS}, v{AL}, v{S}')
        A(f'v_add_f32 v{T0}, v{S + 1}, v{S + 2}')
        for n in range(4):
            if n + 1 < 4:
                build_b(BS + 4 * ((n + 1) & 1), PK + (n + 1) // 2, (n + 1) & 1)
            else:
                A(f'v_add_f32 v{LS}, v{LS}, v{S + 3}')
                A(f'v_add_f32 v{LS}, v{LS}, v{T0}')
            if prepv is None:
                A(f's_waitcnt vmcnt({wv + 3 - n})')
            elif n == 0:
                prepv()
            v = RING + slot * 32 + 16 + n * 4
            b = BS + 4 * (n & 1)
            A(f'v_mfma_f32_16x16x32_bf16 v[{ACC}:{ACC + 3}], v[{v}:{v + 3}], v[{b}:{b + 3}], v[{ACC}:{ACC + 3}]')

    def static_tile(so):
        A(f's_mov_b32 s{so}, s{SSTAT}')
        A(f's_add_u32 s{SSTAT}, s{SSTAT}, 0x4000')
        A(f's_sub_u32 s{SCNT}, s{SCNT}, 1')

    outst = []
    for slot in order0:
        outst += [('K', slot, 0)] * 4 + [('V', slot, 0)] * 4

    def younger(tag):
        last = max(i for i, t in enumerate(outst) if t == tag)
        return len(outst) - 1 - last

    for slot in order0:
        qk(slot, younger(('K', slot, 0)))
        if slot < 2:
            static_tile(SOFF[slot])
            A(f's_waitcnt vmcnt({infl - 4})')
            kloads(slot, SOFF[slot])
            outst += [('K', slot, 1)] * 4
        else:
            A.nop(8)
        softmax_pv(slot, younger(('V', slot, 0)))
        if slot == 0 or (slot == 1 and lead == 2):
            A(f's_waitcnt vmcnt({infl - 4})')
            vloads(slot, SOFF[slot])
            outst += [('V', slot, 1)] * 4
    if lead == 3:
        assert younger(('K', 0, 1)) == 8
    else:
        qk(0, younger(('K', 0, 1)))
        static_tile(SOFF[0])
        A.nop(5)
        softmax_pv(0, younger(('V', 0, 1)))

    TK1, TK2 = 28, 29
    A.label('L_sloop')
    if leak == 3:
        A(f's_cmp_lg_u32 s{SCNT}, {ns - 8 - 24}')
        A('s_cbranch_scc1 L_lkx')
        leakit(3, 4)
        A.label('L_lkx')
    if prog == 1:
        A('s_memrealtime s[98:99]')
        A('s_lshr_b32 m0, s71, 1')
        A('s_add_u32 s71, s71, 1')
        A('s_waitcnt lgkmcnt(0)')
        A('v_writelane_b32 v10, s98, m0')
    def prog2(k, so):
        if prog in (2, 3):
            if prog == 2:
                A(f's_cmp_gt_u32 s{SCNT}, 5')
            else:
                A('s_cmp_gt_u32 s71, 29')
            A(f's_cbranch_scc1 L_pg{k}')
            A(f's_cmp_eq_u32 s{so}, {KVOOB}')
            A(f's_cbranch_scc1 L_pg{k}')
            A('s_memrealtime s[98:99]')
            A('s_mov_b32 m0, s71')
            A('s_add_u32 s71, s71, 1')
            A('s_waitcnt lgkmcnt(0)')
            A('v_writelane_b32 v10, s98, m0')
            A.label(f'L_pg{k}')

    for k in ((1, 0) if lead == 2 else ()):
        so, sn = SOFF[k], SOFF[1 - k]
        if late:
            A(f's_waitcnt vmcnt({gate})')
        A(f's_cmp_lg_u32 s{sn}, 0')
        A(f's_cbranch_scc1 L_iss{k}')
        A('s_mov_b64 exec, 1')
        if late:
            A(f'ds_add_rtn_u32 v{TK1}, v{VZ}, v{VONE} offset:{L_TK}')
        A('s_waitcnt lgkmcnt(0)')
        A(f'v_lshlrev_b32 v{TK1}, 2, v{TK1}')
        A.label(f'L_qt{k}')
        A(f'ds_read_b32 v{TK2}, v{TK1} offset:{L_QT}')
        A('s_waitcnt lgkmcnt(0)')
        A(f'v_readfirstlane_b32 s64, v{TK2}')
        A('s_nop 0')
        A('s_cmp_eq_u32 s64, 0')
        A(f's_cbranch_scc1 L_qt{k}')
        A('s_mov_b64 exec, -1')
        A(f's_mov_b32 s{sn}, s64')
        A.label(f'L_iss{k}')
        A(f's_waitcnt vmcnt({gate})')
        prog2(k, sn)
        kloads(1 - k, sn)
        if whole:
            vloads(1 - k, sn)
        qk(k, 12 if whole else 8)
        A(f's_cmp_eq_u32 s{SCNT}, 0')
        A(f's_cselect_b32 s{so}, 0, s{SSTAT}')
        A('s_cselect_b32 s64, 0, 1')
        A(f's_sub_u32 s{SCNT}, s{SCNT}, s64')
        A(f's_add_u32 s{SSTAT}, s{SSTAT}, 0x4000')
        A.nop(3)

        def prepv():
            A(f's_cmp_eq_u32 s{sn}, {KVOOB}')
            A('s_waitcnt vmcnt(4)')
            A(f's_cbranch_scc1 L_pv{k}')
            vloads(1 - k, sn)
            if not late:
                A(f's_cmp_lg_u32 s{so}, 0')
                A(f's_cbranch_scc1 L_pv{k}')
                A('s_mov_b64 exec, 1')
                A(f'ds_add_rtn_u32 v{TK1}, v{VZ}, v{VONE} offset:{L_TK}')
                A('s_mov_b64 exec, -1')
            A.label(f'L_pv{k}')
        def midw():
            if not late:
                A(f's_cmp_eq_u32 s{sn}, {KVOOB}')
                A(f's_cbranch_scc1 L_pv{k}')
                A(f's_cmp_lg_u32 s{so}, 0')
                A(f's_cbranch_scc1 L_pv{k}')
                A('s_mov_b64 exec, 1')
                A(f'ds_add_rtn_u32 v{TK1}, v{VZ}, v{VONE} offset:{L_TK}')
                A('s_mov_b64 exec, -1')
                A.label(f'L_pv{k}')
        if whole:
            softmax_pv(k, 8, midw)
        else:
            softmax_pv(k, 0, None, prepv)
        A(f's_cmp_eq_u32 s{sn}, {KVOOB}')
        A('s_cbranch_scc1 L_sdone')
    for k in (range(2) if lead == 3 else ()):
        so, sn = SOFF[k], SOFF[1 - k]
        qk(k, 8)
        vloads(1 - k, sn)
        A(f's_cmp_eq_u32 s{SCNT}, 0')
        A(f's_cbranch_scc1 L_dyn{k}')
        static_tile(so)
        A(f's_branch L_sm{k}')
        A.label(f'L_dyn{k}')
        A(f's_mov_b32 s{so}, {KVOOB}')
        A(f's_cmp_eq_u32 s{sn}, {KVOOB}')
        A(f's_cbranch_scc1 L_sm{k}')
        A(f's_mov_b32 s{so}, 0')
        if not late:
            A('s_mov_b64 exec, 1')
            A(f'ds_add_rtn_u32 v{TK1}, v{VZ}, v{VONE} offset:{L_TK}')
            A('s_mov_b64 exec, -1')
        A.label(f'L_sm{k}')

        def mid():
            A(f's_cmp_lg_u32 s{so}, 0')
            A(f's_cbranch_scc1 L_md{k}')
            if late:
                A('s_waitcnt vmcnt(11)')
                A('s_mov_b64 exec, 1')
                A(f'ds_add_rtn_u32 v{TK1}, v{VZ}, v{VONE} offset:{L_TK}')
                A('s_mov_b64 exec, -1')
            else:
                A('s_waitcnt lgkmcnt(0)')
                A(f'v_lshlrev_b32 v{TK1}, 2, v{TK1}')
                A('s_mov_b64 exec, 1')
                A(f'ds_read_b32 v{TK2}, v{TK1} offset:{L_QT}')
                A('s_mov_b64 exec, -1')
            A.label(f'L_md{k}')
        softmax_pv(k, 8, mid)
        A(f's_cmp_eq_u32 s{sn}, {KVOOB}')
        A('s_cbranch_scc1 L_sdone')
        A(f's_cmp_lg_u32 s{so}, 0')
        A(f's_cbranch_scc1 L_iss{k}')
        A('s_mov_b64 exec, 1')
        if late:
            A('s_waitcnt lgkmcnt(0)')
            A(f'v_lshlrev_b32 v{TK1}, 2, v{TK1}')
            A(f'ds_read_b32 v{TK2}, v{TK1} offset:{L_QT}')
        A.label(f'L_qt{k}')
        A('s_waitcnt lgkmcnt(0)')
        A(f'v_readfirstlane_b32 s64, v{TK2}')
        A(f'ds_read_b32 v{TK2}, v{TK1} offset:{L_QT}')
        A('s_cmp_eq_u32 s64, 0')
        A(f's_cbranch_scc1 L_qt{k}')
        A('s_mov_b64 exec, -1')
        A(f's_mov_b32 s{so}, s64')
        A.label(f'L_iss{k}')
        if prog == 2:
            A(f's_cmp_gt_u32 s{SCNT}, 5')
            A(f's_cbranch_scc1 L_pg{k}')
            A(f's_cmp_eq_u32 s{so}, {KVOOB}')
            A(f's_cbranch_scc1 L_pg{k}')
            A('s_memrealtime s[98:99]')
            A('s_mov_b32 m0, s71')
            A('s_add_u32 s71, s71, 1')
            A('s_waitcnt lgkmcnt(0)')
            A('v_writelane_b32 v10, s98, m0')
            A.label(f'L_pg{k}')
        kloads(k, so)
    A('s_branch L_sloop')

    A.label('L_sdone')
    stampit(3)
    allred_g('v_add_f32', LS, T1)
    A(f'ds_write_b64 v18, v[{M2}:{M2 + 1}] offset:{L_MG + 4096}')
    A(f'ds_write_b128 v19, v[{ACC}:{ACC + 3}] offset:{L_MG}')
    A('s_mov_b64 exec, 1')
    A(f'ds_add_rtn_u32 v{T1}, v{VZ}, v{VONE} offset:{L_FIN}')
    A('s_mov_b64 exec, -1')
    for w in range(4):
        A(f'ds_read_b64 v[{BS + 2 * w}:{BS + 2 * w + 1}], v11 offset:{L_MG + 4096 + 512 * w}')
    for w in range(4):
        A(f'ds_read_b128 v[{Q + 4 * w}:{Q + 4 * w + 3}], v{VV} offset:{L_MG + 1024 * w}')
    A(f's_and_b32 s64, s{STAG}, 0xff')
    A('s_movk_i32 s65, 0xff')
    A(f'v_mov_b32 v{PK}, s64')
    A(f'v_mov_b32 v{T0}, s{STAG}')
    A('s_waitcnt lgkmcnt(4)' if not stamp else 's_waitcnt lgkmcnt(0)')
    A(f'v_readfirstlane_b32 s64, v{T1}')
    A(f'v_max_f32 v{M2}, v{BS}, v{BS + 2}')
    A('s_cmp_lg_u32 s64, 3')
    A('s_cbranch_scc1 L_send')
    A(f'v_max3_f32 v{M2}, v{M2}, v{BS + 4}, v{BS + 6}')
    for w in range(4):
        A(f'v_sub_f32 v{S + w}, v{BS + 2 * w}, v{M2}')
    for w in range(4):
        A(f'v_exp_f32 v{S + w}, v{S + w}')
    A(f'v_mov_b32 v{LS}, s{STAG}')
    A(f'v_mul_f32 v{AL}, v{S}, v{BS + 1}')
    for w in range(1, 4):
        A(f'v_fmac_f32 v{AL}, v{S + w}, v{BS + 2 * w + 1}')
    A('s_mov_b64 exec, 0x0101')
    A(f'buffer_store_dwordx4 v[{M2}:{M2 + 3}], v30, s[48:51], s68 offen offset:{L1ML} sc1')
    A('s_mov_b64 exec, -1')
    A('s_waitcnt lgkmcnt(0)')
    for r in range(4):
        A(f'v_mul_f32 v{ACC + r}, v{S}, v{Q + r}')
    for w in range(1, 4):
        for r in range(4):
            A(f'v_fmac_f32 v{ACC + r}, v{S + w}, v{Q + 4 * w + r}')
    for r in range(4):
        A(f'v_bfi_b32 v{ACC + r}, s65, v{PK}, v{ACC + r}')
    A(f'buffer_store_dwordx4 v[{ACC}:{ACC + 3}], v{PUB}, s[48:51], s68 offen sc1')
    stampit(4)
    if stamp:
        A.label('L_send')
        A('s_barrier')
        for _ in range(2): A('s_sleep 127')
    else:
        A('s_barrier')
        A.label('L_send')
    if prog:
        A('s_mov_b32 m0, 31')
        A('s_nop 0')
        if prog == 1:
            A('s_lshr_b32 s71, s71, 1')
        A('v_writelane_b32 v10, s71, m0')
        A('s_lshl_b32 s65, s2, 2')
        A('s_add_u32 s65, s65, s37')
        A('s_lshl_b32 s65, s65, 7')
        A(f's_add_u32 s65, s65, {STAMP_OFF + 65536}')
        A('v_lshlrev_b32 v11, 2, v1')
        A('s_mov_b32 exec_hi, 0')
        A('buffer_store_dword v10, v11, s[48:51], s65 offen')
        A('s_mov_b64 exec, -1')
    stamp_store()
    A('s_endpgm')

    A.label('L_helper')
    A('s_setprio 2')
    HB = 48
    X, E = 64, 80
    A('v_lshlrev_b32 v11, 4, v1')
    A('v_mov_b32 v12, 0')
    A('v_lshlrev_b32 v23, 2, v1')
    for z in range(L_FLAG, L_ZEND, 256):
        A(f'ds_write_b32 v23, v12 offset:{z}')
    A('s_lshr_b32 s33, s31, 4')
    A('s_and_b32 s34, s31, 15')
    A('s_and_b32 s35, s2, 127')
    A('s_sub_u32 s64, s32, s31')
    A('s_and_b32 s64, s64, 7')
    A('s_lshr_b32 s65, s64, 2')
    A('s_lshl_b32 s72, s31, 1')
    A('s_add_u32 s72, s72, s65')
    A('s_lshl_b32 s73, s65, 4')
    A('s_add_u32 s73, s73, s34')
    A('s_and_b32 s64, s64, 3')
    A('s_cmp_lt_u32 s73, 18')
    A('s_cselect_b32 s3, 2, 0')
    A('s_cmp_eq_u32 s64, 2')
    A('s_cselect_b32 s3, s3, 0')
    A('s_cmp_eq_u32 s64, 0')
    A('s_cselect_b32 s3, 1, s3')
    A('v_mul_u32_u24 v13, 36, v1')
    A('s_mov_b32 s42, 2304')
    A('s_mov_b32 s43, 0x20000')
    A(f's_mov_b32 s46, {576 * 8192}')
    A('s_mov_b32 s47, 0x20000')
    A('v_lshrrev_b32 v14, 3, v1')
    A('v_lshlrev_b32 v14, 13, v14')
    A('v_and_b32 v15, 7, v1')
    if swz:
        A('v_lshrrev_b32 v16, 3, v1')
        A('v_and_b32 v16, 2, v16')
        A('v_xor_b32 v15, v15, v16')
    A('v_lshl_add_u32 v14, v15, 4, v14')
    A('v_xor_b32 v31, 64, v14')
    A(f's_mul_i32 s38, s30, {144 * 8192}')
    A('s_lshl_b32 s64, s72, 7')
    A('s_add_u32 s38, s38, s64')
    A(f's_mul_i32 s37, s30, {144 * 128}')
    A(f's_add_u32 s37, s37, {L_WQ}')
    A('s_lshl_b32 s64, s30, 2')
    A('s_add_u32 s64, s64, s3')
    A('s_cmp_eq_u32 s64, 2')
    A('s_cselect_b32 s70, 1, 0')
    A('s_cmp_eq_u32 s3, 1')
    A('s_cselect_b32 s70, 1, s70')
    A('s_waitcnt lgkmcnt(0)')
    A('s_mov_b32 s48, s28')
    A('s_mov_b32 s49, s29')
    A('s_mov_b32 s40, s4')
    A('s_mov_b32 s41, s5')
    A('s_mov_b32 s44, s10')
    A('s_mov_b32 s45, s11')
    A(f's_mov_b32 s64, {EPOCH}')
    A('s_load_dwordx2 s[78:79], s[28:29], s64')
    A('s_cmp_eq_u32 s70, 0')
    A('s_cbranch_scc1 L_h_x')
    A(f'buffer_load_dwordx4 v[{X}:{X + 3}], v13, s[40:43], 0 offen')
    A(f'buffer_load_dwordx4 v[{X + 4}:{X + 7}], v13, s[40:43], 0 offen offset:16')
    A(f'buffer_load_dword v{X + 8}, v13, s[40:43], 0 offen offset:32')
    A('s_cmp_lg_u32 s3, 1')
    A('s_cbranch_scc1 L_h_x')
    for n in range(18):
        A('s_mov_b32 m0, s37')
        A('s_add_u32 s37, s37, 1024')
        A(f'buffer_load_dwordx4 v{31 if (swz and n & 1) else 14}, s[44:47], s38 offen {wqpol} lds')
        A('s_add_u32 s38, s38, 0x10000')
    A.label('L_h_x')
    A('s_barrier')
    A('s_cmp_eq_u32 s70, 0')
    A('s_cbranch_scc1 L_h_noln')

    def layernorm(src, dst):
        D = E + 18
        a, b, c = E + 36, E + 37, E + 38
        for k in range(9):
            A(f'v_lshlrev_b32 v{E + 2 * k}, 16, v{src + k}')
            A(f'v_and_b32 v{E + 2 * k + 1}, 0xffff0000, v{src + k}')
        A(f'v_add_f32 v{a}, v{E}, v{E + 1}')
        A(f'v_add_f32 v{b}, v{E + 2}, v{E + 3}')
        for n in range(4, 18, 2):
            A(f'v_add_f32 v{a}, v{a}, v{E + n}')
            A(f'v_add_f32 v{b}, v{b}, v{E + n + 1}')
        A(f'v_add_f32 v{a}, v{a}, v{b}')
        allred_row(a)
        swapred('v_permlane16_swap_b32', 'v_add_f32', a, b)
        A(f'v_mul_f32 v{a}, {f32(1.0 / 576)}, v{a}')
        for n in range(18):
            A(f'v_sub_f32 v{D + n}, v{E + n}, v{a}')
        A(f'v_mul_f32 v{b}, v{D}, v{D}')
        A(f'v_mul_f32 v{c}, v{D + 1}, v{D + 1}')
        for n in range(2, 18, 2):
            A(f'v_fmac_f32 v{b}, v{D + n}, v{D + n}')
            A(f'v_fmac_f32 v{c}, v{D + n + 1}, v{D + n + 1}')
        A(f'v_add_f32 v{b}, v{b}, v{c}')
        A(f'v_cvt_pk_bf16_f32 v{a}, 0, v{a}')
        allred_row(b)
        swapred('v_permlane16_swap_b32', 'v_add_f32', b, c)
        A(f'v_mul_f32 v{b}, {f32(1.0 / 576)}, v{b}')
        A(f'v_cvt_pk_bf16_f32 v{b}, 0, v{b}')
        A(f'v_add_f32 v{b}, {f32(1e-5)}, v{b}')
        A(f'v_cvt_pk_bf16_f32 v{b}, 0, v{b}')
        A(f'v_sqrt_f32 v{b}, v{b}')
        A(f'v_sub_f32 v{D}, v{E}, v{a}')
        A(f'v_cvt_pk_bf16_f32 v{b}, 0, v{b}')
        A(f'v_rcp_f32 v{b}, v{b}')
        for n in range(1, 18):
            A(f'v_sub_f32 v{D + n}, v{E + n}, v{a}')
        for n in range(18):
            A(f'v_cvt_pk_bf16_f32 v{D + n}, 0, v{D + n}')
        for n in range(18):
            A(f'v_mul_f32 v{D + n}, v{D + n}, v{b}')
        for k in range(9):
            A(f'v_cvt_pk_bf16_f32 v{dst + k}, v{D + 2 * k}, v{D + 2 * k + 1}')

    A('v_and_b32 v15, 1, v2')
    A('v_mul_u32_u24 v15, 1152, v15')
    A('v_lshl_add_u32 v15, v3, 4, v15')
    A('v_lshrrev_b32 v16, 2, v2')
    A('v_lshl_add_u32 v16, v3, 3, v16')
    A('v_lshlrev_b32 v16, 7, v16')
    A('v_and_b32 v17, 3, v1')
    A('v_lshl_add_u32 v16, v17, 3, v16')
    A('s_lshl_b32 s64, s30, 5')
    A('v_add_u32 v16, s64, v16')
    if swz:
        A('v_lshlrev_b32 v17, 2, v1')
        A('v_and_b32 v17, 0x60, v17')
        A('v_xor_b32 v16, v16, v17')
    A('v_add_u32 v20, 0x8000, v16')
    A('v_lshlrev_b32 v17, 2, v2')
    A('v_lshl_add_u32 v17, v3, 14, v17')
    A('s_lshl_b32 s39, s72, 8')
    A('s_lshl_b32 s64, s30, 6')
    A('s_add_u32 s39, s39, s64')
    A(f's_add_u32 s39, s39, {QX}')
    A('s_cmp_eq_u32 s3, 1')
    A('s_cbranch_scc1 L_h_wx')
    A('s_waitcnt vmcnt(0)')
    A.label('L_h_wx')
    A('s_waitcnt vmcnt(18)')
    if stamp == 2: stampit(4)
    layernorm(X, X)
    A('v_mov_b32 v18, 1')
    A('s_cmp_lg_u32 s3, 1')
    A('s_cbranch_scc1 L_h_ln2')
    for k in range(9):
        A(f'ds_write_b32 v13, v{X + k} offset:{L_XN + 4 * k}')
    QA, QB, QD = 120, 192, 76
    A('s_waitcnt lgkmcnt(0)')
    for t in range(18):
        A(f'ds_read_b128 v[{QA + 4 * t}:{QA + 4 * t + 3}], v15 offset:{L_XN + 64 * t}')
        if t == 8:
            A('s_waitcnt lgkmcnt(0)')
    if stamp == 2: stampit(5)
    A('s_waitcnt vmcnt(0)')
    A('s_mov_b64 exec, 1')
    A(f'ds_add_u32 v12, v18 offset:{L_CNT}')
    A('s_mov_b64 exec, -1')
    lds_wait('L_h_sync', L_CNT, 's_cmp_lt_u32', 4, 18, 12, 0)
    if stamp == 2:
        stampit(6)
        A('s_waitcnt lgkmcnt(0)')
    for t0 in (0, 6, 12):
        for t in range(t0, t0 + 6):
            r = QB + 4 * (t % 12)
            for h in range(2):
                off = L_WQ + 4096 * t + 512 * h
                base, off = (16, off) if off < 32768 else (20, off - 32768)
                A(f'ds_read_b64_tr_b16 v[{r + 2 * h}:{r + 2 * h + 1}], v{base} offset:{off}')
        for t in range(t0, t0 + 6):
            r = QB + 4 * (t % 12)
            A(f's_waitcnt lgkmcnt({2 * (t0 + 5 - t)})')
            c = '0' if t == 0 else f'v[{QD}:{QD + 3}]'
            A(f'v_mfma_f32_16x16x32_bf16 v[{QD}:{QD + 3}], v[{QA + 4 * t}:{QA + 4 * t + 3}], v[{r}:{r + 3}], {c}')
    A('s_add_u32 s64, s78, 1')
    A('s_add_u32 s65, s79, 1')
    A('v_cmp_eq_u32 vcc, 1, v3')
    A('v_mov_b32 v19, s64')
    A('v_mov_b32 v21, s65')
    A.nop(4)
    A('v_cndmask_b32 v19, v19, v21, vcc')
    A(f'v_cndmask_b32 v18, v{QD}, v{QD + 1}, vcc')
    A.nop(2)
    A(f'v_mov_b32_dpp v21, v18 quad_perm:[1,0,3,2] {DPP}')
    A('v_cvt_pk_bf16_f32 v18, v18, v21')
    A('s_mov_b64 exec, 0x55555555')
    A('buffer_store_dwordx2 v[18:19], v17, s[48:51], s39 offen sc1')
    A('s_mov_b64 exec, -1')
    stampit(1)
    A('s_branch L_h_q')
    A.label('L_h_ln2')
    layernorm(X, X)
    for k in range(9):
        A(f'ds_write_b32 v13, v{X + k} offset:{L_H + 4 * k}')
    A(f'ds_write_b32 v12, v18 offset:{L_HF}')
    A('s_branch L_h_join')

    A.label('L_h_noln')
    A.label('L_h_q')
    A('s_cmp_eq_u32 s30, 1')
    A('s_cbranch_scc0 L_h_join')
    A('s_lshl_b32 s39, s31, 10')
    A(f's_add_u32 s39, s39, {QX}')
    A('v_lshlrev_b32 v22, 3, v1')
    A('s_waitcnt lgkmcnt(0)')
    A('s_cmp_eq_u32 s33, 0')
    A('s_cselect_b32 s79, s78, s79')
    A('s_add_u32 s79, s79, 1')
    A(f's_mov_b32 s70, {SPIN_MAX}')
    lds_wait('L_go', L_GO, 's_cmp_eq_u32', 0, 14, 12, 4)
    PB = 64

    def qpoll(p):
        A(f'buffer_load_dwordx4 v[{PB + 4 * p}:{PB + 4 * p + 3}], v11, s[48:51], s39 offen sc1')
    for p in range(npoll - 1):
        qpoll(p)
        A(f's_sleep {qsleep}')
    A.label('L_qp')
    for p in range(npoll):
        qpoll((p + npoll - 1) % npoll)
        r = PB + 4 * p
        A(f's_waitcnt vmcnt({npoll - 1})')
        A(f'v_xor_b32 v14, s79, v{r + 1}')
        A(f'v_xor_b32 v15, s79, v{r + 3}')
        A(f'v_mov_b32 v16, v{r}')
        A('v_or_b32 v14, v14, v15')
        A(f'v_mov_b32 v17, v{r + 2}')
        A('v_cmp_ne_u32 vcc, 0, v14')
        A('s_cbranch_vccz L_qp_done')
        A('s_mov_b64 exec, vcc')
    A('s_sub_u32 s70, s70, 1')
    A('s_cmp_lg_u32 s70, 0')
    A('s_cbranch_scc1 L_qp')
    A.label('L_qp_done')
    A('s_mov_b64 exec, -1')
    A(f'ds_write_b64 v22, v[16:17] offset:{L_Q}')
    A('v_mov_b32 v14, 1')
    A('v_mov_b32 v15, s79')
    A(f'ds_write_b64 v12, v[14:15] offset:{L_FLAG}')
    stampit(1)

    A.label('L_h_join')
    make_sel()
    A('v_lshrrev_b32 v5, 3, v2')
    A('v_lshl_add_u32 v5, v5, 2, v3')
    A('v_and_b32 v7, 7, v2')
    A(f's_mul_i32 s74, s31, {8 * S1}')
    A('s_lshr_b32 s64, s32, 2')
    A('s_lshl_b32 s64, s64, 4')
    A('s_add_u32 s69, s74, s64')
    A('s_lshl_b32 s64, s32, 7')
    A('s_add_u32 s74, s74, s64')
    lds_wait('L_h_qf', L_FLAG, 's_cmp_eq_u32', 0, 14, 12, 8)
    A(f'ds_read_b32 v14, v12 offset:{L_TAG}')
    A('s_waitcnt lgkmcnt(0)')
    A('v_readfirstlane_b32 s79, v14')
    stampit(2)

    pc = [0]

    def paced(ins):
        if pc[0] >= hpace:
            A(f's_waitcnt vmcnt({hpace - 1})')
        A(ins)
        pc[0] += 1

    A(f's_mul_i32 s64, s31, {SP}')
    A(f's_add_u32 s36, s64, {POOLR}')
    A('s_add_u32 s60, s28, s36')
    A('s_addc_u32 s61, s29, 0')
    A('s_lshl_b32 s64, s32, 2')
    A('s_add_u32 s64, s64, s30')
    A('s_cmp_lg_u32 s64, 3')
    A('s_cbranch_scc1 L_nopool')
    A('s_and_b32 s64, s31, 3')
    A('s_lshl_b32 s64, s64, 3')
    A(f's_lshl_b32 s64, {4 * pd}, s64')
    A(f's_sub_u32 s64, {(128 - LIM) * 0x01010101}, s64')
    A('v_mov_b32 v14, s64')
    A('v_mov_b32 v15, s64')
    A('v_mov_b32 v16, s79')
    A('s_mov_b64 exec, 1')
    A('buffer_store_dwordx2 v[14:15], v12, s[48:51], s36 offen sc1')
    A('s_waitcnt vmcnt(0)')
    A('buffer_store_dword v16, v12, s[48:51], s36 offen offset:128 sc1')
    A('s_mov_b64 exec, -1')
    A.label('L_nopool')

    WO = 104
    W8 = 3
    A('s_mov_b32 s52, s12')
    A('s_mov_b32 s53, s13')
    A(f's_mov_b32 s54, {4096 * 1152}')
    A('s_mov_b32 s55, 0x20000')
    A('v_mul_u32_u24 v30, 1152, v5')
    A('v_lshl_add_u32 v30, v7, 4, v30')

    def wo_loads(ts, emit, tagl):
        A(f's_mul_i32 s64, s35, {32 * 1152}')
        A(f's_add_u32 s64, s64, {ts[0] * 8 * 1152}')
        A('s_lshl_b32 s65, s30, 8')
        A('s_add_u32 s65, s65, s64')
        for t in ts:
            for bl in range(2):
                r = WO + bl * 16 + t * 4
                emit(f'buffer_load_dwordx4 v[{r}:{r + 3}], v30, s[52:55], s65 offen offset:{128 * bl} {wopol}')
            if t != ts[-1]:
                A(f's_add_u32 s65, s65, {8 * 1152}')
        A(f's_cmp_lg_u32 s30, {W8}')
        A(f's_cbranch_scc1 L_nowo8{tagl}')
        for t in ts:
            r = WO + 32 + t * 4
            emit(f'buffer_load_dwordx4 v[{r}:{r + 3}], v30, s[52:55], s64 offen offset:1024 {wopol}')
            if t != ts[-1]:
                A(f's_add_u32 s64, s64, {8 * 1152}')
        A.label(f'L_nowo8{tagl}')
    ne = woearly if wolate else 4
    if ne:
        wo_loads(list(range(ne)), paced, 'a')

    A('s_lshl_b32 s80, s73, 5')
    A('s_mul_i32 s64, s33, 576')
    A('s_add_u32 s80, s80, s64')
    G = 176
    A('v_and_b32 v17, 1, v3')
    A('v_lshrrev_b32 v18, 1, v3')
    A('v_lshl_add_u32 v17, v17, 1, v18')
    A('v_lshl_add_u32 v17, v17, 3, v7')
    A('v_lshlrev_b32 v24, 2, v17')
    A('v_add_u32 v17, s80, v17')
    A('v_lshlrev_b32 v25, 1, v17')
    A('s_cmp_lg_u32 s3, 2')
    A('s_cbranch_scc1 L_nob')
    PW = 64
    W1, B1, W2 = 152, 170, 188
    U = 206
    A('s_mul_i32 s64, s30, 2304')
    A('v_add_u32 v15, s64, v11')
    A('v_add_u32 v16, s64, v23')
    for k, base in enumerate((16, 18, 20)):
        r = PW + 12 * k
        paced(f'global_load_dwordx4 v[{r}:{r + 3}], v15, s[{base}:{base + 1}] {bpol}')
        paced(f'global_load_dwordx4 v[{r + 4}:{r + 7}], v15, s[{base}:{base + 1}] offset:1024 {bpol}')
        paced(f'global_load_dword v{r + 8}, v16, s[{base}:{base + 1}] offset:2048 {bpol}')
    paced('buffer_load_ushort v26, v25, s[40:43], 0 offen')
    paced('global_load_ushort v27, v12, s[22:23]')
    lds_wait('L_h_hf', L_HF, 's_cmp_eq_u32', 0, 14, 12, 8)
    c0 = -2.0 * math.sqrt(2.0 / math.pi) * LOG2E
    A(f's_mov_b32 s66, {f32(c0 * 0.044715)}')
    A(f'v_mov_b32 v17, {f32(c0)}')
    A('s_lshl_b32 s64, s80, 1')
    A(f's_add_u32 s64, s64, {L_H}')
    A('v_mov_b32 v18, s64')
    A('s_lshl_b32 s64, s30, 7')
    A(f's_add_u32 s64, s64, {L_BP}')
    A('v_mov_b32 v19, s64')
    A('s_waitcnt vmcnt(0)')
    for k, dst in enumerate((W1, B1, W2)):
        for n in range(9):
            A(f'v_lshlrev_b32 v{dst + 2 * n}, 16, v{PW + 12 * k + n}')
            A(f'v_and_b32 v{dst + 2 * n + 1}, 0xffff0000, v{PW + 12 * k + n}')
    A('s_mov_b32 s70, 0')
    A.label('L_bloop')
    A('ds_read_u16 v20, v18')
    A('v_add_u32 v18, 2, v18')
    A('s_waitcnt lgkmcnt(0)')
    A('v_lshlrev_b32 v20, 16, v20')
    V2 = U + 18
    for n in range(18): A(f'v_mul_f32 v{U + n}, v20, v{W1 + n}')
    for n in range(18): A(f'v_cvt_pk_bf16_f32 v{U + n}, 0, v{U + n}')
    for n in range(18): A(f'v_add_f32 v{U + n}, v{U + n}, v{B1 + n}')
    for n in range(18): A(f'v_cvt_pk_bf16_f32 v{U + n}, 0, v{U + n}')
    for n in range(18): A(f'v_mul_f32 v{V2 + n}, v{U + n}, v{U + n}')
    for n in range(18): A(f'v_fma_f32 v{V2 + n}, v{V2 + n}, s66, v17')
    for n in range(18): A(f'v_mul_f32 v{V2 + n}, v{V2 + n}, v{U + n}')
    for n in range(18): A(f'v_exp_f32 v{V2 + n}, v{V2 + n}')
    for n in range(18): A(f'v_add_f32 v{V2 + n}, 1.0, v{V2 + n}')
    for n in range(18): A(f'v_rcp_f32 v{V2 + n}, v{V2 + n}')
    for n in range(18): A(f'v_mul_f32 v{U + n}, v{U + n}, v{V2 + n}')
    for n in range(18): A(f'v_cvt_pk_bf16_f32 v{U + n}, 0, v{U + n}')
    A(f'v_mul_f32 v21, v{U}, v{W2}')
    A(f'v_mul_f32 v22, v{U + 1}, v{W2 + 1}')
    for n in range(2, 18, 2):
        A(f'v_fmac_f32 v21, v{U + n}, v{W2 + n}')
        A(f'v_fmac_f32 v22, v{U + n + 1}, v{W2 + n + 1}')
    A('v_add_f32 v21, v21, v22')
    allred_row(21)
    allred_g('v_add_f32', 21, 22)
    A('ds_write_b32 v19, v21')
    A('v_add_u32 v19, 4, v19')
    A('s_add_u32 s70, s70, 1')
    A('s_cmp_lt_u32 s70, 32')
    A('s_cbranch_scc1 L_bloop')
    A('v_mov_b32 v14, 1')
    A('s_mov_b64 exec, 1')
    A(f'ds_add_u32 v12, v14 offset:{L_BC}')
    A('s_mov_b64 exec, -1')
    lds_wait('L_h_bc', L_BC, 's_cmp_lt_u32', 4, 14, 12, 8)
    for w in range(4):
        A(f'ds_read_b32 v{G + w}, v24 offset:{L_BP + 128 * w}')
    A('s_waitcnt lgkmcnt(0)')
    A(f'v_add_f32 v{G}, v{G}, v{G + 1}')
    A(f'v_add_f32 v{G + 2}, v{G + 2}, v{G + 3}')
    A(f'v_add_f32 v{G}, v{G}, v{G + 2}')
    A('v_lshlrev_b32 v26, 16, v26')
    A('v_lshlrev_b32 v27, 16, v27')
    A(f'v_cvt_pk_bf16_f32 v{G}, 0, v{G}')
    A(f'v_add_f32 v27, v{G}, v27')
    A('v_cvt_pk_bf16_f32 v27, 0, v27')
    A.label('L_nob')

    A('s_mov_b32 s56, s24')
    A('s_mov_b32 s57, s25')
    A('s_mov_b32 s58, 2304')
    A('s_mov_b32 s59, 0x20000')
    A(f'v_mul_u32_u24 v20, {S1}, v7')
    A('v_lshl_add_u32 v19, v5, 4, v20')
    A('v_lshlrev_b32 v21, 4, v7')
    A('v_lshl_add_u32 v21, v3, 7, v21')
    A('v_lshlrev_b32 v22, 3, v1')
    A('v_lshrrev_b32 v31, 3, v1')
    A(f'v_mul_u32_u24 v31, {S2}, v31')
    A('v_lshl_add_u32 v31, v7, 4, v31')
    A(f's_mul_i32 s77, s2, {S2}')
    A(f's_add_u32 s77, s77, {L2A}')
    A('s_lshl_b32 s64, s30, 9')
    A('s_add_u32 s76, s77, s64')
    A('s_lshl_b32 s64, s33, 2')
    A('s_add_u32 s64, s64, s30')
    A(f's_mul_i32 s81, s64, {32 * S2}')
    A('s_lshl_b32 s64, s73, 7')
    A('s_add_u32 s81, s81, s64')
    A(f's_add_u32 s81, s81, {L2A}')
    A(f's_add_u32 s82, s81, {8 * S2}')
    A(f's_add_u32 s46, s81, {16 * S2}')
    A(f's_add_u32 s47, s81, {24 * S2}')
    GS = (81, 82, 46, 47)
    A('s_and_b32 s78, s79, 0xff')
    A('s_movk_i32 s75, 0xff')
    A('v_mov_b32 v28, s78')
    A('v_mov_b32 v29, 1')
    if warm:
        A('s_cmp_lg_u32 s30, 3')
        A('s_cbranch_scc1 L_nowarm1')
        A('buffer_load_dwordx4 v[200:203], v19, s[48:51], s74 offen sc1')
        A(f'buffer_load_dwordx4 v[204:207], v20, s[48:51], s69 offen offset:{L1ML} sc1')
        A.label('L_nowarm1')
        A('s_cmp_lg_u32 s3, 2')
        A('s_cbranch_scc1 L_nowarm2')
        for k in range(4):
            A(f'buffer_load_dwordx4 v[{208 + 4 * k}:{211 + 4 * k}], v31, s[48:51], s{GS[k]} offen sc1')
        A.label('L_nowarm2')

    A('s_cmp_lg_u32 s30, 2')
    A('s_cbranch_scc1 L_nodisp')
    SC, SF, SOWN, SOWNC, SN, SZ = 66, 68, 69, 70, 71, 37
    A('v_lshlrev_b32 v16, 12, v1')
    A('s_lshl_b32 s64, s32, 20')
    A(f's_add_u32 s64, s64, {ns * 16384}')
    A('s_cmp_eq_u32 s3, 1')
    A(f's_cselect_b32 s65, {pd * 16384}, 0')
    A('s_sub_u32 s64, s64, s65')
    A('v_add_u32 v14, s64, v16')
    A(f's_mov_b64 exec, {(1 << (4 * npre)) - 1}')
    A(f'ds_write_b32 v23, v14 offset:{L_QT}')
    A('s_mov_b64 exec, -1')
    A(f's_mov_b32 s{SN}, {4 * npre}')
    A(f's_mov_b32 s83, {SPIN_MAX}')
    A.label('L_prdy')
    A('buffer_load_dword v14, v12, s[48:51], s36 offen offset:128 sc1')
    A('s_sub_u32 s83, s83, 1')
    A('s_waitcnt vmcnt(0)')
    A('v_readfirstlane_b32 s64, v14')
    A('s_cmp_eq_u32 s83, 0')
    A('s_cbranch_scc1 L_dend')
    A('s_cmp_eq_u32 s64, s79')
    A('s_cbranch_scc1 L_prdy_ok')
    A('s_sleep 64')
    A('s_branch L_prdy')
    A.label('L_prdy_ok')
    A(f's_lshl_b32 s{SOWN}, s32, 3')
    A(f's_mov_b32 s{SF}, s{SOWN}')
    A(f's_sub_u32 s{SOWNC}, 64, s{SOWN}')
    A('s_mov_b32 s62, 0x80808080')
    A('s_mov_b32 s63, 0x80808080')
    A(f's_mov_b32 s{SZ}, {first}')
    lds_wait('L_dw0', L_TK, 's_cmp_eq_u32', 0, 14, 12, 16)
    A.label('L_dloop')
    A(f's_sub_u32 s83, s{SN}, {theta}')
    lds_wait('L_dw', L_TK, 's_cmp_lt_u32', 's83', 14, 12, dsleep)
    A.label('L_drty')
    A(f's_mov_b32 s38, s{SZ}')
    A('s_mov_b32 s39, 0')
    A(f's_lshl_b64 s[38:39], s[38:39], s{SF}')
    A(f's_mov_b64 s[{SC}:{SC + 1}], s[38:39]')
    A(f's_atomic_add_x2 s[{SC}:{SC + 1}], s[60:61], 0 glc')
    A(f's_lshl_b32 s83, s{SF}, 17')
    A(f's_lshl_b32 s64, s{SN}, 2')
    A('v_add_u32 v15, s64, v23')
    A('s_waitcnt lgkmcnt(0)')
    A(f's_lshr_b64 s[64:65], s[{SC}:{SC + 1}], s{SF}')
    A('s_and_b32 s64, s64, 0xff')
    A('s_cmp_ge_u32 s64, 128')
    A('s_cbranch_scc1 L_dfail')
    A('s_lshl_b32 s65, s64, 12')
    A('s_add_u32 s65, s65, s83')
    A(f's_add_u32 s65, s65, {((ns + npre) * 16384 - (128 - LIM) * 4096) & 0xffffffff}')
    A('v_add_u32 v14, s65, v16')
    A('s_sub_u32 s65, 128, s64')
    A(f's_min_u32 s65, s65, s{SZ}')
    A('s_bfm_b64 exec, s65, 0')
    A(f'ds_write_b32 v15, v14 offset:{L_QT}')
    A('s_mov_b64 exec, -1')
    A(f's_add_u32 s{SN}, s{SN}, s65')
    A.label('L_dfail')
    A(f's_add_u32 s{SC}, s38, s{SC}')
    A(f's_addc_u32 s{SC + 1}, s39, s{SC + 1}')
    A(f's_andn2_b64 s[38:39], s[62:63], s[{SC}:{SC + 1}]')
    A(f's_lshr_b64 s[44:45], s[38:39], s{SOWN}')
    A(f's_lshl_b64 s[38:39], s[38:39], s{SOWNC}')
    A('s_or_b64 s[38:39], s[38:39], s[44:45]')
    A('s_cbranch_scc0 L_dend')
    A('s_ff1_i32_b64 s65, s[38:39]')
    A(f's_add_u32 s65, s65, s{SOWN}')
    A(f's_and_b32 s{SF}, s65, 56')
    A(f's_lshr_b64 s[38:39], s[{SC}:{SC + 1}], s{SF}')
    A('s_and_b32 s38, s38, 0xff')
    A(f's_cmp_lt_u32 s38, {128 - big}')
    A(f's_cselect_b32 s{SZ}, 4, {small}')
    if huge < 99:
        A(f's_cmp_lt_u32 s38, {128 - huge}')
        A(f's_cselect_b32 s{SZ}, 8, s{SZ}')
    A('s_cmp_ge_u32 s64, 128')
    A('s_cbranch_scc1 L_drty')
    A(f's_cmp_lt_u32 s{SN}, 160')
    A('s_cbranch_scc1 L_dloop')
    A.label('L_dend')
    A(f's_lshl_b32 s64, s{SN}, 2')
    A('v_add_u32 v15, s64, v23')
    A(f'v_mov_b32 v14, {KVOOB}')
    A('s_mov_b64 exec, 15')
    A(f'ds_write_b32 v15, v14 offset:{L_QT}')
    A('s_mov_b64 exec, -1')
    A(f'v_mov_b32 v14, s{SN}')
    A(f'ds_write_b32 v12, v14 offset:{L_EN}')
    A.label('L_nodisp')
    if wolate in (1, 2):
        lds_wait('L_ww0', L_TK, 's_cmp_eq_u32', 0, 14, 12, 32)
        A('s_add_u32 s65, s30, 1')
        A('s_and_b32 s65, s65, 3')
        if wolate == 2:
            A('s_mov_b32 s65, 3')
        A.label('L_ww')
        A(f'ds_read_b64 v[14:15], v12 offset:{L_TK}')
        A('s_waitcnt lgkmcnt(0)')
        A('v_readfirstlane_b32 s64, v14')
        A('v_readfirstlane_b32 s83, v15')
        A(f's_add_u32 s64, s64, {wooff}')
        A('s_cmp_eq_u32 s83, 0')
        A('s_cbranch_scc1 L_wws')
        A('s_add_u32 s83, s83, s65')
        A('s_cmp_gt_u32 s64, s83')
        A('s_cbranch_scc1 L_wwd')
        A.label('L_wws')
        A('s_sleep 1')
        A('s_branch L_ww')
        A.label('L_wwd')
        A('s_waitcnt vmcnt(0)')
        wo_loads(list(range(ne, 4)), A, 'b')
    else:
        A('s_waitcnt vmcnt(0) lgkmcnt(0)')
    A('s_barrier')
    if wolate == 3:
        wo_loads(list(range(ne, 4)), A, 'b')
    stampit(3)
    leakit(4, 0)

    P1, O, W = 200, 232, 236
    A('s_cmp_lg_u32 s30, 3')
    A('s_cbranch_scc1 L_ow')
    A(f's_mov_b32 s70, {SPIN_MAX}')
    def poll1(p):
        r = P1 + 8 * p
        A(f'buffer_load_dwordx4 v[{r}:{r + 3}], v20, s[48:51], s69 offen offset:{L1ML} sc1')
        A(f'buffer_load_dwordx4 v[{r + 4}:{r + 7}], v19, s[48:51], s74 offen sc1')
    assert np1 <= 4
    for p in range(np1 - 1):
        poll1(p)
        A(f's_sleep {ps1}')
    A.label('L_p1')
    for p in range(np1):
        poll1((p + np1 - 1) % np1)
        r = P1 + 8 * p
        A(f's_waitcnt vmcnt({2 * (np1 - 1)})')
        for t in range(4):
            A(f'v_xor_b32 v{O + t}, s78, v{r + 4 + t}')
        A(f'v_xor_b32 v17, s79, v{r + 1}')
        A(f'v_xor_b32 v18, s79, v{r + 3}')
        A(f'v_or3_b32 v14, v{O}, v{O + 1}, v{O + 2}')
        A(f'v_or_b32 v14, v14, v{O + 3}')
        A(f'v_mov_b32 v15, v{r}')
        A('v_and_b32 v14, 0xff, v14')
        A('v_or3_b32 v14, v14, v17, v18')
        A(f'v_mov_b32 v16, v{r + 2}')
        A('v_cmp_ne_u32 vcc, 0, v14')
        A('s_cbranch_vccz L_p1_done')
        A('s_mov_b64 exec, vcc')
    A('s_sub_u32 s70, s70, 1')
    A('s_cmp_lg_u32 s70, 0')
    A('s_cbranch_scc1 L_p1')
    A.label('L_p1_done')
    A('s_mov_b64 exec, -1')
    if stamp == 1:
        stampit(4)
    A(f'v_max_f32_dpp v17, v15, v15 quad_perm:[1,0,3,2] {DPP}')
    for m in ('quad_perm:[2,3,0,1]', 'row_half_mirror'):
        A.nop(2)
        A(f'v_max_f32_dpp v17, v17, v17 {m} {DPP}')
    A('v_sub_f32 v15, v15, v17')
    A('v_exp_f32 v15, v15')
    A.nop(1)
    A('v_mul_f32 v16, v15, v16')
    for t in range(4):
        A(f'v_mul_f32 v{O + t}, v15, v{O + t}')
    for m in ('quad_perm:[1,0,3,2]', 'quad_perm:[2,3,0,1]', 'row_half_mirror'):
        for q in (16, O, O + 1, O + 2, O + 3):
            A(f'v_add_f32_dpp v{q}, v{q}, v{q} {m} {DPP}')
    A('v_rcp_f32 v16, v16')
    A.nop(1)
    for t in range(4):
        A(f'v_mul_f32 v{O + t}, v{O + t}, v16')
    A(f'v_cvt_pk_bf16_f32 v{W}, v{O}, v{O + 1}')
    A(f'v_cvt_pk_bf16_f32 v{W + 1}, v{O + 2}, v{O + 3}')
    A(f'ds_write_b64 v22, v[{W}:{W + 1}] offset:{L_OW}')
    A(f'ds_write_b32 v12, v29 offset:{L_OF}')
    A('s_branch L_proj')
    A.label('L_ow')
    A(f'ds_read_b32 v14, v12 offset:{L_OF}')
    A(f'ds_read_b64 v[{W}:{W + 1}], v22 offset:{L_OW}')
    A('s_waitcnt lgkmcnt(0)')
    A('v_cmp_eq_u32 vcc, 0, v14')
    A('s_cbranch_vccnz L_ow')
    if stamp == 1:
        stampit(4)
    if wolate:
        A('s_waitcnt vmcnt(0)')
    A.label('L_proj')
    DX, DY, DZ = 240, 244, 248
    build_b(HB, W, 0)
    for t in range(4):
        if t < 3:
            build_b(HB + 4 * (t + 1), W + (t + 1) // 2, (t + 1) & 1)
        for bl, D in ((0, DX), (1, DY)):
            r = WO + bl * 16 + t * 4
            c = '0' if t == 0 else f'v[{D}:{D + 3}]'
            A(f'v_mfma_f32_16x16x32_bf16 v[{D}:{D + 3}], v[{r}:{r + 3}], v[{HB + 4 * t}:{HB + 4 * t + 3}], {c}')
    A(f's_cmp_lg_u32 s30, {W8}')
    A('s_cbranch_scc1 L_nob8a')
    for t in range(4):
        r = WO + 32 + t * 4
        c = '0' if t == 0 else f'v[{DZ}:{DZ + 3}]'
        A(f'v_mfma_f32_16x16x32_bf16 v[{DZ}:{DZ + 3}], v[{r}:{r + 3}], v[{HB + 4 * t}:{HB + 4 * t + 3}], {c}')
    A.label('L_nob8a')
    A.nop(6)
    for r in range(4):
        A(f'v_permlane32_swap_b32 v{DX + r}, v{DY + r}')
    A.nop(1)
    for r in range(4):
        A(f'v_add_f32_dpp v{DX + r}, v{DY + r}, v{DX + r} row_ror:8 {DPP}')
    for r in range(4):
        A(f'v_bfi_b32 v{DX + r}, s75, v28, v{DX + r}')
    A('s_mov_b32 exec_lo, 0x00ff00ff')
    A('s_mov_b32 exec_hi, 0x00ff00ff')
    A(f'buffer_store_dwordx4 v[{DX}:{DX + 3}], v21, s[48:51], s76 offen sc1')
    A('s_mov_b64 exec, -1')
    A(f's_cmp_lg_u32 s30, {W8}')
    A('s_cbranch_scc1 L_nob8b')
    for r in range(4):
        A(f'v_permlane32_swap_b32 v{DZ + r}, v{DY + r}')
    A.nop(1)
    for r in range(4):
        A(f'v_add_f32_dpp v{DZ + r}, v{DY + r}, v{DZ + r} row_ror:8 {DPP}')
    for r in range(4):
        A(f'v_bfi_b32 v{DZ + r}, s75, v28, v{DZ + r}')
    A('s_mov_b64 exec, 0x00ff00ff')
    A(f'buffer_store_dwordx4 v[{DZ}:{DZ + 3}], v21, s[48:51], s77 offen offset:2048 sc1')
    A('s_mov_b64 exec, -1')
    A.label('L_nob8b')
    if stamp == 1:
        stampit(5)
    A('s_cmp_lg_u32 s3, 2')
    A('s_cbranch_scc1 L_hend')
    P2 = 104
    A(f's_mov_b32 s70, {SPIN_MAX}')
    for k in range(4):
        A(f's_mov_b64 s[{60 + 2 * k}:{61 + 2 * k}], -1')
    assert np2 <= 4

    def poll2(p, masked):
        for k in range(4):
            r = P2 + 16 * p + 4 * k
            if masked and np2 == 1:
                A(f's_mov_b64 exec, s[{60 + 2 * k}:{61 + 2 * k}]')
                A(f's_cbranch_execz L_gs{k}')
            elif masked:
                A(f's_or_b64 exec, s[{60 + 2 * k}:{61 + 2 * k}], 1')
            A(f'buffer_load_dwordx4 v[{r}:{r + 3}], v31, s[48:51], s{GS[k]} offen sc1')
            if masked and np2 == 1:
                A.label(f'L_gs{k}')
    for p in range(np2 - 1):
        poll2(p, False)
        A(f's_sleep {ps2}')
    A.label('L_ga')
    for p in range(np2):
        poll2((p + np2 - 1) % np2, True)
        A(f's_waitcnt vmcnt({4 * (np2 - 1)})')
        for k in range(4):
            r = P2 + 16 * p + 4 * k
            A(f's_mov_b64 exec, s[{60 + 2 * k}:{61 + 2 * k}]')
            A(f's_cbranch_execz L_gc{p}_{k}')
            for q in range(4):
                A(f'v_xor_b32 v{G + 4 * k + q}, s78, v{r + q}')
            A(f'v_or3_b32 v17, v{G + 4 * k}, v{G + 4 * k + 1}, v{G + 4 * k + 2}')
            A(f'v_or_b32 v17, v17, v{G + 4 * k + 3}')
            A('v_and_b32 v17, 0xff, v17')
            A(f'v_cmp_ne_u32 s[{60 + 2 * k}:{61 + 2 * k}], 0, v17')
            A.label(f'L_gc{p}_{k}')
        A('s_or_b64 s[38:39], s[60:61], s[62:63]')
        A('s_or_b64 s[38:39], s[38:39], s[64:65]')
        A('s_or_b64 s[38:39], s[38:39], s[66:67]')
        A('s_cbranch_scc0 L_ga_done')
    A('s_sub_u32 s70, s70, 1')
    A('s_cmp_lg_u32 s70, 0')
    A('s_cbranch_scc1 L_ga')
    A.label('L_ga_done')
    A('s_mov_b64 exec, -1')
    if stamp == 1:
        stampit(2)
    for r in range(4):
        A(f'v_add_f32 v{G + r}, v{G + r}, v{G + 4 + r}')
        A(f'v_add_f32 v{G + 8 + r}, v{G + 8 + r}, v{G + 12 + r}')
    for r in range(4):
        A(f'v_add_f32 v{G + r}, v{G + r}, v{G + 8 + r}')
    A('s_lshl_b32 s64, s30, 8')
    A(f'v_permlane32_swap_b32 v{G}, v{G + 1}')
    A(f'v_permlane32_swap_b32 v{G + 2}, v{G + 3}')
    A(f'v_add_f32 v{G}, v{G}, v{G + 1}')
    A(f'v_add_f32 v{G + 2}, v{G + 2}, v{G + 3}')
    A('v_add_u32 v17, s64, v23')
    A.nop(1)
    A(f'v_permlane16_swap_b32 v{G}, v{G + 2}')
    A(f'v_add_f32 v{G}, v{G}, v{G + 2}')
    A.nop(2)
    A(f'v_add_f32_dpp v{G}, v{G}, v{G} row_ror:8 {DPP}')
    A(f'ds_write_b32 v17, v{G} offset:{L_P2}')
    A('s_mov_b64 exec, 1')
    A(f'ds_add_rtn_u32 v14, v12, v29 offset:{L_F2}')
    A('s_mov_b64 exec, -1')
    for w in range(4):
        A(f'ds_read_b32 v{G + 4 + w}, v23 offset:{L_P2 + 256 * w}')
    A('s_waitcnt lgkmcnt(0)')
    A('v_readfirstlane_b32 s64, v14')
    A(f'v_add_f32 v{G}, v{G + 4}, v{G + 5}')
    A(f'v_add_f32 v{G + 1}, v{G + 6}, v{G + 7}')
    A('s_cmp_lg_u32 s64, 3')
    A('s_cbranch_scc1 L_hend')
    A(f'v_add_f32 v{G}, v{G}, v{G + 1}')
    A(f'v_cvt_pk_bf16_f32 v{G}, 0, v{G}')
    A(f'v_add_f32 v{G}, v26, v{G}')
    A(f'v_cvt_pk_bf16_f32 v{G}, 0, v{G}')
    A(f'v_add_f32 v{G}, v{G}, v27')
    A(f'v_cvt_pk_bf16_f32 v{G}, v{G}, v{G}')
    A('s_mov_b32 exec_lo, 0x00ff00ff')
    A('s_mov_b32 exec_hi, 0x00ff00ff')
    A(f'buffer_store_short v{G}, v25, s[56:59], 0 offen {outpol}')
    A('s_cmp_lg_u32 s73, 0')
    A('s_cbranch_scc1 L_noep')
    A('v_mov_b32 v17, s79')
    A('s_lshl_b32 s64, s33, 2')
    A(f's_add_u32 s64, s64, {EPOCH}')
    A('s_mov_b64 exec, 1')
    A('buffer_store_dword v17, v12, s[48:51], s64 offen')
    A.label('L_noep')
    A('s_mov_b64 exec, -1')
    if stamp == 1:
        stampit(6)
    leakit(1)
    A.label('L_hend')
    if stamp:
        for _ in range(2): A('s_sleep 127')
    stamp_store()
    A.label('L_end')
    A('s_endpgm')
    if leak:
        A.L += ['.globl post_kernel', '.p2align 8', '.type post_kernel,@function', 'post_kernel:']
        A('s_cmp_ge_u32 s2, 1')
        A('s_cbranch_scc1 L_pend')
        A('s_load_dwordx2 s[4:5], s[0:1], 96')
        A('s_memrealtime s[8:9]')
        A(f's_mov_b32 s6, {EPOCH + 64}')
        A('s_waitcnt lgkmcnt(0)')
        A('s_load_dword s7, s[4:5], s6')
        A('s_waitcnt lgkmcnt(0)')
        A(f's_sub_u32 s7, s7, {lbase}')
        A('s_min_u32 s7, s7, 5000')
        A('s_mul_i32 s7, s7, 10')
        A.label('L_pspin')
        A('s_memrealtime s[10:11]')
        A('s_waitcnt lgkmcnt(0)')
        A('s_sub_u32 s10, s10, s8')
        A('s_cmp_lt_u32 s10, s7')
        A('s_cbranch_scc1 L_pspin')
        A.label('L_pend')
        A('s_endpgm')
    A.L.append('.section .rodata,"a"')
    A.L.append('.p2align 6')
    A.L.append(f'.amdhsa_kernel {KN}_kernel')
    A('.amdhsa_next_free_vgpr 256')
    A('.amdhsa_next_free_sgpr 102')
    A('.amdhsa_accum_offset 256')
    A('.amdhsa_group_segment_fixed_size 0')
    A('.amdhsa_kernarg_size 104')
    A('.amdhsa_user_sgpr_count 2')
    A('.amdhsa_user_sgpr_kernarg_segment_ptr 1')
    A('.amdhsa_system_sgpr_workgroup_id_x 1')
    A.L.append('.end_amdhsa_kernel')
    if leak:
        A.L += ['.p2align 6', '.amdhsa_kernel post_kernel', '  .amdhsa_next_free_vgpr 16', '  .amdhsa_next_free_sgpr 32', '  .amdhsa_accum_offset 16',
                '  .amdhsa_group_segment_fixed_size 0', '  .amdhsa_kernarg_size 104', '  .amdhsa_user_sgpr_count 2', '  .amdhsa_user_sgpr_kernarg_segment_ptr 1',
                '  .amdhsa_system_sgpr_workgroup_id_x 1', '.end_amdhsa_kernel']
    return A.text()


if __name__ == '__main__':
    out = sys.argv[1] if len(sys.argv) > 1 else 'cdna_kernels/' + KN + '.s'
    kw = {}
    for a in sys.argv[2:]:
        k, v = a.split('=')
        kw[k] = int(v) if v.lstrip('-').isdigit() else v
    open(out, 'w').write(gen(**kw))
    print('wrote', out)
```

```python
import struct, sys, math

KN = 'parallel_sum__gqa_block_cached__mixer_token_mlp__decode'


def f32(x):
    return '0x%08x' % struct.unpack('<I', struct.pack('<f', x))[0]


HEADER = open('cdna_kernels/' + KN + '.s.ref').read().split('; Override launch')[0]

LOG2E = 1.4426950408889634
S1 = 1280
L1ML = 1024
S2 = 2304
L2A = 256 * S1
POOLR = L2A + 256 * S2
SP = 768
QX = POOLR + 32 * SP
EPOCH = QX + 32768
WS_SIZE = EPOCH + 256
STAMP_OFF = 8 << 20
SPIN_MAX = 200000
KVOOB = 0x800000
L_Q = 0
L_FLAG, L_TAG, L_CNT, L_HF, L_TK, L_FIN, L_BC, L_OF, L_F2, L_EN, L_GO = 512, 516, 520, 524, 528, 548, 536, 540, 544, 532, 552
L_QT = 576
L_ZEND = 1280
L_BP = 1280
L_OW = 1792
L_P2 = 2304
L_XN = 3328
L_H = 5632
L_MG = 7936
L_WQ = 14336
L_SIZE = L_WQ + 73728


class Asm:
    def __init__(self):
        self.L = []

    def __call__(self, s):
        self.L.append('  ' + s)

    def label(self, s):
        self.L.append(s + ':')

    def nop(self, n):
        while n > 0:
            k = min(n, 16)
            self('s_nop %d' % (k - 1))
            n -= k

    def text(self):
        return '\n'.join(self.L) + '\n'


DPP = 'row_mask:0xf bank_mask:0xf'


def gen(kvpol='nt', wqpol='nt', wopol='nt', stamp=0, prog=0, infl=8, infl0=8, ns=60, npre=2, theta=2, big=12, small=2,
        qsleep=20, qdelay=127, qdelay2=40, bpol='', hpace=2, npoll=1, ps1=6, ps2=6, np1=2, np2=2, dsleep=1, warm=1, outpol='', leak=0, lbase=0, late=0, lead=2, whole=0, gate=4, free0=8, early=1, wolate=0, woearly=0, wooff=0, go=10, swz=1, ga2=1, st2=16384, prewr=0, pd=2, first=4, huge=99, cpf=0, kfirst=0):
    LIM = (64 - ns - npre) * 4
    assert 0 < LIM + 4 * pd <= 56
    A = Asm()
    A.L.append(HEADER.rstrip('\n'))
    if leak:
        A.L.append(f'; @launch kernel={KN}_kernel grid=(256,1,1) block=(512,1,1) lds={L_SIZE}')
        A.L.append('; @launch kernel=post_kernel grid=(1,1,1) block=(64,1,1) lds=0')
    else:
        A.L.append(f'; @launch grid=(256,1,1) block=(512,1,1) lds={L_SIZE}')
    A.L.append('.amdgcn_target "amdgcn-amd-amdhsa--gfx950"')
    A.L.append('.text')
    A.L.append(f'.globl {KN}_kernel')
    A.L.append('.p2align 8')
    A.L.append(f'.type {KN}_kernel,@function')
    A.label(f'{KN}_kernel')
    ws_size = (STAMP_OFF + 65536 + 131072) if stamp else WS_SIZE

    def stampit(k):
        if stamp:
            A(f's_memrealtime s[{84 + 2 * k}:{85 + 2 * k}]')

    def stamp_store():
        if not stamp:
            return
        A('s_waitcnt lgkmcnt(0) vmcnt(0)')
        A('s_getreg_b32 s64, hwreg(HW_REG_XCC_ID)')
        A('s_lshl_b32 s65, s2, 3')
        A('s_add_u32 s65, s65, s30')
        A('s_lshl_b32 s65, s65, 5')
        A(f's_add_u32 s65, s65, {STAMP_OFF}')
        A('s_mov_b64 exec, 1')
        A('v_mov_b32 v4, 0')
        for k in range(7):
            A(f'v_mov_b32 v5, s{84 + 2 * k}')
            A(f'buffer_store_dword v5, v4, s[48:51], s65 offen offset:{4 * k}')
        A('v_mov_b32 v5, s64')
        A(f'buffer_store_dword v5, v4, s[48:51], s65 offen offset:28')
        A('s_waitcnt vmcnt(0)')

    lk = [0]

    def leakit(k, wave=None):
        if leak != k:
            return
        lk[0] += 1
        A('s_cmp_lg_u32 s2, 2')
        A(f's_cbranch_scc1 L_lk{lk[0]}')
        if wave is not None:
            A(f's_cmp_lg_u32 s30, {wave}')
            A(f's_cbranch_scc1 L_lk{lk[0]}')
        A('s_memrealtime s[96:97]')
        A('s_waitcnt lgkmcnt(0)')
        A('s_sub_u32 s96, s96, s100')
        A('v_mov_b32 v254, s96')
        A('v_mov_b32 v31, 0')
        A(f's_mov_b32 s96, {EPOCH + 64}')
        A('s_mov_b64 exec, 1')
        A('buffer_store_dword v254, v31, s[48:51], s96 offen')
        A('s_mov_b64 exec, -1')
        A('s_waitcnt vmcnt(0)')
        A.label(f'L_lk{lk[0]}')

    SEL = 40

    def make_sel():
        A('v_and_b32 v4, 7, v2')
        A('v_lshrrev_b32 v5, 1, v4')
        A('v_and_b32 v6, 1, v4')
        A('v_mov_b32 v7, 0x0c0c0100')
        A('v_mov_b32 v8, 0x01000c0c')
        A('v_cmp_eq_u32 vcc, 1, v6')
        A('v_mov_b32 v9, 0x0c0c0302')
        A('v_mov_b32 v10, 0x03020c0c')
        A('v_cndmask_b32 v7, v7, v8, vcc')
        A('v_cndmask_b32 v9, v9, v10, vcc')
        A('v_mov_b32 v8, 0x0c0c0c0c')
        for d in range(4):
            A(f'v_cmp_eq_u32 vcc, {d}, v5')
            A.nop(2)
            A(f'v_cndmask_b32 v{SEL + d}, v8, v7, vcc')
            A(f'v_cndmask_b32 v{SEL + 4 + d}, v8, v9, vcc')

    def build_b(dst, src, odd):
        for d in range(4):
            A(f'v_perm_b32 v{dst + d}, v{src}, v{src}, v{SEL + 4 * odd + d}')

    def swapred(sw, op, v, t):
        A(f'v_mov_b32 v{t}, v{v}')
        A.nop(2)
        A(f'{sw} v{v}, v{t}')
        A(f'{op} v{v}, v{v}, v{t}')

    def allred_g(op, v, t):
        swapred('v_permlane16_swap_b32', op, v, t)
        swapred('v_permlane32_swap_b32', op, v, t)

    def allred_row(v):
        for m in ('quad_perm:[1,0,3,2]', 'quad_perm:[2,3,0,1]', 'row_half_mirror', 'row_mirror'):
            A.nop(2)
            A(f'v_add_f32_dpp v{v}, v{v}, v{v} {m} {DPP}')

    def lds_wait(lab, off, cmp, val, vt, vz, sleep):
        A.label(lab)
        A(f'ds_read_b32 v{vt}, v{vz} offset:{off}')
        A('s_waitcnt lgkmcnt(0)')
        A(f'v_readfirstlane_b32 s64, v{vt}')
        A('s_nop 0')
        A(f'{cmp} s64, {val}')
        if sleep:
            A(f's_cbranch_scc0 {lab}_ok')
            A(f's_sleep {sleep}')
            A(f's_branch {lab}')
            A.label(lab + '_ok')
        else:
            A(f's_cbranch_scc1 {lab}')

    if kfirst:
        A('s_load_dwordx16 s[4:19], s[0:1], 0')
    A('s_cmp_ge_u32 s2, 256')
    A('s_cbranch_scc1 L_end')
    if stamp:
        for k in range(7):
            A(f's_mov_b64 s[{84 + 2 * k}:{85 + 2 * k}], 0')
    stampit(0)
    if leak:
        A('s_memrealtime s[100:101]')
    if not kfirst:
        A('s_load_dwordx16 s[4:19], s[0:1], 0')
        A('s_load_dwordx8 s[20:27], s[0:1], 64')
        A('s_load_dwordx2 s[28:29], s[0:1], 96')
    A('v_lshrrev_b32 v1, 6, v0')
    A('v_and_b32 v2, 15, v0')
    A('v_readfirstlane_b32 s30, v1')
    A('v_and_b32 v1, 63, v0')
    A('v_lshrrev_b32 v3, 4, v1')
    A('s_lshr_b32 s31, s2, 3')
    A('s_and_b32 s32, s2, 7')
    A(f's_mov_b32 s50, {ws_size}')
    A('s_mov_b32 s51, 0x20000')
    A('s_cmp_lt_u32 s30, 4')
    A('s_cbranch_scc1 L_helper')

    RING, Q, BS, S, ACC, PK = 64, 48, 32, 24, 20, 16
    VK, VV, VZ, VONE = 12, 13, 14, 15
    M2, LS, AL, T0, T1, PUB = 4, 5, 6, 7, 8, 9
    SOFF = (52, 53, 54)
    SSTAT, SCNT, SDONE, STAG = 38, 39, 55, 56
    A('s_sub_u32 s37, s30, 4')
    A('s_lshl_b32 s64, s31, 23')
    A(f's_lshl_b32 s{SSTAT}, s32, 20')
    A('s_lshl_b32 s65, s37, 12')
    A(f's_add_u32 s{SSTAT}, s{SSTAT}, s65')
    A(f's_mov_b32 s42, {KVOOB}')
    A('s_mov_b32 s43, 0x20000')
    A(f's_mov_b32 s46, {KVOOB}')
    A('s_mov_b32 s47, 0x20000')
    A(f'v_and_b32 v{T0}, 3, v2')
    A(f'v_lshlrev_b32 v{T0}, 10, v{T0}')
    A(f'v_lshrrev_b32 v{T1}, 2, v2')
    A(f'v_lshl_add_u32 v{T0}, v{T1}, 8, v{T0}')
    A(f'v_lshl_add_u32 v{VK}, v3, 4, v{T0}')
    A(f'v_lshlrev_b32 v{VV}, 4, v1')
    A('s_waitcnt lgkmcnt(0)')
    A('s_add_u32 s40, s6, s64')
    A('s_addc_u32 s41, s7, 0')
    A('s_add_u32 s44, s8, s64')
    A('s_addc_u32 s45, s9, 0')
    if kfirst:
        A('s_load_dwordx2 s[48:49], s[0:1], 96')
    else:
        A('s_mov_b32 s48, s28')
        A('s_mov_b32 s49, s29')
    if early:
        A('s_sub_u32 s65, s32, s31')
        A('s_and_b32 s65, s65, 3')
        A('s_cmp_eq_u32 s65, 0')
        A('s_cbranch_scc0 L_nobx0')
        A('s_barrier')
        A.label('L_nobx0')
    else:
        A('s_barrier')

    def kloads(slot, so):
        for s in range(4):
            r = RING + slot * 32 + s * 4
            A(f'buffer_load_dwordx4 v[{r}:{r + 3}], v{VK}, s[40:43], s{so} offen offset:{s * 64} {kvpol}')

    def vloads(slot, so):
        for s in range(4):
            r = RING + slot * 32 + 16 + s * 4
            A(f'buffer_load_dwordx4 v[{r}:{r + 3}], v{VV}, s[44:47], s{so} offen offset:{s * 1024} {kvpol}')

    order0 = (0, 2, 3, 1, 4, 5)
    n = 0
    for slot in order0:
        for f in (kloads, vloads):
            if n + 4 > max(infl0, free0):
                A(f's_waitcnt vmcnt({infl0 - 4})')
            if prog == 3:
                A(f's_memrealtime s[{72 + (n // 4 % 6) * 2}:{73 + (n // 4 % 6) * 2}]')
            f(slot, SSTAT)
            n += 4
            if n == 4 * go:
                A(f'ds_write_b32 v{VZ}, v{VONE} offset:{L_GO}')
            if prog == 3 and n in (24, 48):
                A('s_waitcnt lgkmcnt(0)')
                for z in range(6):
                    A(f'v_writelane_b32 v10, s{72 + 2 * z}, {n // 4 - 6 + z}')
                A('s_mov_b32 s71, 12')
            if n == 8 and early:
                A('s_cbranch_scc1 L_nobx')
                A('s_barrier')
                A.label('L_nobx')
            if n == 8:
                make_sel()
                for r in range(4):
                    A(f'v_mov_b32 v{ACC + r}, 0')
                A(f'v_mov_b32 v{LS}, 0')
                A(f'v_mov_b32 v{M2}, {f32(-3.0e38)}')
                A(f'v_mov_b32 v{VZ}, 0')
                A(f'v_mov_b32 v{VONE}, 1')
                A(f's_mov_b32 s66, {f32(128 ** -0.5)}')
                A(f's_mov_b32 s67, {f32(LOG2E)}')
                A(f'v_lshrrev_b32 v{T0}, 3, v2')
                A(f'v_lshl_add_u32 v{T0}, v{T0}, 2, v3')
                A(f'v_lshlrev_b32 v{T0}, 7, v{T0}')
                A(f'v_and_b32 v{T1}, 7, v2')
                A(f'v_lshl_add_u32 v{PUB}, v{T1}, 4, v{T0}')
                A('v_lshlrev_b32 v30, 1, v2')
                A(f's_mul_i32 s68, s2, {S1}')
                A('s_sub_u32 s65, s32, s31')
                A('s_and_b32 s65, s65, 3')
                A('s_cmp_eq_u32 s65, 0')
                A(f's_cselect_b32 s{SCNT}, {ns - 6 - pd}, {ns - 6}')
                A(f's_mov_b32 s{SDONE}, 0')
                A('s_mov_b32 s71, 0')
                A('v_lshlrev_b32 v11, 3, v1')
                A('s_lshl_b32 s64, s37, 9')
                A('v_add_u32 v18, s64, v11')
                A('s_lshl_b32 s64, s37, 10')
                A(f'v_add_u32 v19, s64, v{VV}')
                A(f'v_lshrrev_b32 v{T0}, 3, v2')
                A(f'v_lshlrev_b32 v{T0}, 8, v{T0}')
                A(f'v_lshl_add_u32 v{T0}, v3, 4, v{T0}')
        A(f's_add_u32 s{SSTAT}, s{SSTAT}, 0x4000')
    stampit(1)
    A.label('L_qw')
    A(f'ds_read_b64 v[{PK}:{PK + 1}], v{VZ} offset:{L_FLAG}')
    for s in range(4):
        A(f'ds_read_b128 v[{Q + 4 * s}:{Q + 4 * s + 3}], v{T0} offset:{L_Q + 64 * s}')
    A('s_waitcnt lgkmcnt(0)')
    A(f'v_readfirstlane_b32 s64, v{PK}')
    A(f'v_readfirstlane_b32 s{STAG}, v{PK + 1}')
    A('s_cmp_eq_u32 s64, 0')
    A('s_cbranch_scc1 L_qw')
    stampit(2)
    leakit(2, 4)

    def qk(slot, wk):
        A(f's_waitcnt vmcnt({wk})')
        for s in range(4):
            k = RING + slot * 32 + s * 4
            c = '0' if s == 0 else f'v[{S}:{S + 3}]'
            A(f'v_mfma_f32_16x16x32_bf16 v[{S}:{S + 3}], v[{k}:{k + 3}], v[{Q + 4 * s}:{Q + 4 * s + 3}], {c}')

    def softmax_pv(slot, wv, mid=None, prepv=None):
        for n in range(4):
            A(f'v_cvt_pk_bf16_f32 v{S + n}, 0, v{S + n}')
        for n in range(4):
            A(f'v_mul_f32 v{S + n}, s66, v{S + n}')
        for n in range(4):
            A(f'v_cvt_pk_bf16_f32 v{S + n}, 0, v{S + n}')
        A(f'v_max3_f32 v{T0}, v{S}, v{S + 1}, v{S + 2}')
        A(f'v_max_f32 v{T0}, v{T0}, v{S + 3}')
        allred_g('v_max_f32', T0, T1)
        A(f'v_mul_f32 v{T0}, s67, v{T0}')
        A(f'v_max_f32 v{T0}, v{T0}, v{M2}')
        A(f'v_sub_f32 v{AL}, v{M2}, v{T0}')
        A(f'v_mov_b32 v{M2}, v{T0}')
        A(f'v_exp_f32 v{AL}, v{AL}')
        for n in range(4):
            A(f'v_fma_f32 v{S + n}, v{S + n}, s67, -v{M2}')
        for n in range(4):
            A(f'v_exp_f32 v{S + n}, v{S + n}')
        for r in range(4):
            A(f'v_mul_f32 v{ACC + r}, v{AL}, v{ACC + r}')
        A(f'v_cvt_pk_bf16_f32 v{PK}, v{S}, v{S + 1}')
        A(f'v_cvt_pk_bf16_f32 v{PK + 1}, v{S + 2}, v{S + 3}')
        if mid:
            mid()
        build_b(BS, PK, 0)
        A(f'v_fma_f32 v{LS}, v{LS}, v{AL}, v{S}')
        A(f'v_add_f32 v{T0}, v{S + 1}, v{S + 2}')
        for n in range(4):
            if n + 1 < 4:
                build_b(BS + 4 * ((n + 1) & 1), PK + (n + 1) // 2, (n + 1) & 1)
            else:
                A(f'v_add_f32 v{LS}, v{LS}, v{S + 3}')
                A(f'v_add_f32 v{LS}, v{LS}, v{T0}')
            if prepv is None:
                A(f's_waitcnt vmcnt({wv + 3 - n})')
            elif n == 0:
                prepv()
            v = RING + slot * 32 + 16 + n * 4
            b = BS + 4 * (n & 1)
            A(f'v_mfma_f32_16x16x32_bf16 v[{ACC}:{ACC + 3}], v[{v}:{v + 3}], v[{b}:{b + 3}], v[{ACC}:{ACC + 3}]')

    def static_tile(so):
        A(f's_mov_b32 s{so}, s{SSTAT}')
        A(f's_add_u32 s{SSTAT}, s{SSTAT}, 0x4000')
        A(f's_sub_u32 s{SCNT}, s{SCNT}, 1')

    outst = []
    for slot in order0:
        outst += [('K', slot, 0)] * 4 + [('V', slot, 0)] * 4

    def younger(tag):
        last = max(i for i, t in enumerate(outst) if t == tag)
        return len(outst) - 1 - last

    for slot in order0:
        qk(slot, younger(('K', slot, 0)))
        if slot < 2:
            static_tile(SOFF[slot])
            A(f's_waitcnt vmcnt({infl - 4})')
            kloads(slot, SOFF[slot])
            outst += [('K', slot, 1)] * 4
        else:
            A.nop(8)
        softmax_pv(slot, younger(('V', slot, 0)))
        if slot == 0 or (slot == 1 and lead == 2):
            A(f's_waitcnt vmcnt({infl - 4})')
            vloads(slot, SOFF[slot])
            outst += [('V', slot, 1)] * 4
    if lead == 3:
        assert younger(('K', 0, 1)) == 8
    else:
        qk(0, younger(('K', 0, 1)))
        static_tile(SOFF[0])
        A.nop(5)
        softmax_pv(0, younger(('V', 0, 1)))

    TK1, TK2 = 28, 29
    A.label('L_sloop')
    if leak == 3:
        A(f's_cmp_lg_u32 s{SCNT}, {ns - 8 - 24}')
        A('s_cbranch_scc1 L_lkx')
        leakit(3, 4)
        A.label('L_lkx')
    if prog == 1:
        A('s_memrealtime s[98:99]')
        A('s_lshr_b32 m0, s71, 1')
        A('s_add_u32 s71, s71, 1')
        A('s_waitcnt lgkmcnt(0)')
        A('v_writelane_b32 v10, s98, m0')
    def prog2(k, so):
        if prog in (2, 3):
            if prog == 2:
                A(f's_cmp_gt_u32 s{SCNT}, 5')
            else:
                A('s_cmp_gt_u32 s71, 29')
            A(f's_cbranch_scc1 L_pg{k}')
            A(f's_cmp_eq_u32 s{so}, {KVOOB}')
            A(f's_cbranch_scc1 L_pg{k}')
            A('s_memrealtime s[98:99]')
            A('s_mov_b32 m0, s71')
            A('s_add_u32 s71, s71, 1')
            A('s_waitcnt lgkmcnt(0)')
            A('v_writelane_b32 v10, s98, m0')
            A.label(f'L_pg{k}')

    for k in ((1, 0) if lead == 2 else ()):
        so, sn = SOFF[k], SOFF[1 - k]
        if late:
            A(f's_waitcnt vmcnt({gate})')
        A(f's_cmp_lg_u32 s{sn}, 0')
        A(f's_cbranch_scc1 L_iss{k}')
        A('s_mov_b64 exec, 1')
        if late:
            A(f'ds_add_rtn_u32 v{TK1}, v{VZ}, v{VONE} offset:{L_TK}')
        A('s_waitcnt lgkmcnt(0)')
        A(f'v_lshlrev_b32 v{TK1}, 2, v{TK1}')
        A.label(f'L_qt{k}')
        A(f'ds_read_b32 v{TK2}, v{TK1} offset:{L_QT}')
        A('s_waitcnt lgkmcnt(0)')
        A(f'v_readfirstlane_b32 s64, v{TK2}')
        A('s_nop 0')
        A('s_cmp_eq_u32 s64, 0')
        A(f's_cbranch_scc1 L_qt{k}')
        A('s_mov_b64 exec, -1')
        A(f's_mov_b32 s{sn}, s64')
        A.label(f'L_iss{k}')
        A(f's_waitcnt vmcnt({gate})')
        prog2(k, sn)
        kloads(1 - k, sn)
        if whole:
            vloads(1 - k, sn)
        qk(k, 12 if whole else 8)
        A(f's_cmp_eq_u32 s{SCNT}, 0')
        A(f's_cselect_b32 s{so}, 0, s{SSTAT}')
        A('s_cselect_b32 s64, 0, 1')
        A(f's_sub_u32 s{SCNT}, s{SCNT}, s64')
        A(f's_add_u32 s{SSTAT}, s{SSTAT}, 0x4000')
        A.nop(3)

        def prepv():
            A(f's_cmp_eq_u32 s{sn}, {KVOOB}')
            A('s_waitcnt vmcnt(4)')
            A(f's_cbranch_scc1 L_pv{k}')
            vloads(1 - k, sn)
            if not late:
                A(f's_cmp_lg_u32 s{so}, 0')
                A(f's_cbranch_scc1 L_pv{k}')
                A('s_mov_b64 exec, 1')
                A(f'ds_add_rtn_u32 v{TK1}, v{VZ}, v{VONE} offset:{L_TK}')
                A('s_mov_b64 exec, -1')
            A.label(f'L_pv{k}')
        def midw():
            if not late:
                A(f's_cmp_eq_u32 s{sn}, {KVOOB}')
                A(f's_cbranch_scc1 L_pv{k}')
                A(f's_cmp_lg_u32 s{so}, 0')
                A(f's_cbranch_scc1 L_pv{k}')
                A('s_mov_b64 exec, 1')
                A(f'ds_add_rtn_u32 v{TK1}, v{VZ}, v{VONE} offset:{L_TK}')
                A('s_mov_b64 exec, -1')
                A.label(f'L_pv{k}')
        if whole:
            softmax_pv(k, 8, midw)
        else:
            softmax_pv(k, 0, None, prepv)
        A(f's_cmp_eq_u32 s{sn}, {KVOOB}')
        A('s_cbranch_scc1 L_sdone')
    for k in (range(2) if lead == 3 else ()):
        so, sn = SOFF[k], SOFF[1 - k]
        qk(k, 8)
        vloads(1 - k, sn)
        A(f's_cmp_eq_u32 s{SCNT}, 0')
        A(f's_cbranch_scc1 L_dyn{k}')
        static_tile(so)
        A(f's_branch L_sm{k}')
        A.label(f'L_dyn{k}')
        A(f's_mov_b32 s{so}, {KVOOB}')
        A(f's_cmp_eq_u32 s{sn}, {KVOOB}')
        A(f's_cbranch_scc1 L_sm{k}')
        A(f's_mov_b32 s{so}, 0')
        if not late:
            A('s_mov_b64 exec, 1')
            A(f'ds_add_rtn_u32 v{TK1}, v{VZ}, v{VONE} offset:{L_TK}')
            A('s_mov_b64 exec, -1')
        A.label(f'L_sm{k}')

        def mid():
            A(f's_cmp_lg_u32 s{so}, 0')
            A(f's_cbranch_scc1 L_md{k}')
            if late:
                A('s_waitcnt vmcnt(11)')
                A('s_mov_b64 exec, 1')
                A(f'ds_add_rtn_u32 v{TK1}, v{VZ}, v{VONE} offset:{L_TK}')
                A('s_mov_b64 exec, -1')
            else:
                A('s_waitcnt lgkmcnt(0)')
                A(f'v_lshlrev_b32 v{TK1}, 2, v{TK1}')
                A('s_mov_b64 exec, 1')
                A(f'ds_read_b32 v{TK2}, v{TK1} offset:{L_QT}')
                A('s_mov_b64 exec, -1')
            A.label(f'L_md{k}')
        softmax_pv(k, 8, mid)
        A(f's_cmp_eq_u32 s{sn}, {KVOOB}')
        A('s_cbranch_scc1 L_sdone')
        A(f's_cmp_lg_u32 s{so}, 0')
        A(f's_cbranch_scc1 L_iss{k}')
        A('s_mov_b64 exec, 1')
        if late:
            A('s_waitcnt lgkmcnt(0)')
            A(f'v_lshlrev_b32 v{TK1}, 2, v{TK1}')
            A(f'ds_read_b32 v{TK2}, v{TK1} offset:{L_QT}')
        A.label(f'L_qt{k}')
        A('s_waitcnt lgkmcnt(0)')
        A(f'v_readfirstlane_b32 s64, v{TK2}')
        A(f'ds_read_b32 v{TK2}, v{TK1} offset:{L_QT}')
        A('s_cmp_eq_u32 s64, 0')
        A(f's_cbranch_scc1 L_qt{k}')
        A('s_mov_b64 exec, -1')
        A(f's_mov_b32 s{so}, s64')
        A.label(f'L_iss{k}')
        if prog == 2:
            A(f's_cmp_gt_u32 s{SCNT}, 5')
            A(f's_cbranch_scc1 L_pg{k}')
            A(f's_cmp_eq_u32 s{so}, {KVOOB}')
            A(f's_cbranch_scc1 L_pg{k}')
            A('s_memrealtime s[98:99]')
            A('s_mov_b32 m0, s71')
            A('s_add_u32 s71, s71, 1')
            A('s_waitcnt lgkmcnt(0)')
            A('v_writelane_b32 v10, s98, m0')
            A.label(f'L_pg{k}')
        kloads(k, so)
    A('s_branch L_sloop')

    A.label('L_sdone')
    stampit(3)
    allred_g('v_add_f32', LS, T1)
    A(f'ds_write_b64 v18, v[{M2}:{M2 + 1}] offset:{L_MG + 4096}')
    A(f'ds_write_b128 v19, v[{ACC}:{ACC + 3}] offset:{L_MG}')
    A('s_mov_b64 exec, 1')
    A(f'ds_add_rtn_u32 v{T1}, v{VZ}, v{VONE} offset:{L_FIN}')
    A('s_mov_b64 exec, -1')
    for w in range(4):
        A(f'ds_read_b64 v[{BS + 2 * w}:{BS + 2 * w + 1}], v11 offset:{L_MG + 4096 + 512 * w}')
    for w in range(4):
        A(f'ds_read_b128 v[{Q + 4 * w}:{Q + 4 * w + 3}], v{VV} offset:{L_MG + 1024 * w}')
    A(f's_and_b32 s64, s{STAG}, 0xff')
    A('s_movk_i32 s65, 0xff')
    A(f'v_mov_b32 v{PK}, s64')
    A(f'v_mov_b32 v{T0}, s{STAG}')
    A('s_waitcnt lgkmcnt(4)' if not stamp else 's_waitcnt lgkmcnt(0)')
    A(f'v_readfirstlane_b32 s64, v{T1}')
    A(f'v_max_f32 v{M2}, v{BS}, v{BS + 2}')
    A('s_cmp_lg_u32 s64, 3')
    A('s_cbranch_scc1 L_send')
    A(f'v_max3_f32 v{M2}, v{M2}, v{BS + 4}, v{BS + 6}')
    for w in range(4):
        A(f'v_sub_f32 v{S + w}, v{BS + 2 * w}, v{M2}')
    for w in range(4):
        A(f'v_exp_f32 v{S + w}, v{S + w}')
    A(f'v_mov_b32 v{LS}, s{STAG}')
    A(f'v_mul_f32 v{AL}, v{S}, v{BS + 1}')
    for w in range(1, 4):
        A(f'v_fmac_f32 v{AL}, v{S + w}, v{BS + 2 * w + 1}')
    A('s_mov_b64 exec, 0x0101')
    A(f'buffer_store_dwordx4 v[{M2}:{M2 + 3}], v30, s[48:51], s68 offen offset:{L1ML} sc1')
    A('s_mov_b64 exec, -1')
    A('s_waitcnt lgkmcnt(0)')
    for r in range(4):
        A(f'v_mul_f32 v{ACC + r}, v{S}, v{Q + r}')
    for w in range(1, 4):
        for r in range(4):
            A(f'v_fmac_f32 v{ACC + r}, v{S + w}, v{Q + 4 * w + r}')
    for r in range(4):
        A(f'v_bfi_b32 v{ACC + r}, s65, v{PK}, v{ACC + r}')
    A(f'buffer_store_dwordx4 v[{ACC}:{ACC + 3}], v{PUB}, s[48:51], s68 offen sc1')
    stampit(4)
    if stamp:
        A.label('L_send')
        A('s_barrier')
        for _ in range(2): A('s_sleep 127')
    else:
        A('s_barrier')
        A.label('L_send')
    if prog:
        A('s_mov_b32 m0, 31')
        A('s_nop 0')
        if prog == 1:
            A('s_lshr_b32 s71, s71, 1')
        A('v_writelane_b32 v10, s71, m0')
        A('s_lshl_b32 s65, s2, 2')
        A('s_add_u32 s65, s65, s37')
        A('s_lshl_b32 s65, s65, 7')
        A(f's_add_u32 s65, s65, {STAMP_OFF + 65536}')
        A('v_lshlrev_b32 v11, 2, v1')
        A('s_mov_b32 exec_hi, 0')
        A('buffer_store_dword v10, v11, s[48:51], s65 offen')
        A('s_mov_b64 exec, -1')
    stamp_store()
    A('s_endpgm')

    A.label('L_helper')
    if kfirst:
        A('s_load_dwordx8 s[20:27], s[0:1], 64')
        A('s_load_dwordx2 s[28:29], s[0:1], 96')
    A('s_setprio 2')
    HB = 48
    X, E = 64, 80
    A('v_lshlrev_b32 v11, 4, v1')
    A('v_mov_b32 v12, 0')
    A('v_lshlrev_b32 v23, 2, v1')
    for z in range(L_FLAG, L_ZEND, 256):
        A(f'ds_write_b32 v23, v12 offset:{z}')
    A('s_lshr_b32 s33, s31, 4')
    A('s_and_b32 s34, s31, 15')
    A('s_and_b32 s35, s2, 127')
    A('s_sub_u32 s64, s32, s31')
    A('s_and_b32 s64, s64, 7')
    A('s_lshr_b32 s65, s64, 2')
    A('s_lshl_b32 s72, s31, 1')
    A('s_add_u32 s72, s72, s65')
    A('s_lshl_b32 s73, s65, 4')
    A('s_add_u32 s73, s73, s34')
    A('s_and_b32 s64, s64, 3')
    A('s_cmp_lt_u32 s73, 18')
    A('s_cselect_b32 s3, 2, 0')
    A('s_cmp_eq_u32 s64, 2')
    A('s_cselect_b32 s3, s3, 0')
    A('s_cmp_eq_u32 s64, 0')
    A('s_cselect_b32 s3, 1, s3')
    A('v_mul_u32_u24 v13, 36, v1')
    A('s_mov_b32 s42, 2304')
    A('s_mov_b32 s43, 0x20000')
    A(f's_mov_b32 s46, {576 * 8192}')
    A('s_mov_b32 s47, 0x20000')
    A('v_lshrrev_b32 v14, 3, v1')
    A('v_lshlrev_b32 v14, 13, v14')
    A('v_and_b32 v15, 7, v1')
    if swz:
        A('v_lshrrev_b32 v16, 3, v1')
        A('v_and_b32 v16, 2, v16')
        A('v_xor_b32 v15, v15, v16')
    A('v_lshl_add_u32 v14, v15, 4, v14')
    A('v_xor_b32 v31, 64, v14')
    A(f's_mul_i32 s38, s30, {144 * 8192}')
    A('s_lshl_b32 s64, s72, 7')
    A('s_add_u32 s38, s38, s64')
    A(f's_mul_i32 s37, s30, {144 * 128}')
    A(f's_add_u32 s37, s37, {L_WQ}')
    A('s_lshl_b32 s64, s30, 2')
    A('s_add_u32 s64, s64, s3')
    A('s_cmp_eq_u32 s64, 2')
    A('s_cselect_b32 s70, 1, 0')
    A('s_cmp_eq_u32 s3, 1')
    A('s_cselect_b32 s70, 1, s70')
    A('s_waitcnt lgkmcnt(0)')
    A('s_mov_b32 s48, s28')
    A('s_mov_b32 s49, s29')
    A('s_mov_b32 s40, s4')
    A('s_mov_b32 s41, s5')
    A('s_mov_b32 s44, s10')
    A('s_mov_b32 s45, s11')
    A(f's_mov_b32 s64, {EPOCH}')
    A('s_load_dwordx2 s[78:79], s[28:29], s64')
    A('s_cmp_eq_u32 s70, 0')
    A('s_cbranch_scc1 L_h_x')
    A(f'buffer_load_dwordx4 v[{X}:{X + 3}], v13, s[40:43], 0 offen')
    A(f'buffer_load_dwordx4 v[{X + 4}:{X + 7}], v13, s[40:43], 0 offen offset:16')
    A(f'buffer_load_dword v{X + 8}, v13, s[40:43], 0 offen offset:32')
    A('s_cmp_lg_u32 s3, 1')
    A('s_cbranch_scc1 L_h_x')
    for n in range(18):
        A('s_mov_b32 m0, s37')
        A('s_add_u32 s37, s37, 1024')
        A(f'buffer_load_dwordx4 v{31 if (swz and n & 1) else 14}, s[44:47], s38 offen {wqpol} lds')
        A('s_add_u32 s38, s38, 0x10000')
    A.label('L_h_x')
    A('s_barrier')
    if cpf:
        A('s_cmp_lg_u32 s30, 3')
        A('s_cbranch_scc1 L_nocpf')
        A(f's_cmp_ge_u32 s31, {cpf}')
        A('s_cbranch_scc1 L_nocpf')
        A('s_cmp_eq_u32 s3, 1')
        A('s_cbranch_scc1 L_nocpf')
        A('s_getpc_b64 s[64:65]')
        A.label('L_pcref')
        A(f's_sub_u32 s64, s64, L_pcref-{KN}_kernel')
        A('s_subb_u32 s65, s65, 0')
        A('v_lshlrev_b32 v32, 7, v1')
        A(f'v_min_u32 v33, L_end-{KN}_kernel, v32')
        A('global_load_dword v36, v33, s[64:65]')
        for n in range(1, 3):
            A(f'v_add_u32 v32, 0x2000, v32')
            A(f'v_min_u32 v{33 + n}, L_end-{KN}_kernel, v32')
            A(f'global_load_dword v{36 + n}, v{33 + n}, s[64:65]')
        A.label('L_nocpf')
    A('s_cmp_eq_u32 s70, 0')
    A('s_cbranch_scc1 L_h_noln')

    def layernorm(src, dst):
        D = E + 18
        a, b, c = E + 36, E + 37, E + 38
        for k in range(9):
            A(f'v_lshlrev_b32 v{E + 2 * k}, 16, v{src + k}')
            A(f'v_and_b32 v{E + 2 * k + 1}, 0xffff0000, v{src + k}')
        A(f'v_add_f32 v{a}, v{E}, v{E + 1}')
        A(f'v_add_f32 v{b}, v{E + 2}, v{E + 3}')
        for n in range(4, 18, 2):
            A(f'v_add_f32 v{a}, v{a}, v{E + n}')
            A(f'v_add_f32 v{b}, v{b}, v{E + n + 1}')
        A(f'v_add_f32 v{a}, v{a}, v{b}')
        allred_row(a)
        swapred('v_permlane16_swap_b32', 'v_add_f32', a, b)
        A(f'v_mul_f32 v{a}, {f32(1.0 / 576)}, v{a}')
        for n in range(18):
            A(f'v_sub_f32 v{D + n}, v{E + n}, v{a}')
        A(f'v_mul_f32 v{b}, v{D}, v{D}')
        A(f'v_mul_f32 v{c}, v{D + 1}, v{D + 1}')
        for n in range(2, 18, 2):
            A(f'v_fmac_f32 v{b}, v{D + n}, v{D + n}')
            A(f'v_fmac_f32 v{c}, v{D + n + 1}, v{D + n + 1}')
        A(f'v_add_f32 v{b}, v{b}, v{c}')
        A(f'v_cvt_pk_bf16_f32 v{a}, 0, v{a}')
        allred_row(b)
        swapred('v_permlane16_swap_b32', 'v_add_f32', b, c)
        A(f'v_mul_f32 v{b}, {f32(1.0 / 576)}, v{b}')
        A(f'v_cvt_pk_bf16_f32 v{b}, 0, v{b}')
        A(f'v_add_f32 v{b}, {f32(1e-5)}, v{b}')
        A(f'v_cvt_pk_bf16_f32 v{b}, 0, v{b}')
        A(f'v_sqrt_f32 v{b}, v{b}')
        A(f'v_sub_f32 v{D}, v{E}, v{a}')
        A(f'v_cvt_pk_bf16_f32 v{b}, 0, v{b}')
        A(f'v_rcp_f32 v{b}, v{b}')
        for n in range(1, 18):
            A(f'v_sub_f32 v{D + n}, v{E + n}, v{a}')
        for n in range(18):
            A(f'v_cvt_pk_bf16_f32 v{D + n}, 0, v{D + n}')
        for n in range(18):
            A(f'v_mul_f32 v{D + n}, v{D + n}, v{b}')
        for k in range(9):
            A(f'v_cvt_pk_bf16_f32 v{dst + k}, v{D + 2 * k}, v{D + 2 * k + 1}')

    A('v_and_b32 v15, 1, v2')
    A('v_mul_u32_u24 v15, 1152, v15')
    A('v_lshl_add_u32 v15, v3, 4, v15')
    A('v_lshrrev_b32 v16, 2, v2')
    A('v_lshl_add_u32 v16, v3, 3, v16')
    A('v_lshlrev_b32 v16, 7, v16')
    A('v_and_b32 v17, 3, v1')
    A('v_lshl_add_u32 v16, v17, 3, v16')
    A('s_lshl_b32 s64, s30, 5')
    A('v_add_u32 v16, s64, v16')
    if swz:
        A('v_lshlrev_b32 v17, 2, v1')
        A('v_and_b32 v17, 0x60, v17')
        A('v_xor_b32 v16, v16, v17')
    A('v_add_u32 v20, 0x8000, v16')
    A('v_lshlrev_b32 v17, 2, v2')
    A('v_lshl_add_u32 v17, v3, 14, v17')
    A('s_lshl_b32 s39, s72, 8')
    A('s_lshl_b32 s64, s30, 6')
    A('s_add_u32 s39, s39, s64')
    A(f's_add_u32 s39, s39, {QX}')
    A('s_cmp_eq_u32 s3, 1')
    A('s_cbranch_scc1 L_h_wx')
    A('s_waitcnt vmcnt(0)')
    A.label('L_h_wx')
    A('s_waitcnt vmcnt(18)')
    if stamp == 2: stampit(4)
    layernorm(X, X)
    A('v_mov_b32 v18, 1')
    A('s_cmp_lg_u32 s3, 1')
    A('s_cbranch_scc1 L_h_ln2')
    for k in range(9):
        A(f'ds_write_b32 v13, v{X + k} offset:{L_XN + 4 * k}')
    QA, QB, QD = 120, 192, 76
    A('s_waitcnt lgkmcnt(0)')
    for t in range(18):
        A(f'ds_read_b128 v[{QA + 4 * t}:{QA + 4 * t + 3}], v15 offset:{L_XN + 64 * t}')
        if t == 8:
            A('s_waitcnt lgkmcnt(0)')
    if stamp == 2: stampit(5)
    A('s_waitcnt vmcnt(0)')
    A('s_mov_b64 exec, 1')
    A(f'ds_add_u32 v12, v18 offset:{L_CNT}')
    A('s_mov_b64 exec, -1')
    lds_wait('L_h_sync', L_CNT, 's_cmp_lt_u32', 4, 18, 12, 0)
    if stamp == 2:
        stampit(6)
        A('s_waitcnt lgkmcnt(0)')
    for t0 in (0, 6, 12):
        for t in range(t0, t0 + 6):
            r = QB + 4 * (t % 12)
            for h in range(2):
                off = L_WQ + 4096 * t + 512 * h
                base, off = (16, off) if off < 32768 else (20, off - 32768)
                A(f'ds_read_b64_tr_b16 v[{r + 2 * h}:{r + 2 * h + 1}], v{base} offset:{off}')
        for t in range(t0, t0 + 6):
            r = QB + 4 * (t % 12)
            A(f's_waitcnt lgkmcnt({2 * (t0 + 5 - t)})')
            c = '0' if t == 0 else f'v[{QD}:{QD + 3}]'
            A(f'v_mfma_f32_16x16x32_bf16 v[{QD}:{QD + 3}], v[{QA + 4 * t}:{QA + 4 * t + 3}], v[{r}:{r + 3}], {c}')
    A('s_add_u32 s64, s78, 1')
    A('s_add_u32 s65, s79, 1')
    A('v_cmp_eq_u32 vcc, 1, v3')
    A('v_mov_b32 v19, s64')
    A('v_mov_b32 v21, s65')
    A.nop(4)
    A('v_cndmask_b32 v19, v19, v21, vcc')
    A(f'v_cndmask_b32 v18, v{QD}, v{QD + 1}, vcc')
    A.nop(2)
    A(f'v_mov_b32_dpp v21, v18 quad_perm:[1,0,3,2] {DPP}')
    A('v_cvt_pk_bf16_f32 v18, v18, v21')
    A('s_mov_b64 exec, 0x55555555')
    A('buffer_store_dwordx2 v[18:19], v17, s[48:51], s39 offen sc1')
    A('s_mov_b64 exec, -1')
    stampit(1)
    A('s_branch L_h_q')
    A.label('L_h_ln2')
    layernorm(X, X)
    for k in range(9):
        A(f'ds_write_b32 v13, v{X + k} offset:{L_H + 4 * k}')
    A(f'ds_write_b32 v12, v18 offset:{L_HF}')
    A('s_branch L_h_join')

    A.label('L_h_noln')
    A.label('L_h_q')
    A('s_cmp_eq_u32 s30, 1')
    A('s_cbranch_scc0 L_h_join')
    A('s_lshl_b32 s39, s31, 10')
    A(f's_add_u32 s39, s39, {QX}')
    A('v_lshlrev_b32 v22, 3, v1')
    A('s_waitcnt lgkmcnt(0)')
    A('s_cmp_eq_u32 s33, 0')
    A('s_cselect_b32 s79, s78, s79')
    A('s_add_u32 s79, s79, 1')
    A(f's_mov_b32 s70, {SPIN_MAX}')
    lds_wait('L_go', L_GO, 's_cmp_eq_u32', 0, 14, 12, 4)
    PB = 64

    def qpoll(p):
        A(f'buffer_load_dwordx4 v[{PB + 4 * p}:{PB + 4 * p + 3}], v11, s[48:51], s39 offen sc1')
    for p in range(npoll - 1):
        qpoll(p)
        A(f's_sleep {qsleep}')
    A.label('L_qp')
    for p in range(npoll):
        qpoll((p + npoll - 1) % npoll)
        r = PB + 4 * p
        A(f's_waitcnt vmcnt({npoll - 1})')
        A(f'v_xor_b32 v14, s79, v{r + 1}')
        A(f'v_xor_b32 v15, s79, v{r + 3}')
        A(f'v_mov_b32 v16, v{r}')
        A('v_or_b32 v14, v14, v15')
        A(f'v_mov_b32 v17, v{r + 2}')
        A('v_cmp_ne_u32 vcc, 0, v14')
        A('s_cbranch_vccz L_qp_done')
        A('s_mov_b64 exec, vcc')
    A('s_sub_u32 s70, s70, 1')
    A('s_cmp_lg_u32 s70, 0')
    A('s_cbranch_scc1 L_qp')
    A.label('L_qp_done')
    A('s_mov_b64 exec, -1')
    A(f'ds_write_b64 v22, v[16:17] offset:{L_Q}')
    A('v_mov_b32 v14, 1')
    A('v_mov_b32 v15, s79')
    A(f'ds_write_b64 v12, v[14:15] offset:{L_FLAG}')
    stampit(1)

    A.label('L_h_join')
    make_sel()
    A('v_lshrrev_b32 v5, 3, v2')
    A('v_lshl_add_u32 v5, v5, 2, v3')
    A('v_and_b32 v7, 7, v2')
    A(f's_mul_i32 s74, s31, {8 * S1}')
    A('s_lshr_b32 s64, s32, 2')
    A('s_lshl_b32 s64, s64, 4')
    A('s_add_u32 s69, s74, s64')
    A('s_lshl_b32 s64, s32, 7')
    A('s_add_u32 s74, s74, s64')
    lds_wait('L_h_qf', L_FLAG, 's_cmp_eq_u32', 0, 14, 12, 8)
    A(f'ds_read_b32 v14, v12 offset:{L_TAG}')
    A('s_waitcnt lgkmcnt(0)')
    A('v_readfirstlane_b32 s79, v14')
    stampit(2)

    pc = [0]

    def paced(ins):
        if pc[0] >= hpace:
            A(f's_waitcnt vmcnt({hpace - 1})')
        A(ins)
        pc[0] += 1

    A(f's_mul_i32 s64, s31, {SP}')
    A(f's_add_u32 s36, s64, {POOLR}')
    A('s_add_u32 s60, s28, s36')
    A('s_addc_u32 s61, s29, 0')
    A('s_lshl_b32 s64, s32, 2')
    A('s_add_u32 s64, s64, s30')
    A('s_cmp_lg_u32 s64, 3')
    A('s_cbranch_scc1 L_nopool')
    A('s_and_b32 s64, s31, 3')
    A('s_lshl_b32 s64, s64, 3')
    A(f's_lshl_b32 s64, {4 * pd}, s64')
    A(f's_sub_u32 s64, {(128 - LIM) * 0x01010101}, s64')
    A('v_mov_b32 v14, s64')
    A('v_mov_b32 v15, s64')
    A('v_mov_b32 v16, s79')
    A('s_mov_b64 exec, 1')
    A('buffer_store_dwordx2 v[14:15], v12, s[48:51], s36 offen sc1')
    A('s_waitcnt vmcnt(0)')
    A('buffer_store_dword v16, v12, s[48:51], s36 offen offset:128 sc1')
    A('s_mov_b64 exec, -1')
    A.label('L_nopool')

    WO = 104
    W8 = 3
    A('s_mov_b32 s52, s12')
    A('s_mov_b32 s53, s13')
    A(f's_mov_b32 s54, {4096 * 1152}')
    A('s_mov_b32 s55, 0x20000')
    A('v_mul_u32_u24 v30, 1152, v5')
    A('v_lshl_add_u32 v30, v7, 4, v30')

    def wo_loads(ts, emit, tagl):
        A(f's_mul_i32 s64, s35, {32 * 1152}')
        A(f's_add_u32 s64, s64, {ts[0] * 8 * 1152}')
        A('s_lshl_b32 s65, s30, 8')
        A('s_add_u32 s65, s65, s64')
        for t in ts:
            for bl in range(2):
                r = WO + bl * 16 + t * 4
                emit(f'buffer_load_dwordx4 v[{r}:{r + 3}], v30, s[52:55], s65 offen offset:{128 * bl} {wopol}')
            if t != ts[-1]:
                A(f's_add_u32 s65, s65, {8 * 1152}')
        A(f's_cmp_lg_u32 s30, {W8}')
        A(f's_cbranch_scc1 L_nowo8{tagl}')
        for t in ts:
            r = WO + 32 + t * 4
            emit(f'buffer_load_dwordx4 v[{r}:{r + 3}], v30, s[52:55], s64 offen offset:1024 {wopol}')
            if t != ts[-1]:
                A(f's_add_u32 s64, s64, {8 * 1152}')
        A.label(f'L_nowo8{tagl}')
    ne = woearly if wolate else 4
    if ne:
        wo_loads(list(range(ne)), paced, 'a')

    A('s_lshl_b32 s80, s73, 5')
    A('s_mul_i32 s64, s33, 576')
    A('s_add_u32 s80, s80, s64')
    G = 176
    A('v_and_b32 v17, 1, v3')
    A('v_lshrrev_b32 v18, 1, v3')
    A('v_lshl_add_u32 v17, v17, 1, v18')
    A('v_lshl_add_u32 v17, v17, 3, v7')
    A('v_lshlrev_b32 v24, 2, v17')
    A('v_add_u32 v17, s80, v17')
    A('v_lshlrev_b32 v25, 1, v17')
    A('s_cmp_lg_u32 s3, 2')
    A('s_cbranch_scc1 L_nob')
    PW = 64
    W1, B1, W2 = 152, 170, 188
    U = 206
    A('s_mul_i32 s64, s30, 2304')
    A('v_add_u32 v15, s64, v11')
    A('v_add_u32 v16, s64, v23')
    for k, base in enumerate((16, 18, 20)):
        r = PW + 12 * k
        paced(f'global_load_dwordx4 v[{r}:{r + 3}], v15, s[{base}:{base + 1}] {bpol}')
        paced(f'global_load_dwordx4 v[{r + 4}:{r + 7}], v15, s[{base}:{base + 1}] offset:1024 {bpol}')
        paced(f'global_load_dword v{r + 8}, v16, s[{base}:{base + 1}] offset:2048 {bpol}')
    paced('buffer_load_ushort v26, v25, s[40:43], 0 offen')
    paced('global_load_ushort v27, v12, s[22:23]')
    lds_wait('L_h_hf', L_HF, 's_cmp_eq_u32', 0, 14, 12, 8)
    c0 = -2.0 * math.sqrt(2.0 / math.pi) * LOG2E
    A(f's_mov_b32 s66, {f32(c0 * 0.044715)}')
    A(f'v_mov_b32 v17, {f32(c0)}')
    A('s_lshl_b32 s64, s80, 1')
    A(f's_add_u32 s64, s64, {L_H}')
    A('v_mov_b32 v18, s64')
    A('s_lshl_b32 s64, s30, 7')
    A(f's_add_u32 s64, s64, {L_BP}')
    A('v_mov_b32 v19, s64')
    A('s_waitcnt vmcnt(0)')
    for k, dst in enumerate((W1, B1, W2)):
        for n in range(9):
            A(f'v_lshlrev_b32 v{dst + 2 * n}, 16, v{PW + 12 * k + n}')
            A(f'v_and_b32 v{dst + 2 * n + 1}, 0xffff0000, v{PW + 12 * k + n}')
    A('s_mov_b32 s70, 0')
    A.label('L_bloop')
    A('ds_read_u16 v20, v18')
    A('v_add_u32 v18, 2, v18')
    A('s_waitcnt lgkmcnt(0)')
    A('v_lshlrev_b32 v20, 16, v20')
    V2 = U + 18
    for n in range(18): A(f'v_mul_f32 v{U + n}, v20, v{W1 + n}')
    for n in range(18): A(f'v_cvt_pk_bf16_f32 v{U + n}, 0, v{U + n}')
    for n in range(18): A(f'v_add_f32 v{U + n}, v{U + n}, v{B1 + n}')
    for n in range(18): A(f'v_cvt_pk_bf16_f32 v{U + n}, 0, v{U + n}')
    for n in range(18): A(f'v_mul_f32 v{V2 + n}, v{U + n}, v{U + n}')
    for n in range(18): A(f'v_fma_f32 v{V2 + n}, v{V2 + n}, s66, v17')
    for n in range(18): A(f'v_mul_f32 v{V2 + n}, v{V2 + n}, v{U + n}')
    for n in range(18): A(f'v_exp_f32 v{V2 + n}, v{V2 + n}')
    for n in range(18): A(f'v_add_f32 v{V2 + n}, 1.0, v{V2 + n}')
    for n in range(18): A(f'v_rcp_f32 v{V2 + n}, v{V2 + n}')
    for n in range(18): A(f'v_mul_f32 v{U + n}, v{U + n}, v{V2 + n}')
    for n in range(18): A(f'v_cvt_pk_bf16_f32 v{U + n}, 0, v{U + n}')
    A(f'v_mul_f32 v21, v{U}, v{W2}')
    A(f'v_mul_f32 v22, v{U + 1}, v{W2 + 1}')
    for n in range(2, 18, 2):
        A(f'v_fmac_f32 v21, v{U + n}, v{W2 + n}')
        A(f'v_fmac_f32 v22, v{U + n + 1}, v{W2 + n + 1}')
    A('v_add_f32 v21, v21, v22')
    allred_row(21)
    allred_g('v_add_f32', 21, 22)
    A('ds_write_b32 v19, v21')
    A('v_add_u32 v19, 4, v19')
    A('s_add_u32 s70, s70, 1')
    A('s_cmp_lt_u32 s70, 32')
    A('s_cbranch_scc1 L_bloop')
    A('v_mov_b32 v14, 1')
    A('s_mov_b64 exec, 1')
    A(f'ds_add_u32 v12, v14 offset:{L_BC}')
    A('s_mov_b64 exec, -1')
    lds_wait('L_h_bc', L_BC, 's_cmp_lt_u32', 4, 14, 12, 8)
    for w in range(4):
        A(f'ds_read_b32 v{G + w}, v24 offset:{L_BP + 128 * w}')
    A('s_waitcnt lgkmcnt(0)')
    A(f'v_add_f32 v{G}, v{G}, v{G + 1}')
    A(f'v_add_f32 v{G + 2}, v{G + 2}, v{G + 3}')
    A(f'v_add_f32 v{G}, v{G}, v{G + 2}')
    A('v_lshlrev_b32 v26, 16, v26')
    A('v_lshlrev_b32 v27, 16, v27')
    A(f'v_cvt_pk_bf16_f32 v{G}, 0, v{G}')
    A(f'v_add_f32 v27, v{G}, v27')
    A('v_cvt_pk_bf16_f32 v27, 0, v27')
    A.label('L_nob')

    A('s_mov_b32 s56, s24')
    A('s_mov_b32 s57, s25')
    A('s_mov_b32 s58, 2304')
    A('s_mov_b32 s59, 0x20000')
    A(f'v_mul_u32_u24 v20, {S1}, v7')
    A('v_lshl_add_u32 v19, v5, 4, v20')
    A('v_lshlrev_b32 v21, 4, v7')
    A('v_lshl_add_u32 v21, v3, 7, v21')
    A('v_lshlrev_b32 v22, 3, v1')
    A('v_lshrrev_b32 v31, 3, v1')
    A(f'v_mul_u32_u24 v31, {S2}, v31')
    A('v_lshl_add_u32 v31, v7, 4, v31')
    A(f's_mul_i32 s77, s2, {S2}')
    A(f's_add_u32 s77, s77, {L2A}')
    A('s_lshl_b32 s64, s30, 9')
    A('s_add_u32 s76, s77, s64')
    A('s_lshl_b32 s64, s33, 2')
    A('s_add_u32 s64, s64, s30')
    A(f's_mul_i32 s81, s64, {32 * S2}')
    A('s_lshl_b32 s64, s73, 7')
    A('s_add_u32 s81, s81, s64')
    A(f's_add_u32 s81, s81, {L2A}')
    A(f's_add_u32 s82, s81, {8 * S2}')
    A(f's_add_u32 s46, s81, {16 * S2}')
    A(f's_add_u32 s47, s81, {24 * S2}')
    GS = (81, 82, 46, 47)
    A('s_and_b32 s78, s79, 0xff')
    A('s_movk_i32 s75, 0xff')
    A('v_mov_b32 v28, s78')
    A('v_mov_b32 v29, 1')
    if warm:
        A('s_cmp_lg_u32 s30, 3')
        A('s_cbranch_scc1 L_nowarm1')
        A('buffer_load_dwordx4 v[200:203], v19, s[48:51], s74 offen sc1')
        A(f'buffer_load_dwordx4 v[204:207], v20, s[48:51], s69 offen offset:{L1ML} sc1')
        A.label('L_nowarm1')
        A('s_cmp_lg_u32 s3, 2')
        A('s_cbranch_scc1 L_nowarm2')
        for k in range(4):
            A(f'buffer_load_dwordx4 v[{208 + 4 * k}:{211 + 4 * k}], v31, s[48:51], s{GS[k]} offen sc1')
        A.label('L_nowarm2')

    A('s_cmp_lg_u32 s30, 2')
    A('s_cbranch_scc1 L_nodisp')
    SC, SF, SOWN, SOWNC, SN, SZ = 66, 68, 69, 70, 71, 37
    A('v_lshlrev_b32 v16, 12, v1')
    A('s_lshl_b32 s64, s32, 20')
    A(f's_add_u32 s64, s64, {ns * 16384}')
    A('s_cmp_eq_u32 s3, 1')
    A(f's_cselect_b32 s65, {pd * 16384}, 0')
    A('s_sub_u32 s64, s64, s65')
    A('v_add_u32 v14, s64, v16')
    A(f's_mov_b64 exec, {(1 << (4 * npre)) - 1}')
    A(f'ds_write_b32 v23, v14 offset:{L_QT}')
    A('s_mov_b64 exec, -1')
    A(f's_mov_b32 s{SN}, {4 * npre}')
    A(f's_mov_b32 s83, {SPIN_MAX}')
    A.label('L_prdy')
    A('buffer_load_dword v14, v12, s[48:51], s36 offen offset:128 sc1')
    A('s_sub_u32 s83, s83, 1')
    A('s_waitcnt vmcnt(0)')
    A('v_readfirstlane_b32 s64, v14')
    A('s_cmp_eq_u32 s83, 0')
    A('s_cbranch_scc1 L_dend')
    A('s_cmp_eq_u32 s64, s79')
    A('s_cbranch_scc1 L_prdy_ok')
    A('s_sleep 64')
    A('s_branch L_prdy')
    A.label('L_prdy_ok')
    A(f's_lshl_b32 s{SOWN}, s32, 3')
    A(f's_mov_b32 s{SF}, s{SOWN}')
    A(f's_sub_u32 s{SOWNC}, 64, s{SOWN}')
    A('s_mov_b32 s62, 0x80808080')
    A('s_mov_b32 s63, 0x80808080')
    A(f's_mov_b32 s{SZ}, {first}')
    lds_wait('L_dw0', L_TK, 's_cmp_eq_u32', 0, 14, 12, 16)
    A.label('L_dloop')
    A(f's_sub_u32 s83, s{SN}, {theta}')
    lds_wait('L_dw', L_TK, 's_cmp_lt_u32', 's83', 14, 12, dsleep)
    A.label('L_drty')
    A(f's_mov_b32 s38, s{SZ}')
    A('s_mov_b32 s39, 0')
    A(f's_lshl_b64 s[38:39], s[38:39], s{SF}')
    A(f's_mov_b64 s[{SC}:{SC + 1}], s[38:39]')
    A(f's_atomic_add_x2 s[{SC}:{SC + 1}], s[60:61], 0 glc')
    A(f's_lshl_b32 s83, s{SF}, 17')
    A(f's_lshl_b32 s64, s{SN}, 2')
    A('v_add_u32 v15, s64, v23')
    A('s_waitcnt lgkmcnt(0)')
    A(f's_lshr_b64 s[64:65], s[{SC}:{SC + 1}], s{SF}')
    A('s_and_b32 s64, s64, 0xff')
    A('s_cmp_ge_u32 s64, 128')
    A('s_cbranch_scc1 L_dfail')
    A('s_lshl_b32 s65, s64, 12')
    A('s_add_u32 s65, s65, s83')
    A(f's_add_u32 s65, s65, {((ns + npre) * 16384 - (128 - LIM) * 4096) & 0xffffffff}')
    A('v_add_u32 v14, s65, v16')
    A('s_sub_u32 s65, 128, s64')
    A(f's_min_u32 s65, s65, s{SZ}')
    A('s_bfm_b64 exec, s65, 0')
    A(f'ds_write_b32 v15, v14 offset:{L_QT}')
    A('s_mov_b64 exec, -1')
    A(f's_add_u32 s{SN}, s{SN}, s65')
    A.label('L_dfail')
    A(f's_add_u32 s{SC}, s38, s{SC}')
    A(f's_addc_u32 s{SC + 1}, s39, s{SC + 1}')
    A(f's_andn2_b64 s[38:39], s[62:63], s[{SC}:{SC + 1}]')
    A(f's_lshr_b64 s[44:45], s[38:39], s{SOWN}')
    A(f's_lshl_b64 s[38:39], s[38:39], s{SOWNC}')
    A('s_or_b64 s[38:39], s[38:39], s[44:45]')
    A('s_cbranch_scc0 L_dend')
    A('s_ff1_i32_b64 s65, s[38:39]')
    A(f's_add_u32 s65, s65, s{SOWN}')
    A(f's_and_b32 s{SF}, s65, 56')
    A(f's_lshr_b64 s[38:39], s[{SC}:{SC + 1}], s{SF}')
    A('s_and_b32 s38, s38, 0xff')
    A(f's_cmp_lt_u32 s38, {128 - big}')
    A(f's_cselect_b32 s{SZ}, 4, {small}')
    if huge < 99:
        A(f's_cmp_lt_u32 s38, {128 - huge}')
        A(f's_cselect_b32 s{SZ}, 8, s{SZ}')
    A('s_cmp_ge_u32 s64, 128')
    A('s_cbranch_scc1 L_drty')
    A(f's_cmp_lt_u32 s{SN}, 160')
    A('s_cbranch_scc1 L_dloop')
    A.label('L_dend')
    A(f's_lshl_b32 s64, s{SN}, 2')
    A('v_add_u32 v15, s64, v23')
    A(f'v_mov_b32 v14, {KVOOB}')
    A('s_mov_b64 exec, 15')
    A(f'ds_write_b32 v15, v14 offset:{L_QT}')
    A('s_mov_b64 exec, -1')
    A(f'v_mov_b32 v14, s{SN}')
    A(f'ds_write_b32 v12, v14 offset:{L_EN}')
    A.label('L_nodisp')
    if wolate in (1, 2):
        lds_wait('L_ww0', L_TK, 's_cmp_eq_u32', 0, 14, 12, 32)
        A('s_add_u32 s65, s30, 1')
        A('s_and_b32 s65, s65, 3')
        if wolate == 2:
            A('s_mov_b32 s65, 3')
        A.label('L_ww')
        A(f'ds_read_b64 v[14:15], v12 offset:{L_TK}')
        A('s_waitcnt lgkmcnt(0)')
        A('v_readfirstlane_b32 s64, v14')
        A('v_readfirstlane_b32 s83, v15')
        A(f's_add_u32 s64, s64, {wooff}')
        A('s_cmp_eq_u32 s83, 0')
        A('s_cbranch_scc1 L_wws')
        A('s_add_u32 s83, s83, s65')
        A('s_cmp_gt_u32 s64, s83')
        A('s_cbranch_scc1 L_wwd')
        A.label('L_wws')
        A('s_sleep 1')
        A('s_branch L_ww')
        A.label('L_wwd')
        A('s_waitcnt vmcnt(0)')
        wo_loads(list(range(ne, 4)), A, 'b')
    else:
        A('s_waitcnt vmcnt(0) lgkmcnt(0)')
    A('s_barrier')
    if wolate == 3:
        wo_loads(list(range(ne, 4)), A, 'b')
    stampit(3)
    leakit(4, 0)

    P1, O, W = 200, 232, 236
    A('s_cmp_lg_u32 s30, 3')
    A('s_cbranch_scc1 L_ow')
    A(f's_mov_b32 s70, {SPIN_MAX}')
    def poll1(p):
        r = P1 + 8 * p
        A(f'buffer_load_dwordx4 v[{r}:{r + 3}], v20, s[48:51], s69 offen offset:{L1ML} sc1')
        A(f'buffer_load_dwordx4 v[{r + 4}:{r + 7}], v19, s[48:51], s74 offen sc1')
    assert np1 <= 4
    for p in range(np1 - 1):
        poll1(p)
        A(f's_sleep {ps1}')
    A.label('L_p1')
    for p in range(np1):
        poll1((p + np1 - 1) % np1)
        r = P1 + 8 * p
        A(f's_waitcnt vmcnt({2 * (np1 - 1)})')
        for t in range(4):
            A(f'v_xor_b32 v{O + t}, s78, v{r + 4 + t}')
        A(f'v_xor_b32 v17, s79, v{r + 1}')
        A(f'v_xor_b32 v18, s79, v{r + 3}')
        A(f'v_or3_b32 v14, v{O}, v{O + 1}, v{O + 2}')
        A(f'v_or_b32 v14, v14, v{O + 3}')
        A(f'v_mov_b32 v15, v{r}')
        A('v_and_b32 v14, 0xff, v14')
        A('v_or3_b32 v14, v14, v17, v18')
        A(f'v_mov_b32 v16, v{r + 2}')
        A('v_cmp_ne_u32 vcc, 0, v14')
        A('s_cbranch_vccz L_p1_done')
        A('s_mov_b64 exec, vcc')
    A('s_sub_u32 s70, s70, 1')
    A('s_cmp_lg_u32 s70, 0')
    A('s_cbranch_scc1 L_p1')
    A.label('L_p1_done')
    A('s_mov_b64 exec, -1')
    if stamp == 1:
        stampit(4)
    A(f'v_max_f32_dpp v17, v15, v15 quad_perm:[1,0,3,2] {DPP}')
    for m in ('quad_perm:[2,3,0,1]', 'row_half_mirror'):
        A.nop(2)
        A(f'v_max_f32_dpp v17, v17, v17 {m} {DPP}')
    A('v_sub_f32 v15, v15, v17')
    A('v_exp_f32 v15, v15')
    A.nop(1)
    A('v_mul_f32 v16, v15, v16')
    for t in range(4):
        A(f'v_mul_f32 v{O + t}, v15, v{O + t}')
    for m in ('quad_perm:[1,0,3,2]', 'quad_perm:[2,3,0,1]', 'row_half_mirror'):
        for q in (16, O, O + 1, O + 2, O + 3):
            A(f'v_add_f32_dpp v{q}, v{q}, v{q} {m} {DPP}')
    A('v_rcp_f32 v16, v16')
    A.nop(1)
    for t in range(4):
        A(f'v_mul_f32 v{O + t}, v{O + t}, v16')
    A(f'v_cvt_pk_bf16_f32 v{W}, v{O}, v{O + 1}')
    A(f'v_cvt_pk_bf16_f32 v{W + 1}, v{O + 2}, v{O + 3}')
    A(f'ds_write_b64 v22, v[{W}:{W + 1}] offset:{L_OW}')
    A(f'ds_write_b32 v12, v29 offset:{L_OF}')
    A('s_branch L_proj')
    A.label('L_ow')
    A(f'ds_read_b32 v14, v12 offset:{L_OF}')
    A(f'ds_read_b64 v[{W}:{W + 1}], v22 offset:{L_OW}')
    A('s_waitcnt lgkmcnt(0)')
    A('v_cmp_eq_u32 vcc, 0, v14')
    A('s_cbranch_vccnz L_ow')
    if stamp == 1:
        stampit(4)
    if wolate:
        A('s_waitcnt vmcnt(0)')
    A.label('L_proj')
    DX, DY, DZ = 240, 244, 248
    build_b(HB, W, 0)
    for t in range(4):
        if t < 3:
            build_b(HB + 4 * (t + 1), W + (t + 1) // 2, (t + 1) & 1)
        for bl, D in ((0, DX), (1, DY)):
            r = WO + bl * 16 + t * 4
            c = '0' if t == 0 else f'v[{D}:{D + 3}]'
            A(f'v_mfma_f32_16x16x32_bf16 v[{D}:{D + 3}], v[{r}:{r + 3}], v[{HB + 4 * t}:{HB + 4 * t + 3}], {c}')
    A(f's_cmp_lg_u32 s30, {W8}')
    A('s_cbranch_scc1 L_nob8a')
    for t in range(4):
        r = WO + 32 + t * 4
        c = '0' if t == 0 else f'v[{DZ}:{DZ + 3}]'
        A(f'v_mfma_f32_16x16x32_bf16 v[{DZ}:{DZ + 3}], v[{r}:{r + 3}], v[{HB + 4 * t}:{HB + 4 * t + 3}], {c}')
    A.label('L_nob8a')
    A.nop(6)
    for r in range(4):
        A(f'v_permlane32_swap_b32 v{DX + r}, v{DY + r}')
    A.nop(1)
    for r in range(4):
        A(f'v_add_f32_dpp v{DX + r}, v{DY + r}, v{DX + r} row_ror:8 {DPP}')
    for r in range(4):
        A(f'v_bfi_b32 v{DX + r}, s75, v28, v{DX + r}')
    A('s_mov_b32 exec_lo, 0x00ff00ff')
    A('s_mov_b32 exec_hi, 0x00ff00ff')
    A(f'buffer_store_dwordx4 v[{DX}:{DX + 3}], v21, s[48:51], s76 offen sc1')
    A('s_mov_b64 exec, -1')
    A(f's_cmp_lg_u32 s30, {W8}')
    A('s_cbranch_scc1 L_nob8b')
    for r in range(4):
        A(f'v_permlane32_swap_b32 v{DZ + r}, v{DY + r}')
    A.nop(1)
    for r in range(4):
        A(f'v_add_f32_dpp v{DZ + r}, v{DY + r}, v{DZ + r} row_ror:8 {DPP}')
    for r in range(4):
        A(f'v_bfi_b32 v{DZ + r}, s75, v28, v{DZ + r}')
    A('s_mov_b64 exec, 0x00ff00ff')
    A(f'buffer_store_dwordx4 v[{DZ}:{DZ + 3}], v21, s[48:51], s77 offen offset:2048 sc1')
    A('s_mov_b64 exec, -1')
    A.label('L_nob8b')
    if stamp == 1:
        stampit(5)
    A('s_cmp_lg_u32 s3, 2')
    A('s_cbranch_scc1 L_hend')
    P2 = 104
    A(f's_mov_b32 s70, {SPIN_MAX}')
    for k in range(4):
        A(f's_mov_b64 s[{60 + 2 * k}:{61 + 2 * k}], -1')
    assert np2 <= 4

    def poll2(p, masked):
        for k in range(4):
            r = P2 + 16 * p + 4 * k
            if masked and np2 == 1:
                A(f's_mov_b64 exec, s[{60 + 2 * k}:{61 + 2 * k}]')
                A(f's_cbranch_execz L_gs{k}')
            elif masked:
                A(f's_or_b64 exec, s[{60 + 2 * k}:{61 + 2 * k}], 1')
            A(f'buffer_load_dwordx4 v[{r}:{r + 3}], v31, s[48:51], s{GS[k]} offen sc1')
            if masked and np2 == 1:
                A.label(f'L_gs{k}')
    for p in range(np2 - 1):
        poll2(p, False)
        A(f's_sleep {ps2}')
    A.label('L_ga')
    for p in range(np2):
        poll2((p + np2 - 1) % np2, True)
        A(f's_waitcnt vmcnt({4 * (np2 - 1)})')
        for k in range(4):
            r = P2 + 16 * p + 4 * k
            A(f's_mov_b64 exec, s[{60 + 2 * k}:{61 + 2 * k}]')
            A(f's_cbranch_execz L_gc{p}_{k}')
            for q in range(4):
                A(f'v_xor_b32 v{G + 4 * k + q}, s78, v{r + q}')
            A(f'v_or3_b32 v17, v{G + 4 * k}, v{G + 4 * k + 1}, v{G + 4 * k + 2}')
            A(f'v_or_b32 v17, v17, v{G + 4 * k + 3}')
            A('v_and_b32 v17, 0xff, v17')
            A(f'v_cmp_ne_u32 s[{60 + 2 * k}:{61 + 2 * k}], 0, v17')
            A.label(f'L_gc{p}_{k}')
        A('s_or_b64 s[38:39], s[60:61], s[62:63]')
        A('s_or_b64 s[38:39], s[38:39], s[64:65]')
        A('s_or_b64 s[38:39], s[38:39], s[66:67]')
        A('s_cbranch_scc0 L_ga_done')
    A('s_sub_u32 s70, s70, 1')
    A('s_cmp_lg_u32 s70, 0')
    A('s_cbranch_scc1 L_ga')
    A.label('L_ga_done')
    A('s_mov_b64 exec, -1')
    if stamp == 1:
        stampit(2)
    for r in range(4):
        A(f'v_add_f32 v{G + r}, v{G + r}, v{G + 4 + r}')
        A(f'v_add_f32 v{G + 8 + r}, v{G + 8 + r}, v{G + 12 + r}')
    for r in range(4):
        A(f'v_add_f32 v{G + r}, v{G + r}, v{G + 8 + r}')
    A('s_lshl_b32 s64, s30, 8')
    A(f'v_permlane32_swap_b32 v{G}, v{G + 1}')
    A(f'v_permlane32_swap_b32 v{G + 2}, v{G + 3}')
    A(f'v_add_f32 v{G}, v{G}, v{G + 1}')
    A(f'v_add_f32 v{G + 2}, v{G + 2}, v{G + 3}')
    A('v_add_u32 v17, s64, v23')
    A.nop(1)
    A(f'v_permlane16_swap_b32 v{G}, v{G + 2}')
    A(f'v_add_f32 v{G}, v{G}, v{G + 2}')
    A.nop(2)
    A(f'v_add_f32_dpp v{G}, v{G}, v{G} row_ror:8 {DPP}')
    A(f'ds_write_b32 v17, v{G} offset:{L_P2}')
    A('s_mov_b64 exec, 1')
    A(f'ds_add_rtn_u32 v14, v12, v29 offset:{L_F2}')
    A('s_mov_b64 exec, -1')
    for w in range(4):
        A(f'ds_read_b32 v{G + 4 + w}, v23 offset:{L_P2 + 256 * w}')
    A('s_waitcnt lgkmcnt(0)')
    A('v_readfirstlane_b32 s64, v14')
    A(f'v_add_f32 v{G}, v{G + 4}, v{G + 5}')
    A(f'v_add_f32 v{G + 1}, v{G + 6}, v{G + 7}')
    A('s_cmp_lg_u32 s64, 3')
    A('s_cbranch_scc1 L_hend')
    A(f'v_add_f32 v{G}, v{G}, v{G + 1}')
    A(f'v_cvt_pk_bf16_f32 v{G}, 0, v{G}')
    A(f'v_add_f32 v{G}, v26, v{G}')
    A(f'v_cvt_pk_bf16_f32 v{G}, 0, v{G}')
    A(f'v_add_f32 v{G}, v{G}, v27')
    A(f'v_cvt_pk_bf16_f32 v{G}, v{G}, v{G}')
    A('s_mov_b32 exec_lo, 0x00ff00ff')
    A('s_mov_b32 exec_hi, 0x00ff00ff')
    A(f'buffer_store_short v{G}, v25, s[56:59], 0 offen {outpol}')
    A('s_cmp_lg_u32 s73, 0')
    A('s_cbranch_scc1 L_noep')
    A('v_mov_b32 v17, s79')
    A('s_lshl_b32 s64, s33, 2')
    A(f's_add_u32 s64, s64, {EPOCH}')
    A('s_mov_b64 exec, 1')
    A('buffer_store_dword v17, v12, s[48:51], s64 offen')
    A.label('L_noep')
    A('s_mov_b64 exec, -1')
    if stamp == 1:
        stampit(6)
    leakit(1)
    A.label('L_hend')
    if stamp:
        for _ in range(2): A('s_sleep 127')
    stamp_store()
    A.label('L_end')
    A('s_endpgm')
    if leak:
        A.L += ['.globl post_kernel', '.p2align 8', '.type post_kernel,@function', 'post_kernel:']
        A('s_cmp_ge_u32 s2, 1')
        A('s_cbranch_scc1 L_pend')
        A('s_load_dwordx2 s[4:5], s[0:1], 96')
        A('s_memrealtime s[8:9]')
        A(f's_mov_b32 s6, {EPOCH + 64}')
        A('s_waitcnt lgkmcnt(0)')
        A('s_load_dword s7, s[4:5], s6')
        A('s_waitcnt lgkmcnt(0)')
        A(f's_sub_u32 s7, s7, {lbase}')
        A('s_min_u32 s7, s7, 5000')
        A('s_mul_i32 s7, s7, 10')
        A.label('L_pspin')
        A('s_memrealtime s[10:11]')
        A('s_waitcnt lgkmcnt(0)')
        A('s_sub_u32 s10, s10, s8')
        A('s_cmp_lt_u32 s10, s7')
        A('s_cbranch_scc1 L_pspin')
        A.label('L_pend')
        A('s_endpgm')
    A.L.append('.section .rodata,"a"')
    A.L.append('.p2align 6')
    A.L.append(f'.amdhsa_kernel {KN}_kernel')
    A('.amdhsa_next_free_vgpr 256')
    A('.amdhsa_next_free_sgpr 102')
    A('.amdhsa_accum_offset 256')
    A('.amdhsa_group_segment_fixed_size 0')
    A('.amdhsa_kernarg_size 104')
    A('.amdhsa_user_sgpr_count 2')
    A('.amdhsa_user_sgpr_kernarg_segment_ptr 1')
    A('.amdhsa_system_sgpr_workgroup_id_x 1')
    A.L.append('.end_amdhsa_kernel')
    if leak:
        A.L += ['.p2align 6', '.amdhsa_kernel post_kernel', '  .amdhsa_next_free_vgpr 16', '  .amdhsa_next_free_sgpr 32', '  .amdhsa_accum_offset 16',
                '  .amdhsa_group_segment_fixed_size 0', '  .amdhsa_kernarg_size 104', '  .amdhsa_user_sgpr_count 2', '  .amdhsa_user_sgpr_kernarg_segment_ptr 1',
                '  .amdhsa_system_sgpr_workgroup_id_x 1', '.end_amdhsa_kernel']
    return A.text()


if __name__ == '__main__':
    out = sys.argv[1] if len(sys.argv) > 1 else 'cdna_kernels/' + KN + '.s'
    kw = {}
    for a in sys.argv[2:]:
        k, v = a.split('=')
        kw[k] = int(v) if v.lstrip('-').isdigit() else v
    open(out, 'w').write(gen(**kw))
    print('wrote', out)
```

```python
import struct, sys, math

KN = 'parallel_sum__gqa_block_cached__mixer_token_mlp__decode'


def f32(x):
    return '0x%08x' % struct.unpack('<I', struct.pack('<f', x))[0]


HEADER = open('cdna_kernels/' + KN + '.s.ref').read().split('; Override launch')[0]

LOG2E = 1.4426950408889634
S1 = 1280
L1ML = 1024
S2 = 2304
L2A = 256 * S1
POOLR = L2A + 256 * S2
SP = 768
QX = POOLR + 32 * SP
EPOCH = QX + 32768
WS_SIZE = EPOCH + 256
STAMP_OFF = 8 << 20
SPIN_MAX = 200000
KVOOB = 0x800000
L_Q = 0
L_FLAG, L_TAG, L_CNT, L_HF, L_TK, L_FIN, L_BC, L_OF, L_F2, L_EN, L_GO, L_SF = 512, 516, 520, 524, 528, 548, 536, 540, 544, 532, 552, 556
L_QT = 576
L_ZEND = 1280
L_BP = 1280
L_OW = 1792
L_P2 = 2304
L_XN = 3328
L_H = 5632
L_MG = 7936
L_WQ = 14336
NK = 6
L_KR = L_WQ
L_SC = L_KR + 4 * NK * 4096
SCW = 65 * 128
L_SIZE = L_SC + 4 * SCW


class Asm:
    def __init__(self):
        self.L = []

    def __call__(self, s):
        self.L.append('  ' + s)

    def label(self, s):
        self.L.append(s + ':')

    def nop(self, n):
        while n > 0:
            k = min(n, 16)
            self('s_nop %d' % (k - 1))
            n -= k

    def text(self):
        return '\n'.join(self.L) + '\n'


DPP = 'row_mask:0xf bank_mask:0xf'


def gen(kvpol='nt', wqpol='nt', wopol='nt', stamp=0, prog=0, m=13, pdm=1, npre=1, theta=2, big=12, small=2, first=4, huge=99,
        qsleep=20, bpol='', hpace=2, npoll=1, ps1=6, ps2=6, np1=2, np2=2, dsleep=1, warm=1, outpol='', leak=0, lbase=0,
        go=20, swz=1, lh=3, lg=4, lh0=3, g1=1):
    wolate = woearly = wooff = cpf = kfirst = 0
    NH = 9
    nS = 21 + 3 * m
    pd = 3 * pdm
    ns = nS + 1
    LIM = (64 - ns - npre) * 4
    assert 0 < LIM and LIM + 4 * pd <= 56 and lg < NK and lh in (3, 4) and lg >= lh
    GATE = 2 * (lh - 1)
    A = Asm()
    A.L.append(HEADER.rstrip('\n'))
    if leak:
        A.L.append(f'; @launch kernel={KN}_kernel grid=(256,1,1) block=(512,1,1) lds={L_SIZE}')
        A.L.append('; @launch kernel=post_kernel grid=(1,1,1) block=(64,1,1) lds=0')
    else:
        A.L.append(f'; @launch grid=(256,1,1) block=(512,1,1) lds={L_SIZE}')
    A.L.append('.amdgcn_target "amdgcn-amd-amdhsa--gfx950"')
    A.L.append('.text')
    A.L.append(f'.globl {KN}_kernel')
    A.L.append('.p2align 8')
    A.L.append(f'.type {KN}_kernel,@function')
    A.label(f'{KN}_kernel')
    ws_size = (STAMP_OFF + 65536 + 131072) if stamp else WS_SIZE

    def stampit(k):
        if stamp:
            A(f's_memrealtime s[{84 + 2 * k}:{85 + 2 * k}]')

    def stamp_store():
        if not stamp:
            return
        A('s_waitcnt lgkmcnt(0) vmcnt(0)')
        A('s_getreg_b32 s64, hwreg(HW_REG_XCC_ID)')
        A('s_lshl_b32 s65, s2, 3')
        A('s_add_u32 s65, s65, s30')
        A('s_lshl_b32 s65, s65, 5')
        A(f's_add_u32 s65, s65, {STAMP_OFF}')
        A('s_mov_b64 exec, 1')
        A('v_mov_b32 v4, 0')
        for k in range(7):
            A(f'v_mov_b32 v5, s{84 + 2 * k}')
            A(f'buffer_store_dword v5, v4, s[48:51], s65 offen offset:{4 * k}')
        A('v_mov_b32 v5, s64')
        A(f'buffer_store_dword v5, v4, s[48:51], s65 offen offset:28')
        A('s_waitcnt vmcnt(0)')

    lk = [0]

    def leakit(k, wave=None):
        if leak != k:
            return
        lk[0] += 1
        A('s_cmp_lg_u32 s2, 2')
        A(f's_cbranch_scc1 L_lk{lk[0]}')
        if wave is not None:
            A(f's_cmp_lg_u32 s30, {wave}')
            A(f's_cbranch_scc1 L_lk{lk[0]}')
        A('s_memrealtime s[96:97]')
        A('s_waitcnt lgkmcnt(0)')
        A('s_sub_u32 s96, s96, s100')
        A('v_mov_b32 v254, s96')
        A('v_mov_b32 v31, 0')
        A(f's_mov_b32 s96, {EPOCH + 64}')
        A('s_mov_b64 exec, 1')
        A('buffer_store_dword v254, v31, s[48:51], s96 offen')
        A('s_mov_b64 exec, -1')
        A('s_waitcnt vmcnt(0)')
        A.label(f'L_lk{lk[0]}')

    SEL = 40

    def make_sel():
        A('v_and_b32 v4, 7, v2')
        A('v_lshrrev_b32 v5, 1, v4')
        A('v_and_b32 v6, 1, v4')
        A('v_mov_b32 v7, 0x0c0c0100')
        A('v_mov_b32 v8, 0x01000c0c')
        A('v_cmp_eq_u32 vcc, 1, v6')
        A('v_mov_b32 v9, 0x0c0c0302')
        A('v_mov_b32 v10, 0x03020c0c')
        A('v_cndmask_b32 v7, v7, v8, vcc')
        A('v_cndmask_b32 v9, v9, v10, vcc')
        A('v_mov_b32 v8, 0x0c0c0c0c')
        for d in range(4):
            A(f'v_cmp_eq_u32 vcc, {d}, v5')
            A.nop(2)
            A(f'v_cndmask_b32 v{SEL + d}, v8, v7, vcc')
            A(f'v_cndmask_b32 v{SEL + 4 + d}, v8, v9, vcc')

    def build_b(dst, src, odd):
        for d in range(4):
            A(f'v_perm_b32 v{dst + d}, v{src}, v{src}, v{SEL + 4 * odd + d}')

    def swapred(sw, op, v, t):
        A(f'v_mov_b32 v{t}, v{v}')
        A.nop(2)
        A(f'{sw} v{v}, v{t}')
        A(f'{op} v{v}, v{v}, v{t}')

    def allred_g(op, v, t):
        swapred('v_permlane16_swap_b32', op, v, t)
        swapred('v_permlane32_swap_b32', op, v, t)

    def allred_row(v):
        for m in ('quad_perm:[1,0,3,2]', 'quad_perm:[2,3,0,1]', 'row_half_mirror', 'row_mirror'):
            A.nop(2)
            A(f'v_add_f32_dpp v{v}, v{v}, v{v} {m} {DPP}')

    def lds_wait(lab, off, cmp, val, vt, vz, sleep):
        A.label(lab)
        A(f'ds_read_b32 v{vt}, v{vz} offset:{off}')
        A('s_waitcnt lgkmcnt(0)')
        A(f'v_readfirstlane_b32 s64, v{vt}')
        A('s_nop 0')
        A(f'{cmp} s64, {val}')
        if sleep:
            A(f's_cbranch_scc0 {lab}_ok')
            A(f's_sleep {sleep}')
            A(f's_branch {lab}')
            A.label(lab + '_ok')
        else:
            A(f's_cbranch_scc1 {lab}')

    if kfirst:
        A('s_load_dwordx16 s[4:19], s[0:1], 0')
    A('s_cmp_ge_u32 s2, 256')
    A('s_cbranch_scc1 L_end')
    if stamp:
        for k in range(7):
            A(f's_mov_b64 s[{84 + 2 * k}:{85 + 2 * k}], 0')
    stampit(0)
    if leak:
        A('s_memrealtime s[100:101]')
    if not kfirst:
        A('s_load_dwordx16 s[4:19], s[0:1], 0')
        A('s_load_dwordx8 s[20:27], s[0:1], 64')
        A('s_load_dwordx2 s[28:29], s[0:1], 96')
    A('v_lshrrev_b32 v1, 6, v0')
    A('v_and_b32 v2, 15, v0')
    A('v_readfirstlane_b32 s30, v1')
    A('v_and_b32 v1, 63, v0')
    A('v_lshrrev_b32 v3, 4, v1')
    A('s_lshr_b32 s31, s2, 3')
    A('s_and_b32 s32, s2, 7')
    A(f's_mov_b32 s50, {ws_size}')
    A('s_mov_b32 s51, 0x20000')
    A('s_cmp_lt_u32 s30, 4')
    A('s_cbranch_scc1 L_helper')

    RING, Q, BS, S, ACC, PK = 64, 48, 32, 24, 20, 16
    VK, VV, VZ, VONE = 12, 13, 14, 15
    M2, LS, AL, T0, T1, PUB = 4, 5, 6, 7, 8, 9
    KF, DV, RA, RT, MX, SN, SCA, SCB = 32, 20, 4, 16, 8, 28, 12, 11
    VR = RING + 16 * NH
    SV, SK, SCNT, SKI, SKP, SKB, SKE, STAG, SNX, SPR = 38, 39, 52, 53, 54, 55, 57, 56, 58, 59
    A('s_sub_u32 s37, s30, 4')
    A('s_lshl_b32 s64, s31, 23')
    A(f's_lshl_b32 s{SV}, s32, 20')
    A('s_lshl_b32 s65, s37, 12')
    A(f's_add_u32 s{SV}, s{SV}, s65')
    A(f's_mov_b32 s{SK}, s{SV}')
    A(f's_mov_b32 s42, {KVOOB}')
    A('s_mov_b32 s43, 0x20000')
    A(f's_mov_b32 s46, {KVOOB}')
    A('s_mov_b32 s47, 0x20000')
    A(f'v_lshlrev_b32 v{VV}, 4, v1')
    A('s_sub_u32 s65, s32, s31')
    A(f's_and_b32 s{SPR}, s65, 3')
    A('s_waitcnt lgkmcnt(0)')
    A('s_add_u32 s44, s8, s64')
    A('s_addc_u32 s45, s9, 0')
    A('s_add_u32 s40, s6, s64')
    A('s_addc_u32 s41, s7, 0')
    A('s_mov_b32 s48, s28')
    A('s_mov_b32 s49, s29')
    A(f's_cmp_eq_u32 s{SPR}, 0')
    A('s_cbranch_scc0 L_nobx0')
    A('s_barrier')
    A.label('L_nobx0')

    def vpair(reg, half, so, fine=False):
        for q in range(2):
            if fine and q == 1:
                A(f's_waitcnt vmcnt({GATE})')
            r = reg + (2 * half + q) * 4
            A(f'buffer_load_dwordx4 v[{r}:{r + 3}], v{VV}, s[44:47], s{so} offen offset:{(2 * half + q) * 1024} {kvpol}')

    def vhalf(reg, half, fine=True):
        vpair(reg, half, SV, bool(g1) and fine)
        if half:
            A(f's_add_u32 s{SV}, s{SV}, 0x4000')

    def khalf(half):
        if half == 0:
            A(f's_mov_b32 m0, s{SKI}')
            A(f's_add_u32 s{SKI}, s{SKI}, 0x1000')
        for q in (2 * half, 2 * half + 1):
            if g1 and q & 1:
                A(f's_waitcnt vmcnt({GATE})')
            A(f'buffer_load_dwordx4 v{DV + q}, s[40:43], s{SK} offen offset:{q * 1024} {kvpol} lds')
        if half:
            A(f's_add_u32 s{SK}, s{SK}, 0x4000')
            A(f's_cmp_eq_u32 s{SKI}, s{SKE}')
            A(f's_cselect_b32 s{SKI}, s{SKB}, s{SKI}')

    for n in range(2 * NH):
        if n >= lh0:
            A(f's_waitcnt vmcnt({2 * (lh0 - 1)})')
        vhalf(RING + 16 * (n // 2), n & 1, n >= lh0 - 1)
        if n == lh0 - 1:
            A(f's_cmp_eq_u32 s{SPR}, 0')
            A('s_cbranch_scc1 L_nobx')
            A('s_barrier')
            A.label('L_nobx')
            A(f'v_mov_b32 v{VZ}, 0')
            A(f'v_mov_b32 v{VONE}, 1')
            A(f'v_lshlrev_b32 v{RT}, 2, v3')
            A(f'v_xor_b32 v{RT}, v{RT}, v2')
            A(f'v_lshlrev_b32 v{RT}, 4, v{RT}')
            A(f'v_lshl_add_u32 v{DV}, v3, 8, v{RT}')
            for q in range(1, 4):
                A(f'v_xor_b32 v{DV + q}, {16 * q}, v{DV}')
            A(f'v_and_b32 v{RT}, 3, v2')
            A(f'v_lshlrev_b32 v{RT}, 10, v{RT}')
            A(f'v_lshrrev_b32 v{RT + 1}, 2, v2')
            A(f'v_lshl_add_u32 v{RT}, v{RT + 1}, 8, v{RT}')
            A(f'v_xor_b32 v{RT + 1}, v3, v2')
            A(f'v_lshl_add_u32 v{RA}, v{RT + 1}, 4, v{RT}')
            for q in range(1, 4):
                A(f'v_xor_b32 v{RA + q}, {64 * q}, v{RA}')
            A(f's_mul_i32 s{SKB}, s37, {NK * 4096}')
            A(f's_add_u32 s{SKB}, s{SKB}, {L_KR}')
            A(f's_add_u32 s{SKE}, s{SKB}, {NK * 4096}')
            A(f's_mov_b32 s{SKI}, s{SKB}')
            A(f's_mov_b32 s{SKP}, s{SKB}')
            A(f'v_lshrrev_b32 v{RT}, 3, v2')
            A(f'v_lshl_add_u32 v{RT + 1}, v{RT}, 2, v3')
            A(f's_mul_i32 s64, s37, {SCW}')
            A(f's_add_u32 s64, s64, {L_SC}')
            A(f'v_lshl_add_u32 v{SCA}, v{RT + 1}, 4, s64')
            A(f'v_add_u32 v{SCB}, 128, v{SCA}')
            A(f'v_lshlrev_b32 v{RT}, 8, v{RT}')
            A(f'v_lshl_add_u32 v{PUB}, v3, 4, v{RT}')
            A(f'v_mov_b32 v{MX}, {f32(-3.0e38)}')
            for r in range(4):
                A(f'v_mov_b32 v{S + r}, v{MX}')
            A(f's_mov_b32 s66, {f32(128 ** -0.5)}')
            A(f's_mov_b32 s67, {f32(LOG2E)}')
            A('s_mov_b32 s60, 0x01010101')
            A('s_mov_b32 s61, 0x01010101')
            A(f's_cmp_eq_u32 s{SPR}, 0')
            A(f's_cselect_b32 s{SCNT}, {nS - pd - lg}, {nS - lg}')
            A('s_mov_b32 s71, 0')
        if n + 1 == go:
            A(f'ds_write_b32 v{VZ}, v{VONE} offset:{L_GO}')
    stampit(1)
    A(f's_cmp_lg_u32 s{SPR}, 0')
    A('s_cbranch_scc1 L_sf_ok')
    lds_wait('L_sf', L_SF, 's_cmp_lt_u32', 4, RT, VZ, 0)
    A.label('L_sf_ok')
    for n in range(2 * lg):
        A(f's_waitcnt vmcnt({GATE})')
        khalf(n & 1)
        if 2 * NH + n + 1 == go:
            A(f'ds_write_b32 v{VZ}, v{VONE} offset:{L_GO}')
    A.label('L_qw')
    A(f'ds_read_b64 v[{RT}:{RT + 1}], v{VZ} offset:{L_FLAG}')
    for q in range(4):
        A(f'ds_read_b128 v[{Q + 4 * q}:{Q + 4 * q + 3}], v{PUB} offset:{L_Q + 64 * q}')
    A('s_waitcnt lgkmcnt(0)')
    A(f'v_readfirstlane_b32 s64, v{RT}')
    A(f'v_readfirstlane_b32 s{STAG}, v{RT + 1}')
    A('s_cmp_eq_u32 s64, 0')
    A('s_cbranch_scc1 L_qw')
    stampit(2)

    def kfinish():
        A(f'v_max3_f32 v{MX}, v{MX}, v{S}, v{S + 1}')
        A(f'v_max3_f32 v{MX}, v{MX}, v{S + 2}, v{S + 3}')
        A('s_mov_b64 exec, s[60:61]')
        A(f'ds_write_b128 v{SCA}, v[{S}:{S + 3}]')
        A('s_mov_b64 exec, -1')
        A(f'v_add_u32 v{SCA}, 128, v{SCA}')

    def kreads():
        for q in range(4):
            A(f'v_add_u32 v{RT + q}, s{SKP}, v{RA + q}')
        for q in range(4):
            A(f'ds_read_b128 v[{KF + 4 * q}:{KF + 4 * q + 3}], v{RT + q}')
        A(f's_add_u32 s{SKP}, s{SKP}, 0x1000')
        A(f's_cmp_eq_u32 s{SKP}, s{SKE}')
        A(f's_cselect_b32 s{SKP}, s{SKB}, s{SKP}')

    def kmfma():
        for q in range(4):
            if stamp and q == 0:
                A('s_waitcnt lgkmcnt(0)')
            A(f's_waitcnt lgkmcnt({3 - q})')
            c = '0' if q == 0 else f'v[{S}:{S + 3}]'
            A(f'v_mfma_f32_16x16x32_bf16 v[{S}:{S + 3}], v[{KF + 4 * q}:{KF + 4 * q + 3}], v[{Q + 4 * q}:{Q + 4 * q + 3}], {c}')

    def progstamp(lab, shift):
        if prog == 1:
            A('s_memrealtime s[98:99]')
            A(f's_lshr_b32 m0, s71, {shift}')
            A('s_add_u32 s71, s71, 1')
            A('s_waitcnt lgkmcnt(0)')
            A('v_writelane_b32 v10, s98, m0')

    A.label('L_kloop')
    progstamp('k', 2)
    A(f's_waitcnt vmcnt({GATE})')
    khalf(0)
    A.nop(1)
    kfinish()
    kreads()
    A(f's_waitcnt vmcnt({GATE})')
    khalf(1)
    kmfma()
    A(f's_sub_u32 s{SCNT}, s{SCNT}, 1')
    A(f's_cmp_lg_u32 s{SCNT}, 0')
    A('s_cbranch_scc1 L_kloop')
    outst = []
    for t in range(lg):
        outst += [('K', t)] * 4

    def younger(tag):
        last = max(i for i, t in enumerate(outst) if t == tag)
        return len(outst) - 1 - last

    def vring(h):
        A(f's_waitcnt vmcnt({GATE})')
        vhalf(VR + 16 * ((h // 2) % 3), h & 1)
        outst.extend([('V', h // 2)] * 2)

    for t in range(lg):
        if t < lh:
            vring(t)
        A(f's_waitcnt vmcnt({younger(("K", t))})')
        A.nop(4 if t < lh else 7)
        kfinish()
        kreads()
        kmfma()
    A.nop(8)
    kfinish()
    stampit(5)
    A(f'ds_read_b128 v[{SN}:{SN + 3}], v{SCB} offset:{NH * 128}')
    allred_g('v_max_f32', MX, T0)
    A(f'v_cvt_pk_bf16_f32 v{RT}, 0, v{MX}')
    A(f'v_mul_f32 v{RT}, s66, v{RT}')
    A(f'v_cvt_pk_bf16_f32 v{RT}, 0, v{RT}')
    A(f'v_mul_f32 v{RT}, s67, v{RT}')
    if prog:
        A(f'v_mov_b32 v{RT + 1}, v10')
    make_sel()
    if prog:
        A(f'v_mov_b32 v10, v{RT + 1}')
        A('s_mov_b32 s71, 16')
    A(f'v_mov_b32 v{M2}, v{RT}')
    for r in range(4):
        A(f'v_mov_b32 v{ACC + r}, 0')
    A(f'v_mov_b32 v{LS}, 0')
    A(f'v_add_u32 v{SCA}, {2 * NH * 128}, v{SCB}')
    A(f's_cmp_eq_u32 s{SPR}, 0')
    A(f's_cselect_b32 s{SCNT}, {m - pdm}, {m}')

    def vbody(reg, nxt, pre=None, mid=None):
        if pre:
            pre()
        A('s_waitcnt lgkmcnt(0)')
        for n in range(4):
            A(f'v_cvt_pk_bf16_f32 v{S + n}, 0, v{SN + n}')
        if nxt:
            A(f'ds_read_b128 v[{SN}:{SN + 3}], v{nxt[0]} offset:{nxt[1]}')
        for n in range(4):
            A(f'v_mul_f32 v{S + n}, s66, v{S + n}')
        for n in range(4):
            A(f'v_cvt_pk_bf16_f32 v{S + n}, 0, v{S + n}')
        for n in range(4):
            A(f'v_fma_f32 v{S + n}, v{S + n}, s67, -v{M2}')
        for n in range(4):
            A(f'v_exp_f32 v{S + n}, v{S + n}')
        A(f'v_cvt_pk_bf16_f32 v{PK}, v{S}, v{S + 1}')
        A(f'v_cvt_pk_bf16_f32 v{PK + 1}, v{S + 2}, v{S + 3}')
        build_b(BS, PK, 0)
        build_b(BS + 4, PK, 1)
        A(f'v_add_f32 v{T0}, v{S}, v{S + 1}')
        A(f'v_add_f32 v{T1}, v{S + 2}, v{S + 3}')
        if mid:
            mid()
        for n in range(4):
            v = reg + n * 4
            b = BS + 4 * (n & 1)
            A(f'v_mfma_f32_16x16x32_bf16 v[{ACC}:{ACC + 3}], v[{v}:{v + 3}], v[{b}:{b + 3}], v[{ACC}:{ACC + 3}]')
            if n < 2:
                build_b(b, PK + 1, n & 1)
            elif n == 2:
                A(f'v_add_f32 v{LS}, v{LS}, v{T0}')
                A(f'v_add_f32 v{LS}, v{LS}, v{T1}')

    for u in range(NH):
        vbody(VR + 16 * (u % 3), (SCB, u * 128), lambda: vring(2 * u + lh), lambda: vring(2 * u + lh + 1))
        vbody(RING + 16 * u, (SCB, (NH + u + 1) * 128))
    A.label('L_vloop')
    progstamp('v', 0)
    for u in range(3):
        vbody(VR + 16 * u, (SCA, (u + 1) * 128), lambda: vring(2 * u + lh), lambda: vring(2 * u + lh + 1))
    A(f'v_add_u32 v{SCA}, 384, v{SCA}')
    A(f's_sub_u32 s{SCNT}, s{SCNT}, 1')
    A(f's_cmp_lg_u32 s{SCNT}, 0')
    A('s_cbranch_scc1 L_vloop')

    def kloads(slot, so, qs=range(4)):
        for q in qs:
            r = RING + slot * 32 + q * 4
            A(f'buffer_load_dwordx4 v[{r}:{r + 3}], v{VKT}, s[40:43], s{so} offen offset:{q * 64} {kvpol}')

    def vloads(slot, so):
        vpair(RING + slot * 32 + 16, 0, so)
        vpair(RING + slot * 32 + 16, 1, so)

    VKT, TK1, TK2 = 18, 28, 29
    A(f'v_and_b32 v{AL}, 3, v2')
    A(f'v_lshlrev_b32 v{AL}, 10, v{AL}')
    A(f'v_lshrrev_b32 v{VKT}, 2, v2')
    A(f'v_lshl_add_u32 v{AL}, v{VKT}, 8, v{AL}')
    A(f'v_lshl_add_u32 v{VKT}, v3, 4, v{AL}')
    outst = []
    for h in range(lh):
        outst += [('V', h // 2)] * 2
    tail = [('K', 0), ('K', 1), ('W', 0), ('W', 1)]

    def step(h, need=None, last=False):
        def f():
            w = GATE if need is None else min(GATE, younger(('V', need)))
            A(f's_waitcnt vmcnt({w})')
            if h < 6:
                vhalf(VR + 16 * ((h // 2) % 3), h & 1)
                outst.extend([('V', h // 2)] * 2)
                return
            while tail:
                kind, half = tail.pop(0)
                if kind == 'K':
                    kloads(0, SV, (2 * half, 2 * half + 1))
                else:
                    vpair(RING + 16, half, SV)
                outst.extend([('T', 0)] * 2)
                if not last:
                    break
        return f
    for u in range(3):
        vbody(VR + 16 * u, (SCA, (u + 1) * 128) if u < 2 else None, step(2 * u + lh), step(2 * u + lh + 1, u, u == 2))
    assert not tail
    stampit(6)
    A('s_mov_b64 exec, 1')
    A(f'ds_add_rtn_u32 v{TK1}, v{VZ}, v{VONE} offset:{L_TK}')
    A('s_mov_b64 exec, -1')
    A(f'v_lshrrev_b32 v{T0}, 3, v2')
    A(f'v_lshl_add_u32 v{T0}, v{T0}, 2, v3')
    A(f'v_lshlrev_b32 v{T0}, 7, v{T0}')
    A(f'v_and_b32 v{T1}, 7, v2')
    A(f'v_lshl_add_u32 v{PUB}, v{T1}, 4, v{T0}')
    A('v_lshlrev_b32 v30, 1, v2')
    A(f's_mul_i32 s68, s2, {S1}')
    A('v_lshlrev_b32 v11, 3, v1')
    A('s_lshl_b32 s64, s37, 9')
    A('v_add_u32 v12, s64, v11')
    A('s_lshl_b32 s64, s37, 10')
    A(f'v_add_u32 v19, s64, v{VV}')

    def qk(slot, wk):
        A(f's_waitcnt vmcnt({wk})')
        for q in range(4):
            k = RING + slot * 32 + q * 4
            c = '0' if q == 0 else f'v[{S}:{S + 3}]'
            A(f'v_mfma_f32_16x16x32_bf16 v[{S}:{S + 3}], v[{k}:{k + 3}], v[{Q + 4 * q}:{Q + 4 * q + 3}], {c}')

    def softmax_pv(slot, prepv):
        for n in range(4):
            A(f'v_cvt_pk_bf16_f32 v{S + n}, 0, v{S + n}')
        for n in range(4):
            A(f'v_mul_f32 v{S + n}, s66, v{S + n}')
        for n in range(4):
            A(f'v_cvt_pk_bf16_f32 v{S + n}, 0, v{S + n}')
        A(f'v_max3_f32 v{T0}, v{S}, v{S + 1}, v{S + 2}')
        A(f'v_max_f32 v{T0}, v{T0}, v{S + 3}')
        allred_g('v_max_f32', T0, T1)
        A(f'v_mul_f32 v{T0}, s67, v{T0}')
        A(f'v_max_f32 v{T0}, v{T0}, v{M2}')
        A(f'v_sub_f32 v{AL}, v{M2}, v{T0}')
        A(f'v_mov_b32 v{M2}, v{T0}')
        A(f'v_exp_f32 v{AL}, v{AL}')
        for n in range(4):
            A(f'v_fma_f32 v{S + n}, v{S + n}, s67, -v{M2}')
        for n in range(4):
            A(f'v_exp_f32 v{S + n}, v{S + n}')
        for r in range(4):
            A(f'v_mul_f32 v{ACC + r}, v{AL}, v{ACC + r}')
        A(f'v_cvt_pk_bf16_f32 v{PK}, v{S}, v{S + 1}')
        A(f'v_cvt_pk_bf16_f32 v{PK + 1}, v{S + 2}, v{S + 3}')
        build_b(BS, PK, 0)
        A(f'v_fma_f32 v{LS}, v{LS}, v{AL}, v{S}')
        A(f'v_add_f32 v{T0}, v{S + 1}, v{S + 2}')
        for n in range(4):
            if n + 1 < 4:
                build_b(BS + 4 * ((n + 1) & 1), PK + (n + 1) // 2, (n + 1) & 1)
            else:
                A(f'v_add_f32 v{LS}, v{LS}, v{S + 3}')
                A(f'v_add_f32 v{LS}, v{LS}, v{T0}')
            if n == 0:
                prepv()
            v = RING + slot * 32 + 16 + n * 4
            b = BS + 4 * (n & 1)
            A(f'v_mfma_f32_16x16x32_bf16 v[{ACC}:{ACC + 3}], v[{v}:{v + 3}], v[{b}:{b + 3}], v[{ACC}:{ACC + 3}]')

    A.label('L_sloop')
    for k in (0, 1):
        A('s_mov_b64 exec, 1')
        A('s_waitcnt lgkmcnt(0)')
        A(f'v_lshlrev_b32 v{TK1}, 2, v{TK1}')
        A.label(f'L_qt{k}')
        A(f'ds_read_b32 v{TK2}, v{TK1} offset:{L_QT}')
        A('s_waitcnt lgkmcnt(0)')
        A(f'v_readfirstlane_b32 s64, v{TK2}')
        A('s_nop 0')
        A('s_cmp_eq_u32 s64, 0')
        A(f's_cbranch_scc1 L_qt{k}')
        A('s_mov_b64 exec, -1')
        A(f's_mov_b32 s{SNX}, s64')
        A('s_waitcnt vmcnt(4)')
        kloads(1 - k, SNX)
        qk(k, 8)
        A.nop(8)

        def prepv():
            A(f's_cmp_eq_u32 s{SNX}, {KVOOB}')
            A('s_waitcnt vmcnt(4)')
            A(f's_cbranch_scc1 L_pv{k}')
            vloads(1 - k, SNX)
            A('s_mov_b64 exec, 1')
            A(f'ds_add_rtn_u32 v{TK1}, v{VZ}, v{VONE} offset:{L_TK}')
            A('s_mov_b64 exec, -1')
            A.label(f'L_pv{k}')
        softmax_pv(k, prepv)
        A(f's_cmp_eq_u32 s{SNX}, {KVOOB}')
        if k == 0:
            A('s_cbranch_scc1 L_sdone')
        else:
            A('s_cbranch_scc0 L_sloop')

    A.label('L_sdone')
    stampit(3)
    allred_g('v_add_f32', LS, T1)
    A(f'ds_write_b64 v12, v[{M2}:{M2 + 1}] offset:{L_MG + 4096}')
    A(f'ds_write_b128 v19, v[{ACC}:{ACC + 3}] offset:{L_MG}')
    A('s_mov_b64 exec, 1')
    A(f'ds_add_rtn_u32 v{T1}, v{VZ}, v{VONE} offset:{L_FIN}')
    A('s_mov_b64 exec, -1')
    for w in range(4):
        A(f'ds_read_b64 v[{BS + 2 * w}:{BS + 2 * w + 1}], v11 offset:{L_MG + 4096 + 512 * w}')
    for w in range(4):
        A(f'ds_read_b128 v[{Q + 4 * w}:{Q + 4 * w + 3}], v{VV} offset:{L_MG + 1024 * w}')
    A(f's_and_b32 s64, s{STAG}, 0xff')
    A('s_movk_i32 s65, 0xff')
    A(f'v_mov_b32 v{PK}, s64')
    A(f'v_mov_b32 v{T0}, s{STAG}')
    A('s_waitcnt lgkmcnt(4)' if not stamp else 's_waitcnt lgkmcnt(0)')
    A(f'v_readfirstlane_b32 s64, v{T1}')
    A(f'v_max_f32 v{M2}, v{BS}, v{BS + 2}')
    A('s_cmp_lg_u32 s64, 3')
    A('s_cbranch_scc1 L_send')
    A(f'v_max3_f32 v{M2}, v{M2}, v{BS + 4}, v{BS + 6}')
    for w in range(4):
        A(f'v_sub_f32 v{S + w}, v{BS + 2 * w}, v{M2}')
    for w in range(4):
        A(f'v_exp_f32 v{S + w}, v{S + w}')
    A(f'v_mov_b32 v{LS}, s{STAG}')
    A(f'v_mul_f32 v{AL}, v{S}, v{BS + 1}')
    for w in range(1, 4):
        A(f'v_fmac_f32 v{AL}, v{S + w}, v{BS + 2 * w + 1}')
    A('s_mov_b64 exec, 0x0101')
    A(f'buffer_store_dwordx4 v[{M2}:{M2 + 3}], v30, s[48:51], s68 offen offset:{L1ML} sc1')
    A('s_mov_b64 exec, -1')
    A('s_waitcnt lgkmcnt(0)')
    for r in range(4):
        A(f'v_mul_f32 v{ACC + r}, v{S}, v{Q + r}')
    for w in range(1, 4):
        for r in range(4):
            A(f'v_fmac_f32 v{ACC + r}, v{S + w}, v{Q + 4 * w + r}')
    for r in range(4):
        A(f'v_bfi_b32 v{ACC + r}, s65, v{PK}, v{ACC + r}')
    A(f'buffer_store_dwordx4 v[{ACC}:{ACC + 3}], v{PUB}, s[48:51], s68 offen sc1')
    stampit(4)
    if stamp:
        A.label('L_send')
        A('s_barrier')
        for _ in range(2): A('s_sleep 127')
    else:
        A('s_barrier')
        A.label('L_send')
    if prog:
        A('s_mov_b32 m0, 31')
        A('s_nop 0')
        A('v_writelane_b32 v10, s71, m0')
        A('s_lshl_b32 s65, s2, 2')
        A('s_add_u32 s65, s65, s37')
        A('s_lshl_b32 s65, s65, 7')
        A(f's_add_u32 s65, s65, {STAMP_OFF + 65536}')
        A('v_lshlrev_b32 v11, 2, v1')
        A('s_mov_b32 exec_hi, 0')
        A('buffer_store_dword v10, v11, s[48:51], s65 offen')
        A('s_mov_b64 exec, -1')
    stamp_store()
    A('s_endpgm')

    A.label('L_helper')
    if kfirst:
        A('s_load_dwordx8 s[20:27], s[0:1], 64')
        A('s_load_dwordx2 s[28:29], s[0:1], 96')
    A('s_setprio 2')
    HB = 48
    X, E = 64, 80
    A('v_lshlrev_b32 v11, 4, v1')
    A('v_mov_b32 v12, 0')
    A('v_lshlrev_b32 v23, 2, v1')
    for z in range(L_FLAG, L_ZEND, 256):
        A(f'ds_write_b32 v23, v12 offset:{z}')
    A('s_lshr_b32 s33, s31, 4')
    A('s_and_b32 s34, s31, 15')
    A('s_and_b32 s35, s2, 127')
    A('s_sub_u32 s64, s32, s31')
    A('s_and_b32 s64, s64, 7')
    A('s_lshr_b32 s65, s64, 2')
    A('s_lshl_b32 s72, s31, 1')
    A('s_add_u32 s72, s72, s65')
    A('s_lshl_b32 s73, s65, 4')
    A('s_add_u32 s73, s73, s34')
    A('s_and_b32 s64, s64, 3')
    A('s_cmp_lt_u32 s73, 18')
    A('s_cselect_b32 s3, 2, 0')
    A('s_cmp_eq_u32 s64, 2')
    A('s_cselect_b32 s3, s3, 0')
    A('s_cmp_eq_u32 s64, 0')
    A('s_cselect_b32 s3, 1, s3')
    A('v_mul_u32_u24 v13, 36, v1')
    A('s_mov_b32 s42, 2304')
    A('s_mov_b32 s43, 0x20000')
    A(f's_mov_b32 s46, {576 * 8192}')
    A('s_mov_b32 s47, 0x20000')
    A('v_lshrrev_b32 v14, 3, v1')
    A('v_lshlrev_b32 v14, 13, v14')
    A('v_and_b32 v15, 7, v1')
    if swz:
        A('v_lshrrev_b32 v16, 3, v1')
        A('v_and_b32 v16, 2, v16')
        A('v_xor_b32 v15, v15, v16')
    A('v_lshl_add_u32 v14, v15, 4, v14')
    A('v_xor_b32 v31, 64, v14')
    A(f's_mul_i32 s38, s30, {144 * 8192}')
    A('s_lshl_b32 s64, s72, 7')
    A('s_add_u32 s38, s38, s64')
    A(f's_mul_i32 s37, s30, {144 * 128}')
    A(f's_add_u32 s37, s37, {L_WQ}')
    A('s_lshl_b32 s64, s30, 2')
    A('s_add_u32 s64, s64, s3')
    A('s_cmp_eq_u32 s64, 2')
    A('s_cselect_b32 s70, 1, 0')
    A('s_cmp_eq_u32 s3, 1')
    A('s_cselect_b32 s70, 1, s70')
    A('s_waitcnt lgkmcnt(0)')
    A('s_mov_b32 s48, s28')
    A('s_mov_b32 s49, s29')
    A('s_mov_b32 s40, s4')
    A('s_mov_b32 s41, s5')
    A('s_mov_b32 s44, s10')
    A('s_mov_b32 s45, s11')
    A(f's_mov_b32 s64, {EPOCH}')
    A('s_load_dwordx2 s[78:79], s[28:29], s64')
    A('s_cmp_eq_u32 s70, 0')
    A('s_cbranch_scc1 L_h_x')
    A(f'buffer_load_dwordx4 v[{X}:{X + 3}], v13, s[40:43], 0 offen')
    A(f'buffer_load_dwordx4 v[{X + 4}:{X + 7}], v13, s[40:43], 0 offen offset:16')
    A(f'buffer_load_dword v{X + 8}, v13, s[40:43], 0 offen offset:32')
    A('s_cmp_lg_u32 s3, 1')
    A('s_cbranch_scc1 L_h_x')
    for n in range(18):
        A('s_mov_b32 m0, s37')
        A('s_add_u32 s37, s37, 1024')
        A(f'buffer_load_dwordx4 v{31 if (swz and n & 1) else 14}, s[44:47], s38 offen {wqpol} lds')
        A('s_add_u32 s38, s38, 0x10000')
    A.label('L_h_x')
    A('s_barrier')
    if cpf:
        A('s_cmp_lg_u32 s30, 3')
        A('s_cbranch_scc1 L_nocpf')
        A(f's_cmp_ge_u32 s31, {cpf}')
        A('s_cbranch_scc1 L_nocpf')
        A('s_cmp_eq_u32 s3, 1')
        A('s_cbranch_scc1 L_nocpf')
        A('s_getpc_b64 s[64:65]')
        A.label('L_pcref')
        A(f's_sub_u32 s64, s64, L_pcref-{KN}_kernel')
        A('s_subb_u32 s65, s65, 0')
        A('v_lshlrev_b32 v32, 7, v1')
        A(f'v_min_u32 v33, L_end-{KN}_kernel, v32')
        A('global_load_dword v36, v33, s[64:65]')
        for n in range(1, 3):
            A(f'v_add_u32 v32, 0x2000, v32')
            A(f'v_min_u32 v{33 + n}, L_end-{KN}_kernel, v32')
            A(f'global_load_dword v{36 + n}, v{33 + n}, s[64:65]')
        A.label('L_nocpf')
    A('s_cmp_eq_u32 s70, 0')
    A('s_cbranch_scc1 L_h_noln')

    def layernorm(src, dst):
        D = E + 18
        a, b, c = E + 36, E + 37, E + 38
        for k in range(9):
            A(f'v_lshlrev_b32 v{E + 2 * k}, 16, v{src + k}')
            A(f'v_and_b32 v{E + 2 * k + 1}, 0xffff0000, v{src + k}')
        A(f'v_add_f32 v{a}, v{E}, v{E + 1}')
        A(f'v_add_f32 v{b}, v{E + 2}, v{E + 3}')
        for n in range(4, 18, 2):
            A(f'v_add_f32 v{a}, v{a}, v{E + n}')
            A(f'v_add_f32 v{b}, v{b}, v{E + n + 1}')
        A(f'v_add_f32 v{a}, v{a}, v{b}')
        allred_row(a)
        swapred('v_permlane16_swap_b32', 'v_add_f32', a, b)
        A(f'v_mul_f32 v{a}, {f32(1.0 / 576)}, v{a}')
        for n in range(18):
            A(f'v_sub_f32 v{D + n}, v{E + n}, v{a}')
        A(f'v_mul_f32 v{b}, v{D}, v{D}')
        A(f'v_mul_f32 v{c}, v{D + 1}, v{D + 1}')
        for n in range(2, 18, 2):
            A(f'v_fmac_f32 v{b}, v{D + n}, v{D + n}')
            A(f'v_fmac_f32 v{c}, v{D + n + 1}, v{D + n + 1}')
        A(f'v_add_f32 v{b}, v{b}, v{c}')
        A(f'v_cvt_pk_bf16_f32 v{a}, 0, v{a}')
        allred_row(b)
        swapred('v_permlane16_swap_b32', 'v_add_f32', b, c)
        A(f'v_mul_f32 v{b}, {f32(1.0 / 576)}, v{b}')
        A(f'v_cvt_pk_bf16_f32 v{b}, 0, v{b}')
        A(f'v_add_f32 v{b}, {f32(1e-5)}, v{b}')
        A(f'v_cvt_pk_bf16_f32 v{b}, 0, v{b}')
        A(f'v_sqrt_f32 v{b}, v{b}')
        A(f'v_sub_f32 v{D}, v{E}, v{a}')
        A(f'v_cvt_pk_bf16_f32 v{b}, 0, v{b}')
        A(f'v_rcp_f32 v{b}, v{b}')
        for n in range(1, 18):
            A(f'v_sub_f32 v{D + n}, v{E + n}, v{a}')
        for n in range(18):
            A(f'v_cvt_pk_bf16_f32 v{D + n}, 0, v{D + n}')
        for n in range(18):
            A(f'v_mul_f32 v{D + n}, v{D + n}, v{b}')
        for k in range(9):
            A(f'v_cvt_pk_bf16_f32 v{dst + k}, v{D + 2 * k}, v{D + 2 * k + 1}')

    A('v_and_b32 v15, 1, v2')
    A('v_mul_u32_u24 v15, 1152, v15')
    A('v_lshl_add_u32 v15, v3, 4, v15')
    A('v_lshrrev_b32 v16, 2, v2')
    A('v_lshl_add_u32 v16, v3, 3, v16')
    A('v_lshlrev_b32 v16, 7, v16')
    A('v_and_b32 v17, 3, v1')
    A('v_lshl_add_u32 v16, v17, 3, v16')
    A('s_lshl_b32 s64, s30, 5')
    A('v_add_u32 v16, s64, v16')
    if swz:
        A('v_lshlrev_b32 v17, 2, v1')
        A('v_and_b32 v17, 0x60, v17')
        A('v_xor_b32 v16, v16, v17')
    A('v_add_u32 v20, 0x8000, v16')
    A('v_lshlrev_b32 v17, 2, v2')
    A('v_lshl_add_u32 v17, v3, 14, v17')
    A('s_lshl_b32 s39, s72, 8')
    A('s_lshl_b32 s64, s30, 6')
    A('s_add_u32 s39, s39, s64')
    A(f's_add_u32 s39, s39, {QX}')
    A('s_cmp_eq_u32 s3, 1')
    A('s_cbranch_scc1 L_h_wx')
    A('s_waitcnt vmcnt(0)')
    A.label('L_h_wx')
    A('s_waitcnt vmcnt(18)')
    if stamp == 2: stampit(4)
    layernorm(X, X)
    A('v_mov_b32 v18, 1')
    A('s_cmp_lg_u32 s3, 1')
    A('s_cbranch_scc1 L_h_ln2')
    for k in range(9):
        A(f'ds_write_b32 v13, v{X + k} offset:{L_XN + 4 * k}')
    QA, QB, QD = 120, 192, 76
    A('s_waitcnt lgkmcnt(0)')
    for t in range(18):
        A(f'ds_read_b128 v[{QA + 4 * t}:{QA + 4 * t + 3}], v15 offset:{L_XN + 64 * t}')
        if t == 8:
            A('s_waitcnt lgkmcnt(0)')
    if stamp == 2: stampit(5)
    A('s_waitcnt vmcnt(0)')
    A('s_mov_b64 exec, 1')
    A(f'ds_add_u32 v12, v18 offset:{L_CNT}')
    A('s_mov_b64 exec, -1')
    lds_wait('L_h_sync', L_CNT, 's_cmp_lt_u32', 4, 18, 12, 0)
    if stamp == 2:
        stampit(6)
        A('s_waitcnt lgkmcnt(0)')
    for t0 in (0, 6, 12):
        for t in range(t0, t0 + 6):
            r = QB + 4 * (t % 12)
            for h in range(2):
                off = L_WQ + 4096 * t + 512 * h
                base, off = (16, off) if off < 32768 else (20, off - 32768)
                A(f'ds_read_b64_tr_b16 v[{r + 2 * h}:{r + 2 * h + 1}], v{base} offset:{off}')
        for t in range(t0, t0 + 6):
            r = QB + 4 * (t % 12)
            A(f's_waitcnt lgkmcnt({2 * (t0 + 5 - t)})')
            c = '0' if t == 0 else f'v[{QD}:{QD + 3}]'
            A(f'v_mfma_f32_16x16x32_bf16 v[{QD}:{QD + 3}], v[{QA + 4 * t}:{QA + 4 * t + 3}], v[{r}:{r + 3}], {c}')
    A('v_mov_b32 v18, 1')
    A('s_mov_b64 exec, 1')
    A(f'ds_add_u32 v12, v18 offset:{L_SF}')
    A('s_mov_b64 exec, -1')
    A('s_add_u32 s64, s78, 1')
    A('s_add_u32 s65, s79, 1')
    A('v_cmp_eq_u32 vcc, 1, v3')
    A('v_mov_b32 v19, s64')
    A('v_mov_b32 v21, s65')
    A.nop(4)
    A('v_cndmask_b32 v19, v19, v21, vcc')
    A(f'v_cndmask_b32 v18, v{QD}, v{QD + 1}, vcc')
    A.nop(2)
    A(f'v_mov_b32_dpp v21, v18 quad_perm:[1,0,3,2] {DPP}')
    A('v_cvt_pk_bf16_f32 v18, v18, v21')
    A('s_mov_b64 exec, 0x55555555')
    A('buffer_store_dwordx2 v[18:19], v17, s[48:51], s39 offen sc1')
    A('s_mov_b64 exec, -1')
    stampit(1)
    A('s_branch L_h_q')
    A.label('L_h_ln2')
    layernorm(X, X)
    for k in range(9):
        A(f'ds_write_b32 v13, v{X + k} offset:{L_H + 4 * k}')
    A(f'ds_write_b32 v12, v18 offset:{L_HF}')
    A('s_branch L_h_join')

    A.label('L_h_noln')
    A.label('L_h_q')
    A('s_cmp_eq_u32 s30, 1')
    A('s_cbranch_scc0 L_h_join')
    A('s_lshl_b32 s39, s31, 10')
    A(f's_add_u32 s39, s39, {QX}')
    A('v_lshlrev_b32 v22, 3, v1')
    A('s_waitcnt lgkmcnt(0)')
    A('s_cmp_eq_u32 s33, 0')
    A('s_cselect_b32 s79, s78, s79')
    A('s_add_u32 s79, s79, 1')
    A(f's_mov_b32 s70, {SPIN_MAX}')
    lds_wait('L_go', L_GO, 's_cmp_eq_u32', 0, 14, 12, 4)
    PB = 64

    def qpoll(p):
        A(f'buffer_load_dwordx4 v[{PB + 4 * p}:{PB + 4 * p + 3}], v11, s[48:51], s39 offen sc1')
    for p in range(npoll - 1):
        qpoll(p)
        A(f's_sleep {qsleep}')
    A.label('L_qp')
    for p in range(npoll):
        qpoll((p + npoll - 1) % npoll)
        r = PB + 4 * p
        A(f's_waitcnt vmcnt({npoll - 1})')
        A(f'v_xor_b32 v14, s79, v{r + 1}')
        A(f'v_xor_b32 v15, s79, v{r + 3}')
        A(f'v_mov_b32 v16, v{r}')
        A('v_or_b32 v14, v14, v15')
        A(f'v_mov_b32 v17, v{r + 2}')
        A('v_cmp_ne_u32 vcc, 0, v14')
        A('s_cbranch_vccz L_qp_done')
        A('s_mov_b64 exec, vcc')
    A('s_sub_u32 s70, s70, 1')
    A('s_cmp_lg_u32 s70, 0')
    A('s_cbranch_scc1 L_qp')
    A.label('L_qp_done')
    A('s_mov_b64 exec, -1')
    A(f'ds_write_b64 v22, v[16:17] offset:{L_Q}')
    A('v_mov_b32 v14, 1')
    A('v_mov_b32 v15, s79')
    A(f'ds_write_b64 v12, v[14:15] offset:{L_FLAG}')
    stampit(1)

    A.label('L_h_join')
    make_sel()
    A('v_lshrrev_b32 v5, 3, v2')
    A('v_lshl_add_u32 v5, v5, 2, v3')
    A('v_and_b32 v7, 7, v2')
    A(f's_mul_i32 s74, s31, {8 * S1}')
    A('s_lshr_b32 s64, s32, 2')
    A('s_lshl_b32 s64, s64, 4')
    A('s_add_u32 s69, s74, s64')
    A('s_lshl_b32 s64, s32, 7')
    A('s_add_u32 s74, s74, s64')
    lds_wait('L_h_qf', L_FLAG, 's_cmp_eq_u32', 0, 14, 12, 8)
    A(f'ds_read_b32 v14, v12 offset:{L_TAG}')
    A('s_waitcnt lgkmcnt(0)')
    A('v_readfirstlane_b32 s79, v14')
    stampit(2)

    pc = [0]

    def paced(ins):
        if pc[0] >= hpace:
            A(f's_waitcnt vmcnt({hpace - 1})')
        A(ins)
        pc[0] += 1

    A(f's_mul_i32 s64, s31, {SP}')
    A(f's_add_u32 s36, s64, {POOLR}')
    A('s_add_u32 s60, s28, s36')
    A('s_addc_u32 s61, s29, 0')
    A('s_lshl_b32 s64, s32, 2')
    A('s_add_u32 s64, s64, s30')
    A('s_cmp_lg_u32 s64, 3')
    A('s_cbranch_scc1 L_nopool')
    A('s_and_b32 s64, s31, 3')
    A('s_lshl_b32 s64, s64, 3')
    A(f's_lshl_b32 s64, {4 * pd}, s64')
    A(f's_sub_u32 s64, {(128 - LIM) * 0x01010101}, s64')
    A('v_mov_b32 v14, s64')
    A('v_mov_b32 v15, s64')
    A('v_mov_b32 v16, s79')
    A('s_mov_b64 exec, 1')
    A('buffer_store_dwordx2 v[14:15], v12, s[48:51], s36 offen sc1')
    A('s_waitcnt vmcnt(0)')
    A('buffer_store_dword v16, v12, s[48:51], s36 offen offset:128 sc1')
    A('s_mov_b64 exec, -1')
    A.label('L_nopool')

    WO = 104
    W8 = 3
    A('s_mov_b32 s52, s12')
    A('s_mov_b32 s53, s13')
    A(f's_mov_b32 s54, {4096 * 1152}')
    A('s_mov_b32 s55, 0x20000')
    A('v_mul_u32_u24 v30, 1152, v5')
    A('v_lshl_add_u32 v30, v7, 4, v30')

    def wo_loads(ts, emit, tagl):
        A(f's_mul_i32 s64, s35, {32 * 1152}')
        A(f's_add_u32 s64, s64, {ts[0] * 8 * 1152}')
        A('s_lshl_b32 s65, s30, 8')
        A('s_add_u32 s65, s65, s64')
        for t in ts:
            for bl in range(2):
                r = WO + bl * 16 + t * 4
                emit(f'buffer_load_dwordx4 v[{r}:{r + 3}], v30, s[52:55], s65 offen offset:{128 * bl} {wopol}')
            if t != ts[-1]:
                A(f's_add_u32 s65, s65, {8 * 1152}')
        A(f's_cmp_lg_u32 s30, {W8}')
        A(f's_cbranch_scc1 L_nowo8{tagl}')
        for t in ts:
            r = WO + 32 + t * 4
            emit(f'buffer_load_dwordx4 v[{r}:{r + 3}], v30, s[52:55], s64 offen offset:1024 {wopol}')
            if t != ts[-1]:
                A(f's_add_u32 s64, s64, {8 * 1152}')
        A.label(f'L_nowo8{tagl}')
    ne = woearly if wolate else 4
    if ne:
        wo_loads(list(range(ne)), paced, 'a')

    A('s_lshl_b32 s80, s73, 5')
    A('s_mul_i32 s64, s33, 576')
    A('s_add_u32 s80, s80, s64')
    G = 176
    A('v_and_b32 v17, 1, v3')
    A('v_lshrrev_b32 v18, 1, v3')
    A('v_lshl_add_u32 v17, v17, 1, v18')
    A('v_lshl_add_u32 v17, v17, 3, v7')
    A('v_lshlrev_b32 v24, 2, v17')
    A('v_add_u32 v17, s80, v17')
    A('v_lshlrev_b32 v25, 1, v17')
    A('s_cmp_lg_u32 s3, 2')
    A('s_cbranch_scc1 L_nob')
    PW = 64
    W1, B1, W2 = 152, 170, 188
    U = 206
    A('s_mul_i32 s64, s30, 2304')
    A('v_add_u32 v15, s64, v11')
    A('v_add_u32 v16, s64, v23')
    for k, base in enumerate((16, 18, 20)):
        r = PW + 12 * k
        paced(f'global_load_dwordx4 v[{r}:{r + 3}], v15, s[{base}:{base + 1}] {bpol}')
        paced(f'global_load_dwordx4 v[{r + 4}:{r + 7}], v15, s[{base}:{base + 1}] offset:1024 {bpol}')
        paced(f'global_load_dword v{r + 8}, v16, s[{base}:{base + 1}] offset:2048 {bpol}')
    paced('buffer_load_ushort v26, v25, s[40:43], 0 offen')
    paced('global_load_ushort v27, v12, s[22:23]')
    lds_wait('L_h_hf', L_HF, 's_cmp_eq_u32', 0, 14, 12, 8)
    c0 = -2.0 * math.sqrt(2.0 / math.pi) * LOG2E
    A(f's_mov_b32 s66, {f32(c0 * 0.044715)}')
    A(f'v_mov_b32 v17, {f32(c0)}')
    A('s_lshl_b32 s64, s80, 1')
    A(f's_add_u32 s64, s64, {L_H}')
    A('v_mov_b32 v18, s64')
    A('s_lshl_b32 s64, s30, 7')
    A(f's_add_u32 s64, s64, {L_BP}')
    A('v_mov_b32 v19, s64')
    A('s_waitcnt vmcnt(0)')
    for k, dst in enumerate((W1, B1, W2)):
        for n in range(9):
            A(f'v_lshlrev_b32 v{dst + 2 * n}, 16, v{PW + 12 * k + n}')
            A(f'v_and_b32 v{dst + 2 * n + 1}, 0xffff0000, v{PW + 12 * k + n}')
    A('s_mov_b32 s70, 0')
    A.label('L_bloop')
    A('ds_read_u16 v20, v18')
    A('v_add_u32 v18, 2, v18')
    A('s_waitcnt lgkmcnt(0)')
    A('v_lshlrev_b32 v20, 16, v20')
    V2 = U + 18
    for n in range(18): A(f'v_mul_f32 v{U + n}, v20, v{W1 + n}')
    for n in range(18): A(f'v_cvt_pk_bf16_f32 v{U + n}, 0, v{U + n}')
    for n in range(18): A(f'v_add_f32 v{U + n}, v{U + n}, v{B1 + n}')
    for n in range(18): A(f'v_cvt_pk_bf16_f32 v{U + n}, 0, v{U + n}')
    for n in range(18): A(f'v_mul_f32 v{V2 + n}, v{U + n}, v{U + n}')
    for n in range(18): A(f'v_fma_f32 v{V2 + n}, v{V2 + n}, s66, v17')
    for n in range(18): A(f'v_mul_f32 v{V2 + n}, v{V2 + n}, v{U + n}')
    for n in range(18): A(f'v_exp_f32 v{V2 + n}, v{V2 + n}')
    for n in range(18): A(f'v_add_f32 v{V2 + n}, 1.0, v{V2 + n}')
    for n in range(18): A(f'v_rcp_f32 v{V2 + n}, v{V2 + n}')
    for n in range(18): A(f'v_mul_f32 v{U + n}, v{U + n}, v{V2 + n}')
    for n in range(18): A(f'v_cvt_pk_bf16_f32 v{U + n}, 0, v{U + n}')
    A(f'v_mul_f32 v21, v{U}, v{W2}')
    A(f'v_mul_f32 v22, v{U + 1}, v{W2 + 1}')
    for n in range(2, 18, 2):
        A(f'v_fmac_f32 v21, v{U + n}, v{W2 + n}')
        A(f'v_fmac_f32 v22, v{U + n + 1}, v{W2 + n + 1}')
    A('v_add_f32 v21, v21, v22')
    allred_row(21)
    allred_g('v_add_f32', 21, 22)
    A('ds_write_b32 v19, v21')
    A('v_add_u32 v19, 4, v19')
    A('s_add_u32 s70, s70, 1')
    A('s_cmp_lt_u32 s70, 32')
    A('s_cbranch_scc1 L_bloop')
    A('v_mov_b32 v14, 1')
    A('s_mov_b64 exec, 1')
    A(f'ds_add_u32 v12, v14 offset:{L_BC}')
    A('s_mov_b64 exec, -1')
    lds_wait('L_h_bc', L_BC, 's_cmp_lt_u32', 4, 14, 12, 8)
    for w in range(4):
        A(f'ds_read_b32 v{G + w}, v24 offset:{L_BP + 128 * w}')
    A('s_waitcnt lgkmcnt(0)')
    A(f'v_add_f32 v{G}, v{G}, v{G + 1}')
    A(f'v_add_f32 v{G + 2}, v{G + 2}, v{G + 3}')
    A(f'v_add_f32 v{G}, v{G}, v{G + 2}')
    A('v_lshlrev_b32 v26, 16, v26')
    A('v_lshlrev_b32 v27, 16, v27')
    A(f'v_cvt_pk_bf16_f32 v{G}, 0, v{G}')
    A(f'v_add_f32 v27, v{G}, v27')
    A('v_cvt_pk_bf16_f32 v27, 0, v27')
    A.label('L_nob')

    A('s_mov_b32 s56, s24')
    A('s_mov_b32 s57, s25')
    A('s_mov_b32 s58, 2304')
    A('s_mov_b32 s59, 0x20000')
    A(f'v_mul_u32_u24 v20, {S1}, v7')
    A('v_lshl_add_u32 v19, v5, 4, v20')
    A('v_lshlrev_b32 v21, 4, v7')
    A('v_lshl_add_u32 v21, v3, 7, v21')
    A('v_lshlrev_b32 v22, 3, v1')
    A('v_lshrrev_b32 v31, 3, v1')
    A(f'v_mul_u32_u24 v31, {S2}, v31')
    A('v_lshl_add_u32 v31, v7, 4, v31')
    A(f's_mul_i32 s77, s2, {S2}')
    A(f's_add_u32 s77, s77, {L2A}')
    A('s_lshl_b32 s64, s30, 9')
    A('s_add_u32 s76, s77, s64')
    A('s_lshl_b32 s64, s33, 2')
    A('s_add_u32 s64, s64, s30')
    A(f's_mul_i32 s81, s64, {32 * S2}')
    A('s_lshl_b32 s64, s73, 7')
    A('s_add_u32 s81, s81, s64')
    A(f's_add_u32 s81, s81, {L2A}')
    A(f's_add_u32 s82, s81, {8 * S2}')
    A(f's_add_u32 s46, s81, {16 * S2}')
    A(f's_add_u32 s47, s81, {24 * S2}')
    GS = (81, 82, 46, 47)
    A('s_and_b32 s78, s79, 0xff')
    A('s_movk_i32 s75, 0xff')
    A('v_mov_b32 v28, s78')
    A('v_mov_b32 v29, 1')
    if warm:
        A('s_cmp_lg_u32 s30, 3')
        A('s_cbranch_scc1 L_nowarm1')
        A('buffer_load_dwordx4 v[200:203], v19, s[48:51], s74 offen sc1')
        A(f'buffer_load_dwordx4 v[204:207], v20, s[48:51], s69 offen offset:{L1ML} sc1')
        A.label('L_nowarm1')
        A('s_cmp_lg_u32 s3, 2')
        A('s_cbranch_scc1 L_nowarm2')
        for k in range(4):
            A(f'buffer_load_dwordx4 v[{208 + 4 * k}:{211 + 4 * k}], v31, s[48:51], s{GS[k]} offen sc1')
        A.label('L_nowarm2')

    A('s_cmp_lg_u32 s30, 2')
    A('s_cbranch_scc1 L_nodisp')
    SC, SF, SOWN, SOWNC, SN, SZ = 66, 68, 69, 70, 71, 37
    A('v_lshlrev_b32 v16, 12, v1')
    A('s_lshl_b32 s64, s32, 20')
    A(f's_add_u32 s64, s64, {ns * 16384}')
    A('s_cmp_eq_u32 s3, 1')
    A(f's_cselect_b32 s65, {pd * 16384}, 0')
    A('s_sub_u32 s64, s64, s65')
    A('v_add_u32 v14, s64, v16')
    A(f's_mov_b64 exec, {(1 << (4 * npre)) - 1}')
    A(f'ds_write_b32 v23, v14 offset:{L_QT}')
    A('s_mov_b64 exec, -1')
    A(f's_mov_b32 s{SN}, {4 * npre}')
    A(f's_mov_b32 s83, {SPIN_MAX}')
    A.label('L_prdy')
    A('buffer_load_dword v14, v12, s[48:51], s36 offen offset:128 sc1')
    A('s_sub_u32 s83, s83, 1')
    A('s_waitcnt vmcnt(0)')
    A('v_readfirstlane_b32 s64, v14')
    A('s_cmp_eq_u32 s83, 0')
    A('s_cbranch_scc1 L_dend')
    A('s_cmp_eq_u32 s64, s79')
    A('s_cbranch_scc1 L_prdy_ok')
    A('s_sleep 64')
    A('s_branch L_prdy')
    A.label('L_prdy_ok')
    A(f's_lshl_b32 s{SOWN}, s32, 3')
    A(f's_mov_b32 s{SF}, s{SOWN}')
    A(f's_sub_u32 s{SOWNC}, 64, s{SOWN}')
    A('s_mov_b32 s62, 0x80808080')
    A('s_mov_b32 s63, 0x80808080')
    A(f's_mov_b32 s{SZ}, {first}')
    lds_wait('L_dw0', L_TK, 's_cmp_eq_u32', 0, 14, 12, 16)
    A.label('L_dloop')
    A(f's_sub_u32 s83, s{SN}, {theta}')
    lds_wait('L_dw', L_TK, 's_cmp_lt_u32', 's83', 14, 12, dsleep)
    A.label('L_drty')
    A(f's_mov_b32 s38, s{SZ}')
    A('s_mov_b32 s39, 0')
    A(f's_lshl_b64 s[38:39], s[38:39], s{SF}')
    A(f's_mov_b64 s[{SC}:{SC + 1}], s[38:39]')
    A(f's_atomic_add_x2 s[{SC}:{SC + 1}], s[60:61], 0 glc')
    A(f's_lshl_b32 s83, s{SF}, 17')
    A(f's_lshl_b32 s64, s{SN}, 2')
    A('v_add_u32 v15, s64, v23')
    A('s_waitcnt lgkmcnt(0)')
    A(f's_lshr_b64 s[64:65], s[{SC}:{SC + 1}], s{SF}')
    A('s_and_b32 s64, s64, 0xff')
    A('s_cmp_ge_u32 s64, 128')
    A('s_cbranch_scc1 L_dfail')
    A('s_lshl_b32 s65, s64, 12')
    A('s_add_u32 s65, s65, s83')
    A(f's_add_u32 s65, s65, {((ns + npre) * 16384 - (128 - LIM) * 4096) & 0xffffffff}')
    A('v_add_u32 v14, s65, v16')
    A('s_sub_u32 s65, 128, s64')
    A(f's_min_u32 s65, s65, s{SZ}')
    A('s_bfm_b64 exec, s65, 0')
    A(f'ds_write_b32 v15, v14 offset:{L_QT}')
    A('s_mov_b64 exec, -1')
    A(f's_add_u32 s{SN}, s{SN}, s65')
    A.label('L_dfail')
    A(f's_add_u32 s{SC}, s38, s{SC}')
    A(f's_addc_u32 s{SC + 1}, s39, s{SC + 1}')
    A(f's_andn2_b64 s[38:39], s[62:63], s[{SC}:{SC + 1}]')
    A(f's_lshr_b64 s[44:45], s[38:39], s{SOWN}')
    A(f's_lshl_b64 s[38:39], s[38:39], s{SOWNC}')
    A('s_or_b64 s[38:39], s[38:39], s[44:45]')
    A('s_cbranch_scc0 L_dend')
    A('s_ff1_i32_b64 s65, s[38:39]')
    A(f's_add_u32 s65, s65, s{SOWN}')
    A(f's_and_b32 s{SF}, s65, 56')
    A(f's_lshr_b64 s[38:39], s[{SC}:{SC + 1}], s{SF}')
    A('s_and_b32 s38, s38, 0xff')
    A(f's_cmp_lt_u32 s38, {128 - big}')
    A(f's_cselect_b32 s{SZ}, 4, {small}')
    if huge < 99:
        A(f's_cmp_lt_u32 s38, {128 - huge}')
        A(f's_cselect_b32 s{SZ}, 8, s{SZ}')
    A('s_cmp_ge_u32 s64, 128')
    A('s_cbranch_scc1 L_drty')
    A(f's_cmp_lt_u32 s{SN}, 160')
    A('s_cbranch_scc1 L_dloop')
    A.label('L_dend')
    A(f's_lshl_b32 s64, s{SN}, 2')
    A('v_add_u32 v15, s64, v23')
    A(f'v_mov_b32 v14, {KVOOB}')
    A('s_mov_b64 exec, 15')
    A(f'ds_write_b32 v15, v14 offset:{L_QT}')
    A('s_mov_b64 exec, -1')
    A(f'v_mov_b32 v14, s{SN}')
    A(f'ds_write_b32 v12, v14 offset:{L_EN}')
    A.label('L_nodisp')
    if wolate in (1, 2):
        lds_wait('L_ww0', L_TK, 's_cmp_eq_u32', 0, 14, 12, 32)
        A('s_add_u32 s65, s30, 1')
        A('s_and_b32 s65, s65, 3')
        if wolate == 2:
            A('s_mov_b32 s65, 3')
        A.label('L_ww')
        A(f'ds_read_b64 v[14:15], v12 offset:{L_TK}')
        A('s_waitcnt lgkmcnt(0)')
        A('v_readfirstlane_b32 s64, v14')
        A('v_readfirstlane_b32 s83, v15')
        A(f's_add_u32 s64, s64, {wooff}')
        A('s_cmp_eq_u32 s83, 0')
        A('s_cbranch_scc1 L_wws')
        A('s_add_u32 s83, s83, s65')
        A('s_cmp_gt_u32 s64, s83')
        A('s_cbranch_scc1 L_wwd')
        A.label('L_wws')
        A('s_sleep 1')
        A('s_branch L_ww')
        A.label('L_wwd')
        A('s_waitcnt vmcnt(0)')
        wo_loads(list(range(ne, 4)), A, 'b')
    else:
        A('s_waitcnt vmcnt(0) lgkmcnt(0)')
    A('s_barrier')
    if wolate == 3:
        wo_loads(list(range(ne, 4)), A, 'b')
    stampit(3)
    leakit(4, 0)

    P1, O, W = 200, 232, 236
    A('s_cmp_lg_u32 s30, 3')
    A('s_cbranch_scc1 L_ow')
    A(f's_mov_b32 s70, {SPIN_MAX}')
    def poll1(p):
        r = P1 + 8 * p
        A(f'buffer_load_dwordx4 v[{r}:{r + 3}], v20, s[48:51], s69 offen offset:{L1ML} sc1')
        A(f'buffer_load_dwordx4 v[{r + 4}:{r + 7}], v19, s[48:51], s74 offen sc1')
    assert np1 <= 4
    for p in range(np1 - 1):
        poll1(p)
        A(f's_sleep {ps1}')
    A.label('L_p1')
    for p in range(np1):
        poll1((p + np1 - 1) % np1)
        r = P1 + 8 * p
        A(f's_waitcnt vmcnt({2 * (np1 - 1)})')
        for t in range(4):
            A(f'v_xor_b32 v{O + t}, s78, v{r + 4 + t}')
        A(f'v_xor_b32 v17, s79, v{r + 1}')
        A(f'v_xor_b32 v18, s79, v{r + 3}')
        A(f'v_or3_b32 v14, v{O}, v{O + 1}, v{O + 2}')
        A(f'v_or_b32 v14, v14, v{O + 3}')
        A(f'v_mov_b32 v15, v{r}')
        A('v_and_b32 v14, 0xff, v14')
        A('v_or3_b32 v14, v14, v17, v18')
        A(f'v_mov_b32 v16, v{r + 2}')
        A('v_cmp_ne_u32 vcc, 0, v14')
        A('s_cbranch_vccz L_p1_done')
        A('s_mov_b64 exec, vcc')
    A('s_sub_u32 s70, s70, 1')
    A('s_cmp_lg_u32 s70, 0')
    A('s_cbranch_scc1 L_p1')
    A.label('L_p1_done')
    A('s_mov_b64 exec, -1')
    if stamp == 1:
        stampit(4)
    A(f'v_max_f32_dpp v17, v15, v15 quad_perm:[1,0,3,2] {DPP}')
    for m in ('quad_perm:[2,3,0,1]', 'row_half_mirror'):
        A.nop(2)
        A(f'v_max_f32_dpp v17, v17, v17 {m} {DPP}')
    A('v_sub_f32 v15, v15, v17')
    A('v_exp_f32 v15, v15')
    A.nop(1)
    A('v_mul_f32 v16, v15, v16')
    for t in range(4):
        A(f'v_mul_f32 v{O + t}, v15, v{O + t}')
    for m in ('quad_perm:[1,0,3,2]', 'quad_perm:[2,3,0,1]', 'row_half_mirror'):
        for q in (16, O, O + 1, O + 2, O + 3):
            A(f'v_add_f32_dpp v{q}, v{q}, v{q} {m} {DPP}')
    A('v_rcp_f32 v16, v16')
    A.nop(1)
    for t in range(4):
        A(f'v_mul_f32 v{O + t}, v{O + t}, v16')
    A(f'v_cvt_pk_bf16_f32 v{W}, v{O}, v{O + 1}')
    A(f'v_cvt_pk_bf16_f32 v{W + 1}, v{O + 2}, v{O + 3}')
    A(f'ds_write_b64 v22, v[{W}:{W + 1}] offset:{L_OW}')
    A(f'ds_write_b32 v12, v29 offset:{L_OF}')
    A('s_branch L_proj')
    A.label('L_ow')
    A(f'ds_read_b32 v14, v12 offset:{L_OF}')
    A(f'ds_read_b64 v[{W}:{W + 1}], v22 offset:{L_OW}')
    A('s_waitcnt lgkmcnt(0)')
    A('v_cmp_eq_u32 vcc, 0, v14')
    A('s_cbranch_vccnz L_ow')
    if stamp == 1:
        stampit(4)
    if wolate:
        A('s_waitcnt vmcnt(0)')
    A.label('L_proj')
    DX, DY, DZ = 240, 244, 248
    build_b(HB, W, 0)
    for t in range(4):
        if t < 3:
            build_b(HB + 4 * (t + 1), W + (t + 1) // 2, (t + 1) & 1)
        for bl, D in ((0, DX), (1, DY)):
            r = WO + bl * 16 + t * 4
            c = '0' if t == 0 else f'v[{D}:{D + 3}]'
            A(f'v_mfma_f32_16x16x32_bf16 v[{D}:{D + 3}], v[{r}:{r + 3}], v[{HB + 4 * t}:{HB + 4 * t + 3}], {c}')
    A(f's_cmp_lg_u32 s30, {W8}')
    A('s_cbranch_scc1 L_nob8a')
    for t in range(4):
        r = WO + 32 + t * 4
        c = '0' if t == 0 else f'v[{DZ}:{DZ + 3}]'
        A(f'v_mfma_f32_16x16x32_bf16 v[{DZ}:{DZ + 3}], v[{r}:{r + 3}], v[{HB + 4 * t}:{HB + 4 * t + 3}], {c}')
    A.label('L_nob8a')
    A.nop(6)
    for r in range(4):
        A(f'v_permlane32_swap_b32 v{DX + r}, v{DY + r}')
    A.nop(1)
    for r in range(4):
        A(f'v_add_f32_dpp v{DX + r}, v{DY + r}, v{DX + r} row_ror:8 {DPP}')
    for r in range(4):
        A(f'v_bfi_b32 v{DX + r}, s75, v28, v{DX + r}')
    A('s_mov_b32 exec_lo, 0x00ff00ff')
    A('s_mov_b32 exec_hi, 0x00ff00ff')
    A(f'buffer_store_dwordx4 v[{DX}:{DX + 3}], v21, s[48:51], s76 offen sc1')
    A('s_mov_b64 exec, -1')
    A(f's_cmp_lg_u32 s30, {W8}')
    A('s_cbranch_scc1 L_nob8b')
    for r in range(4):
        A(f'v_permlane32_swap_b32 v{DZ + r}, v{DY + r}')
    A.nop(1)
    for r in range(4):
        A(f'v_add_f32_dpp v{DZ + r}, v{DY + r}, v{DZ + r} row_ror:8 {DPP}')
    for r in range(4):
        A(f'v_bfi_b32 v{DZ + r}, s75, v28, v{DZ + r}')
    A('s_mov_b64 exec, 0x00ff00ff')
    A(f'buffer_store_dwordx4 v[{DZ}:{DZ + 3}], v21, s[48:51], s77 offen offset:2048 sc1')
    A('s_mov_b64 exec, -1')
    A.label('L_nob8b')
    if stamp == 1:
        stampit(5)
    A('s_cmp_lg_u32 s3, 2')
    A('s_cbranch_scc1 L_hend')
    P2 = 104
    A(f's_mov_b32 s70, {SPIN_MAX}')
    for k in range(4):
        A(f's_mov_b64 s[{60 + 2 * k}:{61 + 2 * k}], -1')
    assert np2 <= 4

    def poll2(p, masked):
        for k in range(4):
            r = P2 + 16 * p + 4 * k
            if masked and np2 == 1:
                A(f's_mov_b64 exec, s[{60 + 2 * k}:{61 + 2 * k}]')
                A(f's_cbranch_execz L_gs{k}')
            elif masked:
                A(f's_or_b64 exec, s[{60 + 2 * k}:{61 + 2 * k}], 1')
            A(f'buffer_load_dwordx4 v[{r}:{r + 3}], v31, s[48:51], s{GS[k]} offen sc1')
            if masked and np2 == 1:
                A.label(f'L_gs{k}')
    for p in range(np2 - 1):
        poll2(p, False)
        A(f's_sleep {ps2}')
    A.label('L_ga')
    for p in range(np2):
        poll2((p + np2 - 1) % np2, True)
        A(f's_waitcnt vmcnt({4 * (np2 - 1)})')
        for k in range(4):
            r = P2 + 16 * p + 4 * k
            A(f's_mov_b64 exec, s[{60 + 2 * k}:{61 + 2 * k}]')
            A(f's_cbranch_execz L_gc{p}_{k}')
            for q in range(4):
                A(f'v_xor_b32 v{G + 4 * k + q}, s78, v{r + q}')
            A(f'v_or3_b32 v17, v{G + 4 * k}, v{G + 4 * k + 1}, v{G + 4 * k + 2}')
            A(f'v_or_b32 v17, v17, v{G + 4 * k + 3}')
            A('v_and_b32 v17, 0xff, v17')
            A(f'v_cmp_ne_u32 s[{60 + 2 * k}:{61 + 2 * k}], 0, v17')
            A.label(f'L_gc{p}_{k}')
        A('s_or_b64 s[38:39], s[60:61], s[62:63]')
        A('s_or_b64 s[38:39], s[38:39], s[64:65]')
        A('s_or_b64 s[38:39], s[38:39], s[66:67]')
        A('s_cbranch_scc0 L_ga_done')
    A('s_sub_u32 s70, s70, 1')
    A('s_cmp_lg_u32 s70, 0')
    A('s_cbranch_scc1 L_ga')
    A.label('L_ga_done')
    A('s_mov_b64 exec, -1')
    if stamp == 1:
        stampit(2)
    for r in range(4):
        A(f'v_add_f32 v{G + r}, v{G + r}, v{G + 4 + r}')
        A(f'v_add_f32 v{G + 8 + r}, v{G + 8 + r}, v{G + 12 + r}')
    for r in range(4):
        A(f'v_add_f32 v{G + r}, v{G + r}, v{G + 8 + r}')
    A('s_lshl_b32 s64, s30, 8')
    A(f'v_permlane32_swap_b32 v{G}, v{G + 1}')
    A(f'v_permlane32_swap_b32 v{G + 2}, v{G + 3}')
    A(f'v_add_f32 v{G}, v{G}, v{G + 1}')
    A(f'v_add_f32 v{G + 2}, v{G + 2}, v{G + 3}')
    A('v_add_u32 v17, s64, v23')
    A.nop(1)
    A(f'v_permlane16_swap_b32 v{G}, v{G + 2}')
    A(f'v_add_f32 v{G}, v{G}, v{G + 2}')
    A.nop(2)
    A(f'v_add_f32_dpp v{G}, v{G}, v{G} row_ror:8 {DPP}')
    A(f'ds_write_b32 v17, v{G} offset:{L_P2}')
    A('s_mov_b64 exec, 1')
    A(f'ds_add_rtn_u32 v14, v12, v29 offset:{L_F2}')
    A('s_mov_b64 exec, -1')
    for w in range(4):
        A(f'ds_read_b32 v{G + 4 + w}, v23 offset:{L_P2 + 256 * w}')
    A('s_waitcnt lgkmcnt(0)')
    A('v_readfirstlane_b32 s64, v14')
    A(f'v_add_f32 v{G}, v{G + 4}, v{G + 5}')
    A(f'v_add_f32 v{G + 1}, v{G + 6}, v{G + 7}')
    A('s_cmp_lg_u32 s64, 3')
    A('s_cbranch_scc1 L_hend')
    A(f'v_add_f32 v{G}, v{G}, v{G + 1}')
    A(f'v_cvt_pk_bf16_f32 v{G}, 0, v{G}')
    A(f'v_add_f32 v{G}, v26, v{G}')
    A(f'v_cvt_pk_bf16_f32 v{G}, 0, v{G}')
    A(f'v_add_f32 v{G}, v{G}, v27')
    A(f'v_cvt_pk_bf16_f32 v{G}, v{G}, v{G}')
    A('s_mov_b32 exec_lo, 0x00ff00ff')
    A('s_mov_b32 exec_hi, 0x00ff00ff')
    A(f'buffer_store_short v{G}, v25, s[56:59], 0 offen {outpol}')
    A('s_cmp_lg_u32 s73, 0')
    A('s_cbranch_scc1 L_noep')
    A('v_mov_b32 v17, s79')
    A('s_lshl_b32 s64, s33, 2')
    A(f's_add_u32 s64, s64, {EPOCH}')
    A('s_mov_b64 exec, 1')
    A('buffer_store_dword v17, v12, s[48:51], s64 offen')
    A.label('L_noep')
    A('s_mov_b64 exec, -1')
    if stamp == 1:
        stampit(6)
    leakit(1)
    A.label('L_hend')
    if stamp:
        for _ in range(2): A('s_sleep 127')
    stamp_store()
    A.label('L_end')
    A('s_endpgm')
    if leak:
        A.L += ['.globl post_kernel', '.p2align 8', '.type post_kernel,@function', 'post_kernel:']
        A('s_cmp_ge_u32 s2, 1')
        A('s_cbranch_scc1 L_pend')
        A('s_load_dwordx2 s[4:5], s[0:1], 96')
        A('s_memrealtime s[8:9]')
        A(f's_mov_b32 s6, {EPOCH + 64}')
        A('s_waitcnt lgkmcnt(0)')
        A('s_load_dword s7, s[4:5], s6')
        A('s_waitcnt lgkmcnt(0)')
        A(f's_sub_u32 s7, s7, {lbase}')
        A('s_min_u32 s7, s7, 5000')
        A('s_mul_i32 s7, s7, 10')
        A.label('L_pspin')
        A('s_memrealtime s[10:11]')
        A('s_waitcnt lgkmcnt(0)')
        A('s_sub_u32 s10, s10, s8')
        A('s_cmp_lt_u32 s10, s7')
        A('s_cbranch_scc1 L_pspin')
        A.label('L_pend')
        A('s_endpgm')
    A.L.append('.section .rodata,"a"')
    A.L.append('.p2align 6')
    A.L.append(f'.amdhsa_kernel {KN}_kernel')
    A('.amdhsa_next_free_vgpr 256')
    A('.amdhsa_next_free_sgpr 102')
    A('.amdhsa_accum_offset 256')
    A('.amdhsa_group_segment_fixed_size 0')
    A('.amdhsa_kernarg_size 104')
    A('.amdhsa_user_sgpr_count 2')
    A('.amdhsa_user_sgpr_kernarg_segment_ptr 1')
    A('.amdhsa_system_sgpr_workgroup_id_x 1')
    A.L.append('.end_amdhsa_kernel')
    if leak:
        A.L += ['.p2align 6', '.amdhsa_kernel post_kernel', '  .amdhsa_next_free_vgpr 16', '  .amdhsa_next_free_sgpr 32', '  .amdhsa_accum_offset 16',
                '  .amdhsa_group_segment_fixed_size 0', '  .amdhsa_kernarg_size 104', '  .amdhsa_user_sgpr_count 2', '  .amdhsa_user_sgpr_kernarg_segment_ptr 1',
                '  .amdhsa_system_sgpr_workgroup_id_x 1', '.end_amdhsa_kernel']
    return A.text()


if __name__ == '__main__':
    out = sys.argv[1] if len(sys.argv) > 1 else 'cdna_kernels/' + KN + '.s'
    kw = {}
    for a in sys.argv[2:]:
        k, v = a.split('=')
        kw[k] = int(v) if v.lstrip('-').isdigit() else v
    open(out, 'w').write(gen(**kw))
    print('wrote', out)
```

```python
import struct, sys, math

KN = 'parallel_sum__gqa_block_cached__mixer_token_mlp__decode'


def f32(x):
    return '0x%08x' % struct.unpack('<I', struct.pack('<f', x))[0]


HEADER = open('cdna_kernels/' + KN + '.s.ref').read().split('; Override launch')[0]

LOG2E = 1.4426950408889634
S1 = 1280
L1ML = 1024
S2 = 2304
L2A = 256 * S1
POOLR = L2A + 256 * S2
SP = 768
QX = POOLR + 32 * SP
EPOCH = QX + 32768
WS_SIZE = EPOCH + 256
STAMP_OFF = 8 << 20
SPIN_MAX = 200000
KVOOB = 0x800000
L_Q = 0
L_FLAG, L_TAG, L_CNT, L_HF, L_TK, L_FIN, L_BC, L_OF, L_F2, L_EN, L_GO, L_SF = 512, 516, 520, 524, 528, 548, 536, 540, 544, 532, 552, 556
L_QT = 576
L_ZEND = 1280
L_BP = 1280
L_OW = 1792
L_P2 = 2304
L_XN = 3328
L_H = 5632
L_MG = 7936
L_WQ = 14336
NK = 5
L_KR = L_WQ
L_SC = L_KR + 4 * NK * 4096
SCW = 66 * 128
L_SIZE = L_SC + 4 * SCW


class Asm:
    def __init__(self):
        self.L = []

    def __call__(self, s):
        self.L.append('  ' + s)

    def label(self, s):
        self.L.append(s + ':')

    def nop(self, n):
        while n > 0:
            k = min(n, 16)
            self('s_nop %d' % (k - 1))
            n -= k

    def text(self):
        return '\n'.join(self.L) + '\n'


DPP = 'row_mask:0xf bank_mask:0xf'


def gen(kvpol='nt', wqpol='nt', wopol='nt', stamp=0, prog=0, nS=60, pd=3, npre=1, theta=2, big=12, small=2, first=4, huge=99,
        qsleep=20, bpol='', hpace=2, npoll=1, ps1=6, ps2=6, np1=2, np2=2, dsleep=1, warm=1, outpol='', leak=0, lbase=0,
        go=20, swz=1, lg=4, prio=1, gate=4, kspread=0, reh=0):
    wolate = woearly = wooff = cpf = kfirst = 0
    NH = 8
    pv = pd
    ns = nS + 1
    LIM = (64 - ns - npre) * 4
    assert 0 < LIM and LIM + 4 * pd <= 56 and lg < NK and theta <= 4 * npre
    GATE = gate
    assert gate <= 4
    A = Asm()
    A.L.append(HEADER.rstrip('\n'))
    if leak:
        A.L.append(f'; @launch kernel={KN}_kernel grid=(256,1,1) block=(512,1,1) lds={L_SIZE}')
        A.L.append('; @launch kernel=post_kernel grid=(1,1,1) block=(64,1,1) lds=0')
    else:
        A.L.append(f'; @launch grid=(256,1,1) block=(512,1,1) lds={L_SIZE}')
    A.L.append('.amdgcn_target "amdgcn-amd-amdhsa--gfx950"')
    A.L.append('.text')
    A.L.append(f'.globl {KN}_kernel')
    A.L.append('.p2align 8')
    A.L.append(f'.type {KN}_kernel,@function')
    A.label(f'{KN}_kernel')
    ws_size = (STAMP_OFF + 65536 + 131072) if stamp else WS_SIZE

    def stampit(k):
        if stamp:
            A(f's_memrealtime s[{84 + 2 * k}:{85 + 2 * k}]')

    def stamp_store():
        if not stamp:
            return
        A('s_waitcnt lgkmcnt(0) vmcnt(0)')
        A('s_getreg_b32 s64, hwreg(HW_REG_XCC_ID)')
        A('s_lshl_b32 s65, s2, 3')
        A('s_add_u32 s65, s65, s30')
        A('s_lshl_b32 s65, s65, 5')
        A(f's_add_u32 s65, s65, {STAMP_OFF}')
        A('s_mov_b64 exec, 1')
        A('v_mov_b32 v4, 0')
        for k in range(7):
            A(f'v_mov_b32 v5, s{84 + 2 * k}')
            A(f'buffer_store_dword v5, v4, s[48:51], s65 offen offset:{4 * k}')
        A('v_mov_b32 v5, s64')
        A(f'buffer_store_dword v5, v4, s[48:51], s65 offen offset:28')
        A('s_waitcnt vmcnt(0)')

    lk = [0]

    def leakit(k, wave=None):
        if leak != k:
            return
        lk[0] += 1
        A('s_cmp_lg_u32 s2, 2')
        A(f's_cbranch_scc1 L_lk{lk[0]}')
        if wave is not None:
            A(f's_cmp_lg_u32 s30, {wave}')
            A(f's_cbranch_scc1 L_lk{lk[0]}')
        A('s_memrealtime s[96:97]')
        A('s_waitcnt lgkmcnt(0)')
        A('s_sub_u32 s96, s96, s100')
        A('v_mov_b32 v254, s96')
        A('v_mov_b32 v31, 0')
        A(f's_mov_b32 s96, {EPOCH + 64}')
        A('s_mov_b64 exec, 1')
        A('buffer_store_dword v254, v31, s[48:51], s96 offen')
        A('s_mov_b64 exec, -1')
        A('s_waitcnt vmcnt(0)')
        A.label(f'L_lk{lk[0]}')

    SEL = 40

    def make_sel():
        A('v_and_b32 v4, 7, v2')
        A('v_lshrrev_b32 v5, 1, v4')
        A('v_and_b32 v6, 1, v4')
        A('v_mov_b32 v7, 0x0c0c0100')
        A('v_mov_b32 v8, 0x01000c0c')
        A('v_cmp_eq_u32 vcc, 1, v6')
        A('v_mov_b32 v9, 0x0c0c0302')
        A('v_mov_b32 v10, 0x03020c0c')
        A('v_cndmask_b32 v7, v7, v8, vcc')
        A('v_cndmask_b32 v9, v9, v10, vcc')
        A('v_mov_b32 v8, 0x0c0c0c0c')
        for d in range(4):
            A(f'v_cmp_eq_u32 vcc, {d}, v5')
            A.nop(2)
            A(f'v_cndmask_b32 v{SEL + d}, v8, v7, vcc')
            A(f'v_cndmask_b32 v{SEL + 4 + d}, v8, v9, vcc')

    def build_b(dst, src, odd):
        for d in range(4):
            A(f'v_perm_b32 v{dst + d}, v{src}, v{src}, v{SEL + 4 * odd + d}')

    def swapred(sw, op, v, t):
        A(f'v_mov_b32 v{t}, v{v}')
        A.nop(2)
        A(f'{sw} v{v}, v{t}')
        A(f'{op} v{v}, v{v}, v{t}')

    def allred_g(op, v, t):
        swapred('v_permlane16_swap_b32', op, v, t)
        swapred('v_permlane32_swap_b32', op, v, t)

    def allred_row(v):
        for m in ('quad_perm:[1,0,3,2]', 'quad_perm:[2,3,0,1]', 'row_half_mirror', 'row_mirror'):
            A.nop(2)
            A(f'v_add_f32_dpp v{v}, v{v}, v{v} {m} {DPP}')

    def lds_wait(lab, off, cmp, val, vt, vz, sleep):
        A.label(lab)
        A(f'ds_read_b32 v{vt}, v{vz} offset:{off}')
        A('s_waitcnt lgkmcnt(0)')
        A(f'v_readfirstlane_b32 s64, v{vt}')
        A('s_nop 0')
        A(f'{cmp} s64, {val}')
        if sleep:
            A(f's_cbranch_scc0 {lab}_ok')
            A(f's_sleep {sleep}')
            A(f's_branch {lab}')
            A.label(lab + '_ok')
        else:
            A(f's_cbranch_scc1 {lab}')

    if kfirst:
        A('s_load_dwordx16 s[4:19], s[0:1], 0')
    A('s_cmp_ge_u32 s2, 256')
    A('s_cbranch_scc1 L_end')
    if stamp:
        for k in range(7):
            A(f's_mov_b64 s[{84 + 2 * k}:{85 + 2 * k}], 0')
    stampit(0)
    if leak:
        A('s_memrealtime s[100:101]')
    if not kfirst:
        A('s_load_dwordx16 s[4:19], s[0:1], 0')
        A('s_load_dwordx8 s[20:27], s[0:1], 64')
        A('s_load_dwordx2 s[28:29], s[0:1], 96')
    A('v_lshrrev_b32 v1, 6, v0')
    A('v_and_b32 v2, 15, v0')
    A('v_readfirstlane_b32 s30, v1')
    A('v_and_b32 v1, 63, v0')
    A('v_lshrrev_b32 v3, 4, v1')
    A('s_lshr_b32 s31, s2, 3')
    A('s_and_b32 s32, s2, 7')
    A(f's_mov_b32 s50, {ws_size}')
    A('s_mov_b32 s51, 0x20000')
    A('s_cmp_lt_u32 s30, 4')
    A('s_cbranch_scc1 L_helper')

    RING, Q, BS, S, ACC, PK = 64, 48, 32, 24, 20, 16
    VV, VZ, VONE = 13, 14, 15
    M2, LS, AL, T0, T1, PUB = 4, 5, 6, 7, 8, 9
    KF, DV, RA, RT, MX, SN, SH, SCA, SCB, LIST = 32, 20, 4, 16, 8, 28, 48, 12, 11, 0
    TK1, TK2 = 28, 29
    VR = RING + 16 * NH
    SV, SK, SCNT, SKI, SKP, SKB, SKE, STAG, SO, SPR, SLN, SIX, SREM = 38, 39, 52, 53, 54, 55, 57, 56, 58, 59, 62, 63, 69
    A('s_sub_u32 s37, s30, 4')
    if prio:
        A('s_setprio 1')
    A('s_lshl_b32 s64, s31, 23')
    A(f's_lshl_b32 s{SV}, s32, 20')
    A('s_lshl_b32 s65, s37, 12')
    A(f's_add_u32 s{SV}, s{SV}, s65')
    A(f's_mov_b32 s{SK}, s{SV}')
    A(f's_mov_b32 s42, {KVOOB}')
    A('s_mov_b32 s43, 0x20000')
    A(f's_mov_b32 s46, {KVOOB}')
    A('s_mov_b32 s47, 0x20000')
    A(f'v_lshlrev_b32 v{VV}, 4, v1')
    A('s_sub_u32 s65, s32, s31')
    A(f's_and_b32 s{SPR}, s65, 3')
    A('s_waitcnt lgkmcnt(0)')
    A('s_add_u32 s44, s8, s64')
    A('s_addc_u32 s45, s9, 0')
    A('s_add_u32 s40, s6, s64')
    A('s_addc_u32 s41, s7, 0')
    A('s_mov_b32 s48, s28')
    A('s_mov_b32 s49, s29')
    A(f's_cmp_eq_u32 s{SPR}, 0')
    A('s_cbranch_scc0 L_nobx0')
    A('s_barrier')
    A.label('L_nobx0')

    def vload(reg, q, so, gated=True):
        if gated:
            A(f's_waitcnt vmcnt({GATE})')
        A(f'buffer_load_dwordx4 v[{reg + 4 * q}:{reg + 4 * q + 3}], v{VV}, s[44:47], s{so} offen offset:{q * 1024} {kvpol}')

    def khalf(half):
        if half == 0:
            A(f's_mov_b32 m0, s{SKI}')
            A(f's_add_u32 s{SKI}, s{SKI}, 0x1000')
        for q in (2 * half, 2 * half + 1):
            A(f's_waitcnt vmcnt({GATE})')
            A(f'buffer_load_dwordx4 v{DV + q}, s[40:43], s{SK} offen offset:{q * 1024} {kvpol} lds')
        if half:
            A(f's_add_u32 s{SK}, s{SK}, 0x4000')
            A(f's_cmp_eq_u32 s{SKI}, s{SKE}')
            A(f's_cselect_b32 s{SKI}, s{SKB}, s{SKI}')

    for n in range(4 * NH):
        if n == 4 * (NH - pv):
            A(f's_cmp_eq_u32 s{SPR}, 0')
            A('s_cbranch_scc1 L_v0e')
        vload(RING + 16 * (n // 4), n & 3, SV, n > GATE)
        if n & 3 == 3:
            A(f's_add_u32 s{SV}, s{SV}, 0x4000')
        if n == GATE:
            A(f's_cmp_eq_u32 s{SPR}, 0')
            A('s_cbranch_scc1 L_nobx')
            A('s_barrier')
            A.label('L_nobx')
            A(f'v_mov_b32 v{VZ}, 0')
            A(f'v_mov_b32 v{VONE}, 1')
            A(f'v_lshlrev_b32 v{RT}, 2, v3')
            A(f'v_xor_b32 v{RT}, v{RT}, v2')
            A(f'v_lshlrev_b32 v{RT}, 4, v{RT}')
            A(f'v_lshl_add_u32 v{DV}, v3, 8, v{RT}')
            for q in range(1, 4):
                A(f'v_xor_b32 v{DV + q}, {16 * q}, v{DV}')
            A(f'v_and_b32 v{RT}, 3, v2')
            A(f'v_lshlrev_b32 v{RT}, 10, v{RT}')
            A(f'v_lshrrev_b32 v{RT + 1}, 2, v2')
            A(f'v_lshl_add_u32 v{RT}, v{RT + 1}, 8, v{RT}')
            A(f'v_xor_b32 v{RT + 1}, v3, v2')
            A(f'v_lshl_add_u32 v{RA}, v{RT + 1}, 4, v{RT}')
            for q in range(1, 4):
                A(f'v_xor_b32 v{RA + q}, {64 * q}, v{RA}')
            A(f's_mul_i32 s{SKB}, s37, {NK * 4096}')
            A(f's_add_u32 s{SKB}, s{SKB}, {L_KR}')
            A(f's_add_u32 s{SKE}, s{SKB}, {NK * 4096}')
            A(f's_mov_b32 s{SKI}, s{SKB}')
            A(f's_mov_b32 s{SKP}, s{SKB}')
            A(f'v_lshrrev_b32 v{RT}, 3, v2')
            A(f'v_lshl_add_u32 v{RT + 1}, v{RT}, 2, v3')
            A(f's_mul_i32 s64, s37, {SCW}')
            A(f's_add_u32 s64, s64, {L_SC}')
            A(f'v_lshl_add_u32 v{SCA}, v{RT + 1}, 4, s64')
            A(f'v_add_u32 v{SCB}, 128, v{SCA}')
            A(f'v_lshlrev_b32 v{RT}, 8, v{RT}')
            A(f'v_lshl_add_u32 v{PUB}, v3, 4, v{RT}')
            A(f'v_mov_b32 v{MX}, {f32(-3.0e38)}')
            for r in range(4):
                A(f'v_mov_b32 v{S + r}, v{MX}')
            A(f's_mov_b32 s66, {f32(128 ** -0.5)}')
            A(f's_mov_b32 s67, {f32(LOG2E)}')
            A('s_mov_b32 s60, 0x01010101')
            A('s_mov_b32 s61, 0x01010101')
            A(f's_cmp_eq_u32 s{SPR}, 0')
            A(f's_cselect_b32 s{SCNT}, {nS - pd - lg}, {nS - lg}')
            A('s_mov_b32 s71, 0')
    A.label('L_v0e')
    stampit(1)
    A(f's_cmp_lg_u32 s{SPR}, 0')
    A('s_cbranch_scc1 L_sf_ok')
    lds_wait('L_sf', L_SF, 's_cmp_lt_u32', 4, RT, VZ, 0)
    A.label('L_sf_ok')
    assert go >= 2 * NH
    for n in range(2 * lg):
        if 2 * NH + n == go:
            A(f'ds_write_b32 v{VZ}, v{VONE} offset:{L_GO}')
        khalf(n & 1)
    A.label('L_qw')
    A(f'ds_read_b64 v[{RT}:{RT + 1}], v{VZ} offset:{L_FLAG}')
    for q in range(4):
        A(f'ds_read_b128 v[{Q + 4 * q}:{Q + 4 * q + 3}], v{PUB} offset:{L_Q + 64 * q}')
    A('s_waitcnt lgkmcnt(0)')
    A(f'v_readfirstlane_b32 s64, v{RT}')
    A(f'v_readfirstlane_b32 s{STAG}, v{RT + 1}')
    A('s_cmp_eq_u32 s64, 0')
    A('s_cbranch_scc1 L_qw')
    stampit(2)

    def kfinish():
        A(f'v_max3_f32 v{MX}, v{MX}, v{S}, v{S + 1}')
        A(f'v_max3_f32 v{MX}, v{MX}, v{S + 2}, v{S + 3}')
        A('s_mov_b64 exec, s[60:61]')
        A(f'ds_write_b128 v{SCA}, v[{S}:{S + 3}]')
        A('s_mov_b64 exec, -1')
        A(f'v_add_u32 v{SCA}, 128, v{SCA}')

    def kreads():
        for q in range(4):
            A(f'v_add_u32 v{RT + q}, s{SKP}, v{RA + q}')
        for q in range(4):
            A(f'ds_read_b128 v[{KF + 4 * q}:{KF + 4 * q + 3}], v{RT + q}')
        A(f's_add_u32 s{SKP}, s{SKP}, 0x1000')
        A(f's_cmp_eq_u32 s{SKP}, s{SKE}')
        A(f's_cselect_b32 s{SKP}, s{SKB}, s{SKP}')

    def kmfma():
        for q in range(4):
            if stamp and q == 0:
                A('s_waitcnt lgkmcnt(0)')
            A(f's_waitcnt lgkmcnt({3 - q})')
            c = '0' if q == 0 else f'v[{S}:{S + 3}]'
            A(f'v_mfma_f32_16x16x32_bf16 v[{S}:{S + 3}], v[{KF + 4 * q}:{KF + 4 * q + 3}], v[{Q + 4 * q}:{Q + 4 * q + 3}], {c}')

    def progstamp(shift):
        if prog == 1:
            A('s_memrealtime s[98:99]')
            A(f's_lshr_b32 m0, s71, {shift}')
            A('s_add_u32 s71, s71, 1')
            A('s_waitcnt lgkmcnt(0)')
            A('v_writelane_b32 v10, s98, m0')

    A.label('L_kloop')
    if prog == 1:
        A('s_min_u32 s71, s71, 63')
    progstamp(2)
    if kspread:
        def kl1(q):
            A(f's_waitcnt vmcnt({GATE})')
            A(f'buffer_load_dwordx4 v{DV + q}, s[40:43], s{SK} offen offset:{q * 1024} {kvpol} lds')
        A(f's_mov_b32 m0, s{SKI}')
        A(f's_add_u32 s{SKI}, s{SKI}, 0x1000')
        kl1(0)
        kfinish()
        kl1(1)
        kreads()
        kl1(2)
        kmfma()
        kl1(3)
        A(f's_add_u32 s{SK}, s{SK}, 0x4000')
        A(f's_cmp_eq_u32 s{SKI}, s{SKE}')
        A(f's_cselect_b32 s{SKI}, s{SKB}, s{SKI}')
    else:
        khalf(0)
        kfinish()
        kreads()
        khalf(1)
        kmfma()
    A(f's_sub_u32 s{SCNT}, s{SCNT}, 1')
    A(f's_cmp_lg_u32 s{SCNT}, 0')
    A('s_cbranch_scc1 L_kloop')
    outst = []
    for t in range(lg):
        outst += [('K', t)] * 4

    def younger(tag):
        last = max(i for i, t in enumerate(outst) if t == tag)
        return len(outst) - 1 - last

    vq = [(u, q) for u in range(3) for q in range(4)]

    def vstart(n):
        for _ in range(n):
            u, q = vq.pop(0)
            vload(VR + 16 * u, q, SV)
            if q == 3:
                A(f's_add_u32 s{SV}, s{SV}, 0x4000')
            outst.append(('V', u))

    for t in range(lg):
        vstart(2)
        A(f's_waitcnt vmcnt({younger(("K", t))})')
        A.nop(3)
        kfinish()
        kreads()
        kmfma()
    vstart(2)
    A.nop(4)
    kfinish()
    stampit(5)
    A(f's_cmp_eq_u32 s{SPR}, 0')
    A(f's_cselect_b32 s64, {NH - pv}, {NH}')
    nb = nS - NH - 3 - NH
    assert nb % 4 == 1
    A(f's_mov_b32 s{SCNT}, {(nb + 3) // 4}')
    A('s_lshl_b32 s64, s64, 7')
    A(f'v_add_u32 v{SCA}, s64, v{SCB}')
    A(f'ds_read_b128 v[{SN}:{SN + 3}], v{SCA}')
    A(f'ds_read_b128 v[{SH}:{SH + 3}], v{SCB}')
    allred_g('v_max_f32', MX, T0)
    A(f'v_cvt_pk_bf16_f32 v{RT}, 0, v{MX}')
    A(f'v_mul_f32 v{RT}, s66, v{RT}')
    A(f'v_cvt_pk_bf16_f32 v{RT}, 0, v{RT}')
    A(f'v_mul_f32 v{RT}, s67, v{RT}')
    vstart(1)
    if prog:
        A(f'v_mov_b32 v{RT + 1}, v10')
    make_sel()
    if prog:
        A(f'v_mov_b32 v10, v{RT + 1}')
        A('s_mov_b32 s71, 16')
    A(f'v_mov_b32 v{M2}, v{RT}')
    for r in range(4):
        A(f'v_mov_b32 v{ACC + r}, 0')
    A(f'v_mov_b32 v{LS}, 0')
    vstart(len(vq))

    def vbody(reg, src, nxt, hooks=(None, None, None, None), waits=None):
        if hooks[0]:
            hooks[0]()
        A('s_waitcnt lgkmcnt(0)')
        for n in range(4):
            A(f'v_cvt_pk_bf16_f32 v{S + n}, 0, v{src + n}')
        if nxt:
            A(f'ds_read_b128 v[{src}:{src + 3}], v{nxt[0]} offset:{nxt[1]}')
        for n in range(4):
            A(f'v_mul_f32 v{S + n}, s66, v{S + n}')
        for n in range(4):
            A(f'v_cvt_pk_bf16_f32 v{S + n}, 0, v{S + n}')
        for n in range(4):
            A(f'v_fma_f32 v{S + n}, v{S + n}, s67, -v{M2}')
        for n in range(4):
            A(f'v_exp_f32 v{S + n}, v{S + n}')
        if hooks[1]:
            hooks[1]()
        A(f'v_cvt_pk_bf16_f32 v{PK}, v{S}, v{S + 1}')
        A(f'v_cvt_pk_bf16_f32 v{PK + 1}, v{S + 2}, v{S + 3}')
        build_b(BS, PK, 0)
        build_b(BS + 4, PK, 1)
        A(f'v_add_f32 v{T0}, v{S}, v{S + 1}')
        A(f'v_add_f32 v{T1}, v{S + 2}, v{S + 3}')
        if hooks[2]:
            hooks[2]()
        for n in range(4):
            v = reg + n * 4
            b = BS + 4 * (n & 1)
            if waits:
                A(f's_waitcnt vmcnt({waits[n]})')
            A(f'v_mfma_f32_16x16x32_bf16 v[{ACC}:{ACC + 3}], v[{v}:{v + 3}], v[{b}:{b + 3}], v[{ACC}:{ACC + 3}]')
            if n < 2:
                build_b(b, PK + 1, n & 1)
            elif n == 2:
                A(f'v_add_f32 v{LS}, v{LS}, v{T0}')
                A(f'v_add_f32 v{LS}, v{LS}, v{T1}')
        if hooks[3]:
            hooks[3]()

    for u in range(NH):
        dst = VR + 16 * ((u + 3) % 4)
        ld = lambda q: (lambda: vload(dst, q, SV))
        vbody(VR + 16 * (u % 4), SN, (SCA, (u + 1) * 128), (ld(0), None, ld(1), None))
        if u >= NH - pv:
            A(f's_cmp_eq_u32 s{SPR}, 0')
            A(f's_cbranch_scc0 L_hb{u}')
            vload(dst, 2, SV)
            vload(dst, 3, SV)
            A(f's_branch L_he{u}')
            A.label(f'L_hb{u}')
        vbody(RING + 16 * u, SH, (SCB, (u + 1) * 128) if u + 1 < NH else None, (ld(2), None, ld(3), None))
        A.label(f'L_he{u}')
        A(f's_add_u32 s{SV}, s{SV}, 0x4000')
    A(f'v_add_u32 v{SCA}, {NH * 128}, v{SCA}')
    A(f'v_lshrrev_b32 v{T0}, 3, v2')
    A(f'v_lshl_add_u32 v{T0}, v{T0}, 2, v3')
    A(f'v_lshlrev_b32 v{T0}, 7, v{T0}')
    A(f'v_and_b32 v{T1}, 7, v2')
    A(f'v_lshl_add_u32 v{PUB}, v{T1}, 4, v{T0}')
    VKT = LIST
    A(f'v_and_b32 v{AL}, 3, v2')
    A(f'v_lshlrev_b32 v{AL}, 10, v{AL}')
    A(f'v_lshrrev_b32 v{VKT}, 2, v2')
    A(f'v_lshl_add_u32 v{AL}, v{VKT}, 8, v{AL}')
    A(f'v_lshl_add_u32 v{VKT}, v3, 4, v{AL}')
    A(f'v_lshrrev_b32 v{AL}, 3, v2')
    A(f'v_lshlrev_b32 v{AL}, 8, v{AL}')
    A(f'v_lshl_add_u32 v{AL}, v3, 4, v{AL}')
    A(f'ds_read_b128 v[{Q}:{Q + 3}], v{AL} offset:{L_Q}')
    A('v_lshlrev_b32 v3, 1, v2')
    A(f's_mul_i32 s68, s2, {S1}')
    A('v_lshlrev_b32 v11, 3, v1')
    A('s_lshl_b32 s64, s37, 9')
    A('v_add_u32 v18, s64, v11')
    A('s_lshl_b32 s64, s37, 10')
    A(f'v_add_u32 v19, s64, v{VV}')

    A.label('L_vt0')
    progstamp(0)
    for u in range(4):
        dst = VR + 16 * ((u + 3) % 4)
        ld = lambda q: (lambda: vload(dst, q, SV))
        vbody(VR + 16 * u, SN, (SCA, 128 * (u + 1)), (ld(0), ld(1), ld(2), ld(3)))
        A(f's_add_u32 s{SV}, s{SV}, 0x4000')
        if u == 0:
            A(f's_sub_u32 s{SCNT}, s{SCNT}, 1')
            A(f's_cmp_eq_u32 s{SCNT}, 0')
            A('s_cbranch_scc1 L_vsw')
    A(f'v_add_u32 v{SCA}, 512, v{SCA}')
    A('s_branch L_vt0')

    def kloads(slot, so, qs=range(4), gated=False):
        for q in qs:
            r = RING + slot * 32 + q * 4
            if gated:
                A(f's_waitcnt vmcnt({GATE})')
            A(f'buffer_load_dwordx4 v[{r}:{r + 3}], v{VKT}, s[40:43], s{so} offen offset:{q * 64} {kvpol}')

    def vloads(slot, so):
        for q in range(4):
            vload(RING + slot * 32 + 16, q, so, False)

    A.label('L_vsw')
    SNX = SO
    kl = lambda qs: (lambda: kloads(0, SV, qs, True))
    vl = lambda q: (lambda: vload(RING + 16, q, SV))
    vbody(VR + 16, SN, (SCA, 256), (kl((0,)), None, kl((1,)), None))
    vbody(VR + 32, SN, (SCA, 384), (kl((2,)), None, kl((3,)), None))
    vbody(VR + 48, SN, None, (vl(0), vl(1), vl(2), vl(3)))
    stampit(6)
    A('s_mov_b64 exec, 1')
    A(f'ds_add_rtn_u32 v{TK1}, v{VZ}, v{VONE} offset:{L_TK}')
    A('s_mov_b64 exec, -1')

    def qk(slot, wk):
        A(f's_waitcnt vmcnt({wk})')
        for q in range(4):
            k = RING + slot * 32 + q * 4
            c = '0' if q == 0 else f'v[{S}:{S + 3}]'
            A(f'v_mfma_f32_16x16x32_bf16 v[{S}:{S + 3}], v[{k}:{k + 3}], v[{Q + 4 * q}:{Q + 4 * q + 3}], {c}')

    def softmax_pv(slot, prepv):
        for n in range(4):
            A(f'v_cvt_pk_bf16_f32 v{S + n}, 0, v{S + n}')
        for n in range(4):
            A(f'v_mul_f32 v{S + n}, s66, v{S + n}')
        for n in range(4):
            A(f'v_cvt_pk_bf16_f32 v{S + n}, 0, v{S + n}')
        A(f'v_max3_f32 v{T0}, v{S}, v{S + 1}, v{S + 2}')
        A(f'v_max_f32 v{T0}, v{T0}, v{S + 3}')
        allred_g('v_max_f32', T0, T1)
        A(f'v_mul_f32 v{T0}, s67, v{T0}')
        A(f'v_max_f32 v{T0}, v{T0}, v{M2}')
        A(f'v_sub_f32 v{AL}, v{M2}, v{T0}')
        A(f'v_mov_b32 v{M2}, v{T0}')
        A(f'v_exp_f32 v{AL}, v{AL}')
        for n in range(4):
            A(f'v_fma_f32 v{S + n}, v{S + n}, s67, -v{M2}')
        for n in range(4):
            A(f'v_exp_f32 v{S + n}, v{S + n}')
        for r in range(4):
            A(f'v_mul_f32 v{ACC + r}, v{AL}, v{ACC + r}')
        A(f'v_cvt_pk_bf16_f32 v{PK}, v{S}, v{S + 1}')
        A(f'v_cvt_pk_bf16_f32 v{PK + 1}, v{S + 2}, v{S + 3}')
        build_b(BS, PK, 0)
        A(f'v_fma_f32 v{LS}, v{LS}, v{AL}, v{S}')
        A(f'v_add_f32 v{T0}, v{S + 1}, v{S + 2}')
        for n in range(4):
            if n + 1 < 4:
                build_b(BS + 4 * ((n + 1) & 1), PK + (n + 1) // 2, (n + 1) & 1)
            else:
                A(f'v_add_f32 v{LS}, v{LS}, v{S + 3}')
                A(f'v_add_f32 v{LS}, v{LS}, v{T0}')
            if n == 0:
                prepv()
            v = RING + slot * 32 + 16 + n * 4
            b = BS + 4 * (n & 1)
            A(f'v_mfma_f32_16x16x32_bf16 v[{ACC}:{ACC + 3}], v[{v}:{v + 3}], v[{b}:{b + 3}], v[{ACC}:{ACC + 3}]')

    A.label('L_sloop')
    for k in (0, 1):
        A('s_mov_b64 exec, 1')
        A('s_waitcnt lgkmcnt(0)')
        A(f'v_lshlrev_b32 v{TK1}, 2, v{TK1}')
        A.label(f'L_qt{k}')
        A(f'ds_read_b32 v{TK2}, v{TK1} offset:{L_QT}')
        A('s_waitcnt lgkmcnt(0)')
        A(f'v_readfirstlane_b32 s64, v{TK2}')
        A('s_nop 0')
        A('s_cmp_eq_u32 s64, 0')
        A(f's_cbranch_scc1 L_qt{k}')
        A('s_mov_b64 exec, -1')
        A(f's_mov_b32 s{SNX}, s64')
        A('s_waitcnt vmcnt(4)')
        kloads(1 - k, SNX)
        qk(k, 8)
        A.nop(8)

        def prepv():
            A(f's_cmp_eq_u32 s{SNX}, {KVOOB}')
            A('s_waitcnt vmcnt(4)')
            A(f's_cbranch_scc1 L_pv{k}')
            vloads(1 - k, SNX)
            A('s_mov_b64 exec, 1')
            A(f'ds_add_rtn_u32 v{TK1}, v{VZ}, v{VONE} offset:{L_TK}')
            A('s_mov_b64 exec, -1')
            A.label(f'L_pv{k}')
        softmax_pv(k, prepv)
        A(f's_cmp_eq_u32 s{SNX}, {KVOOB}')
        if k == 0:
            A('s_cbranch_scc1 L_sdone')
        else:
            A('s_cbranch_scc0 L_sloop')

    A.label('L_sdone')
    stampit(3)
    allred_g('v_add_f32', LS, T1)
    A(f'ds_write_b64 v18, v[{M2}:{M2 + 1}] offset:{L_MG + 4096}')
    A(f'ds_write_b128 v19, v[{ACC}:{ACC + 3}] offset:{L_MG}')
    A('s_mov_b64 exec, 1')
    A(f'ds_add_rtn_u32 v{T1}, v{VZ}, v{VONE} offset:{L_FIN}')
    A('s_mov_b64 exec, -1')
    for w in range(4):
        A(f'ds_read_b64 v[{BS + 2 * w}:{BS + 2 * w + 1}], v11 offset:{L_MG + 4096 + 512 * w}')
    for w in range(4):
        A(f'ds_read_b128 v[{Q + 4 * w}:{Q + 4 * w + 3}], v{VV} offset:{L_MG + 1024 * w}')
    A(f's_and_b32 s64, s{STAG}, 0xff')
    A('s_movk_i32 s65, 0xff')
    A(f'v_mov_b32 v{PK}, s64')
    A(f'v_mov_b32 v{T0}, s{STAG}')
    A('s_waitcnt lgkmcnt(4)' if not stamp else 's_waitcnt lgkmcnt(0)')
    A(f'v_readfirstlane_b32 s64, v{T1}')
    A(f'v_max_f32 v{M2}, v{BS}, v{BS + 2}')
    A('s_cmp_lg_u32 s64, 3')
    A('s_cbranch_scc1 L_send')
    A(f'v_max3_f32 v{M2}, v{M2}, v{BS + 4}, v{BS + 6}')
    for w in range(4):
        A(f'v_sub_f32 v{S + w}, v{BS + 2 * w}, v{M2}')
    for w in range(4):
        A(f'v_exp_f32 v{S + w}, v{S + w}')
    A(f'v_mov_b32 v{LS}, s{STAG}')
    A(f'v_mul_f32 v{AL}, v{S}, v{BS + 1}')
    for w in range(1, 4):
        A(f'v_fmac_f32 v{AL}, v{S + w}, v{BS + 2 * w + 1}')
    A('s_mov_b64 exec, 0x0101')
    A(f'buffer_store_dwordx4 v[{M2}:{M2 + 3}], v3, s[48:51], s68 offen offset:{L1ML} sc1')
    A('s_mov_b64 exec, -1')
    A('s_waitcnt lgkmcnt(0)')
    for r in range(4):
        A(f'v_mul_f32 v{ACC + r}, v{S}, v{Q + r}')
    for w in range(1, 4):
        for r in range(4):
            A(f'v_fmac_f32 v{ACC + r}, v{S + w}, v{Q + 4 * w + r}')
    for r in range(4):
        A(f'v_bfi_b32 v{ACC + r}, s65, v{PK}, v{ACC + r}')
    A(f'buffer_store_dwordx4 v[{ACC}:{ACC + 3}], v{PUB}, s[48:51], s68 offen sc1')
    stampit(4)
    if stamp:
        A.label('L_send')
        A('s_barrier')
        for _ in range(2): A('s_sleep 127')
    else:
        A('s_barrier')
        A.label('L_send')
    if prog:
        A('s_mov_b32 m0, 31')
        A('s_nop 0')
        A('v_writelane_b32 v10, s71, m0')
        A('s_lshl_b32 s65, s2, 2')
        A('s_add_u32 s65, s65, s37')
        A('s_lshl_b32 s65, s65, 7')
        A(f's_add_u32 s65, s65, {STAMP_OFF + 65536}')
        A('v_lshlrev_b32 v11, 2, v1')
        A('s_mov_b32 exec_hi, 0')
        A('buffer_store_dword v10, v11, s[48:51], s65 offen')
        A('s_mov_b64 exec, -1')
    stamp_store()
    A('s_endpgm')

    A.label('L_helper')
    if kfirst:
        A('s_load_dwordx8 s[20:27], s[0:1], 64')
        A('s_load_dwordx2 s[28:29], s[0:1], 96')
    A('s_setprio 2')
    HB = 48
    X, E = 64, 80
    A('v_lshlrev_b32 v11, 4, v1')
    A('v_mov_b32 v12, 0')
    A('v_lshlrev_b32 v23, 2, v1')
    for z in range(L_FLAG, L_ZEND, 256):
        A(f'ds_write_b32 v23, v12 offset:{z}')
    A('s_lshr_b32 s33, s31, 4')
    A('s_and_b32 s34, s31, 15')
    A('s_and_b32 s35, s2, 127')
    A('s_sub_u32 s64, s32, s31')
    A('s_and_b32 s64, s64, 7')
    A('s_lshr_b32 s65, s64, 2')
    A('s_lshl_b32 s72, s31, 1')
    A('s_add_u32 s72, s72, s65')
    A('s_lshl_b32 s73, s65, 4')
    A('s_add_u32 s73, s73, s34')
    A('s_and_b32 s64, s64, 3')
    A('s_cmp_lt_u32 s73, 18')
    A('s_cselect_b32 s3, 2, 0')
    A('s_cmp_eq_u32 s64, 2')
    A('s_cselect_b32 s3, s3, 0')
    A('s_cmp_eq_u32 s64, 0')
    A('s_cselect_b32 s3, 1, s3')
    A('v_mul_u32_u24 v13, 36, v1')
    A('s_mov_b32 s42, 2304')
    A('s_mov_b32 s43, 0x20000')
    A(f's_mov_b32 s46, {576 * 8192}')
    A('s_mov_b32 s47, 0x20000')
    A('v_lshrrev_b32 v14, 3, v1')
    A('v_lshlrev_b32 v14, 13, v14')
    A('v_and_b32 v15, 7, v1')
    if swz:
        A('v_lshrrev_b32 v16, 3, v1')
        A('v_and_b32 v16, 2, v16')
        A('v_xor_b32 v15, v15, v16')
    A('v_lshl_add_u32 v14, v15, 4, v14')
    A('v_xor_b32 v31, 64, v14')
    A(f's_mul_i32 s38, s30, {144 * 8192}')
    A('s_lshl_b32 s64, s72, 7')
    A('s_add_u32 s38, s38, s64')
    A(f's_mul_i32 s37, s30, {144 * 128}')
    A(f's_add_u32 s37, s37, {L_WQ}')
    A('s_lshl_b32 s64, s30, 2')
    A('s_add_u32 s64, s64, s3')
    A('s_cmp_eq_u32 s64, 2')
    A('s_cselect_b32 s70, 1, 0')
    A('s_cmp_eq_u32 s3, 1')
    A('s_cselect_b32 s70, 1, s70')
    A('s_waitcnt lgkmcnt(0)')
    A('s_mov_b32 s48, s28')
    A('s_mov_b32 s49, s29')
    A('s_mov_b32 s40, s4')
    A('s_mov_b32 s41, s5')
    A('s_mov_b32 s44, s10')
    A('s_mov_b32 s45, s11')
    A(f's_mov_b32 s64, {EPOCH}')
    A('s_load_dwordx2 s[78:79], s[28:29], s64')
    A('s_cmp_eq_u32 s70, 0')
    A('s_cbranch_scc1 L_h_x')
    A(f'buffer_load_dwordx4 v[{X}:{X + 3}], v13, s[40:43], 0 offen')
    A(f'buffer_load_dwordx4 v[{X + 4}:{X + 7}], v13, s[40:43], 0 offen offset:16')
    A(f'buffer_load_dword v{X + 8}, v13, s[40:43], 0 offen offset:32')
    A('s_cmp_lg_u32 s3, 1')
    A('s_cbranch_scc1 L_h_x')
    for n in range(18):
        A('s_mov_b32 m0, s37')
        A('s_add_u32 s37, s37, 1024')
        A(f'buffer_load_dwordx4 v{31 if (swz and n & 1) else 14}, s[44:47], s38 offen {wqpol} lds')
        A('s_add_u32 s38, s38, 0x10000')
    A.label('L_h_x')
    A('s_barrier')
    if cpf:
        A('s_cmp_lg_u32 s30, 3')
        A('s_cbranch_scc1 L_nocpf')
        A(f's_cmp_ge_u32 s31, {cpf}')
        A('s_cbranch_scc1 L_nocpf')
        A('s_cmp_eq_u32 s3, 1')
        A('s_cbranch_scc1 L_nocpf')
        A('s_getpc_b64 s[64:65]')
        A.label('L_pcref')
        A(f's_sub_u32 s64, s64, L_pcref-{KN}_kernel')
        A('s_subb_u32 s65, s65, 0')
        A('v_lshlrev_b32 v32, 7, v1')
        A(f'v_min_u32 v33, L_end-{KN}_kernel, v32')
        A('global_load_dword v36, v33, s[64:65]')
        for n in range(1, 3):
            A(f'v_add_u32 v32, 0x2000, v32')
            A(f'v_min_u32 v{33 + n}, L_end-{KN}_kernel, v32')
            A(f'global_load_dword v{36 + n}, v{33 + n}, s[64:65]')
        A.label('L_nocpf')
    A('s_cmp_eq_u32 s70, 0')
    A('s_cbranch_scc1 L_h_noln')

    def layernorm(src, dst):
        D = E + 18
        a, b, c = E + 36, E + 37, E + 38
        for k in range(9):
            A(f'v_lshlrev_b32 v{E + 2 * k}, 16, v{src + k}')
            A(f'v_and_b32 v{E + 2 * k + 1}, 0xffff0000, v{src + k}')
        A(f'v_add_f32 v{a}, v{E}, v{E + 1}')
        A(f'v_add_f32 v{b}, v{E + 2}, v{E + 3}')
        for n in range(4, 18, 2):
            A(f'v_add_f32 v{a}, v{a}, v{E + n}')
            A(f'v_add_f32 v{b}, v{b}, v{E + n + 1}')
        A(f'v_add_f32 v{a}, v{a}, v{b}')
        allred_row(a)
        swapred('v_permlane16_swap_b32', 'v_add_f32', a, b)
        A(f'v_mul_f32 v{a}, {f32(1.0 / 576)}, v{a}')
        for n in range(18):
            A(f'v_sub_f32 v{D + n}, v{E + n}, v{a}')
        A(f'v_mul_f32 v{b}, v{D}, v{D}')
        A(f'v_mul_f32 v{c}, v{D + 1}, v{D + 1}')
        for n in range(2, 18, 2):
            A(f'v_fmac_f32 v{b}, v{D + n}, v{D + n}')
            A(f'v_fmac_f32 v{c}, v{D + n + 1}, v{D + n + 1}')
        A(f'v_add_f32 v{b}, v{b}, v{c}')
        A(f'v_cvt_pk_bf16_f32 v{a}, 0, v{a}')
        allred_row(b)
        swapred('v_permlane16_swap_b32', 'v_add_f32', b, c)
        A(f'v_mul_f32 v{b}, {f32(1.0 / 576)}, v{b}')
        A(f'v_cvt_pk_bf16_f32 v{b}, 0, v{b}')
        A(f'v_add_f32 v{b}, {f32(1e-5)}, v{b}')
        A(f'v_cvt_pk_bf16_f32 v{b}, 0, v{b}')
        A(f'v_sqrt_f32 v{b}, v{b}')
        A(f'v_sub_f32 v{D}, v{E}, v{a}')
        A(f'v_cvt_pk_bf16_f32 v{b}, 0, v{b}')
        A(f'v_rcp_f32 v{b}, v{b}')
        for n in range(1, 18):
            A(f'v_sub_f32 v{D + n}, v{E + n}, v{a}')
        for n in range(18):
            A(f'v_cvt_pk_bf16_f32 v{D + n}, 0, v{D + n}')
        for n in range(18):
            A(f'v_mul_f32 v{D + n}, v{D + n}, v{b}')
        for k in range(9):
            A(f'v_cvt_pk_bf16_f32 v{dst + k}, v{D + 2 * k}, v{D + 2 * k + 1}')

    A('v_and_b32 v15, 1, v2')
    A('v_mul_u32_u24 v15, 1152, v15')
    A('v_lshl_add_u32 v15, v3, 4, v15')
    A('v_lshrrev_b32 v16, 2, v2')
    A('v_lshl_add_u32 v16, v3, 3, v16')
    A('v_lshlrev_b32 v16, 7, v16')
    A('v_and_b32 v17, 3, v1')
    A('v_lshl_add_u32 v16, v17, 3, v16')
    A('s_lshl_b32 s64, s30, 5')
    A('v_add_u32 v16, s64, v16')
    if swz:
        A('v_lshlrev_b32 v17, 2, v1')
        A('v_and_b32 v17, 0x60, v17')
        A('v_xor_b32 v16, v16, v17')
    A('v_add_u32 v20, 0x8000, v16')
    A('v_lshlrev_b32 v17, 2, v2')
    A('v_lshl_add_u32 v17, v3, 14, v17')
    A('s_lshl_b32 s39, s72, 8')
    A('s_lshl_b32 s64, s30, 6')
    A('s_add_u32 s39, s39, s64')
    A(f's_add_u32 s39, s39, {QX}')
    A('s_cmp_eq_u32 s3, 1')
    A('s_cbranch_scc1 L_h_wx')
    A('s_waitcnt vmcnt(0)')
    A.label('L_h_wx')
    A('s_waitcnt vmcnt(18)')
    if stamp == 2: stampit(4)
    layernorm(X, X)
    A('v_mov_b32 v18, 1')
    A('s_cmp_lg_u32 s3, 1')
    A('s_cbranch_scc1 L_h_ln2')
    for k in range(9):
        A(f'ds_write_b32 v13, v{X + k} offset:{L_XN + 4 * k}')
    QA, QB, QD = 120, 192, 76
    A('s_waitcnt lgkmcnt(0)')
    for t in range(18):
        A(f'ds_read_b128 v[{QA + 4 * t}:{QA + 4 * t + 3}], v15 offset:{L_XN + 64 * t}')
        if t == 8:
            A('s_waitcnt lgkmcnt(0)')
    if stamp == 2: stampit(5)
    A('s_waitcnt vmcnt(0)')
    A('s_mov_b64 exec, 1')
    A(f'ds_add_u32 v12, v18 offset:{L_CNT}')
    A('s_mov_b64 exec, -1')
    lds_wait('L_h_sync', L_CNT, 's_cmp_lt_u32', 4, 18, 12, 0)
    if stamp == 2:
        stampit(6)
        A('s_waitcnt lgkmcnt(0)')
    for t0 in (0, 6, 12):
        for t in range(t0, t0 + 6):
            r = QB + 4 * (t % 12)
            for h in range(2):
                off = L_WQ + 4096 * t + 512 * h
                base, off = (16, off) if off < 32768 else (20, off - 32768)
                A(f'ds_read_b64_tr_b16 v[{r + 2 * h}:{r + 2 * h + 1}], v{base} offset:{off}')
        for t in range(t0, t0 + 6):
            r = QB + 4 * (t % 12)
            A(f's_waitcnt lgkmcnt({2 * (t0 + 5 - t)})')
            c = '0' if t == 0 else f'v[{QD}:{QD + 3}]'
            A(f'v_mfma_f32_16x16x32_bf16 v[{QD}:{QD + 3}], v[{QA + 4 * t}:{QA + 4 * t + 3}], v[{r}:{r + 3}], {c}')
    A('v_mov_b32 v18, 1')
    A('s_mov_b64 exec, 1')
    A(f'ds_add_u32 v12, v18 offset:{L_SF}')
    A('s_mov_b64 exec, -1')
    A('s_add_u32 s64, s78, 1')
    A('s_add_u32 s65, s79, 1')
    A('v_cmp_eq_u32 vcc, 1, v3')
    A('v_mov_b32 v19, s64')
    A('v_mov_b32 v21, s65')
    A.nop(4)
    A('v_cndmask_b32 v19, v19, v21, vcc')
    A(f'v_cndmask_b32 v18, v{QD}, v{QD + 1}, vcc')
    A.nop(2)
    A(f'v_mov_b32_dpp v21, v18 quad_perm:[1,0,3,2] {DPP}')
    A('v_cvt_pk_bf16_f32 v18, v18, v21')
    A('s_mov_b64 exec, 0x55555555')
    A('buffer_store_dwordx2 v[18:19], v17, s[48:51], s39 offen sc1')
    A('s_mov_b64 exec, -1')
    stampit(1)
    A('s_branch L_h_q')
    A.label('L_h_ln2')
    layernorm(X, X)
    for k in range(9):
        A(f'ds_write_b32 v13, v{X + k} offset:{L_H + 4 * k}')
    A(f'ds_write_b32 v12, v18 offset:{L_HF}')
    A('s_branch L_h_join')

    A.label('L_h_noln')
    A.label('L_h_q')
    A('s_cmp_eq_u32 s30, 1')
    A('s_cbranch_scc0 L_h_join')
    A('s_lshl_b32 s39, s31, 10')
    A(f's_add_u32 s39, s39, {QX}')
    A('v_lshlrev_b32 v22, 3, v1')
    A('s_waitcnt lgkmcnt(0)')
    A('s_cmp_eq_u32 s33, 0')
    A('s_cselect_b32 s79, s78, s79')
    A('s_add_u32 s79, s79, 1')
    A(f's_mov_b32 s70, {SPIN_MAX}')
    lds_wait('L_go', L_GO, 's_cmp_eq_u32', 0, 14, 12, 4)
    PB = 64

    def qpoll(p):
        A(f'buffer_load_dwordx4 v[{PB + 4 * p}:{PB + 4 * p + 3}], v11, s[48:51], s39 offen sc1')
    for p in range(npoll - 1):
        qpoll(p)
        A(f's_sleep {qsleep}')
    A.label('L_qp')
    for p in range(npoll):
        qpoll((p + npoll - 1) % npoll)
        r = PB + 4 * p
        A(f's_waitcnt vmcnt({npoll - 1})')
        A(f'v_xor_b32 v14, s79, v{r + 1}')
        A(f'v_xor_b32 v15, s79, v{r + 3}')
        A(f'v_mov_b32 v16, v{r}')
        A('v_or_b32 v14, v14, v15')
        A(f'v_mov_b32 v17, v{r + 2}')
        A('v_cmp_ne_u32 vcc, 0, v14')
        A('s_cbranch_vccz L_qp_done')
        A('s_mov_b64 exec, vcc')
    A('s_sub_u32 s70, s70, 1')
    A('s_cmp_lg_u32 s70, 0')
    A('s_cbranch_scc1 L_qp')
    A.label('L_qp_done')
    A('s_mov_b64 exec, -1')
    A(f'ds_write_b64 v22, v[16:17] offset:{L_Q}')
    A('v_mov_b32 v14, 1')
    A('v_mov_b32 v15, s79')
    A(f'ds_write_b64 v12, v[14:15] offset:{L_FLAG}')
    stampit(1)

    A.label('L_h_join')
    make_sel()
    A('v_lshrrev_b32 v5, 3, v2')
    A('v_lshl_add_u32 v5, v5, 2, v3')
    A('v_and_b32 v7, 7, v2')
    A(f's_mul_i32 s74, s31, {8 * S1}')
    A('s_lshr_b32 s64, s32, 2')
    A('s_lshl_b32 s64, s64, 4')
    A('s_add_u32 s69, s74, s64')
    A('s_lshl_b32 s64, s32, 7')
    A('s_add_u32 s74, s74, s64')
    lds_wait('L_h_qf', L_FLAG, 's_cmp_eq_u32', 0, 14, 12, 8)
    A(f'ds_read_b32 v14, v12 offset:{L_TAG}')
    A('s_waitcnt lgkmcnt(0)')
    A('v_readfirstlane_b32 s79, v14')
    stampit(2)

    pc = [0]

    def paced(ins):
        if pc[0] >= hpace:
            A(f's_waitcnt vmcnt({hpace - 1})')
        A(ins)
        pc[0] += 1

    A(f's_mul_i32 s64, s31, {SP}')
    A(f's_add_u32 s36, s64, {POOLR}')
    A('s_add_u32 s60, s28, s36')
    A('s_addc_u32 s61, s29, 0')
    A('s_lshl_b32 s64, s32, 2')
    A('s_add_u32 s64, s64, s30')
    A('s_cmp_lg_u32 s64, 3')
    A('s_cbranch_scc1 L_nopool')
    A('s_and_b32 s64, s31, 3')
    A('s_lshl_b32 s64, s64, 3')
    A(f's_lshl_b32 s64, {4 * pd}, s64')
    A(f's_sub_u32 s64, {(128 - LIM) * 0x01010101}, s64')
    A('v_mov_b32 v14, s64')
    A('v_mov_b32 v15, s64')
    A('v_mov_b32 v16, s79')
    A('s_mov_b64 exec, 1')
    A('buffer_store_dwordx2 v[14:15], v12, s[48:51], s36 offen sc1')
    A('s_waitcnt vmcnt(0)')
    A('buffer_store_dword v16, v12, s[48:51], s36 offen offset:128 sc1')
    A('s_mov_b64 exec, -1')
    A.label('L_nopool')

    WO = 104
    W8 = 3
    A('s_mov_b32 s52, s12')
    A('s_mov_b32 s53, s13')
    A(f's_mov_b32 s54, {4096 * 1152}')
    A('s_mov_b32 s55, 0x20000')
    A('v_mul_u32_u24 v30, 1152, v5')
    A('v_lshl_add_u32 v30, v7, 4, v30')

    def wo_loads(ts, emit, tagl):
        A(f's_mul_i32 s64, s35, {32 * 1152}')
        A(f's_add_u32 s64, s64, {ts[0] * 8 * 1152}')
        A('s_lshl_b32 s65, s30, 8')
        A('s_add_u32 s65, s65, s64')
        for t in ts:
            for bl in range(2):
                r = WO + bl * 16 + t * 4
                emit(f'buffer_load_dwordx4 v[{r}:{r + 3}], v30, s[52:55], s65 offen offset:{128 * bl} {wopol}')
            if t != ts[-1]:
                A(f's_add_u32 s65, s65, {8 * 1152}')
        A(f's_cmp_lg_u32 s30, {W8}')
        A(f's_cbranch_scc1 L_nowo8{tagl}')
        for t in ts:
            r = WO + 32 + t * 4
            emit(f'buffer_load_dwordx4 v[{r}:{r + 3}], v30, s[52:55], s64 offen offset:1024 {wopol}')
            if t != ts[-1]:
                A(f's_add_u32 s64, s64, {8 * 1152}')
        A.label(f'L_nowo8{tagl}')
    ne = woearly if wolate else 4
    if ne:
        wo_loads(list(range(ne)), paced, 'a')


    A('s_lshl_b32 s80, s73, 5')
    A('s_mul_i32 s64, s33, 576')
    A('s_add_u32 s80, s80, s64')
    G = 176
    A('v_and_b32 v17, 1, v3')
    A('v_lshrrev_b32 v18, 1, v3')
    A('v_lshl_add_u32 v17, v17, 1, v18')
    A('v_lshl_add_u32 v17, v17, 3, v7')
    A('v_lshlrev_b32 v24, 2, v17')
    A('v_add_u32 v17, s80, v17')
    A('v_lshlrev_b32 v25, 1, v17')
    A('s_cmp_lg_u32 s3, 2')
    A('s_cbranch_scc1 L_nob')
    PW = 64
    W1, B1, W2 = 152, 170, 188
    U = 206
    A('s_mul_i32 s64, s30, 2304')
    A('v_add_u32 v15, s64, v11')
    A('v_add_u32 v16, s64, v23')
    for k, base in enumerate((16, 18, 20)):
        r = PW + 12 * k
        paced(f'global_load_dwordx4 v[{r}:{r + 3}], v15, s[{base}:{base + 1}] {bpol}')
        paced(f'global_load_dwordx4 v[{r + 4}:{r + 7}], v15, s[{base}:{base + 1}] offset:1024 {bpol}')
        paced(f'global_load_dword v{r + 8}, v16, s[{base}:{base + 1}] offset:2048 {bpol}')
    paced('buffer_load_ushort v26, v25, s[40:43], 0 offen')
    paced('global_load_ushort v27, v12, s[22:23]')
    lds_wait('L_h_hf', L_HF, 's_cmp_eq_u32', 0, 14, 12, 8)
    c0 = -2.0 * math.sqrt(2.0 / math.pi) * LOG2E
    A(f's_mov_b32 s66, {f32(c0 * 0.044715)}')
    A(f'v_mov_b32 v17, {f32(c0)}')
    A('s_lshl_b32 s64, s80, 1')
    A(f's_add_u32 s64, s64, {L_H}')
    A('v_mov_b32 v18, s64')
    A('s_lshl_b32 s64, s30, 7')
    A(f's_add_u32 s64, s64, {L_BP}')
    A('v_mov_b32 v19, s64')
    A('s_waitcnt vmcnt(0)')
    for k, dst in enumerate((W1, B1, W2)):
        for n in range(9):
            A(f'v_lshlrev_b32 v{dst + 2 * n}, 16, v{PW + 12 * k + n}')
            A(f'v_and_b32 v{dst + 2 * n + 1}, 0xffff0000, v{PW + 12 * k + n}')
    A('s_mov_b32 s70, 0')
    if prio:
        A('s_setprio 0')
    A.label('L_bloop')
    A('ds_read_u16 v20, v18')
    A('v_add_u32 v18, 2, v18')
    A('s_waitcnt lgkmcnt(0)')
    A('v_lshlrev_b32 v20, 16, v20')
    V2 = U + 18
    for n in range(18): A(f'v_mul_f32 v{U + n}, v20, v{W1 + n}')
    for n in range(18): A(f'v_cvt_pk_bf16_f32 v{U + n}, 0, v{U + n}')
    for n in range(18): A(f'v_add_f32 v{U + n}, v{U + n}, v{B1 + n}')
    for n in range(18): A(f'v_cvt_pk_bf16_f32 v{U + n}, 0, v{U + n}')
    for n in range(18): A(f'v_mul_f32 v{V2 + n}, v{U + n}, v{U + n}')
    for n in range(18): A(f'v_fma_f32 v{V2 + n}, v{V2 + n}, s66, v17')
    for n in range(18): A(f'v_mul_f32 v{V2 + n}, v{V2 + n}, v{U + n}')
    for n in range(18): A(f'v_exp_f32 v{V2 + n}, v{V2 + n}')
    for n in range(18): A(f'v_add_f32 v{V2 + n}, 1.0, v{V2 + n}')
    for n in range(18): A(f'v_rcp_f32 v{V2 + n}, v{V2 + n}')
    for n in range(18): A(f'v_mul_f32 v{U + n}, v{U + n}, v{V2 + n}')
    for n in range(18): A(f'v_cvt_pk_bf16_f32 v{U + n}, 0, v{U + n}')
    A(f'v_mul_f32 v21, v{U}, v{W2}')
    A(f'v_mul_f32 v22, v{U + 1}, v{W2 + 1}')
    for n in range(2, 18, 2):
        A(f'v_fmac_f32 v21, v{U + n}, v{W2 + n}')
        A(f'v_fmac_f32 v22, v{U + n + 1}, v{W2 + n + 1}')
    A('v_add_f32 v21, v21, v22')
    allred_row(21)
    allred_g('v_add_f32', 21, 22)
    A('ds_write_b32 v19, v21')
    A('v_add_u32 v19, 4, v19')
    A('s_add_u32 s70, s70, 1')
    A('s_cmp_lt_u32 s70, 32')
    A('s_cbranch_scc1 L_bloop')
    if prio:
        A('s_setprio 2')
    A('v_mov_b32 v14, 1')
    A('s_mov_b64 exec, 1')
    A(f'ds_add_u32 v12, v14 offset:{L_BC}')
    A('s_mov_b64 exec, -1')
    lds_wait('L_h_bc', L_BC, 's_cmp_lt_u32', 4, 14, 12, 8)
    for w in range(4):
        A(f'ds_read_b32 v{G + w}, v24 offset:{L_BP + 128 * w}')
    A('s_waitcnt lgkmcnt(0)')
    A(f'v_add_f32 v{G}, v{G}, v{G + 1}')
    A(f'v_add_f32 v{G + 2}, v{G + 2}, v{G + 3}')
    A(f'v_add_f32 v{G}, v{G}, v{G + 2}')
    A('v_lshlrev_b32 v26, 16, v26')
    A('v_lshlrev_b32 v27, 16, v27')
    A(f'v_cvt_pk_bf16_f32 v{G}, 0, v{G}')
    A(f'v_add_f32 v27, v{G}, v27')
    A('v_cvt_pk_bf16_f32 v27, 0, v27')
    A.label('L_nob')

    A('s_mov_b32 s56, s24')
    A('s_mov_b32 s57, s25')
    A('s_mov_b32 s58, 2304')
    A('s_mov_b32 s59, 0x20000')
    A(f'v_mul_u32_u24 v20, {S1}, v7')
    A('v_lshl_add_u32 v19, v5, 4, v20')
    A('v_lshlrev_b32 v21, 4, v7')
    A('v_lshl_add_u32 v21, v3, 7, v21')
    A('v_lshlrev_b32 v22, 3, v1')
    A('v_lshrrev_b32 v31, 3, v1')
    A(f'v_mul_u32_u24 v31, {S2}, v31')
    A('v_lshl_add_u32 v31, v7, 4, v31')
    A(f's_mul_i32 s77, s2, {S2}')
    A(f's_add_u32 s77, s77, {L2A}')
    A('s_lshl_b32 s64, s30, 9')
    A('s_add_u32 s76, s77, s64')
    A('s_lshl_b32 s64, s33, 2')
    A('s_add_u32 s64, s64, s30')
    A(f's_mul_i32 s81, s64, {32 * S2}')
    A('s_lshl_b32 s64, s73, 7')
    A('s_add_u32 s81, s81, s64')
    A(f's_add_u32 s81, s81, {L2A}')
    A(f's_add_u32 s82, s81, {8 * S2}')
    A(f's_add_u32 s46, s81, {16 * S2}')
    A(f's_add_u32 s47, s81, {24 * S2}')
    GS = (81, 82, 46, 47)
    A('s_and_b32 s78, s79, 0xff')
    A('s_movk_i32 s75, 0xff')
    A('v_mov_b32 v28, s78')
    A('v_mov_b32 v29, 1')
    if warm:
        A('s_cmp_lg_u32 s30, 3')
        A('s_cbranch_scc1 L_nowarm1')
        A('buffer_load_dwordx4 v[200:203], v19, s[48:51], s74 offen sc1')
        A(f'buffer_load_dwordx4 v[204:207], v20, s[48:51], s69 offen offset:{L1ML} sc1')
        A.label('L_nowarm1')
        A('s_cmp_lg_u32 s3, 2')
        A('s_cbranch_scc1 L_nowarm2')
        for k in range(4):
            A(f'buffer_load_dwordx4 v[{208 + 4 * k}:{211 + 4 * k}], v31, s[48:51], s{GS[k]} offen sc1')
        A.label('L_nowarm2')

    A('s_cmp_lg_u32 s30, 2')
    A('s_cbranch_scc1 L_nodisp')
    SC, SF, SOWN, SOWNC, SN, SZ = 66, 68, 69, 70, 71, 37
    A('v_lshlrev_b32 v16, 12, v1')
    A('s_lshl_b32 s64, s32, 20')
    A(f's_add_u32 s64, s64, {ns * 16384}')
    A('s_cmp_eq_u32 s3, 1')
    A(f's_cselect_b32 s65, {pd * 16384}, 0')
    A('s_sub_u32 s64, s64, s65')
    A('v_add_u32 v14, s64, v16')
    A(f's_mov_b64 exec, {(1 << (4 * npre)) - 1}')
    A(f'ds_write_b32 v23, v14 offset:{L_QT}')
    A('s_mov_b64 exec, -1')
    A(f's_mov_b32 s{SN}, {4 * npre}')
    A(f's_mov_b32 s83, {SPIN_MAX}')
    A.label('L_prdy')
    A('buffer_load_dword v14, v12, s[48:51], s36 offen offset:128 sc1')
    A('s_sub_u32 s83, s83, 1')
    A('s_waitcnt vmcnt(0)')
    A('v_readfirstlane_b32 s64, v14')
    A('s_cmp_eq_u32 s83, 0')
    A('s_cbranch_scc1 L_dend')
    A('s_cmp_eq_u32 s64, s79')
    A('s_cbranch_scc1 L_prdy_ok')
    A('s_sleep 64')
    A('s_branch L_prdy')
    A.label('L_prdy_ok')
    A(f's_lshl_b32 s{SOWN}, s32, 3')
    A(f's_mov_b32 s{SF}, s{SOWN}')
    A(f's_sub_u32 s{SOWNC}, 64, s{SOWN}')
    A('s_mov_b32 s62, 0x80808080')
    A('s_mov_b32 s63, 0x80808080')
    A(f's_mov_b32 s{SZ}, {first}')
    lds_wait('L_dw0', L_TK, 's_cmp_eq_u32', 0, 14, 12, 16)
    A.label('L_dloop')
    A(f's_sub_u32 s83, s{SN}, {theta}')
    lds_wait('L_dw', L_TK, 's_cmp_lt_u32', 's83', 14, 12, dsleep)
    A.label('L_drty')
    A(f's_mov_b32 s38, s{SZ}')
    A('s_mov_b32 s39, 0')
    A(f's_lshl_b64 s[38:39], s[38:39], s{SF}')
    A(f's_mov_b64 s[{SC}:{SC + 1}], s[38:39]')
    A(f's_atomic_add_x2 s[{SC}:{SC + 1}], s[60:61], 0 glc')
    A(f's_lshl_b32 s83, s{SF}, 17')
    A(f's_lshl_b32 s64, s{SN}, 2')
    A('v_add_u32 v15, s64, v23')
    A('s_waitcnt lgkmcnt(0)')
    A(f's_lshr_b64 s[64:65], s[{SC}:{SC + 1}], s{SF}')
    A('s_and_b32 s64, s64, 0xff')
    A('s_cmp_ge_u32 s64, 128')
    A('s_cbranch_scc1 L_dfail')
    A('s_lshl_b32 s65, s64, 12')
    A('s_add_u32 s65, s65, s83')
    A(f's_add_u32 s65, s65, {((ns + npre) * 16384 - (128 - LIM) * 4096) & 0xffffffff}')
    A('v_add_u32 v14, s65, v16')
    A('s_sub_u32 s65, 128, s64')
    A(f's_min_u32 s65, s65, s{SZ}')
    A('s_bfm_b64 exec, s65, 0')
    A(f'ds_write_b32 v15, v14 offset:{L_QT}')
    A('s_mov_b64 exec, -1')
    A(f's_add_u32 s{SN}, s{SN}, s65')
    A.label('L_dfail')
    A(f's_add_u32 s{SC}, s38, s{SC}')
    A(f's_addc_u32 s{SC + 1}, s39, s{SC + 1}')
    A(f's_andn2_b64 s[38:39], s[62:63], s[{SC}:{SC + 1}]')
    A(f's_lshr_b64 s[44:45], s[38:39], s{SOWN}')
    A(f's_lshl_b64 s[38:39], s[38:39], s{SOWNC}')
    A('s_or_b64 s[38:39], s[38:39], s[44:45]')
    A('s_cbranch_scc0 L_dend')
    A('s_ff1_i32_b64 s65, s[38:39]')
    A(f's_add_u32 s65, s65, s{SOWN}')
    A(f's_and_b32 s{SF}, s65, 56')
    A(f's_lshr_b64 s[38:39], s[{SC}:{SC + 1}], s{SF}')
    A('s_and_b32 s38, s38, 0xff')
    A(f's_cmp_lt_u32 s38, {128 - big}')
    A(f's_cselect_b32 s{SZ}, 4, {small}')
    if huge < 99:
        A(f's_cmp_lt_u32 s38, {128 - huge}')
        A(f's_cselect_b32 s{SZ}, 8, s{SZ}')
    A('s_cmp_ge_u32 s64, 128')
    A('s_cbranch_scc1 L_drty')
    A(f's_cmp_lt_u32 s{SN}, 160')
    A('s_cbranch_scc1 L_dloop')
    A.label('L_dend')
    A(f's_lshl_b32 s64, s{SN}, 2')
    A('v_add_u32 v15, s64, v23')
    A(f'v_mov_b32 v14, {KVOOB}')
    A('s_mov_b64 exec, 15')
    A(f'ds_write_b32 v15, v14 offset:{L_QT}')
    A('s_mov_b64 exec, -1')
    A(f'v_mov_b32 v14, s{SN}')
    A(f'ds_write_b32 v12, v14 offset:{L_EN}')
    A.label('L_nodisp')
    if wolate in (1, 2):
        lds_wait('L_ww0', L_TK, 's_cmp_eq_u32', 0, 14, 12, 32)
        A('s_add_u32 s65, s30, 1')
        A('s_and_b32 s65, s65, 3')
        if wolate == 2:
            A('s_mov_b32 s65, 3')
        A.label('L_ww')
        A(f'ds_read_b64 v[14:15], v12 offset:{L_TK}')
        A('s_waitcnt lgkmcnt(0)')
        A('v_readfirstlane_b32 s64, v14')
        A('v_readfirstlane_b32 s83, v15')
        A(f's_add_u32 s64, s64, {wooff}')
        A('s_cmp_eq_u32 s83, 0')
        A('s_cbranch_scc1 L_wws')
        A('s_add_u32 s83, s83, s65')
        A('s_cmp_gt_u32 s64, s83')
        A('s_cbranch_scc1 L_wwd')
        A.label('L_wws')
        A('s_sleep 1')
        A('s_branch L_ww')
        A.label('L_wwd')
        A('s_waitcnt vmcnt(0)')
        wo_loads(list(range(ne, 4)), A, 'b')
    else:
        A('s_waitcnt vmcnt(0) lgkmcnt(0)')
    A(f's_mov_b32 s80, {SPIN_MAX}')
    if reh:
        A('s_cmp_lg_u32 s30, 3')
        A('s_cbranch_scc1 L_b3')
        A('s_mov_b32 s80, 1')
        A('v_mov_b32 v29, 0')
        A('s_mov_b32 s83, s73')
        A('s_mov_b64 s[72:73], s[76:77]')
        A('s_mov_b32 s76, s50')
        A('s_mov_b32 s77, s50')
        A('s_branch L_reh')
        A.label('L_rehd')
        A(f's_mov_b32 s80, {SPIN_MAX}')
        A('v_mov_b32 v29, 1')
        A('s_mov_b64 s[76:77], s[72:73]')
        A('s_mov_b32 s73, s83')
        A('s_waitcnt vmcnt(0) lgkmcnt(0)')
        A.label('L_b3')
    A('s_barrier')
    if wolate == 3:
        wo_loads(list(range(ne, 4)), A, 'b')
    stampit(3)
    leakit(4, 0)

    P1, O, W = 200, 232, 236
    A('s_cmp_lg_u32 s30, 3')
    A('s_cbranch_scc1 L_ow')
    A.label('L_reh')
    A('s_mov_b32 s70, s80')
    def poll1(p):
        r = P1 + 8 * p
        A(f'buffer_load_dwordx4 v[{r}:{r + 3}], v20, s[48:51], s69 offen offset:{L1ML} sc1')
        A(f'buffer_load_dwordx4 v[{r + 4}:{r + 7}], v19, s[48:51], s74 offen sc1')
    assert np1 <= 4
    for p in range(np1 - 1):
        poll1(p)
        A(f's_sleep {ps1}')
    A.label('L_p1')
    for p in range(np1):
        poll1((p + np1 - 1) % np1)
        r = P1 + 8 * p
        A(f's_waitcnt vmcnt({2 * (np1 - 1)})')
        for t in range(4):
            A(f'v_xor_b32 v{O + t}, s78, v{r + 4 + t}')
        A(f'v_xor_b32 v17, s79, v{r + 1}')
        A(f'v_xor_b32 v18, s79, v{r + 3}')
        A(f'v_or3_b32 v14, v{O}, v{O + 1}, v{O + 2}')
        A(f'v_or_b32 v14, v14, v{O + 3}')
        A(f'v_mov_b32 v15, v{r}')
        A('v_and_b32 v14, 0xff, v14')
        A('v_or3_b32 v14, v14, v17, v18')
        A(f'v_mov_b32 v16, v{r + 2}')
        A('v_cmp_ne_u32 vcc, 0, v14')
        A('s_cbranch_vccz L_p1_done')
        A('s_mov_b64 exec, vcc')
    A('s_sub_u32 s70, s70, 1')
    A('s_cmp_lg_u32 s70, 0')
    A('s_cbranch_scc1 L_p1')
    A.label('L_p1_done')
    A('s_mov_b64 exec, -1')
    if stamp == 1:
        stampit(4)
    A(f'v_max_f32_dpp v17, v15, v15 quad_perm:[1,0,3,2] {DPP}')
    for m in ('quad_perm:[2,3,0,1]', 'row_half_mirror'):
        A.nop(2)
        A(f'v_max_f32_dpp v17, v17, v17 {m} {DPP}')
    A('v_sub_f32 v15, v15, v17')
    A('v_exp_f32 v15, v15')
    A.nop(1)
    A('v_mul_f32 v16, v15, v16')
    for t in range(4):
        A(f'v_mul_f32 v{O + t}, v15, v{O + t}')
    for m in ('quad_perm:[1,0,3,2]', 'quad_perm:[2,3,0,1]', 'row_half_mirror'):
        for q in (16, O, O + 1, O + 2, O + 3):
            A(f'v_add_f32_dpp v{q}, v{q}, v{q} {m} {DPP}')
    A('v_rcp_f32 v16, v16')
    A.nop(1)
    for t in range(4):
        A(f'v_mul_f32 v{O + t}, v{O + t}, v16')
    A(f'v_cvt_pk_bf16_f32 v{W}, v{O}, v{O + 1}')
    A(f'v_cvt_pk_bf16_f32 v{W + 1}, v{O + 2}, v{O + 3}')
    A(f'ds_write_b64 v22, v[{W}:{W + 1}] offset:{L_OW}')
    A(f'ds_write_b32 v12, v29 offset:{L_OF}')
    A('s_branch L_proj')
    A.label('L_ow')
    A(f'ds_read_b32 v14, v12 offset:{L_OF}')
    A(f'ds_read_b64 v[{W}:{W + 1}], v22 offset:{L_OW}')
    A('s_waitcnt lgkmcnt(0)')
    A('v_cmp_eq_u32 vcc, 0, v14')
    A('s_cbranch_vccnz L_ow')
    if stamp == 1:
        stampit(4)
    if wolate:
        A('s_waitcnt vmcnt(0)')
    A.label('L_proj')
    DX, DY, DZ = 240, 244, 248
    build_b(HB, W, 0)
    for t in range(4):
        if t < 3:
            build_b(HB + 4 * (t + 1), W + (t + 1) // 2, (t + 1) & 1)
        for bl, D in ((0, DX), (1, DY)):
            r = WO + bl * 16 + t * 4
            c = '0' if t == 0 else f'v[{D}:{D + 3}]'
            A(f'v_mfma_f32_16x16x32_bf16 v[{D}:{D + 3}], v[{r}:{r + 3}], v[{HB + 4 * t}:{HB + 4 * t + 3}], {c}')
    A(f's_cmp_lg_u32 s30, {W8}')
    A('s_cbranch_scc1 L_nob8a')
    for t in range(4):
        r = WO + 32 + t * 4
        c = '0' if t == 0 else f'v[{DZ}:{DZ + 3}]'
        A(f'v_mfma_f32_16x16x32_bf16 v[{DZ}:{DZ + 3}], v[{r}:{r + 3}], v[{HB + 4 * t}:{HB + 4 * t + 3}], {c}')
    A.label('L_nob8a')
    A.nop(6)
    for r in range(4):
        A(f'v_permlane32_swap_b32 v{DX + r}, v{DY + r}')
    A.nop(1)
    for r in range(4):
        A(f'v_add_f32_dpp v{DX + r}, v{DY + r}, v{DX + r} row_ror:8 {DPP}')
    for r in range(4):
        A(f'v_bfi_b32 v{DX + r}, s75, v28, v{DX + r}')
    A('s_mov_b32 exec_lo, 0x00ff00ff')
    A('s_mov_b32 exec_hi, 0x00ff00ff')
    A(f'buffer_store_dwordx4 v[{DX}:{DX + 3}], v21, s[48:51], s76 offen sc1')
    A('s_mov_b64 exec, -1')
    A(f's_cmp_lg_u32 s30, {W8}')
    A('s_cbranch_scc1 L_nob8b')
    for r in range(4):
        A(f'v_permlane32_swap_b32 v{DZ + r}, v{DY + r}')
    A.nop(1)
    for r in range(4):
        A(f'v_add_f32_dpp v{DZ + r}, v{DY + r}, v{DZ + r} row_ror:8 {DPP}')
    for r in range(4):
        A(f'v_bfi_b32 v{DZ + r}, s75, v28, v{DZ + r}')
    A('s_mov_b64 exec, 0x00ff00ff')
    A(f'buffer_store_dwordx4 v[{DZ}:{DZ + 3}], v21, s[48:51], s77 offen offset:2048 sc1')
    A('s_mov_b64 exec, -1')
    A.label('L_nob8b')
    if stamp == 1:
        stampit(5)
    A('s_cmp_lg_u32 s3, 2')
    A('s_cbranch_scc1 L_hend')
    P2 = 64
    assert np2 <= 2
    A('s_mov_b32 s70, s80')
    for k in range(4):
        A(f's_mov_b64 s[{60 + 2 * k}:{61 + 2 * k}], -1')
    assert np2 <= 4

    def poll2(p, masked):
        for k in range(4):
            r = P2 + 16 * p + 4 * k
            if masked and np2 == 1:
                A(f's_mov_b64 exec, s[{60 + 2 * k}:{61 + 2 * k}]')
                A(f's_cbranch_execz L_gs{k}')
            elif masked:
                A(f's_or_b64 exec, s[{60 + 2 * k}:{61 + 2 * k}], 1')
            A(f'buffer_load_dwordx4 v[{r}:{r + 3}], v31, s[48:51], s{GS[k]} offen sc1')
            if masked and np2 == 1:
                A.label(f'L_gs{k}')
    for p in range(np2 - 1):
        poll2(p, False)
        A(f's_sleep {ps2}')
    A.label('L_ga')
    for p in range(np2):
        poll2((p + np2 - 1) % np2, True)
        A(f's_waitcnt vmcnt({4 * (np2 - 1)})')
        for k in range(4):
            r = P2 + 16 * p + 4 * k
            A(f's_mov_b64 exec, s[{60 + 2 * k}:{61 + 2 * k}]')
            A(f's_cbranch_execz L_gc{p}_{k}')
            for q in range(4):
                A(f'v_xor_b32 v{G + 4 * k + q}, s78, v{r + q}')
            A(f'v_or3_b32 v17, v{G + 4 * k}, v{G + 4 * k + 1}, v{G + 4 * k + 2}')
            A(f'v_or_b32 v17, v17, v{G + 4 * k + 3}')
            A('v_and_b32 v17, 0xff, v17')
            A(f'v_cmp_ne_u32 s[{60 + 2 * k}:{61 + 2 * k}], 0, v17')
            A.label(f'L_gc{p}_{k}')
        A('s_or_b64 s[38:39], s[60:61], s[62:63]')
        A('s_or_b64 s[38:39], s[38:39], s[64:65]')
        A('s_or_b64 s[38:39], s[38:39], s[66:67]')
        A('s_cbranch_scc0 L_ga_done')
    A('s_sub_u32 s70, s70, 1')
    A('s_cmp_lg_u32 s70, 0')
    A('s_cbranch_scc1 L_ga')
    A.label('L_ga_done')
    A('s_mov_b64 exec, -1')
    if stamp == 1:
        stampit(2)
    for r in range(4):
        A(f'v_add_f32 v{G + r}, v{G + r}, v{G + 4 + r}')
        A(f'v_add_f32 v{G + 8 + r}, v{G + 8 + r}, v{G + 12 + r}')
    for r in range(4):
        A(f'v_add_f32 v{G + r}, v{G + r}, v{G + 8 + r}')
    A('s_lshl_b32 s64, s30, 8')
    A(f'v_permlane32_swap_b32 v{G}, v{G + 1}')
    A(f'v_permlane32_swap_b32 v{G + 2}, v{G + 3}')
    A(f'v_add_f32 v{G}, v{G}, v{G + 1}')
    A(f'v_add_f32 v{G + 2}, v{G + 2}, v{G + 3}')
    A('v_add_u32 v17, s64, v23')
    A.nop(1)
    A(f'v_permlane16_swap_b32 v{G}, v{G + 2}')
    A(f'v_add_f32 v{G}, v{G}, v{G + 2}')
    A.nop(2)
    A(f'v_add_f32_dpp v{G}, v{G}, v{G} row_ror:8 {DPP}')
    A(f'ds_write_b32 v17, v{G} offset:{L_P2}')
    A('s_mov_b64 exec, 1')
    A(f'ds_add_rtn_u32 v14, v12, v29 offset:{L_F2}')
    A('s_mov_b64 exec, -1')
    for w in range(4):
        A(f'ds_read_b32 v{G + 4 + w}, v23 offset:{L_P2 + 256 * w}')
    A('s_waitcnt lgkmcnt(0)')
    A('v_readfirstlane_b32 s64, v14')
    A(f'v_add_f32 v{G}, v{G + 4}, v{G + 5}')
    A(f'v_add_f32 v{G + 1}, v{G + 6}, v{G + 7}')
    A('s_cmp_lg_u32 s64, 3')
    A('s_cbranch_scc1 L_hend')
    A(f'v_add_f32 v{G}, v{G}, v{G + 1}')
    A(f'v_cvt_pk_bf16_f32 v{G}, 0, v{G}')
    A(f'v_add_f32 v{G}, v26, v{G}')
    A(f'v_cvt_pk_bf16_f32 v{G}, 0, v{G}')
    A(f'v_add_f32 v{G}, v{G}, v27')
    A(f'v_cvt_pk_bf16_f32 v{G}, v{G}, v{G}')
    A('s_mov_b32 exec_lo, 0x00ff00ff')
    A('s_mov_b32 exec_hi, 0x00ff00ff')
    A(f'buffer_store_short v{G}, v25, s[56:59], 0 offen {outpol}')
    A('s_cmp_lg_u32 s73, 0')
    A('s_cbranch_scc1 L_noep')
    A('v_mov_b32 v17, s79')
    A('s_lshl_b32 s64, s33, 2')
    A(f's_add_u32 s64, s64, {EPOCH}')
    A('s_mov_b64 exec, 1')
    A('buffer_store_dword v17, v12, s[48:51], s64 offen')
    A.label('L_noep')
    A('s_mov_b64 exec, -1')
    if stamp == 1:
        stampit(6)
    leakit(1)
    A.label('L_hend')
    if reh:
        A('s_cmp_eq_u32 s80, 1')
        A('s_cbranch_scc1 L_rehd')
    if stamp:
        for _ in range(2): A('s_sleep 127')
    stamp_store()
    A.label('L_end')
    A('s_endpgm')
    if leak:
        A.L += ['.globl post_kernel', '.p2align 8', '.type post_kernel,@function', 'post_kernel:']
        A('s_cmp_ge_u32 s2, 1')
        A('s_cbranch_scc1 L_pend')
        A('s_load_dwordx2 s[4:5], s[0:1], 96')
        A('s_memrealtime s[8:9]')
        A(f's_mov_b32 s6, {EPOCH + 64}')
        A('s_waitcnt lgkmcnt(0)')
        A('s_load_dword s7, s[4:5], s6')
        A('s_waitcnt lgkmcnt(0)')
        A(f's_sub_u32 s7, s7, {lbase}')
        A('s_min_u32 s7, s7, 5000')
        A('s_mul_i32 s7, s7, 10')
        A.label('L_pspin')
        A('s_memrealtime s[10:11]')
        A('s_waitcnt lgkmcnt(0)')
        A('s_sub_u32 s10, s10, s8')
        A('s_cmp_lt_u32 s10, s7')
        A('s_cbranch_scc1 L_pspin')
        A.label('L_pend')
        A('s_endpgm')
    A.L.append('.section .rodata,"a"')
    A.L.append('.p2align 6')
    A.L.append(f'.amdhsa_kernel {KN}_kernel')
    A('.amdhsa_next_free_vgpr 256')
    A('.amdhsa_next_free_sgpr 102')
    A('.amdhsa_accum_offset 256')
    A('.amdhsa_group_segment_fixed_size 0')
    A('.amdhsa_kernarg_size 104')
    A('.amdhsa_user_sgpr_count 2')
    A('.amdhsa_user_sgpr_kernarg_segment_ptr 1')
    A('.amdhsa_system_sgpr_workgroup_id_x 1')
    A.L.append('.end_amdhsa_kernel')
    if leak:
        A.L += ['.p2align 6', '.amdhsa_kernel post_kernel', '  .amdhsa_next_free_vgpr 16', '  .amdhsa_next_free_sgpr 32', '  .amdhsa_accum_offset 16',
                '  .amdhsa_group_segment_fixed_size 0', '  .amdhsa_kernarg_size 104', '  .amdhsa_user_sgpr_count 2', '  .amdhsa_user_sgpr_kernarg_segment_ptr 1',
                '  .amdhsa_system_sgpr_workgroup_id_x 1', '.end_amdhsa_kernel']
    return A.text()


if __name__ == '__main__':
    out = sys.argv[1] if len(sys.argv) > 1 else 'cdna_kernels/' + KN + '.s'
    kw = {}
    for a in sys.argv[2:]:
        k, v = a.split('=')
        kw[k] = int(v) if v.lstrip('-').isdigit() else v
    open(out, 'w').write(gen(**kw))
    print('wrote', out)
```

```python
import struct, sys, math

KN = 'parallel_sum__gqa_block_cached__mixer_token_mlp__decode'


def f32(x):
    return '0x%08x' % struct.unpack('<I', struct.pack('<f', x))[0]


HEADER = open('cdna_kernels/' + KN + '.s.ref').read().split('; Override launch')[0]

LOG2E = 1.4426950408889634
S1 = 1280
L1ML = 1024
S2 = 2304
L2A = 256 * S1
POOLR = L2A + 256 * S2
SP = 768
QX = POOLR + 32 * SP
EPOCH = QX + 32768
WS_SIZE = EPOCH + 256
STAMP_OFF = 8 << 20
SPIN_MAX = 200000
KVOOB = 0x800000
L_Q = 0
L_FLAG, L_TAG, L_CNT, L_HF, L_TK, L_FIN, L_BC, L_OF, L_F2, L_EN, L_GO, L_SF = 512, 516, 520, 524, 528, 548, 536, 540, 544, 532, 552, 556
L_QT = 576
L_ZEND = 1280
L_BP = 1280
L_OW = 1792
L_P2 = 2304
L_XN = 3328
L_H = 5632
L_MG = 7936
L_WQ = 14336
NK = 5
L_KR = L_WQ
L_SC = L_KR + 4 * NK * 4096
SCW = 66 * 128
L_SIZE = L_SC + 4 * SCW


class Asm:
    def __init__(self):
        self.L = []

    def __call__(self, s):
        self.L.append('  ' + s)

    def label(self, s):
        self.L.append(s + ':')

    def nop(self, n):
        while n > 0:
            k = min(n, 16)
            self('s_nop %d' % (k - 1))
            n -= k

    def text(self):
        return '\n'.join(self.L) + '\n'


DPP = 'row_mask:0xf bank_mask:0xf'


def gen(kvpol='nt', wqpol='nt', wopol='nt', stamp=0, prog=0, nS=60, pd=3, npre=1, theta=2, big=12, small=2, first=4, huge=99,
        qsleep=20, bpol='', hpace=2, npoll=1, ps1=6, ps2=6, np1=2, np2=2, dsleep=1, warm=1, outpol='', leak=0, lbase=0,
        go=20, swz=1, lg=4, prio=1, gate=4, kspread=0, reh=0, galt=0):
    wolate = woearly = wooff = cpf = kfirst = 0
    NH = 8
    pv = pd
    ns = nS + 1
    LIM = (64 - ns - npre) * 4
    assert 0 < LIM and LIM + 4 * pd <= 56 and lg < NK and theta <= 4 * npre
    GATE = gate
    assert gate + galt <= 8
    GQ = lambda q: GATE + (galt if q & 1 else 0)
    A = Asm()
    A.L.append(HEADER.rstrip('\n'))
    if leak:
        A.L.append(f'; @launch kernel={KN}_kernel grid=(256,1,1) block=(512,1,1) lds={L_SIZE}')
        A.L.append('; @launch kernel=post_kernel grid=(1,1,1) block=(64,1,1) lds=0')
    else:
        A.L.append(f'; @launch grid=(256,1,1) block=(512,1,1) lds={L_SIZE}')
    A.L.append('.amdgcn_target "amdgcn-amd-amdhsa--gfx950"')
    A.L.append('.text')
    A.L.append(f'.globl {KN}_kernel')
    A.L.append('.p2align 8')
    A.L.append(f'.type {KN}_kernel,@function')
    A.label(f'{KN}_kernel')
    ws_size = (STAMP_OFF + 65536 + 131072) if stamp else WS_SIZE

    def stampit(k):
        if stamp:
            A(f's_memrealtime s[{84 + 2 * k}:{85 + 2 * k}]')

    def stamp_store():
        if not stamp:
            return
        A('s_waitcnt lgkmcnt(0) vmcnt(0)')
        A('s_getreg_b32 s64, hwreg(HW_REG_XCC_ID)')
        A('s_lshl_b32 s65, s2, 3')
        A('s_add_u32 s65, s65, s30')
        A('s_lshl_b32 s65, s65, 5')
        A(f's_add_u32 s65, s65, {STAMP_OFF}')
        A('s_mov_b64 exec, 1')
        A('v_mov_b32 v4, 0')
        for k in range(7):
            A(f'v_mov_b32 v5, s{84 + 2 * k}')
            A(f'buffer_store_dword v5, v4, s[48:51], s65 offen offset:{4 * k}')
        A('v_mov_b32 v5, s64')
        A(f'buffer_store_dword v5, v4, s[48:51], s65 offen offset:28')
        A('s_waitcnt vmcnt(0)')

    lk = [0]

    def leakit(k, wave=None):
        if leak != k:
            return
        lk[0] += 1
        A('s_cmp_lg_u32 s2, 2')
        A(f's_cbranch_scc1 L_lk{lk[0]}')
        if wave is not None:
            A(f's_cmp_lg_u32 s30, {wave}')
            A(f's_cbranch_scc1 L_lk{lk[0]}')
        A('s_memrealtime s[96:97]')
        A('s_waitcnt lgkmcnt(0)')
        A('s_sub_u32 s96, s96, s100')
        A('v_mov_b32 v254, s96')
        A('v_mov_b32 v31, 0')
        A(f's_mov_b32 s96, {EPOCH + 64}')
        A('s_mov_b64 exec, 1')
        A('buffer_store_dword v254, v31, s[48:51], s96 offen')
        A('s_mov_b64 exec, -1')
        A('s_waitcnt vmcnt(0)')
        A.label(f'L_lk{lk[0]}')

    SEL = 40

    def make_sel():
        A('v_and_b32 v4, 7, v2')
        A('v_lshrrev_b32 v5, 1, v4')
        A('v_and_b32 v6, 1, v4')
        A('v_mov_b32 v7, 0x0c0c0100')
        A('v_mov_b32 v8, 0x01000c0c')
        A('v_cmp_eq_u32 vcc, 1, v6')
        A('v_mov_b32 v9, 0x0c0c0302')
        A('v_mov_b32 v10, 0x03020c0c')
        A('v_cndmask_b32 v7, v7, v8, vcc')
        A('v_cndmask_b32 v9, v9, v10, vcc')
        A('v_mov_b32 v8, 0x0c0c0c0c')
        for d in range(4):
            A(f'v_cmp_eq_u32 vcc, {d}, v5')
            A.nop(2)
            A(f'v_cndmask_b32 v{SEL + d}, v8, v7, vcc')
            A(f'v_cndmask_b32 v{SEL + 4 + d}, v8, v9, vcc')

    def build_b(dst, src, odd):
        for d in range(4):
            A(f'v_perm_b32 v{dst + d}, v{src}, v{src}, v{SEL + 4 * odd + d}')

    def swapred(sw, op, v, t):
        A(f'v_mov_b32 v{t}, v{v}')
        A.nop(2)
        A(f'{sw} v{v}, v{t}')
        A(f'{op} v{v}, v{v}, v{t}')

    def allred_g(op, v, t):
        swapred('v_permlane16_swap_b32', op, v, t)
        swapred('v_permlane32_swap_b32', op, v, t)

    def allred_row(v):
        for m in ('quad_perm:[1,0,3,2]', 'quad_perm:[2,3,0,1]', 'row_half_mirror', 'row_mirror'):
            A.nop(2)
            A(f'v_add_f32_dpp v{v}, v{v}, v{v} {m} {DPP}')

    def lds_wait(lab, off, cmp, val, vt, vz, sleep):
        A.label(lab)
        A(f'ds_read_b32 v{vt}, v{vz} offset:{off}')
        A('s_waitcnt lgkmcnt(0)')
        A(f'v_readfirstlane_b32 s64, v{vt}')
        A('s_nop 0')
        A(f'{cmp} s64, {val}')
        if sleep:
            A(f's_cbranch_scc0 {lab}_ok')
            A(f's_sleep {sleep}')
            A(f's_branch {lab}')
            A.label(lab + '_ok')
        else:
            A(f's_cbranch_scc1 {lab}')

    if kfirst:
        A('s_load_dwordx16 s[4:19], s[0:1], 0')
    A('s_cmp_ge_u32 s2, 256')
    A('s_cbranch_scc1 L_end')
    if stamp:
        for k in range(7):
            A(f's_mov_b64 s[{84 + 2 * k}:{85 + 2 * k}], 0')
    stampit(0)
    if leak:
        A('s_memrealtime s[100:101]')
    if not kfirst:
        A('s_load_dwordx16 s[4:19], s[0:1], 0')
        A('s_load_dwordx8 s[20:27], s[0:1], 64')
        A('s_load_dwordx2 s[28:29], s[0:1], 96')
    A('v_lshrrev_b32 v1, 6, v0')
    A('v_and_b32 v2, 15, v0')
    A('v_readfirstlane_b32 s30, v1')
    A('v_and_b32 v1, 63, v0')
    A('v_lshrrev_b32 v3, 4, v1')
    A('s_lshr_b32 s31, s2, 3')
    A('s_and_b32 s32, s2, 7')
    A(f's_mov_b32 s50, {ws_size}')
    A('s_mov_b32 s51, 0x20000')
    A('s_cmp_lt_u32 s30, 4')
    A('s_cbranch_scc1 L_helper')

    RING, Q, BS, S, ACC, PK = 64, 48, 32, 24, 20, 16
    VV, VZ, VONE = 13, 14, 15
    M2, LS, AL, T0, T1, PUB = 4, 5, 6, 7, 8, 9
    KF, DV, RA, RT, MX, SN, SH, SCA, SCB, LIST = 32, 20, 4, 16, 8, 28, 48, 12, 11, 0
    TK1, TK2 = 28, 29
    VR = RING + 16 * NH
    SV, SK, SCNT, SKI, SKP, SKB, SKE, STAG, SO, SPR, SLN, SIX, SREM = 38, 39, 52, 53, 54, 55, 57, 56, 58, 59, 62, 63, 69
    A('s_sub_u32 s37, s30, 4')
    if prio:
        A('s_setprio 1')
    A('s_lshl_b32 s64, s31, 23')
    A(f's_lshl_b32 s{SV}, s32, 20')
    A('s_lshl_b32 s65, s37, 12')
    A(f's_add_u32 s{SV}, s{SV}, s65')
    A(f's_mov_b32 s{SK}, s{SV}')
    A(f's_mov_b32 s42, {KVOOB}')
    A('s_mov_b32 s43, 0x20000')
    A(f's_mov_b32 s46, {KVOOB}')
    A('s_mov_b32 s47, 0x20000')
    A(f'v_lshlrev_b32 v{VV}, 4, v1')
    A('s_sub_u32 s65, s32, s31')
    A(f's_and_b32 s{SPR}, s65, 3')
    A('s_waitcnt lgkmcnt(0)')
    A('s_add_u32 s44, s8, s64')
    A('s_addc_u32 s45, s9, 0')
    A('s_add_u32 s40, s6, s64')
    A('s_addc_u32 s41, s7, 0')
    A('s_mov_b32 s48, s28')
    A('s_mov_b32 s49, s29')
    A(f's_cmp_eq_u32 s{SPR}, 0')
    A('s_cbranch_scc0 L_nobx0')
    A('s_barrier')
    A.label('L_nobx0')

    def vload(reg, q, so, gated=True):
        if gated:
            A(f's_waitcnt vmcnt({GQ(q)})')
        A(f'buffer_load_dwordx4 v[{reg + 4 * q}:{reg + 4 * q + 3}], v{VV}, s[44:47], s{so} offen offset:{q * 1024} {kvpol}')

    def khalf(half):
        if half == 0:
            A(f's_mov_b32 m0, s{SKI}')
            A(f's_add_u32 s{SKI}, s{SKI}, 0x1000')
        for q in (2 * half, 2 * half + 1):
            A(f's_waitcnt vmcnt({GQ(q)})')
            A(f'buffer_load_dwordx4 v{DV + q}, s[40:43], s{SK} offen offset:{q * 1024} {kvpol} lds')
        if half:
            A(f's_add_u32 s{SK}, s{SK}, 0x4000')
            A(f's_cmp_eq_u32 s{SKI}, s{SKE}')
            A(f's_cselect_b32 s{SKI}, s{SKB}, s{SKI}')

    for n in range(4 * NH):
        if n == 4 * (NH - pv):
            A(f's_cmp_eq_u32 s{SPR}, 0')
            A('s_cbranch_scc1 L_v0e')
        vload(RING + 16 * (n // 4), n & 3, SV, n > GATE)
        if n & 3 == 3:
            A(f's_add_u32 s{SV}, s{SV}, 0x4000')
        if n == GATE:
            A(f's_cmp_eq_u32 s{SPR}, 0')
            A('s_cbranch_scc1 L_nobx')
            A('s_barrier')
            A.label('L_nobx')
            A(f'v_mov_b32 v{VZ}, 0')
            A(f'v_mov_b32 v{VONE}, 1')
            A(f'v_lshlrev_b32 v{RT}, 2, v3')
            A(f'v_xor_b32 v{RT}, v{RT}, v2')
            A(f'v_lshlrev_b32 v{RT}, 4, v{RT}')
            A(f'v_lshl_add_u32 v{DV}, v3, 8, v{RT}')
            for q in range(1, 4):
                A(f'v_xor_b32 v{DV + q}, {16 * q}, v{DV}')
            A(f'v_and_b32 v{RT}, 3, v2')
            A(f'v_lshlrev_b32 v{RT}, 10, v{RT}')
            A(f'v_lshrrev_b32 v{RT + 1}, 2, v2')
            A(f'v_lshl_add_u32 v{RT}, v{RT + 1}, 8, v{RT}')
            A(f'v_xor_b32 v{RT + 1}, v3, v2')
            A(f'v_lshl_add_u32 v{RA}, v{RT + 1}, 4, v{RT}')
            for q in range(1, 4):
                A(f'v_xor_b32 v{RA + q}, {64 * q}, v{RA}')
            A(f's_mul_i32 s{SKB}, s37, {NK * 4096}')
            A(f's_add_u32 s{SKB}, s{SKB}, {L_KR}')
            A(f's_add_u32 s{SKE}, s{SKB}, {NK * 4096}')
            A(f's_mov_b32 s{SKI}, s{SKB}')
            A(f's_mov_b32 s{SKP}, s{SKB}')
            A(f'v_lshrrev_b32 v{RT}, 3, v2')
            A(f'v_lshl_add_u32 v{RT + 1}, v{RT}, 2, v3')
            A(f's_mul_i32 s64, s37, {SCW}')
            A(f's_add_u32 s64, s64, {L_SC}')
            A(f'v_lshl_add_u32 v{SCA}, v{RT + 1}, 4, s64')
            A(f'v_add_u32 v{SCB}, 128, v{SCA}')
            A(f'v_lshlrev_b32 v{RT}, 8, v{RT}')
            A(f'v_lshl_add_u32 v{PUB}, v3, 4, v{RT}')
            A(f'v_mov_b32 v{MX}, {f32(-3.0e38)}')
            for r in range(4):
                A(f'v_mov_b32 v{S + r}, v{MX}')
            A(f's_mov_b32 s66, {f32(128 ** -0.5)}')
            A(f's_mov_b32 s67, {f32(LOG2E)}')
            A('s_mov_b32 s60, 0x01010101')
            A('s_mov_b32 s61, 0x01010101')
            A(f's_cmp_eq_u32 s{SPR}, 0')
            A(f's_cselect_b32 s{SCNT}, {nS - pd - lg}, {nS - lg}')
            A('s_mov_b32 s71, 0')
    A.label('L_v0e')
    stampit(1)
    A(f's_cmp_lg_u32 s{SPR}, 0')
    A('s_cbranch_scc1 L_sf_ok')
    lds_wait('L_sf', L_SF, 's_cmp_lt_u32', 4, RT, VZ, 0)
    A.label('L_sf_ok')
    assert go >= 2 * NH
    for n in range(2 * lg):
        if 2 * NH + n == go:
            A(f'ds_write_b32 v{VZ}, v{VONE} offset:{L_GO}')
        khalf(n & 1)
    A.label('L_qw')
    A(f'ds_read_b64 v[{RT}:{RT + 1}], v{VZ} offset:{L_FLAG}')
    for q in range(4):
        A(f'ds_read_b128 v[{Q + 4 * q}:{Q + 4 * q + 3}], v{PUB} offset:{L_Q + 64 * q}')
    A('s_waitcnt lgkmcnt(0)')
    A(f'v_readfirstlane_b32 s64, v{RT}')
    A(f'v_readfirstlane_b32 s{STAG}, v{RT + 1}')
    A('s_cmp_eq_u32 s64, 0')
    A('s_cbranch_scc1 L_qw')
    stampit(2)

    def kfinish():
        A(f'v_max3_f32 v{MX}, v{MX}, v{S}, v{S + 1}')
        A(f'v_max3_f32 v{MX}, v{MX}, v{S + 2}, v{S + 3}')
        A('s_mov_b64 exec, s[60:61]')
        A(f'ds_write_b128 v{SCA}, v[{S}:{S + 3}]')
        A('s_mov_b64 exec, -1')
        A(f'v_add_u32 v{SCA}, 128, v{SCA}')

    def kreads():
        for q in range(4):
            A(f'v_add_u32 v{RT + q}, s{SKP}, v{RA + q}')
        for q in range(4):
            A(f'ds_read_b128 v[{KF + 4 * q}:{KF + 4 * q + 3}], v{RT + q}')
        A(f's_add_u32 s{SKP}, s{SKP}, 0x1000')
        A(f's_cmp_eq_u32 s{SKP}, s{SKE}')
        A(f's_cselect_b32 s{SKP}, s{SKB}, s{SKP}')

    def kmfma():
        for q in range(4):
            if stamp and q == 0:
                A('s_waitcnt lgkmcnt(0)')
            A(f's_waitcnt lgkmcnt({3 - q})')
            c = '0' if q == 0 else f'v[{S}:{S + 3}]'
            A(f'v_mfma_f32_16x16x32_bf16 v[{S}:{S + 3}], v[{KF + 4 * q}:{KF + 4 * q + 3}], v[{Q + 4 * q}:{Q + 4 * q + 3}], {c}')

    def progstamp(shift):
        if prog == 1:
            A('s_memrealtime s[98:99]')
            A(f's_lshr_b32 m0, s71, {shift}')
            A('s_add_u32 s71, s71, 1')
            A('s_waitcnt lgkmcnt(0)')
            A('v_writelane_b32 v10, s98, m0')

    A.label('L_kloop')
    if prog == 1:
        A('s_min_u32 s71, s71, 63')
    progstamp(2)
    if kspread:
        def kl1(q):
            A(f's_waitcnt vmcnt({GQ(q)})')
            A(f'buffer_load_dwordx4 v{DV + q}, s[40:43], s{SK} offen offset:{q * 1024} {kvpol} lds')
        A(f's_mov_b32 m0, s{SKI}')
        A(f's_add_u32 s{SKI}, s{SKI}, 0x1000')
        kl1(0)
        kfinish()
        kl1(1)
        kreads()
        kl1(2)
        kmfma()
        kl1(3)
        A(f's_add_u32 s{SK}, s{SK}, 0x4000')
        A(f's_cmp_eq_u32 s{SKI}, s{SKE}')
        A(f's_cselect_b32 s{SKI}, s{SKB}, s{SKI}')
    else:
        khalf(0)
        kfinish()
        kreads()
        khalf(1)
        kmfma()
    A(f's_sub_u32 s{SCNT}, s{SCNT}, 1')
    A(f's_cmp_lg_u32 s{SCNT}, 0')
    A('s_cbranch_scc1 L_kloop')
    outst = []
    for t in range(lg):
        outst += [('K', t)] * 4

    def younger(tag):
        last = max(i for i, t in enumerate(outst) if t == tag)
        return len(outst) - 1 - last

    vq = [(u, q) for u in range(3) for q in range(4)]

    def vstart(n):
        for _ in range(n):
            u, q = vq.pop(0)
            vload(VR + 16 * u, q, SV)
            if q == 3:
                A(f's_add_u32 s{SV}, s{SV}, 0x4000')
            outst.append(('V', u))

    for t in range(lg):
        vstart(2)
        A(f's_waitcnt vmcnt({younger(("K", t))})')
        A.nop(3)
        kfinish()
        kreads()
        kmfma()
    vstart(2)
    A.nop(4)
    kfinish()
    stampit(5)
    A(f's_cmp_eq_u32 s{SPR}, 0')
    A(f's_cselect_b32 s64, {NH - pv}, {NH}')
    nb = nS - NH - 3 - NH
    assert nb % 4 == 1
    A(f's_mov_b32 s{SCNT}, {(nb + 3) // 4}')
    A('s_lshl_b32 s64, s64, 7')
    A(f'v_add_u32 v{SCA}, s64, v{SCB}')
    A(f'ds_read_b128 v[{SN}:{SN + 3}], v{SCA}')
    A(f'ds_read_b128 v[{SH}:{SH + 3}], v{SCB}')
    allred_g('v_max_f32', MX, T0)
    A(f'v_cvt_pk_bf16_f32 v{RT}, 0, v{MX}')
    A(f'v_mul_f32 v{RT}, s66, v{RT}')
    A(f'v_cvt_pk_bf16_f32 v{RT}, 0, v{RT}')
    A(f'v_mul_f32 v{RT}, s67, v{RT}')
    vstart(1)
    if prog:
        A(f'v_mov_b32 v{RT + 1}, v10')
    make_sel()
    if prog:
        A(f'v_mov_b32 v10, v{RT + 1}')
        A('s_mov_b32 s71, 16')
    A(f'v_mov_b32 v{M2}, v{RT}')
    for r in range(4):
        A(f'v_mov_b32 v{ACC + r}, 0')
    A(f'v_mov_b32 v{LS}, 0')
    vstart(len(vq))

    def vbody(reg, src, nxt, hooks=(None, None, None, None), waits=None):
        if hooks[0]:
            hooks[0]()
        A('s_waitcnt lgkmcnt(0)')
        for n in range(4):
            A(f'v_cvt_pk_bf16_f32 v{S + n}, 0, v{src + n}')
        if nxt:
            A(f'ds_read_b128 v[{src}:{src + 3}], v{nxt[0]} offset:{nxt[1]}')
        for n in range(4):
            A(f'v_mul_f32 v{S + n}, s66, v{S + n}')
        for n in range(4):
            A(f'v_cvt_pk_bf16_f32 v{S + n}, 0, v{S + n}')
        for n in range(4):
            A(f'v_fma_f32 v{S + n}, v{S + n}, s67, -v{M2}')
        for n in range(4):
            A(f'v_exp_f32 v{S + n}, v{S + n}')
        if hooks[1]:
            hooks[1]()
        A(f'v_cvt_pk_bf16_f32 v{PK}, v{S}, v{S + 1}')
        A(f'v_cvt_pk_bf16_f32 v{PK + 1}, v{S + 2}, v{S + 3}')
        build_b(BS, PK, 0)
        build_b(BS + 4, PK, 1)
        A(f'v_add_f32 v{T0}, v{S}, v{S + 1}')
        A(f'v_add_f32 v{T1}, v{S + 2}, v{S + 3}')
        if hooks[2]:
            hooks[2]()
        for n in range(4):
            v = reg + n * 4
            b = BS + 4 * (n & 1)
            if waits:
                A(f's_waitcnt vmcnt({waits[n]})')
            A(f'v_mfma_f32_16x16x32_bf16 v[{ACC}:{ACC + 3}], v[{v}:{v + 3}], v[{b}:{b + 3}], v[{ACC}:{ACC + 3}]')
            if n < 2:
                build_b(b, PK + 1, n & 1)
            elif n == 2:
                A(f'v_add_f32 v{LS}, v{LS}, v{T0}')
                A(f'v_add_f32 v{LS}, v{LS}, v{T1}')
        if hooks[3]:
            hooks[3]()

    for u in range(NH):
        dst = VR + 16 * ((u + 3) % 4)
        ld = lambda q: (lambda: vload(dst, q, SV))
        vbody(VR + 16 * (u % 4), SN, (SCA, (u + 1) * 128), (ld(0), None, ld(1), None))
        if u >= NH - pv:
            A(f's_cmp_eq_u32 s{SPR}, 0')
            A(f's_cbranch_scc0 L_hb{u}')
            vload(dst, 2, SV)
            vload(dst, 3, SV)
            A(f's_branch L_he{u}')
            A.label(f'L_hb{u}')
        vbody(RING + 16 * u, SH, (SCB, (u + 1) * 128) if u + 1 < NH else None, (ld(2), None, ld(3), None))
        A.label(f'L_he{u}')
        A(f's_add_u32 s{SV}, s{SV}, 0x4000')
    A(f'v_add_u32 v{SCA}, {NH * 128}, v{SCA}')
    A(f'v_lshrrev_b32 v{T0}, 3, v2')
    A(f'v_lshl_add_u32 v{T0}, v{T0}, 2, v3')
    A(f'v_lshlrev_b32 v{T0}, 7, v{T0}')
    A(f'v_and_b32 v{T1}, 7, v2')
    A(f'v_lshl_add_u32 v{PUB}, v{T1}, 4, v{T0}')
    VKT = LIST
    A(f'v_and_b32 v{AL}, 3, v2')
    A(f'v_lshlrev_b32 v{AL}, 10, v{AL}')
    A(f'v_lshrrev_b32 v{VKT}, 2, v2')
    A(f'v_lshl_add_u32 v{AL}, v{VKT}, 8, v{AL}')
    A(f'v_lshl_add_u32 v{VKT}, v3, 4, v{AL}')
    A(f'v_lshrrev_b32 v{AL}, 3, v2')
    A(f'v_lshlrev_b32 v{AL}, 8, v{AL}')
    A(f'v_lshl_add_u32 v{AL}, v3, 4, v{AL}')
    A(f'ds_read_b128 v[{Q}:{Q + 3}], v{AL} offset:{L_Q}')
    A('v_lshlrev_b32 v3, 1, v2')
    A(f's_mul_i32 s68, s2, {S1}')
    A('v_lshlrev_b32 v11, 3, v1')
    A('s_lshl_b32 s64, s37, 9')
    A('v_add_u32 v18, s64, v11')
    A('s_lshl_b32 s64, s37, 10')
    A(f'v_add_u32 v19, s64, v{VV}')

    A.label('L_vt0')
    progstamp(0)
    for u in range(4):
        dst = VR + 16 * ((u + 3) % 4)
        ld = lambda q: (lambda: vload(dst, q, SV))
        vbody(VR + 16 * u, SN, (SCA, 128 * (u + 1)), (ld(0), ld(1), ld(2), ld(3)))
        A(f's_add_u32 s{SV}, s{SV}, 0x4000')
        if u == 0:
            A(f's_sub_u32 s{SCNT}, s{SCNT}, 1')
            A(f's_cmp_eq_u32 s{SCNT}, 0')
            A('s_cbranch_scc1 L_vsw')
    A(f'v_add_u32 v{SCA}, 512, v{SCA}')
    A('s_branch L_vt0')

    def kloads(slot, so, qs=range(4), gated=False):
        for q in qs:
            r = RING + slot * 32 + q * 4
            if gated:
                A(f's_waitcnt vmcnt({GATE})')
            A(f'buffer_load_dwordx4 v[{r}:{r + 3}], v{VKT}, s[40:43], s{so} offen offset:{q * 64} {kvpol}')

    def vloads(slot, so):
        for q in range(4):
            vload(RING + slot * 32 + 16, q, so, False)

    A.label('L_vsw')
    SNX = SO
    kl = lambda qs: (lambda: kloads(0, SV, qs, True))
    vl = lambda q: (lambda: vload(RING + 16, q, SV))
    vbody(VR + 16, SN, (SCA, 256), (kl((0,)), None, kl((1,)), None), (13, 12, 11, 10))
    vbody(VR + 32, SN, (SCA, 384), (kl((2,)), None, kl((3,)), None), (11, 10, 9, 8))
    vbody(VR + 48, SN, None, (vl(0), vl(1), vl(2), vl(3)), (10, 9, 8, 7))
    stampit(6)
    A('s_mov_b64 exec, 1')
    A(f'ds_add_rtn_u32 v{TK1}, v{VZ}, v{VONE} offset:{L_TK}')
    A('s_mov_b64 exec, -1')

    def qk(slot, wk):
        A(f's_waitcnt vmcnt({wk})')
        for q in range(4):
            k = RING + slot * 32 + q * 4
            c = '0' if q == 0 else f'v[{S}:{S + 3}]'
            A(f'v_mfma_f32_16x16x32_bf16 v[{S}:{S + 3}], v[{k}:{k + 3}], v[{Q + 4 * q}:{Q + 4 * q + 3}], {c}')

    def softmax_pv(slot, prepv):
        for n in range(4):
            A(f'v_cvt_pk_bf16_f32 v{S + n}, 0, v{S + n}')
        for n in range(4):
            A(f'v_mul_f32 v{S + n}, s66, v{S + n}')
        for n in range(4):
            A(f'v_cvt_pk_bf16_f32 v{S + n}, 0, v{S + n}')
        A(f'v_max3_f32 v{T0}, v{S}, v{S + 1}, v{S + 2}')
        A(f'v_max_f32 v{T0}, v{T0}, v{S + 3}')
        allred_g('v_max_f32', T0, T1)
        A(f'v_mul_f32 v{T0}, s67, v{T0}')
        A(f'v_max_f32 v{T0}, v{T0}, v{M2}')
        A(f'v_sub_f32 v{AL}, v{M2}, v{T0}')
        A(f'v_mov_b32 v{M2}, v{T0}')
        A(f'v_exp_f32 v{AL}, v{AL}')
        for n in range(4):
            A(f'v_fma_f32 v{S + n}, v{S + n}, s67, -v{M2}')
        for n in range(4):
            A(f'v_exp_f32 v{S + n}, v{S + n}')
        for r in range(4):
            A(f'v_mul_f32 v{ACC + r}, v{AL}, v{ACC + r}')
        A(f'v_cvt_pk_bf16_f32 v{PK}, v{S}, v{S + 1}')
        A(f'v_cvt_pk_bf16_f32 v{PK + 1}, v{S + 2}, v{S + 3}')
        build_b(BS, PK, 0)
        A(f'v_fma_f32 v{LS}, v{LS}, v{AL}, v{S}')
        A(f'v_add_f32 v{T0}, v{S + 1}, v{S + 2}')
        for n in range(4):
            if n + 1 < 4:
                build_b(BS + 4 * ((n + 1) & 1), PK + (n + 1) // 2, (n + 1) & 1)
            else:
                A(f'v_add_f32 v{LS}, v{LS}, v{S + 3}')
                A(f'v_add_f32 v{LS}, v{LS}, v{T0}')
            if n == 0:
                prepv()
            v = RING + slot * 32 + 16 + n * 4
            b = BS + 4 * (n & 1)
            A(f'v_mfma_f32_16x16x32_bf16 v[{ACC}:{ACC + 3}], v[{v}:{v + 3}], v[{b}:{b + 3}], v[{ACC}:{ACC + 3}]')

    A.label('L_sloop')
    for k in (0, 1):
        A('s_mov_b64 exec, 1')
        A('s_waitcnt lgkmcnt(0)')
        A(f'v_lshlrev_b32 v{TK1}, 2, v{TK1}')
        A.label(f'L_qt{k}')
        A(f'ds_read_b32 v{TK2}, v{TK1} offset:{L_QT}')
        A('s_waitcnt lgkmcnt(0)')
        A(f'v_readfirstlane_b32 s64, v{TK2}')
        A('s_nop 0')
        A('s_cmp_eq_u32 s64, 0')
        A(f's_cbranch_scc1 L_qt{k}')
        A('s_mov_b64 exec, -1')
        A(f's_mov_b32 s{SNX}, s64')
        A('s_waitcnt vmcnt(4)')
        kloads(1 - k, SNX)
        qk(k, 8)
        A.nop(8)

        def prepv():
            A(f's_cmp_eq_u32 s{SNX}, {KVOOB}')
            A('s_waitcnt vmcnt(4)')
            A(f's_cbranch_scc1 L_pv{k}')
            vloads(1 - k, SNX)
            A('s_mov_b64 exec, 1')
            A(f'ds_add_rtn_u32 v{TK1}, v{VZ}, v{VONE} offset:{L_TK}')
            A('s_mov_b64 exec, -1')
            A.label(f'L_pv{k}')
        softmax_pv(k, prepv)
        A(f's_cmp_eq_u32 s{SNX}, {KVOOB}')
        if k == 0:
            A('s_cbranch_scc1 L_sdone')
        else:
            A('s_cbranch_scc0 L_sloop')

    A.label('L_sdone')
    stampit(3)
    allred_g('v_add_f32', LS, T1)
    A(f'ds_write_b64 v18, v[{M2}:{M2 + 1}] offset:{L_MG + 4096}')
    A(f'ds_write_b128 v19, v[{ACC}:{ACC + 3}] offset:{L_MG}')
    A('s_mov_b64 exec, 1')
    A(f'ds_add_rtn_u32 v{T1}, v{VZ}, v{VONE} offset:{L_FIN}')
    A('s_mov_b64 exec, -1')
    for w in range(4):
        A(f'ds_read_b64 v[{BS + 2 * w}:{BS + 2 * w + 1}], v11 offset:{L_MG + 4096 + 512 * w}')
    for w in range(4):
        A(f'ds_read_b128 v[{Q + 4 * w}:{Q + 4 * w + 3}], v{VV} offset:{L_MG + 1024 * w}')
    A(f's_and_b32 s64, s{STAG}, 0xff')
    A('s_movk_i32 s65, 0xff')
    A(f'v_mov_b32 v{PK}, s64')
    A(f'v_mov_b32 v{T0}, s{STAG}')
    A('s_waitcnt lgkmcnt(4)' if not stamp else 's_waitcnt lgkmcnt(0)')
    A(f'v_readfirstlane_b32 s64, v{T1}')
    A(f'v_max_f32 v{M2}, v{BS}, v{BS + 2}')
    A('s_cmp_lg_u32 s64, 3')
    A('s_cbranch_scc1 L_send')
    A(f'v_max3_f32 v{M2}, v{M2}, v{BS + 4}, v{BS + 6}')
    for w in range(4):
        A(f'v_sub_f32 v{S + w}, v{BS + 2 * w}, v{M2}')
    for w in range(4):
        A(f'v_exp_f32 v{S + w}, v{S + w}')
    A(f'v_mov_b32 v{LS}, s{STAG}')
    A(f'v_mul_f32 v{AL}, v{S}, v{BS + 1}')
    for w in range(1, 4):
        A(f'v_fmac_f32 v{AL}, v{S + w}, v{BS + 2 * w + 1}')
    A('s_mov_b64 exec, 0x0101')
    A(f'buffer_store_dwordx4 v[{M2}:{M2 + 3}], v3, s[48:51], s68 offen offset:{L1ML} sc1')
    A('s_mov_b64 exec, -1')
    A('s_waitcnt lgkmcnt(0)')
    for r in range(4):
        A(f'v_mul_f32 v{ACC + r}, v{S}, v{Q + r}')
    for w in range(1, 4):
        for r in range(4):
            A(f'v_fmac_f32 v{ACC + r}, v{S + w}, v{Q + 4 * w + r}')
    for r in range(4):
        A(f'v_bfi_b32 v{ACC + r}, s65, v{PK}, v{ACC + r}')
    A(f'buffer_store_dwordx4 v[{ACC}:{ACC + 3}], v{PUB}, s[48:51], s68 offen sc1')
    stampit(4)
    if stamp:
        A.label('L_send')
        A('s_barrier')
        for _ in range(2): A('s_sleep 127')
    else:
        A('s_barrier')
        A.label('L_send')
    if prog:
        A('s_mov_b32 m0, 31')
        A('s_nop 0')
        A('v_writelane_b32 v10, s71, m0')
        A('s_lshl_b32 s65, s2, 2')
        A('s_add_u32 s65, s65, s37')
        A('s_lshl_b32 s65, s65, 7')
        A(f's_add_u32 s65, s65, {STAMP_OFF + 65536}')
        A('v_lshlrev_b32 v11, 2, v1')
        A('s_mov_b32 exec_hi, 0')
        A('buffer_store_dword v10, v11, s[48:51], s65 offen')
        A('s_mov_b64 exec, -1')
    stamp_store()
    A('s_endpgm')

    A.label('L_helper')
    if kfirst:
        A('s_load_dwordx8 s[20:27], s[0:1], 64')
        A('s_load_dwordx2 s[28:29], s[0:1], 96')
    A('s_setprio 2')
    HB = 48
    X, E = 64, 80
    A('v_lshlrev_b32 v11, 4, v1')
    A('v_mov_b32 v12, 0')
    A('v_lshlrev_b32 v23, 2, v1')
    for z in range(L_FLAG, L_ZEND, 256):
        A(f'ds_write_b32 v23, v12 offset:{z}')
    A('s_lshr_b32 s33, s31, 4')
    A('s_and_b32 s34, s31, 15')
    A('s_and_b32 s35, s2, 127')
    A('s_sub_u32 s64, s32, s31')
    A('s_and_b32 s64, s64, 7')
    A('s_lshr_b32 s65, s64, 2')
    A('s_lshl_b32 s72, s31, 1')
    A('s_add_u32 s72, s72, s65')
    A('s_lshl_b32 s73, s65, 4')
    A('s_add_u32 s73, s73, s34')
    A('s_and_b32 s64, s64, 3')
    A('s_cmp_lt_u32 s73, 18')
    A('s_cselect_b32 s3, 2, 0')
    A('s_cmp_eq_u32 s64, 2')
    A('s_cselect_b32 s3, s3, 0')
    A('s_cmp_eq_u32 s64, 0')
    A('s_cselect_b32 s3, 1, s3')
    A('v_mul_u32_u24 v13, 36, v1')
    A('s_mov_b32 s42, 2304')
    A('s_mov_b32 s43, 0x20000')
    A(f's_mov_b32 s46, {576 * 8192}')
    A('s_mov_b32 s47, 0x20000')
    A('v_lshrrev_b32 v14, 3, v1')
    A('v_lshlrev_b32 v14, 13, v14')
    A('v_and_b32 v15, 7, v1')
    if swz:
        A('v_lshrrev_b32 v16, 3, v1')
        A('v_and_b32 v16, 2, v16')
        A('v_xor_b32 v15, v15, v16')
    A('v_lshl_add_u32 v14, v15, 4, v14')
    A('v_xor_b32 v31, 64, v14')
    A(f's_mul_i32 s38, s30, {144 * 8192}')
    A('s_lshl_b32 s64, s72, 7')
    A('s_add_u32 s38, s38, s64')
    A(f's_mul_i32 s37, s30, {144 * 128}')
    A(f's_add_u32 s37, s37, {L_WQ}')
    A('s_lshl_b32 s64, s30, 2')
    A('s_add_u32 s64, s64, s3')
    A('s_cmp_eq_u32 s64, 2')
    A('s_cselect_b32 s70, 1, 0')
    A('s_cmp_eq_u32 s3, 1')
    A('s_cselect_b32 s70, 1, s70')
    A('s_waitcnt lgkmcnt(0)')
    A('s_mov_b32 s48, s28')
    A('s_mov_b32 s49, s29')
    A('s_mov_b32 s40, s4')
    A('s_mov_b32 s41, s5')
    A('s_mov_b32 s44, s10')
    A('s_mov_b32 s45, s11')
    A(f's_mov_b32 s64, {EPOCH}')
    A('s_load_dwordx2 s[78:79], s[28:29], s64')
    A('s_cmp_eq_u32 s70, 0')
    A('s_cbranch_scc1 L_h_x')
    A(f'buffer_load_dwordx4 v[{X}:{X + 3}], v13, s[40:43], 0 offen')
    A(f'buffer_load_dwordx4 v[{X + 4}:{X + 7}], v13, s[40:43], 0 offen offset:16')
    A(f'buffer_load_dword v{X + 8}, v13, s[40:43], 0 offen offset:32')
    A('s_cmp_lg_u32 s3, 1')
    A('s_cbranch_scc1 L_h_x')
    for n in range(18):
        A('s_mov_b32 m0, s37')
        A('s_add_u32 s37, s37, 1024')
        A(f'buffer_load_dwordx4 v{31 if (swz and n & 1) else 14}, s[44:47], s38 offen {wqpol} lds')
        A('s_add_u32 s38, s38, 0x10000')
    A.label('L_h_x')
    A('s_barrier')
    if cpf:
        A('s_cmp_lg_u32 s30, 3')
        A('s_cbranch_scc1 L_nocpf')
        A(f's_cmp_ge_u32 s31, {cpf}')
        A('s_cbranch_scc1 L_nocpf')
        A('s_cmp_eq_u32 s3, 1')
        A('s_cbranch_scc1 L_nocpf')
        A('s_getpc_b64 s[64:65]')
        A.label('L_pcref')
        A(f's_sub_u32 s64, s64, L_pcref-{KN}_kernel')
        A('s_subb_u32 s65, s65, 0')
        A('v_lshlrev_b32 v32, 7, v1')
        A(f'v_min_u32 v33, L_end-{KN}_kernel, v32')
        A('global_load_dword v36, v33, s[64:65]')
        for n in range(1, 3):
            A(f'v_add_u32 v32, 0x2000, v32')
            A(f'v_min_u32 v{33 + n}, L_end-{KN}_kernel, v32')
            A(f'global_load_dword v{36 + n}, v{33 + n}, s[64:65]')
        A.label('L_nocpf')
    A('s_cmp_eq_u32 s70, 0')
    A('s_cbranch_scc1 L_h_noln')

    def layernorm(src, dst):
        D = E + 18
        a, b, c = E + 36, E + 37, E + 38
        for k in range(9):
            A(f'v_lshlrev_b32 v{E + 2 * k}, 16, v{src + k}')
            A(f'v_and_b32 v{E + 2 * k + 1}, 0xffff0000, v{src + k}')
        A(f'v_add_f32 v{a}, v{E}, v{E + 1}')
        A(f'v_add_f32 v{b}, v{E + 2}, v{E + 3}')
        for n in range(4, 18, 2):
            A(f'v_add_f32 v{a}, v{a}, v{E + n}')
            A(f'v_add_f32 v{b}, v{b}, v{E + n + 1}')
        A(f'v_add_f32 v{a}, v{a}, v{b}')
        allred_row(a)
        swapred('v_permlane16_swap_b32', 'v_add_f32', a, b)
        A(f'v_mul_f32 v{a}, {f32(1.0 / 576)}, v{a}')
        for n in range(18):
            A(f'v_sub_f32 v{D + n}, v{E + n}, v{a}')
        A(f'v_mul_f32 v{b}, v{D}, v{D}')
        A(f'v_mul_f32 v{c}, v{D + 1}, v{D + 1}')
        for n in range(2, 18, 2):
            A(f'v_fmac_f32 v{b}, v{D + n}, v{D + n}')
            A(f'v_fmac_f32 v{c}, v{D + n + 1}, v{D + n + 1}')
        A(f'v_add_f32 v{b}, v{b}, v{c}')
        A(f'v_cvt_pk_bf16_f32 v{a}, 0, v{a}')
        allred_row(b)
        swapred('v_permlane16_swap_b32', 'v_add_f32', b, c)
        A(f'v_mul_f32 v{b}, {f32(1.0 / 576)}, v{b}')
        A(f'v_cvt_pk_bf16_f32 v{b}, 0, v{b}')
        A(f'v_add_f32 v{b}, {f32(1e-5)}, v{b}')
        A(f'v_cvt_pk_bf16_f32 v{b}, 0, v{b}')
        A(f'v_sqrt_f32 v{b}, v{b}')
        A(f'v_sub_f32 v{D}, v{E}, v{a}')
        A(f'v_cvt_pk_bf16_f32 v{b}, 0, v{b}')
        A(f'v_rcp_f32 v{b}, v{b}')
        for n in range(1, 18):
            A(f'v_sub_f32 v{D + n}, v{E + n}, v{a}')
        for n in range(18):
            A(f'v_cvt_pk_bf16_f32 v{D + n}, 0, v{D + n}')
        for n in range(18):
            A(f'v_mul_f32 v{D + n}, v{D + n}, v{b}')
        for k in range(9):
            A(f'v_cvt_pk_bf16_f32 v{dst + k}, v{D + 2 * k}, v{D + 2 * k + 1}')

    A('v_and_b32 v15, 1, v2')
    A('v_mul_u32_u24 v15, 1152, v15')
    A('v_lshl_add_u32 v15, v3, 4, v15')
    A('v_lshrrev_b32 v16, 2, v2')
    A('v_lshl_add_u32 v16, v3, 3, v16')
    A('v_lshlrev_b32 v16, 7, v16')
    A('v_and_b32 v17, 3, v1')
    A('v_lshl_add_u32 v16, v17, 3, v16')
    A('s_lshl_b32 s64, s30, 5')
    A('v_add_u32 v16, s64, v16')
    if swz:
        A('v_lshlrev_b32 v17, 2, v1')
        A('v_and_b32 v17, 0x60, v17')
        A('v_xor_b32 v16, v16, v17')
    A('v_add_u32 v20, 0x8000, v16')
    A('v_lshlrev_b32 v17, 2, v2')
    A('v_lshl_add_u32 v17, v3, 14, v17')
    A('s_lshl_b32 s39, s72, 8')
    A('s_lshl_b32 s64, s30, 6')
    A('s_add_u32 s39, s39, s64')
    A(f's_add_u32 s39, s39, {QX}')
    A('s_cmp_eq_u32 s3, 1')
    A('s_cbranch_scc1 L_h_wx')
    A('s_waitcnt vmcnt(0)')
    A.label('L_h_wx')
    A('s_waitcnt vmcnt(18)')
    if stamp == 2: stampit(4)
    layernorm(X, X)
    A('v_mov_b32 v18, 1')
    A('s_cmp_lg_u32 s3, 1')
    A('s_cbranch_scc1 L_h_ln2')
    for k in range(9):
        A(f'ds_write_b32 v13, v{X + k} offset:{L_XN + 4 * k}')
    QA, QB, QD = 120, 192, 76
    A('s_waitcnt lgkmcnt(0)')
    for t in range(18):
        A(f'ds_read_b128 v[{QA + 4 * t}:{QA + 4 * t + 3}], v15 offset:{L_XN + 64 * t}')
        if t == 8:
            A('s_waitcnt lgkmcnt(0)')
    if stamp == 2: stampit(5)
    A('s_waitcnt vmcnt(0)')
    A('s_mov_b64 exec, 1')
    A(f'ds_add_u32 v12, v18 offset:{L_CNT}')
    A('s_mov_b64 exec, -1')
    lds_wait('L_h_sync', L_CNT, 's_cmp_lt_u32', 4, 18, 12, 0)
    if stamp == 2:
        stampit(6)
        A('s_waitcnt lgkmcnt(0)')
    for t0 in (0, 6, 12):
        for t in range(t0, t0 + 6):
            r = QB + 4 * (t % 12)
            for h in range(2):
                off = L_WQ + 4096 * t + 512 * h
                base, off = (16, off) if off < 32768 else (20, off - 32768)
                A(f'ds_read_b64_tr_b16 v[{r + 2 * h}:{r + 2 * h + 1}], v{base} offset:{off}')
        for t in range(t0, t0 + 6):
            r = QB + 4 * (t % 12)
            A(f's_waitcnt lgkmcnt({2 * (t0 + 5 - t)})')
            c = '0' if t == 0 else f'v[{QD}:{QD + 3}]'
            A(f'v_mfma_f32_16x16x32_bf16 v[{QD}:{QD + 3}], v[{QA + 4 * t}:{QA + 4 * t + 3}], v[{r}:{r + 3}], {c}')
    A('v_mov_b32 v18, 1')
    A('s_mov_b64 exec, 1')
    A(f'ds_add_u32 v12, v18 offset:{L_SF}')
    A('s_mov_b64 exec, -1')
    A('s_add_u32 s64, s78, 1')
    A('s_add_u32 s65, s79, 1')
    A('v_cmp_eq_u32 vcc, 1, v3')
    A('v_mov_b32 v19, s64')
    A('v_mov_b32 v21, s65')
    A.nop(4)
    A('v_cndmask_b32 v19, v19, v21, vcc')
    A(f'v_cndmask_b32 v18, v{QD}, v{QD + 1}, vcc')
    A.nop(2)
    A(f'v_mov_b32_dpp v21, v18 quad_perm:[1,0,3,2] {DPP}')
    A('v_cvt_pk_bf16_f32 v18, v18, v21')
    A('s_mov_b64 exec, 0x55555555')
    A('buffer_store_dwordx2 v[18:19], v17, s[48:51], s39 offen sc1')
    A('s_mov_b64 exec, -1')
    stampit(1)
    A('s_branch L_h_q')
    A.label('L_h_ln2')
    layernorm(X, X)
    for k in range(9):
        A(f'ds_write_b32 v13, v{X + k} offset:{L_H + 4 * k}')
    A(f'ds_write_b32 v12, v18 offset:{L_HF}')
    A('s_branch L_h_join')

    A.label('L_h_noln')
    A.label('L_h_q')
    A('s_cmp_eq_u32 s30, 1')
    A('s_cbranch_scc0 L_h_join')
    A('s_lshl_b32 s39, s31, 10')
    A(f's_add_u32 s39, s39, {QX}')
    A('v_lshlrev_b32 v22, 3, v1')
    A('s_waitcnt lgkmcnt(0)')
    A('s_cmp_eq_u32 s33, 0')
    A('s_cselect_b32 s79, s78, s79')
    A('s_add_u32 s79, s79, 1')
    A(f's_mov_b32 s70, {SPIN_MAX}')
    lds_wait('L_go', L_GO, 's_cmp_eq_u32', 0, 14, 12, 4)
    PB = 64

    def qpoll(p):
        A(f'buffer_load_dwordx4 v[{PB + 4 * p}:{PB + 4 * p + 3}], v11, s[48:51], s39 offen sc1')
    for p in range(npoll - 1):
        qpoll(p)
        A(f's_sleep {qsleep}')
    A.label('L_qp')
    for p in range(npoll):
        qpoll((p + npoll - 1) % npoll)
        r = PB + 4 * p
        A(f's_waitcnt vmcnt({npoll - 1})')
        A(f'v_xor_b32 v14, s79, v{r + 1}')
        A(f'v_xor_b32 v15, s79, v{r + 3}')
        A(f'v_mov_b32 v16, v{r}')
        A('v_or_b32 v14, v14, v15')
        A(f'v_mov_b32 v17, v{r + 2}')
        A('v_cmp_ne_u32 vcc, 0, v14')
        A('s_cbranch_vccz L_qp_done')
        A('s_mov_b64 exec, vcc')
    A('s_sub_u32 s70, s70, 1')
    A('s_cmp_lg_u32 s70, 0')
    A('s_cbranch_scc1 L_qp')
    A.label('L_qp_done')
    A('s_mov_b64 exec, -1')
    A(f'ds_write_b64 v22, v[16:17] offset:{L_Q}')
    A('v_mov_b32 v14, 1')
    A('v_mov_b32 v15, s79')
    A(f'ds_write_b64 v12, v[14:15] offset:{L_FLAG}')
    stampit(1)

    A.label('L_h_join')
    make_sel()
    A('v_lshrrev_b32 v5, 3, v2')
    A('v_lshl_add_u32 v5, v5, 2, v3')
    A('v_and_b32 v7, 7, v2')
    A(f's_mul_i32 s74, s31, {8 * S1}')
    A('s_lshr_b32 s64, s32, 2')
    A('s_lshl_b32 s64, s64, 4')
    A('s_add_u32 s69, s74, s64')
    A('s_lshl_b32 s64, s32, 7')
    A('s_add_u32 s74, s74, s64')
    lds_wait('L_h_qf', L_FLAG, 's_cmp_eq_u32', 0, 14, 12, 8)
    A(f'ds_read_b32 v14, v12 offset:{L_TAG}')
    A('s_waitcnt lgkmcnt(0)')
    A('v_readfirstlane_b32 s79, v14')
    stampit(2)

    pc = [0]

    def paced(ins):
        if pc[0] >= hpace:
            A(f's_waitcnt vmcnt({hpace - 1})')
        A(ins)
        pc[0] += 1

    A(f's_mul_i32 s64, s31, {SP}')
    A(f's_add_u32 s36, s64, {POOLR}')
    A('s_add_u32 s60, s28, s36')
    A('s_addc_u32 s61, s29, 0')
    A('s_lshl_b32 s64, s32, 2')
    A('s_add_u32 s64, s64, s30')
    A('s_cmp_lg_u32 s64, 3')
    A('s_cbranch_scc1 L_nopool')
    A('s_and_b32 s64, s31, 3')
    A('s_lshl_b32 s64, s64, 3')
    A(f's_lshl_b32 s64, {4 * pd}, s64')
    A(f's_sub_u32 s64, {(128 - LIM) * 0x01010101}, s64')
    A('v_mov_b32 v14, s64')
    A('v_mov_b32 v15, s64')
    A('v_mov_b32 v16, s79')
    A('s_mov_b64 exec, 1')
    A('buffer_store_dwordx2 v[14:15], v12, s[48:51], s36 offen sc1')
    A('s_waitcnt vmcnt(0)')
    A('buffer_store_dword v16, v12, s[48:51], s36 offen offset:128 sc1')
    A('s_mov_b64 exec, -1')
    A.label('L_nopool')

    WO = 104
    W8 = 3
    A('s_mov_b32 s52, s12')
    A('s_mov_b32 s53, s13')
    A(f's_mov_b32 s54, {4096 * 1152}')
    A('s_mov_b32 s55, 0x20000')
    A('v_mul_u32_u24 v30, 1152, v5')
    A('v_lshl_add_u32 v30, v7, 4, v30')

    def wo_loads(ts, emit, tagl):
        A(f's_mul_i32 s64, s35, {32 * 1152}')
        A(f's_add_u32 s64, s64, {ts[0] * 8 * 1152}')
        A('s_lshl_b32 s65, s30, 8')
        A('s_add_u32 s65, s65, s64')
        for t in ts:
            for bl in range(2):
                r = WO + bl * 16 + t * 4
                emit(f'buffer_load_dwordx4 v[{r}:{r + 3}], v30, s[52:55], s65 offen offset:{128 * bl} {wopol}')
            if t != ts[-1]:
                A(f's_add_u32 s65, s65, {8 * 1152}')
        A(f's_cmp_lg_u32 s30, {W8}')
        A(f's_cbranch_scc1 L_nowo8{tagl}')
        for t in ts:
            r = WO + 32 + t * 4
            emit(f'buffer_load_dwordx4 v[{r}:{r + 3}], v30, s[52:55], s64 offen offset:1024 {wopol}')
            if t != ts[-1]:
                A(f's_add_u32 s64, s64, {8 * 1152}')
        A.label(f'L_nowo8{tagl}')
    ne = woearly if wolate else 4
    if ne:
        wo_loads(list(range(ne)), paced, 'a')


    A('s_lshl_b32 s80, s73, 5')
    A('s_mul_i32 s64, s33, 576')
    A('s_add_u32 s80, s80, s64')
    G = 176
    A('v_and_b32 v17, 1, v3')
    A('v_lshrrev_b32 v18, 1, v3')
    A('v_lshl_add_u32 v17, v17, 1, v18')
    A('v_lshl_add_u32 v17, v17, 3, v7')
    A('v_lshlrev_b32 v24, 2, v17')
    A('v_add_u32 v17, s80, v17')
    A('v_lshlrev_b32 v25, 1, v17')
    A('s_cmp_lg_u32 s3, 2')
    A('s_cbranch_scc1 L_nob')
    PW = 64
    W1, B1, W2 = 152, 170, 188
    U = 206
    A('s_mul_i32 s64, s30, 2304')
    A('v_add_u32 v15, s64, v11')
    A('v_add_u32 v16, s64, v23')
    for k, base in enumerate((16, 18, 20)):
        r = PW + 12 * k
        paced(f'global_load_dwordx4 v[{r}:{r + 3}], v15, s[{base}:{base + 1}] {bpol}')
        paced(f'global_load_dwordx4 v[{r + 4}:{r + 7}], v15, s[{base}:{base + 1}] offset:1024 {bpol}')
        paced(f'global_load_dword v{r + 8}, v16, s[{base}:{base + 1}] offset:2048 {bpol}')
    paced('buffer_load_ushort v26, v25, s[40:43], 0 offen')
    paced('global_load_ushort v27, v12, s[22:23]')
    lds_wait('L_h_hf', L_HF, 's_cmp_eq_u32', 0, 14, 12, 8)
    c0 = -2.0 * math.sqrt(2.0 / math.pi) * LOG2E
    A(f's_mov_b32 s66, {f32(c0 * 0.044715)}')
    A(f'v_mov_b32 v17, {f32(c0)}')
    A('s_lshl_b32 s64, s80, 1')
    A(f's_add_u32 s64, s64, {L_H}')
    A('v_mov_b32 v18, s64')
    A('s_lshl_b32 s64, s30, 7')
    A(f's_add_u32 s64, s64, {L_BP}')
    A('v_mov_b32 v19, s64')
    A('s_waitcnt vmcnt(0)')
    for k, dst in enumerate((W1, B1, W2)):
        for n in range(9):
            A(f'v_lshlrev_b32 v{dst + 2 * n}, 16, v{PW + 12 * k + n}')
            A(f'v_and_b32 v{dst + 2 * n + 1}, 0xffff0000, v{PW + 12 * k + n}')
    A('s_mov_b32 s70, 0')
    if prio:
        A('s_setprio 0')
    A.label('L_bloop')
    A('ds_read_u16 v20, v18')
    A('v_add_u32 v18, 2, v18')
    A('s_waitcnt lgkmcnt(0)')
    A('v_lshlrev_b32 v20, 16, v20')
    V2 = U + 18
    for n in range(18): A(f'v_mul_f32 v{U + n}, v20, v{W1 + n}')
    for n in range(18): A(f'v_cvt_pk_bf16_f32 v{U + n}, 0, v{U + n}')
    for n in range(18): A(f'v_add_f32 v{U + n}, v{U + n}, v{B1 + n}')
    for n in range(18): A(f'v_cvt_pk_bf16_f32 v{U + n}, 0, v{U + n}')
    for n in range(18): A(f'v_mul_f32 v{V2 + n}, v{U + n}, v{U + n}')
    for n in range(18): A(f'v_fma_f32 v{V2 + n}, v{V2 + n}, s66, v17')
    for n in range(18): A(f'v_mul_f32 v{V2 + n}, v{V2 + n}, v{U + n}')
    for n in range(18): A(f'v_exp_f32 v{V2 + n}, v{V2 + n}')
    for n in range(18): A(f'v_add_f32 v{V2 + n}, 1.0, v{V2 + n}')
    for n in range(18): A(f'v_rcp_f32 v{V2 + n}, v{V2 + n}')
    for n in range(18): A(f'v_mul_f32 v{U + n}, v{U + n}, v{V2 + n}')
    for n in range(18): A(f'v_cvt_pk_bf16_f32 v{U + n}, 0, v{U + n}')
    A(f'v_mul_f32 v21, v{U}, v{W2}')
    A(f'v_mul_f32 v22, v{U + 1}, v{W2 + 1}')
    for n in range(2, 18, 2):
        A(f'v_fmac_f32 v21, v{U + n}, v{W2 + n}')
        A(f'v_fmac_f32 v22, v{U + n + 1}, v{W2 + n + 1}')
    A('v_add_f32 v21, v21, v22')
    allred_row(21)
    allred_g('v_add_f32', 21, 22)
    A('ds_write_b32 v19, v21')
    A('v_add_u32 v19, 4, v19')
    A('s_add_u32 s70, s70, 1')
    A('s_cmp_lt_u32 s70, 32')
    A('s_cbranch_scc1 L_bloop')
    if prio:
        A('s_setprio 2')
    A('v_mov_b32 v14, 1')
    A('s_mov_b64 exec, 1')
    A(f'ds_add_u32 v12, v14 offset:{L_BC}')
    A('s_mov_b64 exec, -1')
    lds_wait('L_h_bc', L_BC, 's_cmp_lt_u32', 4, 14, 12, 8)
    for w in range(4):
        A(f'ds_read_b32 v{G + w}, v24 offset:{L_BP + 128 * w}')
    A('s_waitcnt lgkmcnt(0)')
    A(f'v_add_f32 v{G}, v{G}, v{G + 1}')
    A(f'v_add_f32 v{G + 2}, v{G + 2}, v{G + 3}')
    A(f'v_add_f32 v{G}, v{G}, v{G + 2}')
    A('v_lshlrev_b32 v26, 16, v26')
    A('v_lshlrev_b32 v27, 16, v27')
    A(f'v_cvt_pk_bf16_f32 v{G}, 0, v{G}')
    A(f'v_add_f32 v27, v{G}, v27')
    A('v_cvt_pk_bf16_f32 v27, 0, v27')
    A.label('L_nob')

    A('s_mov_b32 s56, s24')
    A('s_mov_b32 s57, s25')
    A('s_mov_b32 s58, 2304')
    A('s_mov_b32 s59, 0x20000')
    A(f'v_mul_u32_u24 v20, {S1}, v7')
    A('v_lshl_add_u32 v19, v5, 4, v20')
    A('v_lshlrev_b32 v21, 4, v7')
    A('v_lshl_add_u32 v21, v3, 7, v21')
    A('v_lshlrev_b32 v22, 3, v1')
    A('v_lshrrev_b32 v31, 3, v1')
    A(f'v_mul_u32_u24 v31, {S2}, v31')
    A('v_lshl_add_u32 v31, v7, 4, v31')
    A(f's_mul_i32 s77, s2, {S2}')
    A(f's_add_u32 s77, s77, {L2A}')
    A('s_lshl_b32 s64, s30, 9')
    A('s_add_u32 s76, s77, s64')
    A('s_lshl_b32 s64, s33, 2')
    A('s_add_u32 s64, s64, s30')
    A(f's_mul_i32 s81, s64, {32 * S2}')
    A('s_lshl_b32 s64, s73, 7')
    A('s_add_u32 s81, s81, s64')
    A(f's_add_u32 s81, s81, {L2A}')
    A(f's_add_u32 s82, s81, {8 * S2}')
    A(f's_add_u32 s46, s81, {16 * S2}')
    A(f's_add_u32 s47, s81, {24 * S2}')
    GS = (81, 82, 46, 47)
    A('s_and_b32 s78, s79, 0xff')
    A('s_movk_i32 s75, 0xff')
    A('v_mov_b32 v28, s78')
    A('v_mov_b32 v29, 1')
    if warm:
        A('s_cmp_lg_u32 s30, 3')
        A('s_cbranch_scc1 L_nowarm1')
        A('buffer_load_dwordx4 v[200:203], v19, s[48:51], s74 offen sc1')
        A(f'buffer_load_dwordx4 v[204:207], v20, s[48:51], s69 offen offset:{L1ML} sc1')
        A.label('L_nowarm1')
        A('s_cmp_lg_u32 s3, 2')
        A('s_cbranch_scc1 L_nowarm2')
        for k in range(4):
            A(f'buffer_load_dwordx4 v[{208 + 4 * k}:{211 + 4 * k}], v31, s[48:51], s{GS[k]} offen sc1')
        A.label('L_nowarm2')

    A('s_cmp_lg_u32 s30, 2')
    A('s_cbranch_scc1 L_nodisp')
    SC, SF, SOWN, SOWNC, SN, SZ = 66, 68, 69, 70, 71, 37
    A('v_lshlrev_b32 v16, 12, v1')
    A('s_lshl_b32 s64, s32, 20')
    A(f's_add_u32 s64, s64, {ns * 16384}')
    A('s_cmp_eq_u32 s3, 1')
    A(f's_cselect_b32 s65, {pd * 16384}, 0')
    A('s_sub_u32 s64, s64, s65')
    A('v_add_u32 v14, s64, v16')
    A(f's_mov_b64 exec, {(1 << (4 * npre)) - 1}')
    A(f'ds_write_b32 v23, v14 offset:{L_QT}')
    A('s_mov_b64 exec, -1')
    A(f's_mov_b32 s{SN}, {4 * npre}')
    A(f's_mov_b32 s83, {SPIN_MAX}')
    A.label('L_prdy')
    A('buffer_load_dword v14, v12, s[48:51], s36 offen offset:128 sc1')
    A('s_sub_u32 s83, s83, 1')
    A('s_waitcnt vmcnt(0)')
    A('v_readfirstlane_b32 s64, v14')
    A('s_cmp_eq_u32 s83, 0')
    A('s_cbranch_scc1 L_dend')
    A('s_cmp_eq_u32 s64, s79')
    A('s_cbranch_scc1 L_prdy_ok')
    A('s_sleep 64')
    A('s_branch L_prdy')
    A.label('L_prdy_ok')
    A(f's_lshl_b32 s{SOWN}, s32, 3')
    A(f's_mov_b32 s{SF}, s{SOWN}')
    A(f's_sub_u32 s{SOWNC}, 64, s{SOWN}')
    A('s_mov_b32 s62, 0x80808080')
    A('s_mov_b32 s63, 0x80808080')
    A(f's_mov_b32 s{SZ}, {first}')
    lds_wait('L_dw0', L_TK, 's_cmp_eq_u32', 0, 14, 12, 16)
    A.label('L_dloop')
    A(f's_sub_u32 s83, s{SN}, {theta}')
    lds_wait('L_dw', L_TK, 's_cmp_lt_u32', 's83', 14, 12, dsleep)
    A.label('L_drty')
    A(f's_mov_b32 s38, s{SZ}')
    A('s_mov_b32 s39, 0')
    A(f's_lshl_b64 s[38:39], s[38:39], s{SF}')
    A(f's_mov_b64 s[{SC}:{SC + 1}], s[38:39]')
    A(f's_atomic_add_x2 s[{SC}:{SC + 1}], s[60:61], 0 glc')
    A(f's_lshl_b32 s83, s{SF}, 17')
    A(f's_lshl_b32 s64, s{SN}, 2')
    A('v_add_u32 v15, s64, v23')
    A('s_waitcnt lgkmcnt(0)')
    A(f's_lshr_b64 s[64:65], s[{SC}:{SC + 1}], s{SF}')
    A('s_and_b32 s64, s64, 0xff')
    A('s_cmp_ge_u32 s64, 128')
    A('s_cbranch_scc1 L_dfail')
    A('s_lshl_b32 s65, s64, 12')
    A('s_add_u32 s65, s65, s83')
    A(f's_add_u32 s65, s65, {((ns + npre) * 16384 - (128 - LIM) * 4096) & 0xffffffff}')
    A('v_add_u32 v14, s65, v16')
    A('s_sub_u32 s65, 128, s64')
    A(f's_min_u32 s65, s65, s{SZ}')
    A('s_bfm_b64 exec, s65, 0')
    A(f'ds_write_b32 v15, v14 offset:{L_QT}')
    A('s_mov_b64 exec, -1')
    A(f's_add_u32 s{SN}, s{SN}, s65')
    A.label('L_dfail')
    A(f's_add_u32 s{SC}, s38, s{SC}')
    A(f's_addc_u32 s{SC + 1}, s39, s{SC + 1}')
    A(f's_andn2_b64 s[38:39], s[62:63], s[{SC}:{SC + 1}]')
    A(f's_lshr_b64 s[44:45], s[38:39], s{SOWN}')
    A(f's_lshl_b64 s[38:39], s[38:39], s{SOWNC}')
    A('s_or_b64 s[38:39], s[38:39], s[44:45]')
    A('s_cbranch_scc0 L_dend')
    A('s_ff1_i32_b64 s65, s[38:39]')
    A(f's_add_u32 s65, s65, s{SOWN}')
    A(f's_and_b32 s{SF}, s65, 56')
    A(f's_lshr_b64 s[38:39], s[{SC}:{SC + 1}], s{SF}')
    A('s_and_b32 s38, s38, 0xff')
    A(f's_cmp_lt_u32 s38, {128 - big}')
    A(f's_cselect_b32 s{SZ}, 4, {small}')
    if huge < 99:
        A(f's_cmp_lt_u32 s38, {128 - huge}')
        A(f's_cselect_b32 s{SZ}, 8, s{SZ}')
    A('s_cmp_ge_u32 s64, 128')
    A('s_cbranch_scc1 L_drty')
    A(f's_cmp_lt_u32 s{SN}, 160')
    A('s_cbranch_scc1 L_dloop')
    A.label('L_dend')
    A(f's_lshl_b32 s64, s{SN}, 2')
    A('v_add_u32 v15, s64, v23')
    A(f'v_mov_b32 v14, {KVOOB}')
    A('s_mov_b64 exec, 15')
    A(f'ds_write_b32 v15, v14 offset:{L_QT}')
    A('s_mov_b64 exec, -1')
    A(f'v_mov_b32 v14, s{SN}')
    A(f'ds_write_b32 v12, v14 offset:{L_EN}')
    A.label('L_nodisp')
    if wolate in (1, 2):
        lds_wait('L_ww0', L_TK, 's_cmp_eq_u32', 0, 14, 12, 32)
        A('s_add_u32 s65, s30, 1')
        A('s_and_b32 s65, s65, 3')
        if wolate == 2:
            A('s_mov_b32 s65, 3')
        A.label('L_ww')
        A(f'ds_read_b64 v[14:15], v12 offset:{L_TK}')
        A('s_waitcnt lgkmcnt(0)')
        A('v_readfirstlane_b32 s64, v14')
        A('v_readfirstlane_b32 s83, v15')
        A(f's_add_u32 s64, s64, {wooff}')
        A('s_cmp_eq_u32 s83, 0')
        A('s_cbranch_scc1 L_wws')
        A('s_add_u32 s83, s83, s65')
        A('s_cmp_gt_u32 s64, s83')
        A('s_cbranch_scc1 L_wwd')
        A.label('L_wws')
        A('s_sleep 1')
        A('s_branch L_ww')
        A.label('L_wwd')
        A('s_waitcnt vmcnt(0)')
        wo_loads(list(range(ne, 4)), A, 'b')
    else:
        A('s_waitcnt vmcnt(0) lgkmcnt(0)')
    A(f's_mov_b32 s80, {SPIN_MAX}')
    if reh:
        A('s_cmp_lg_u32 s30, 3')
        A('s_cbranch_scc1 L_b3')
        A('s_mov_b32 s80, 1')
        A('v_mov_b32 v29, 0')
        A('s_mov_b32 s83, s73')
        A('s_mov_b64 s[72:73], s[76:77]')
        A('s_mov_b32 s76, s50')
        A('s_mov_b32 s77, s50')
        A('s_branch L_reh')
        A.label('L_rehd')
        A(f's_mov_b32 s80, {SPIN_MAX}')
        A('v_mov_b32 v29, 1')
        A('s_mov_b64 s[76:77], s[72:73]')
        A('s_mov_b32 s73, s83')
        A('s_waitcnt vmcnt(0) lgkmcnt(0)')
        A.label('L_b3')
    A('s_barrier')
    if wolate == 3:
        wo_loads(list(range(ne, 4)), A, 'b')
    stampit(3)
    leakit(4, 0)

    P1, O, W = 200, 232, 236
    A('s_cmp_lg_u32 s30, 3')
    A('s_cbranch_scc1 L_ow')
    A.label('L_reh')
    A('s_mov_b32 s70, s80')
    def poll1(p):
        r = P1 + 8 * p
        A(f'buffer_load_dwordx4 v[{r}:{r + 3}], v20, s[48:51], s69 offen offset:{L1ML} sc1')
        A(f'buffer_load_dwordx4 v[{r + 4}:{r + 7}], v19, s[48:51], s74 offen sc1')
    assert np1 <= 4
    for p in range(np1 - 1):
        poll1(p)
        A(f's_sleep {ps1}')
    A.label('L_p1')
    for p in range(np1):
        poll1((p + np1 - 1) % np1)
        r = P1 + 8 * p
        A(f's_waitcnt vmcnt({2 * (np1 - 1)})')
        for t in range(4):
            A(f'v_xor_b32 v{O + t}, s78, v{r + 4 + t}')
        A(f'v_xor_b32 v17, s79, v{r + 1}')
        A(f'v_xor_b32 v18, s79, v{r + 3}')
        A(f'v_or3_b32 v14, v{O}, v{O + 1}, v{O + 2}')
        A(f'v_or_b32 v14, v14, v{O + 3}')
        A(f'v_mov_b32 v15, v{r}')
        A('v_and_b32 v14, 0xff, v14')
        A('v_or3_b32 v14, v14, v17, v18')
        A(f'v_mov_b32 v16, v{r + 2}')
        A('v_cmp_ne_u32 vcc, 0, v14')
        A('s_cbranch_vccz L_p1_done')
        A('s_mov_b64 exec, vcc')
    A('s_sub_u32 s70, s70, 1')
    A('s_cmp_lg_u32 s70, 0')
    A('s_cbranch_scc1 L_p1')
    A.label('L_p1_done')
    A('s_mov_b64 exec, -1')
    if stamp == 1:
        stampit(4)
    A(f'v_max_f32_dpp v17, v15, v15 quad_perm:[1,0,3,2] {DPP}')
    for m in ('quad_perm:[2,3,0,1]', 'row_half_mirror'):
        A.nop(2)
        A(f'v_max_f32_dpp v17, v17, v17 {m} {DPP}')
    A('v_sub_f32 v15, v15, v17')
    A('v_exp_f32 v15, v15')
    A.nop(1)
    A('v_mul_f32 v16, v15, v16')
    for t in range(4):
        A(f'v_mul_f32 v{O + t}, v15, v{O + t}')
    for m in ('quad_perm:[1,0,3,2]', 'quad_perm:[2,3,0,1]', 'row_half_mirror'):
        for q in (16, O, O + 1, O + 2, O + 3):
            A(f'v_add_f32_dpp v{q}, v{q}, v{q} {m} {DPP}')
    A('v_rcp_f32 v16, v16')
    A.nop(1)
    for t in range(4):
        A(f'v_mul_f32 v{O + t}, v{O + t}, v16')
    A(f'v_cvt_pk_bf16_f32 v{W}, v{O}, v{O + 1}')
    A(f'v_cvt_pk_bf16_f32 v{W + 1}, v{O + 2}, v{O + 3}')
    A(f'ds_write_b64 v22, v[{W}:{W + 1}] offset:{L_OW}')
    A(f'ds_write_b32 v12, v29 offset:{L_OF}')
    A('s_branch L_proj')
    A.label('L_ow')
    A(f'ds_read_b32 v14, v12 offset:{L_OF}')
    A(f'ds_read_b64 v[{W}:{W + 1}], v22 offset:{L_OW}')
    A('s_waitcnt lgkmcnt(0)')
    A('v_cmp_eq_u32 vcc, 0, v14')
    A('s_cbranch_vccnz L_ow')
    if stamp == 1:
        stampit(4)
    if wolate:
        A('s_waitcnt vmcnt(0)')
    A.label('L_proj')
    DX, DY, DZ = 240, 244, 248
    build_b(HB, W, 0)
    for t in range(4):
        if t < 3:
            build_b(HB + 4 * (t + 1), W + (t + 1) // 2, (t + 1) & 1)
        for bl, D in ((0, DX), (1, DY)):
            r = WO + bl * 16 + t * 4
            c = '0' if t == 0 else f'v[{D}:{D + 3}]'
            A(f'v_mfma_f32_16x16x32_bf16 v[{D}:{D + 3}], v[{r}:{r + 3}], v[{HB + 4 * t}:{HB + 4 * t + 3}], {c}')
    A(f's_cmp_lg_u32 s30, {W8}')
    A('s_cbranch_scc1 L_nob8a')
    for t in range(4):
        r = WO + 32 + t * 4
        c = '0' if t == 0 else f'v[{DZ}:{DZ + 3}]'
        A(f'v_mfma_f32_16x16x32_bf16 v[{DZ}:{DZ + 3}], v[{r}:{r + 3}], v[{HB + 4 * t}:{HB + 4 * t + 3}], {c}')
    A.label('L_nob8a')
    A.nop(6)
    for r in range(4):
        A(f'v_permlane32_swap_b32 v{DX + r}, v{DY + r}')
    A.nop(1)
    for r in range(4):
        A(f'v_add_f32_dpp v{DX + r}, v{DY + r}, v{DX + r} row_ror:8 {DPP}')
    for r in range(4):
        A(f'v_bfi_b32 v{DX + r}, s75, v28, v{DX + r}')
    A('s_mov_b32 exec_lo, 0x00ff00ff')
    A('s_mov_b32 exec_hi, 0x00ff00ff')
    A(f'buffer_store_dwordx4 v[{DX}:{DX + 3}], v21, s[48:51], s76 offen sc1')
    A('s_mov_b64 exec, -1')
    A(f's_cmp_lg_u32 s30, {W8}')
    A('s_cbranch_scc1 L_nob8b')
    for r in range(4):
        A(f'v_permlane32_swap_b32 v{DZ + r}, v{DY + r}')
    A.nop(1)
    for r in range(4):
        A(f'v_add_f32_dpp v{DZ + r}, v{DY + r}, v{DZ + r} row_ror:8 {DPP}')
    for r in range(4):
        A(f'v_bfi_b32 v{DZ + r}, s75, v28, v{DZ + r}')
    A('s_mov_b64 exec, 0x00ff00ff')
    A(f'buffer_store_dwordx4 v[{DZ}:{DZ + 3}], v21, s[48:51], s77 offen offset:2048 sc1')
    A('s_mov_b64 exec, -1')
    A.label('L_nob8b')
    if stamp == 1:
        stampit(5)
    A('s_cmp_lg_u32 s3, 2')
    A('s_cbranch_scc1 L_hend')
    P2 = 64
    assert np2 <= 2
    A('s_mov_b32 s70, s80')
    for k in range(4):
        A(f's_mov_b64 s[{60 + 2 * k}:{61 + 2 * k}], -1')
    assert np2 <= 4

    def poll2(p, masked):
        for k in range(4):
            r = P2 + 16 * p + 4 * k
            if masked and np2 == 1:
                A(f's_mov_b64 exec, s[{60 + 2 * k}:{61 + 2 * k}]')
                A(f's_cbranch_execz L_gs{k}')
            elif masked:
                A(f's_or_b64 exec, s[{60 + 2 * k}:{61 + 2 * k}], 1')
            A(f'buffer_load_dwordx4 v[{r}:{r + 3}], v31, s[48:51], s{GS[k]} offen sc1')
            if masked and np2 == 1:
                A.label(f'L_gs{k}')
    for p in range(np2 - 1):
        poll2(p, False)
        A(f's_sleep {ps2}')
    A.label('L_ga')
    for p in range(np2):
        poll2((p + np2 - 1) % np2, True)
        A(f's_waitcnt vmcnt({4 * (np2 - 1)})')
        for k in range(4):
            r = P2 + 16 * p + 4 * k
            A(f's_mov_b64 exec, s[{60 + 2 * k}:{61 + 2 * k}]')
            A(f's_cbranch_execz L_gc{p}_{k}')
            for q in range(4):
                A(f'v_xor_b32 v{G + 4 * k + q}, s78, v{r + q}')
            A(f'v_or3_b32 v17, v{G + 4 * k}, v{G + 4 * k + 1}, v{G + 4 * k + 2}')
            A(f'v_or_b32 v17, v17, v{G + 4 * k + 3}')
            A('v_and_b32 v17, 0xff, v17')
            A(f'v_cmp_ne_u32 s[{60 + 2 * k}:{61 + 2 * k}], 0, v17')
            A.label(f'L_gc{p}_{k}')
        A('s_or_b64 s[38:39], s[60:61], s[62:63]')
        A('s_or_b64 s[38:39], s[38:39], s[64:65]')
        A('s_or_b64 s[38:39], s[38:39], s[66:67]')
        A('s_cbranch_scc0 L_ga_done')
    A('s_sub_u32 s70, s70, 1')
    A('s_cmp_lg_u32 s70, 0')
    A('s_cbranch_scc1 L_ga')
    A.label('L_ga_done')
    A('s_mov_b64 exec, -1')
    if stamp == 1:
        stampit(2)
    for r in range(4):
        A(f'v_add_f32 v{G + r}, v{G + r}, v{G + 4 + r}')
        A(f'v_add_f32 v{G + 8 + r}, v{G + 8 + r}, v{G + 12 + r}')
    for r in range(4):
        A(f'v_add_f32 v{G + r}, v{G + r}, v{G + 8 + r}')
    A('s_lshl_b32 s64, s30, 8')
    A(f'v_permlane32_swap_b32 v{G}, v{G + 1}')
    A(f'v_permlane32_swap_b32 v{G + 2}, v{G + 3}')
    A(f'v_add_f32 v{G}, v{G}, v{G + 1}')
    A(f'v_add_f32 v{G + 2}, v{G + 2}, v{G + 3}')
    A('v_add_u32 v17, s64, v23')
    A.nop(1)
    A(f'v_permlane16_swap_b32 v{G}, v{G + 2}')
    A(f'v_add_f32 v{G}, v{G}, v{G + 2}')
    A.nop(2)
    A(f'v_add_f32_dpp v{G}, v{G}, v{G} row_ror:8 {DPP}')
    A(f'ds_write_b32 v17, v{G} offset:{L_P2}')
    A('s_mov_b64 exec, 1')
    A(f'ds_add_rtn_u32 v14, v12, v29 offset:{L_F2}')
    A('s_mov_b64 exec, -1')
    for w in range(4):
        A(f'ds_read_b32 v{G + 4 + w}, v23 offset:{L_P2 + 256 * w}')
    A('s_waitcnt lgkmcnt(0)')
    A('v_readfirstlane_b32 s64, v14')
    A(f'v_add_f32 v{G}, v{G + 4}, v{G + 5}')
    A(f'v_add_f32 v{G + 1}, v{G + 6}, v{G + 7}')
    A('s_cmp_lg_u32 s64, 3')
    A('s_cbranch_scc1 L_hend')
    A(f'v_add_f32 v{G}, v{G}, v{G + 1}')
    A(f'v_cvt_pk_bf16_f32 v{G}, 0, v{G}')
    A(f'v_add_f32 v{G}, v26, v{G}')
    A(f'v_cvt_pk_bf16_f32 v{G}, 0, v{G}')
    A(f'v_add_f32 v{G}, v{G}, v27')
    A(f'v_cvt_pk_bf16_f32 v{G}, v{G}, v{G}')
    A('s_mov_b32 exec_lo, 0x00ff00ff')
    A('s_mov_b32 exec_hi, 0x00ff00ff')
    A(f'buffer_store_short v{G}, v25, s[56:59], 0 offen {outpol}')
    A('s_cmp_lg_u32 s73, 0')
    A('s_cbranch_scc1 L_noep')
    A('v_mov_b32 v17, s79')
    A('s_lshl_b32 s64, s33, 2')
    A(f's_add_u32 s64, s64, {EPOCH}')
    A('s_mov_b64 exec, 1')
    A('buffer_store_dword v17, v12, s[48:51], s64 offen')
    A.label('L_noep')
    A('s_mov_b64 exec, -1')
    if stamp == 1:
        stampit(6)
    leakit(1)
    A.label('L_hend')
    if reh:
        A('s_cmp_eq_u32 s80, 1')
        A('s_cbranch_scc1 L_rehd')
    if stamp:
        for _ in range(2): A('s_sleep 127')
    stamp_store()
    A.label('L_end')
    A('s_endpgm')
    if leak:
        A.L += ['.globl post_kernel', '.p2align 8', '.type post_kernel,@function', 'post_kernel:']
        A('s_cmp_ge_u32 s2, 1')
        A('s_cbranch_scc1 L_pend')
        A('s_load_dwordx2 s[4:5], s[0:1], 96')
        A('s_memrealtime s[8:9]')
        A(f's_mov_b32 s6, {EPOCH + 64}')
        A('s_waitcnt lgkmcnt(0)')
        A('s_load_dword s7, s[4:5], s6')
        A('s_waitcnt lgkmcnt(0)')
        A(f's_sub_u32 s7, s7, {lbase}')
        A('s_min_u32 s7, s7, 5000')
        A('s_mul_i32 s7, s7, 10')
        A.label('L_pspin')
        A('s_memrealtime s[10:11]')
        A('s_waitcnt lgkmcnt(0)')
        A('s_sub_u32 s10, s10, s8')
        A('s_cmp_lt_u32 s10, s7')
        A('s_cbranch_scc1 L_pspin')
        A.label('L_pend')
        A('s_endpgm')
    A.L.append('.section .rodata,"a"')
    A.L.append('.p2align 6')
    A.L.append(f'.amdhsa_kernel {KN}_kernel')
    A('.amdhsa_next_free_vgpr 256')
    A('.amdhsa_next_free_sgpr 102')
    A('.amdhsa_accum_offset 256')
    A('.amdhsa_group_segment_fixed_size 0')
    A('.amdhsa_kernarg_size 104')
    A('.amdhsa_user_sgpr_count 2')
    A('.amdhsa_user_sgpr_kernarg_segment_ptr 1')
    A('.amdhsa_system_sgpr_workgroup_id_x 1')
    A.L.append('.end_amdhsa_kernel')
    if leak:
        A.L += ['.p2align 6', '.amdhsa_kernel post_kernel', '  .amdhsa_next_free_vgpr 16', '  .amdhsa_next_free_sgpr 32', '  .amdhsa_accum_offset 16',
                '  .amdhsa_group_segment_fixed_size 0', '  .amdhsa_kernarg_size 104', '  .amdhsa_user_sgpr_count 2', '  .amdhsa_user_sgpr_kernarg_segment_ptr 1',
                '  .amdhsa_system_sgpr_workgroup_id_x 1', '.end_amdhsa_kernel']
    return A.text()


if __name__ == '__main__':
    out = sys.argv[1] if len(sys.argv) > 1 else 'cdna_kernels/' + KN + '.s'
    kw = {}
    for a in sys.argv[2:]:
        k, v = a.split('=')
        kw[k] = int(v) if v.lstrip('-').isdigit() else v
    open(out, 'w').write(gen(**kw))
    print('wrote', out)
```

```python
import struct, sys, math

KN = 'parallel_sum__gqa_block_cached__mixer_token_mlp__decode'


def f32(x):
    return '0x%08x' % struct.unpack('<I', struct.pack('<f', x))[0]


HEADER = open('cdna_kernels/' + KN + '.s.ref').read().split('; Override launch')[0]

LOG2E = 1.4426950408889634
S1 = 1280
L1ML = 1024
S2 = 2304
L2A = 256 * S1
POOLR = L2A + 256 * S2
SP = 768
QX = POOLR + 32 * SP
EPOCH = QX + 32768
WS_SIZE = EPOCH + 256
STAMP_OFF = 8 << 20
SPIN_MAX = 200000
KVOOB = 0x800000
L_Q = 0
L_FLAG, L_TAG, L_CNT, L_HF, L_TK, L_FIN, L_BC, L_OF, L_F2, L_EN, L_GO, L_SF = 512, 516, 520, 524, 528, 548, 536, 540, 544, 532, 552, 556
L_QT = 576
L_ZEND = 1280
L_BP = 1280
L_OW = 1792
L_P2 = 2304
L_XN = 3328
L_H = 5632
L_MG = 7936
L_WQ = 14336
NK = 6
L_KR = L_WQ
L_SC = L_KR + 4 * NK * 4096
SCW = 66 * 128
L_SIZE = L_SC + 4 * SCW


DOC = """; ---------------------------------------------------------------------------------------------
; ---------------------------------------------------------------------------------------------"""


class Asm:
    def __init__(self):
        self.L = []

    def __call__(self, s):
        self.L.append('  ' + s)

    def label(self, s):
        self.L.append(s + ':')

    def nop(self, n):
        while n > 0:
            k = min(n, 16)
            self('s_nop %d' % (k - 1))
            n -= k

    def text(self):
        return '\n'.join(self.L) + '\n'


DPP = 'row_mask:0xf bank_mask:0xf'


def gen(kvpol='nt', wqpol='nt', wopol='nt', stamp=0, prog=0, nS=60, pd=3, npre=1, theta=2, big=12, small=2, first=4, huge=99,
        qsleep=20, bpol='', hpace=2, npoll=1, ps1=6, ps2=6, np1=2, np2=2, dsleep=1, warm=1, outpol='', leak=0, lbase=0,
        go=20, swz=1, lg=4, prio=1, gate=4, kspread=0, reh=0, galt=0, free0=4, g0=4, n0=0):
    wolate = woearly = wooff = cpf = kfirst = 0
    NH = 8
    pv = pd
    ns = nS + 1
    LIM = (64 - ns - npre) * 4
    assert 0 < LIM and LIM + 4 * pd <= 56 and lg < NK and theta <= 4 * npre
    GATE = gate
    assert gate + galt <= 8
    GQ = lambda q: GATE + (galt if q & 1 else 0)
    A = Asm()
    A.L.append(HEADER.rstrip('\n'))
    if leak:
        A.L.append(f'; @launch kernel={KN}_kernel grid=(256,1,1) block=(512,1,1) lds={L_SIZE}')
        A.L.append('; @launch kernel=post_kernel grid=(1,1,1) block=(64,1,1) lds=0')
    else:
        A.L.append(f'; @launch grid=(256,1,1) block=(512,1,1) lds={L_SIZE}')
    A.L.append(DOC)
    A.L.append('.amdgcn_target "amdgcn-amd-amdhsa--gfx950"')
    A.L.append('.text')
    A.L.append(f'.globl {KN}_kernel')
    A.L.append('.p2align 8')
    A.L.append(f'.type {KN}_kernel,@function')
    A.label(f'{KN}_kernel')
    ws_size = (STAMP_OFF + 65536 + 131072) if stamp else WS_SIZE

    def stampit(k):
        if stamp:
            A(f's_memrealtime s[{84 + 2 * k}:{85 + 2 * k}]')

    def stamp_store():
        if not stamp:
            return
        A('s_waitcnt lgkmcnt(0) vmcnt(0)')
        A('s_getreg_b32 s64, hwreg(HW_REG_XCC_ID)')
        A('s_lshl_b32 s65, s2, 3')
        A('s_add_u32 s65, s65, s30')
        A('s_lshl_b32 s65, s65, 5')
        A(f's_add_u32 s65, s65, {STAMP_OFF}')
        A('s_mov_b64 exec, 1')
        A('v_mov_b32 v4, 0')
        for k in range(7):
            A(f'v_mov_b32 v5, s{84 + 2 * k}')
            A(f'buffer_store_dword v5, v4, s[48:51], s65 offen offset:{4 * k}')
        A('v_mov_b32 v5, s64')
        A(f'buffer_store_dword v5, v4, s[48:51], s65 offen offset:28')
        A('s_waitcnt vmcnt(0)')

    lk = [0]

    def leakit(k, wave=None):
        if leak != k:
            return
        lk[0] += 1
        A('s_cmp_lg_u32 s2, 2')
        A(f's_cbranch_scc1 L_lk{lk[0]}')
        if wave is not None:
            A(f's_cmp_lg_u32 s30, {wave}')
            A(f's_cbranch_scc1 L_lk{lk[0]}')
        A('s_memrealtime s[96:97]')
        A('s_waitcnt lgkmcnt(0)')
        A('s_sub_u32 s96, s96, s100')
        A('v_mov_b32 v254, s96')
        A('v_mov_b32 v31, 0')
        A(f's_mov_b32 s96, {EPOCH + 64}')
        A('s_mov_b64 exec, 1')
        A('buffer_store_dword v254, v31, s[48:51], s96 offen')
        A('s_mov_b64 exec, -1')
        A('s_waitcnt vmcnt(0)')
        A.label(f'L_lk{lk[0]}')

    SEL = 40

    def make_sel():
        A('v_and_b32 v4, 7, v2')
        A('v_lshrrev_b32 v5, 1, v4')
        A('v_and_b32 v6, 1, v4')
        A('v_mov_b32 v7, 0x0c0c0100')
        A('v_mov_b32 v8, 0x01000c0c')
        A('v_cmp_eq_u32 vcc, 1, v6')
        A('v_mov_b32 v9, 0x0c0c0302')
        A('v_mov_b32 v10, 0x03020c0c')
        A('v_cndmask_b32 v7, v7, v8, vcc')
        A('v_cndmask_b32 v9, v9, v10, vcc')
        A('v_mov_b32 v8, 0x0c0c0c0c')
        for d in range(4):
            A(f'v_cmp_eq_u32 vcc, {d}, v5')
            A.nop(2)
            A(f'v_cndmask_b32 v{SEL + d}, v8, v7, vcc')
            A(f'v_cndmask_b32 v{SEL + 4 + d}, v8, v9, vcc')

    def build_b(dst, src, odd):
        for d in range(4):
            A(f'v_perm_b32 v{dst + d}, v{src}, v{src}, v{SEL + 4 * odd + d}')

    def swapred(sw, op, v, t):
        A(f'v_mov_b32 v{t}, v{v}')
        A.nop(2)
        A(f'{sw} v{v}, v{t}')
        A(f'{op} v{v}, v{v}, v{t}')

    def allred_g(op, v, t):
        swapred('v_permlane16_swap_b32', op, v, t)
        swapred('v_permlane32_swap_b32', op, v, t)

    def allred_row(v):
        for m in ('quad_perm:[1,0,3,2]', 'quad_perm:[2,3,0,1]', 'row_half_mirror', 'row_mirror'):
            A.nop(2)
            A(f'v_add_f32_dpp v{v}, v{v}, v{v} {m} {DPP}')

    def lds_wait(lab, off, cmp, val, vt, vz, sleep):
        A.label(lab)
        A(f'ds_read_b32 v{vt}, v{vz} offset:{off}')
        A('s_waitcnt lgkmcnt(0)')
        A(f'v_readfirstlane_b32 s64, v{vt}')
        A('s_nop 0')
        A(f'{cmp} s64, {val}')
        if sleep:
            A(f's_cbranch_scc0 {lab}_ok')
            A(f's_sleep {sleep}')
            A(f's_branch {lab}')
            A.label(lab + '_ok')
        else:
            A(f's_cbranch_scc1 {lab}')

    if kfirst:
        A('s_load_dwordx16 s[4:19], s[0:1], 0')
    A('s_cmp_ge_u32 s2, 256')
    A('s_cbranch_scc1 L_end')
    if stamp:
        for k in range(7):
            A(f's_mov_b64 s[{84 + 2 * k}:{85 + 2 * k}], 0')
    stampit(0)
    if leak:
        A('s_memrealtime s[100:101]')
    if not kfirst:
        A('s_load_dwordx16 s[4:19], s[0:1], 0')
        A('s_load_dwordx8 s[20:27], s[0:1], 64')
        A('s_load_dwordx2 s[28:29], s[0:1], 96')
    A('v_lshrrev_b32 v1, 6, v0')
    A('v_and_b32 v2, 15, v0')
    A('v_readfirstlane_b32 s30, v1')
    A('v_and_b32 v1, 63, v0')
    A('v_lshrrev_b32 v3, 4, v1')
    A('s_lshr_b32 s31, s2, 3')
    A('s_and_b32 s32, s2, 7')
    A(f's_mov_b32 s50, {ws_size}')
    A('s_mov_b32 s51, 0x20000')
    A('s_cmp_lt_u32 s30, 4')
    A('s_cbranch_scc1 L_helper')

    RING, Q, BS, S, ACC, PK = 64, 48, 32, 24, 20, 16
    VV, VZ, VONE = 13, 14, 15
    M2, LS, AL, T0, T1, PUB = 4, 5, 6, 7, 8, 9
    KF, DV, RA, RT, MX, SN, SH, SCA, SCB, LIST = 32, 20, 4, 16, 8, 28, 48, 12, 11, 0
    TK1, TK2 = 28, 29
    VR = RING + 16 * NH
    SV, SK, SCNT, SKI, SKP, SKB, SKE, STAG, SO, SPR, SLN, SIX, SREM = 38, 39, 52, 53, 54, 55, 57, 56, 58, 59, 62, 63, 69
    A('s_sub_u32 s37, s30, 4')
    if prio:
        A('s_setprio 1')
    A('s_lshl_b32 s64, s31, 23')
    A(f's_lshl_b32 s{SV}, s32, 20')
    A('s_lshl_b32 s65, s37, 12')
    A(f's_add_u32 s{SV}, s{SV}, s65')
    A(f's_mov_b32 s{SK}, s{SV}')
    A(f's_mov_b32 s42, {KVOOB}')
    A('s_mov_b32 s43, 0x20000')
    A(f's_mov_b32 s46, {KVOOB}')
    A('s_mov_b32 s47, 0x20000')
    A(f'v_lshlrev_b32 v{VV}, 4, v1')
    A('s_sub_u32 s65, s32, s31')
    A(f's_and_b32 s{SPR}, s65, 3')
    A('s_waitcnt lgkmcnt(0)')
    A('s_add_u32 s44, s8, s64')
    A('s_addc_u32 s45, s9, 0')
    A('s_add_u32 s40, s6, s64')
    A('s_addc_u32 s41, s7, 0')
    A('s_mov_b32 s48, s28')
    A('s_mov_b32 s49, s29')
    A(f's_cmp_eq_u32 s{SPR}, 0')
    A('s_cbranch_scc0 L_nobx0')
    A('s_barrier')
    A.label('L_nobx0')

    def vload(reg, q, so, gated=True):
        if gated:
            A(f's_waitcnt vmcnt({GQ(q)})')
        A(f'buffer_load_dwordx4 v[{reg + 4 * q}:{reg + 4 * q + 3}], v{VV}, s[44:47], s{so} offen offset:{q * 1024} {kvpol}')

    def khalf(half):
        if half == 0:
            A(f's_mov_b32 m0, s{SKI}')
            A(f's_add_u32 s{SKI}, s{SKI}, 0x1000')
        for q in (2 * half, 2 * half + 1):
            A(f's_waitcnt vmcnt({GQ(q)})')
            A(f'buffer_load_dwordx4 v{DV + q}, s[40:43], s{SK} offen offset:{q * 1024} {kvpol} lds')
        if half:
            A(f's_add_u32 s{SK}, s{SK}, 0x4000')
            A(f's_cmp_eq_u32 s{SKI}, s{SKE}')
            A(f's_cselect_b32 s{SKI}, s{SKB}, s{SKI}')

    for n in range(4 * NH):
        if n == 4 * (NH - pv):
            A(f's_cmp_eq_u32 s{SPR}, 0')
            A('s_cbranch_scc1 L_v0e')
        if n > free0 and n < n0:
            A(f's_waitcnt vmcnt({g0})')
        vload(RING + 16 * (n // 4), n & 3, SV, n > free0 and n >= n0)
        if n & 3 == 3:
            A(f's_add_u32 s{SV}, s{SV}, 0x4000')
        if n == free0:
            A(f's_cmp_eq_u32 s{SPR}, 0')
            A('s_cbranch_scc1 L_nobx')
            A('s_barrier')
            A.label('L_nobx')
            A(f'v_mov_b32 v{VZ}, 0')
            A(f'v_mov_b32 v{VONE}, 1')
            A(f'v_lshlrev_b32 v{RT}, 2, v3')
            A(f'v_xor_b32 v{RT}, v{RT}, v2')
            A(f'v_lshlrev_b32 v{RT}, 4, v{RT}')
            A(f'v_lshl_add_u32 v{DV}, v3, 8, v{RT}')
            for q in range(1, 4):
                A(f'v_xor_b32 v{DV + q}, {16 * q}, v{DV}')
            A(f'v_and_b32 v{RT}, 3, v2')
            A(f'v_lshlrev_b32 v{RT}, 10, v{RT}')
            A(f'v_lshrrev_b32 v{RT + 1}, 2, v2')
            A(f'v_lshl_add_u32 v{RT}, v{RT + 1}, 8, v{RT}')
            A(f'v_xor_b32 v{RT + 1}, v3, v2')
            A(f'v_lshl_add_u32 v{RA}, v{RT + 1}, 4, v{RT}')
            for q in range(1, 4):
                A(f'v_xor_b32 v{RA + q}, {64 * q}, v{RA}')
            A(f's_mul_i32 s{SKB}, s37, {NK * 4096}')
            A(f's_add_u32 s{SKB}, s{SKB}, {L_KR}')
            A(f's_add_u32 s{SKE}, s{SKB}, {NK * 4096}')
            A(f's_mov_b32 s{SKI}, s{SKB}')
            A(f's_mov_b32 s{SKP}, s{SKB}')
            A(f'v_lshrrev_b32 v{RT}, 3, v2')
            A(f'v_lshl_add_u32 v{RT + 1}, v{RT}, 2, v3')
            A(f's_mul_i32 s64, s37, {SCW}')
            A(f's_add_u32 s64, s64, {L_SC}')
            A(f'v_lshl_add_u32 v{SCA}, v{RT + 1}, 4, s64')
            A(f'v_add_u32 v{SCB}, 128, v{SCA}')
            A(f'v_lshlrev_b32 v{RT}, 8, v{RT}')
            A(f'v_lshl_add_u32 v{PUB}, v3, 4, v{RT}')
            A(f'v_mov_b32 v{MX}, {f32(-3.0e38)}')
            for r in range(4):
                A(f'v_mov_b32 v{S + r}, v{MX}')
            A(f's_mov_b32 s66, {f32(128 ** -0.5)}')
            A(f's_mov_b32 s67, {f32(LOG2E)}')
            A('s_mov_b32 s60, 0x01010101')
            A('s_mov_b32 s61, 0x01010101')
            A(f's_cmp_eq_u32 s{SPR}, 0')
            A(f's_cselect_b32 s{SCNT}, {nS - pd - lg}, {nS - lg}')
            A('s_mov_b32 s71, 0')
    A.label('L_v0e')
    stampit(1)
    A(f's_cmp_lg_u32 s{SPR}, 0')
    A('s_cbranch_scc1 L_sf_ok')
    lds_wait('L_sf', L_SF, 's_cmp_lt_u32', 4, RT, VZ, 0)
    A.label('L_sf_ok')
    assert go >= 2 * NH
    for n in range(2 * lg):
        if 2 * NH + n == go:
            A(f'ds_write_b32 v{VZ}, v{VONE} offset:{L_GO}')
        khalf(n & 1)
    A.label('L_qw')
    A(f'ds_read_b64 v[{RT}:{RT + 1}], v{VZ} offset:{L_FLAG}')
    for q in range(4):
        A(f'ds_read_b128 v[{Q + 4 * q}:{Q + 4 * q + 3}], v{PUB} offset:{L_Q + 64 * q}')
    A('s_waitcnt lgkmcnt(0)')
    A(f'v_readfirstlane_b32 s64, v{RT}')
    A(f'v_readfirstlane_b32 s{STAG}, v{RT + 1}')
    A('s_cmp_eq_u32 s64, 0')
    A('s_cbranch_scc1 L_qw')
    stampit(2)

    def kfinish():
        A(f'v_max3_f32 v{MX}, v{MX}, v{S}, v{S + 1}')
        A(f'v_max3_f32 v{MX}, v{MX}, v{S + 2}, v{S + 3}')
        A('s_mov_b64 exec, s[60:61]')
        A(f'ds_write_b128 v{SCA}, v[{S}:{S + 3}]')
        A('s_mov_b64 exec, -1')
        A(f'v_add_u32 v{SCA}, 128, v{SCA}')

    def kreads():
        for q in range(4):
            A(f'v_add_u32 v{RT + q}, s{SKP}, v{RA + q}')
        for q in range(4):
            A(f'ds_read_b128 v[{KF + 4 * q}:{KF + 4 * q + 3}], v{RT + q}')
        A(f's_add_u32 s{SKP}, s{SKP}, 0x1000')
        A(f's_cmp_eq_u32 s{SKP}, s{SKE}')
        A(f's_cselect_b32 s{SKP}, s{SKB}, s{SKP}')

    def kmfma():
        for q in range(4):
            if stamp and q == 0:
                A('s_waitcnt lgkmcnt(0)')
            A(f's_waitcnt lgkmcnt({3 - q})')
            c = '0' if q == 0 else f'v[{S}:{S + 3}]'
            A(f'v_mfma_f32_16x16x32_bf16 v[{S}:{S + 3}], v[{KF + 4 * q}:{KF + 4 * q + 3}], v[{Q + 4 * q}:{Q + 4 * q + 3}], {c}')

    def progstamp(shift):
        if prog == 1:
            A('s_memrealtime s[98:99]')
            A(f's_lshr_b32 m0, s71, {shift}')
            A('s_add_u32 s71, s71, 1')
            A('s_waitcnt lgkmcnt(0)')
            A('v_writelane_b32 v10, s98, m0')

    A.label('L_kloop')
    if prog == 1:
        A('s_min_u32 s71, s71, 63')
    progstamp(2)
    if kspread:
        def kl1(q):
            A(f's_waitcnt vmcnt({GQ(q)})')
            A(f'buffer_load_dwordx4 v{DV + q}, s[40:43], s{SK} offen offset:{q * 1024} {kvpol} lds')
        A(f's_mov_b32 m0, s{SKI}')
        A(f's_add_u32 s{SKI}, s{SKI}, 0x1000')
        kl1(0)
        kfinish()
        kl1(1)
        kreads()
        kl1(2)
        kmfma()
        kl1(3)
        A(f's_add_u32 s{SK}, s{SK}, 0x4000')
        A(f's_cmp_eq_u32 s{SKI}, s{SKE}')
        A(f's_cselect_b32 s{SKI}, s{SKB}, s{SKI}')
    else:
        khalf(0)
        kfinish()
        kreads()
        khalf(1)
        kmfma()
    A(f's_sub_u32 s{SCNT}, s{SCNT}, 1')
    A(f's_cmp_lg_u32 s{SCNT}, 0')
    A('s_cbranch_scc1 L_kloop')
    outst = []
    for t in range(lg):
        outst += [('K', t)] * 4

    def younger(tag):
        last = max(i for i, t in enumerate(outst) if t == tag)
        return len(outst) - 1 - last

    vq = [(u, q) for u in range(3) for q in range(4)]

    def vstart(n):
        for _ in range(n):
            u, q = vq.pop(0)
            vload(VR + 16 * u, q, SV)
            if q == 3:
                A(f's_add_u32 s{SV}, s{SV}, 0x4000')
            outst.append(('V', u))

    for t in range(lg):
        vstart(2 if lg <= 4 or t < 3 else 1)
        if lg > 4 and t >= 3:
            A.nop(2)
        A(f's_waitcnt vmcnt({younger(("K", t))})')
        A.nop(3)
        kfinish()
        kreads()
        kmfma()
    vstart(2)
    A.nop(4)
    kfinish()
    stampit(5)
    A(f's_cmp_eq_u32 s{SPR}, 0')
    A(f's_cselect_b32 s64, {NH - pv}, {NH}')
    nb = nS - NH - 3 - NH
    assert nb % 4 == 1
    A(f's_mov_b32 s{SCNT}, {(nb + 3) // 4}')
    A('s_lshl_b32 s64, s64, 7')
    A(f'v_add_u32 v{SCA}, s64, v{SCB}')
    A(f'ds_read_b128 v[{SN}:{SN + 3}], v{SCA}')
    A(f'ds_read_b128 v[{SH}:{SH + 3}], v{SCB}')
    allred_g('v_max_f32', MX, T0)
    A(f'v_cvt_pk_bf16_f32 v{RT}, 0, v{MX}')
    A(f'v_mul_f32 v{RT}, s66, v{RT}')
    A(f'v_cvt_pk_bf16_f32 v{RT}, 0, v{RT}')
    A(f'v_mul_f32 v{RT}, s67, v{RT}')
    vstart(1)
    if prog:
        A(f'v_mov_b32 v{RT + 1}, v10')
    make_sel()
    if prog:
        A(f'v_mov_b32 v10, v{RT + 1}')
        A('s_mov_b32 s71, 16')
    A(f'v_mov_b32 v{M2}, v{RT}')
    for r in range(4):
        A(f'v_mov_b32 v{ACC + r}, 0')
    A(f'v_mov_b32 v{LS}, 0')
    vstart(len(vq))

    def vbody(reg, src, nxt, hooks=(None, None, None, None), waits=None):
        if hooks[0]:
            hooks[0]()
        A('s_waitcnt lgkmcnt(0)')
        for n in range(4):
            A(f'v_cvt_pk_bf16_f32 v{S + n}, 0, v{src + n}')
        if nxt:
            A(f'ds_read_b128 v[{src}:{src + 3}], v{nxt[0]} offset:{nxt[1]}')
        for n in range(4):
            A(f'v_mul_f32 v{S + n}, s66, v{S + n}')
        for n in range(4):
            A(f'v_cvt_pk_bf16_f32 v{S + n}, 0, v{S + n}')
        for n in range(4):
            A(f'v_fma_f32 v{S + n}, v{S + n}, s67, -v{M2}')
        for n in range(4):
            A(f'v_exp_f32 v{S + n}, v{S + n}')
        if hooks[1]:
            hooks[1]()
        A(f'v_cvt_pk_bf16_f32 v{PK}, v{S}, v{S + 1}')
        A(f'v_cvt_pk_bf16_f32 v{PK + 1}, v{S + 2}, v{S + 3}')
        build_b(BS, PK, 0)
        build_b(BS + 4, PK, 1)
        A(f'v_add_f32 v{T0}, v{S}, v{S + 1}')
        A(f'v_add_f32 v{T1}, v{S + 2}, v{S + 3}')
        if hooks[2]:
            hooks[2]()
        for n in range(4):
            v = reg + n * 4
            b = BS + 4 * (n & 1)
            if waits:
                A(f's_waitcnt vmcnt({waits[n]})')
            A(f'v_mfma_f32_16x16x32_bf16 v[{ACC}:{ACC + 3}], v[{v}:{v + 3}], v[{b}:{b + 3}], v[{ACC}:{ACC + 3}]')
            if n < 2:
                build_b(b, PK + 1, n & 1)
            elif n == 2:
                A(f'v_add_f32 v{LS}, v{LS}, v{T0}')
                A(f'v_add_f32 v{LS}, v{LS}, v{T1}')
        if hooks[3]:
            hooks[3]()

    for u in range(NH):
        dst = VR + 16 * ((u + 3) % 4)
        ld = lambda q: (lambda: vload(dst, q, SV))
        vbody(VR + 16 * (u % 4), SN, (SCA, (u + 1) * 128), (ld(0), None, ld(1), None))
        if u >= NH - pv:
            A(f's_cmp_eq_u32 s{SPR}, 0')
            A(f's_cbranch_scc0 L_hb{u}')
            vload(dst, 2, SV)
            vload(dst, 3, SV)
            A(f's_branch L_he{u}')
            A.label(f'L_hb{u}')
        vbody(RING + 16 * u, SH, (SCB, (u + 1) * 128) if u + 1 < NH else None, (ld(2), None, ld(3), None))
        A.label(f'L_he{u}')
        A(f's_add_u32 s{SV}, s{SV}, 0x4000')
    A(f'v_add_u32 v{SCA}, {NH * 128}, v{SCA}')
    A(f'v_lshrrev_b32 v{T0}, 3, v2')
    A(f'v_lshl_add_u32 v{T0}, v{T0}, 2, v3')
    A(f'v_lshlrev_b32 v{T0}, 7, v{T0}')
    A(f'v_and_b32 v{T1}, 7, v2')
    A(f'v_lshl_add_u32 v{PUB}, v{T1}, 4, v{T0}')
    VKT = LIST
    A(f'v_and_b32 v{AL}, 3, v2')
    A(f'v_lshlrev_b32 v{AL}, 10, v{AL}')
    A(f'v_lshrrev_b32 v{VKT}, 2, v2')
    A(f'v_lshl_add_u32 v{AL}, v{VKT}, 8, v{AL}')
    A(f'v_lshl_add_u32 v{VKT}, v3, 4, v{AL}')
    A(f'v_lshrrev_b32 v{AL}, 3, v2')
    A(f'v_lshlrev_b32 v{AL}, 8, v{AL}')
    A(f'v_lshl_add_u32 v{AL}, v3, 4, v{AL}')
    A(f'ds_read_b128 v[{Q}:{Q + 3}], v{AL} offset:{L_Q}')
    A('v_lshlrev_b32 v3, 1, v2')
    A(f's_mul_i32 s68, s2, {S1}')
    A('v_lshlrev_b32 v11, 3, v1')
    A('s_lshl_b32 s64, s37, 9')
    A('v_add_u32 v18, s64, v11')
    A('s_lshl_b32 s64, s37, 10')
    A(f'v_add_u32 v19, s64, v{VV}')

    A.label('L_vt0')
    progstamp(0)
    for u in range(4):
        dst = VR + 16 * ((u + 3) % 4)
        ld = lambda q: (lambda: vload(dst, q, SV))
        vbody(VR + 16 * u, SN, (SCA, 128 * (u + 1)), (ld(0), ld(1), ld(2), ld(3)))
        A(f's_add_u32 s{SV}, s{SV}, 0x4000')
        if u == 0:
            A(f's_sub_u32 s{SCNT}, s{SCNT}, 1')
            A(f's_cmp_eq_u32 s{SCNT}, 0')
            A('s_cbranch_scc1 L_vsw')
    A(f'v_add_u32 v{SCA}, 512, v{SCA}')
    A('s_branch L_vt0')

    def kloads(slot, so, qs=range(4), gated=False):
        for q in qs:
            r = RING + slot * 32 + q * 4
            if gated:
                A(f's_waitcnt vmcnt({GATE})')
            A(f'buffer_load_dwordx4 v[{r}:{r + 3}], v{VKT}, s[40:43], s{so} offen offset:{q * 64} {kvpol}')

    def vloads(slot, so):
        for q in range(4):
            vload(RING + slot * 32 + 16, q, so, False)

    A.label('L_vsw')
    SNX = SO
    kl = lambda qs: (lambda: kloads(0, SV, qs, True))
    vl = lambda q: (lambda: vload(RING + 16, q, SV))
    vbody(VR + 16, SN, (SCA, 256), (kl((0,)), None, kl((1,)), None), (13, 12, 11, 10))
    vbody(VR + 32, SN, (SCA, 384), (kl((2,)), None, kl((3,)), None), (11, 10, 9, 8))
    vbody(VR + 48, SN, None, (vl(0), vl(1), vl(2), vl(3)), (10, 9, 8, 7))
    stampit(6)
    A('s_mov_b64 exec, 1')
    A(f'ds_add_rtn_u32 v{TK1}, v{VZ}, v{VONE} offset:{L_TK}')
    A('s_mov_b64 exec, -1')

    def qk(slot, wk):
        A(f's_waitcnt vmcnt({wk})')
        for q in range(4):
            k = RING + slot * 32 + q * 4
            c = '0' if q == 0 else f'v[{S}:{S + 3}]'
            A(f'v_mfma_f32_16x16x32_bf16 v[{S}:{S + 3}], v[{k}:{k + 3}], v[{Q + 4 * q}:{Q + 4 * q + 3}], {c}')

    def softmax_pv(slot, prepv):
        for n in range(4):
            A(f'v_cvt_pk_bf16_f32 v{S + n}, 0, v{S + n}')
        for n in range(4):
            A(f'v_mul_f32 v{S + n}, s66, v{S + n}')
        for n in range(4):
            A(f'v_cvt_pk_bf16_f32 v{S + n}, 0, v{S + n}')
        A(f'v_max3_f32 v{T0}, v{S}, v{S + 1}, v{S + 2}')
        A(f'v_max_f32 v{T0}, v{T0}, v{S + 3}')
        allred_g('v_max_f32', T0, T1)
        A(f'v_mul_f32 v{T0}, s67, v{T0}')
        A(f'v_max_f32 v{T0}, v{T0}, v{M2}')
        A(f'v_sub_f32 v{AL}, v{M2}, v{T0}')
        A(f'v_mov_b32 v{M2}, v{T0}')
        A(f'v_exp_f32 v{AL}, v{AL}')
        for n in range(4):
            A(f'v_fma_f32 v{S + n}, v{S + n}, s67, -v{M2}')
        for n in range(4):
            A(f'v_exp_f32 v{S + n}, v{S + n}')
        for r in range(4):
            A(f'v_mul_f32 v{ACC + r}, v{AL}, v{ACC + r}')
        A(f'v_cvt_pk_bf16_f32 v{PK}, v{S}, v{S + 1}')
        A(f'v_cvt_pk_bf16_f32 v{PK + 1}, v{S + 2}, v{S + 3}')
        build_b(BS, PK, 0)
        A(f'v_fma_f32 v{LS}, v{LS}, v{AL}, v{S}')
        A(f'v_add_f32 v{T0}, v{S + 1}, v{S + 2}')
        for n in range(4):
            if n + 1 < 4:
                build_b(BS + 4 * ((n + 1) & 1), PK + (n + 1) // 2, (n + 1) & 1)
            else:
                A(f'v_add_f32 v{LS}, v{LS}, v{S + 3}')
                A(f'v_add_f32 v{LS}, v{LS}, v{T0}')
            if n == 0:
                prepv()
            v = RING + slot * 32 + 16 + n * 4
            b = BS + 4 * (n & 1)
            A(f'v_mfma_f32_16x16x32_bf16 v[{ACC}:{ACC + 3}], v[{v}:{v + 3}], v[{b}:{b + 3}], v[{ACC}:{ACC + 3}]')

    A.label('L_sloop')
    for k in (0, 1):
        A('s_mov_b64 exec, 1')
        A('s_waitcnt lgkmcnt(0)')
        A(f'v_lshlrev_b32 v{TK1}, 2, v{TK1}')
        A.label(f'L_qt{k}')
        A(f'ds_read_b32 v{TK2}, v{TK1} offset:{L_QT}')
        A('s_waitcnt lgkmcnt(0)')
        A(f'v_readfirstlane_b32 s64, v{TK2}')
        A('s_nop 0')
        A('s_cmp_eq_u32 s64, 0')
        A(f's_cbranch_scc1 L_qt{k}')
        A('s_mov_b64 exec, -1')
        A(f's_mov_b32 s{SNX}, s64')
        A('s_waitcnt vmcnt(4)')
        kloads(1 - k, SNX)
        qk(k, 8)
        A.nop(8)

        def prepv():
            A(f's_cmp_eq_u32 s{SNX}, {KVOOB}')
            A('s_waitcnt vmcnt(4)')
            A(f's_cbranch_scc1 L_pv{k}')
            vloads(1 - k, SNX)
            A('s_mov_b64 exec, 1')
            A(f'ds_add_rtn_u32 v{TK1}, v{VZ}, v{VONE} offset:{L_TK}')
            A('s_mov_b64 exec, -1')
            A.label(f'L_pv{k}')
        softmax_pv(k, prepv)
        A(f's_cmp_eq_u32 s{SNX}, {KVOOB}')
        if k == 0:
            A('s_cbranch_scc1 L_sdone')
        else:
            A('s_cbranch_scc0 L_sloop')

    A.label('L_sdone')
    stampit(3)
    allred_g('v_add_f32', LS, T1)
    A(f'ds_write_b64 v18, v[{M2}:{M2 + 1}] offset:{L_MG + 4096}')
    A(f'ds_write_b128 v19, v[{ACC}:{ACC + 3}] offset:{L_MG}')
    A('s_mov_b64 exec, 1')
    A(f'ds_add_rtn_u32 v{T1}, v{VZ}, v{VONE} offset:{L_FIN}')
    A('s_mov_b64 exec, -1')
    for w in range(4):
        A(f'ds_read_b64 v[{BS + 2 * w}:{BS + 2 * w + 1}], v11 offset:{L_MG + 4096 + 512 * w}')
    for w in range(4):
        A(f'ds_read_b128 v[{Q + 4 * w}:{Q + 4 * w + 3}], v{VV} offset:{L_MG + 1024 * w}')
    A(f's_and_b32 s64, s{STAG}, 0xff')
    A('s_movk_i32 s65, 0xff')
    A(f'v_mov_b32 v{PK}, s64')
    A(f'v_mov_b32 v{T0}, s{STAG}')
    A('s_waitcnt lgkmcnt(4)' if not stamp else 's_waitcnt lgkmcnt(0)')
    A(f'v_readfirstlane_b32 s64, v{T1}')
    A(f'v_max_f32 v{M2}, v{BS}, v{BS + 2}')
    A('s_cmp_lg_u32 s64, 3')
    A('s_cbranch_scc1 L_send')
    A(f'v_max3_f32 v{M2}, v{M2}, v{BS + 4}, v{BS + 6}')
    for w in range(4):
        A(f'v_sub_f32 v{S + w}, v{BS + 2 * w}, v{M2}')
    for w in range(4):
        A(f'v_exp_f32 v{S + w}, v{S + w}')
    A(f'v_mov_b32 v{LS}, s{STAG}')
    A(f'v_mul_f32 v{AL}, v{S}, v{BS + 1}')
    for w in range(1, 4):
        A(f'v_fmac_f32 v{AL}, v{S + w}, v{BS + 2 * w + 1}')
    A('s_mov_b64 exec, 0x0101')
    A(f'buffer_store_dwordx4 v[{M2}:{M2 + 3}], v3, s[48:51], s68 offen offset:{L1ML} sc1')
    A('s_mov_b64 exec, -1')
    A('s_waitcnt lgkmcnt(0)')
    for r in range(4):
        A(f'v_mul_f32 v{ACC + r}, v{S}, v{Q + r}')
    for w in range(1, 4):
        for r in range(4):
            A(f'v_fmac_f32 v{ACC + r}, v{S + w}, v{Q + 4 * w + r}')
    for r in range(4):
        A(f'v_bfi_b32 v{ACC + r}, s65, v{PK}, v{ACC + r}')
    A(f'buffer_store_dwordx4 v[{ACC}:{ACC + 3}], v{PUB}, s[48:51], s68 offen sc1')
    stampit(4)
    if stamp:
        A.label('L_send')
        A('s_barrier')
        for _ in range(2): A('s_sleep 127')
    else:
        A('s_barrier')
        A.label('L_send')
    if prog:
        A('s_mov_b32 m0, 31')
        A('s_nop 0')
        A('v_writelane_b32 v10, s71, m0')
        A('s_lshl_b32 s65, s2, 2')
        A('s_add_u32 s65, s65, s37')
        A('s_lshl_b32 s65, s65, 7')
        A(f's_add_u32 s65, s65, {STAMP_OFF + 65536}')
        A('v_lshlrev_b32 v11, 2, v1')
        A('s_mov_b32 exec_hi, 0')
        A('buffer_store_dword v10, v11, s[48:51], s65 offen')
        A('s_mov_b64 exec, -1')
    stamp_store()
    A('s_endpgm')

    A.label('L_helper')
    if kfirst:
        A('s_load_dwordx8 s[20:27], s[0:1], 64')
        A('s_load_dwordx2 s[28:29], s[0:1], 96')
    A('s_setprio 2')
    HB = 48
    X, E = 64, 80
    A('v_lshlrev_b32 v11, 4, v1')
    A('v_mov_b32 v12, 0')
    A('v_lshlrev_b32 v23, 2, v1')
    for z in range(L_FLAG, L_ZEND, 256):
        A(f'ds_write_b32 v23, v12 offset:{z}')
    A('s_lshr_b32 s33, s31, 4')
    A('s_and_b32 s34, s31, 15')
    A('s_and_b32 s35, s2, 127')
    A('s_sub_u32 s64, s32, s31')
    A('s_and_b32 s64, s64, 7')
    A('s_lshr_b32 s65, s64, 2')
    A('s_lshl_b32 s72, s31, 1')
    A('s_add_u32 s72, s72, s65')
    A('s_lshl_b32 s73, s65, 4')
    A('s_add_u32 s73, s73, s34')
    A('s_and_b32 s64, s64, 3')
    A('s_cmp_lt_u32 s73, 18')
    A('s_cselect_b32 s3, 2, 0')
    A('s_cmp_eq_u32 s64, 2')
    A('s_cselect_b32 s3, s3, 0')
    A('s_cmp_eq_u32 s64, 0')
    A('s_cselect_b32 s3, 1, s3')
    A('v_mul_u32_u24 v13, 36, v1')
    A('s_mov_b32 s42, 2304')
    A('s_mov_b32 s43, 0x20000')
    A(f's_mov_b32 s46, {576 * 8192}')
    A('s_mov_b32 s47, 0x20000')
    A('v_lshrrev_b32 v14, 3, v1')
    A('v_lshlrev_b32 v14, 13, v14')
    A('v_and_b32 v15, 7, v1')
    if swz:
        A('v_lshrrev_b32 v16, 3, v1')
        A('v_and_b32 v16, 2, v16')
        A('v_xor_b32 v15, v15, v16')
    A('v_lshl_add_u32 v14, v15, 4, v14')
    A('v_xor_b32 v31, 64, v14')
    A(f's_mul_i32 s38, s30, {144 * 8192}')
    A('s_lshl_b32 s64, s72, 7')
    A('s_add_u32 s38, s38, s64')
    A(f's_mul_i32 s37, s30, {144 * 128}')
    A(f's_add_u32 s37, s37, {L_WQ}')
    A('s_lshl_b32 s64, s30, 2')
    A('s_add_u32 s64, s64, s3')
    A('s_cmp_eq_u32 s64, 2')
    A('s_cselect_b32 s70, 1, 0')
    A('s_cmp_eq_u32 s3, 1')
    A('s_cselect_b32 s70, 1, s70')
    A('s_waitcnt lgkmcnt(0)')
    A('s_mov_b32 s48, s28')
    A('s_mov_b32 s49, s29')
    A('s_mov_b32 s40, s4')
    A('s_mov_b32 s41, s5')
    A('s_mov_b32 s44, s10')
    A('s_mov_b32 s45, s11')
    A(f's_mov_b32 s64, {EPOCH}')
    A('s_load_dwordx2 s[78:79], s[28:29], s64')
    A('s_cmp_eq_u32 s70, 0')
    A('s_cbranch_scc1 L_h_x')
    A(f'buffer_load_dwordx4 v[{X}:{X + 3}], v13, s[40:43], 0 offen')
    A(f'buffer_load_dwordx4 v[{X + 4}:{X + 7}], v13, s[40:43], 0 offen offset:16')
    A(f'buffer_load_dword v{X + 8}, v13, s[40:43], 0 offen offset:32')
    A('s_cmp_lg_u32 s3, 1')
    A('s_cbranch_scc1 L_h_x')
    for n in range(18):
        A('s_mov_b32 m0, s37')
        A('s_add_u32 s37, s37, 1024')
        A(f'buffer_load_dwordx4 v{31 if (swz and n & 1) else 14}, s[44:47], s38 offen {wqpol} lds')
        A('s_add_u32 s38, s38, 0x10000')
    A.label('L_h_x')
    A('s_barrier')
    if cpf:
        A('s_cmp_lg_u32 s30, 3')
        A('s_cbranch_scc1 L_nocpf')
        A(f's_cmp_ge_u32 s31, {cpf}')
        A('s_cbranch_scc1 L_nocpf')
        A('s_cmp_eq_u32 s3, 1')
        A('s_cbranch_scc1 L_nocpf')
        A('s_getpc_b64 s[64:65]')
        A.label('L_pcref')
        A(f's_sub_u32 s64, s64, L_pcref-{KN}_kernel')
        A('s_subb_u32 s65, s65, 0')
        A('v_lshlrev_b32 v32, 7, v1')
        A(f'v_min_u32 v33, L_end-{KN}_kernel, v32')
        A('global_load_dword v36, v33, s[64:65]')
        for n in range(1, 3):
            A(f'v_add_u32 v32, 0x2000, v32')
            A(f'v_min_u32 v{33 + n}, L_end-{KN}_kernel, v32')
            A(f'global_load_dword v{36 + n}, v{33 + n}, s[64:65]')
        A.label('L_nocpf')
    A('s_cmp_eq_u32 s70, 0')
    A('s_cbranch_scc1 L_h_noln')

    def layernorm(src, dst):
        D = E + 18
        a, b, c = E + 36, E + 37, E + 38
        for k in range(9):
            A(f'v_lshlrev_b32 v{E + 2 * k}, 16, v{src + k}')
            A(f'v_and_b32 v{E + 2 * k + 1}, 0xffff0000, v{src + k}')
        A(f'v_add_f32 v{a}, v{E}, v{E + 1}')
        A(f'v_add_f32 v{b}, v{E + 2}, v{E + 3}')
        for n in range(4, 18, 2):
            A(f'v_add_f32 v{a}, v{a}, v{E + n}')
            A(f'v_add_f32 v{b}, v{b}, v{E + n + 1}')
        A(f'v_add_f32 v{a}, v{a}, v{b}')
        allred_row(a)
        swapred('v_permlane16_swap_b32', 'v_add_f32', a, b)
        A(f'v_mul_f32 v{a}, {f32(1.0 / 576)}, v{a}')
        for n in range(18):
            A(f'v_sub_f32 v{D + n}, v{E + n}, v{a}')
        A(f'v_mul_f32 v{b}, v{D}, v{D}')
        A(f'v_mul_f32 v{c}, v{D + 1}, v{D + 1}')
        for n in range(2, 18, 2):
            A(f'v_fmac_f32 v{b}, v{D + n}, v{D + n}')
            A(f'v_fmac_f32 v{c}, v{D + n + 1}, v{D + n + 1}')
        A(f'v_add_f32 v{b}, v{b}, v{c}')
        A(f'v_cvt_pk_bf16_f32 v{a}, 0, v{a}')
        allred_row(b)
        swapred('v_permlane16_swap_b32', 'v_add_f32', b, c)
        A(f'v_mul_f32 v{b}, {f32(1.0 / 576)}, v{b}')
        A(f'v_cvt_pk_bf16_f32 v{b}, 0, v{b}')
        A(f'v_add_f32 v{b}, {f32(1e-5)}, v{b}')
        A(f'v_cvt_pk_bf16_f32 v{b}, 0, v{b}')
        A(f'v_sqrt_f32 v{b}, v{b}')
        A(f'v_sub_f32 v{D}, v{E}, v{a}')
        A(f'v_cvt_pk_bf16_f32 v{b}, 0, v{b}')
        A(f'v_rcp_f32 v{b}, v{b}')
        for n in range(1, 18):
            A(f'v_sub_f32 v{D + n}, v{E + n}, v{a}')
        for n in range(18):
            A(f'v_cvt_pk_bf16_f32 v{D + n}, 0, v{D + n}')
        for n in range(18):
            A(f'v_mul_f32 v{D + n}, v{D + n}, v{b}')
        for k in range(9):
            A(f'v_cvt_pk_bf16_f32 v{dst + k}, v{D + 2 * k}, v{D + 2 * k + 1}')

    A('v_and_b32 v15, 1, v2')
    A('v_mul_u32_u24 v15, 1152, v15')
    A('v_lshl_add_u32 v15, v3, 4, v15')
    A('v_lshrrev_b32 v16, 2, v2')
    A('v_lshl_add_u32 v16, v3, 3, v16')
    A('v_lshlrev_b32 v16, 7, v16')
    A('v_and_b32 v17, 3, v1')
    A('v_lshl_add_u32 v16, v17, 3, v16')
    A('s_lshl_b32 s64, s30, 5')
    A('v_add_u32 v16, s64, v16')
    if swz:
        A('v_lshlrev_b32 v17, 2, v1')
        A('v_and_b32 v17, 0x60, v17')
        A('v_xor_b32 v16, v16, v17')
    A('v_add_u32 v20, 0x8000, v16')
    A('v_lshlrev_b32 v17, 2, v2')
    A('v_lshl_add_u32 v17, v3, 14, v17')
    A('s_lshl_b32 s39, s72, 8')
    A('s_lshl_b32 s64, s30, 6')
    A('s_add_u32 s39, s39, s64')
    A(f's_add_u32 s39, s39, {QX}')
    A('s_cmp_eq_u32 s3, 1')
    A('s_cbranch_scc1 L_h_wx')
    A('s_waitcnt vmcnt(0)')
    A.label('L_h_wx')
    A('s_waitcnt vmcnt(18)')
    if stamp == 2: stampit(4)
    layernorm(X, X)
    A('v_mov_b32 v18, 1')
    A('s_cmp_lg_u32 s3, 1')
    A('s_cbranch_scc1 L_h_ln2')
    for k in range(9):
        A(f'ds_write_b32 v13, v{X + k} offset:{L_XN + 4 * k}')
    QA, QB, QD = 120, 192, 76
    A('s_waitcnt lgkmcnt(0)')
    for t in range(18):
        A(f'ds_read_b128 v[{QA + 4 * t}:{QA + 4 * t + 3}], v15 offset:{L_XN + 64 * t}')
        if t == 8:
            A('s_waitcnt lgkmcnt(0)')
    if stamp == 2: stampit(5)
    A('s_waitcnt vmcnt(0)')
    A('s_mov_b64 exec, 1')
    A(f'ds_add_u32 v12, v18 offset:{L_CNT}')
    A('s_mov_b64 exec, -1')
    lds_wait('L_h_sync', L_CNT, 's_cmp_lt_u32', 4, 18, 12, 0)
    if stamp == 2:
        stampit(6)
        A('s_waitcnt lgkmcnt(0)')
    for t0 in (0, 6, 12):
        for t in range(t0, t0 + 6):
            r = QB + 4 * (t % 12)
            for h in range(2):
                off = L_WQ + 4096 * t + 512 * h
                base, off = (16, off) if off < 32768 else (20, off - 32768)
                A(f'ds_read_b64_tr_b16 v[{r + 2 * h}:{r + 2 * h + 1}], v{base} offset:{off}')
        for t in range(t0, t0 + 6):
            r = QB + 4 * (t % 12)
            A(f's_waitcnt lgkmcnt({2 * (t0 + 5 - t)})')
            c = '0' if t == 0 else f'v[{QD}:{QD + 3}]'
            A(f'v_mfma_f32_16x16x32_bf16 v[{QD}:{QD + 3}], v[{QA + 4 * t}:{QA + 4 * t + 3}], v[{r}:{r + 3}], {c}')
    A('v_mov_b32 v18, 1')
    A('s_mov_b64 exec, 1')
    A(f'ds_add_u32 v12, v18 offset:{L_SF}')
    A('s_mov_b64 exec, -1')
    A('s_add_u32 s64, s78, 1')
    A('s_add_u32 s65, s79, 1')
    A('v_cmp_eq_u32 vcc, 1, v3')
    A('v_mov_b32 v19, s64')
    A('v_mov_b32 v21, s65')
    A.nop(4)
    A('v_cndmask_b32 v19, v19, v21, vcc')
    A(f'v_cndmask_b32 v18, v{QD}, v{QD + 1}, vcc')
    A.nop(2)
    A(f'v_mov_b32_dpp v21, v18 quad_perm:[1,0,3,2] {DPP}')
    A('v_cvt_pk_bf16_f32 v18, v18, v21')
    A('s_mov_b64 exec, 0x55555555')
    A('buffer_store_dwordx2 v[18:19], v17, s[48:51], s39 offen sc1')
    A('s_mov_b64 exec, -1')
    stampit(1)
    A('s_branch L_h_q')
    A.label('L_h_ln2')
    layernorm(X, X)
    for k in range(9):
        A(f'ds_write_b32 v13, v{X + k} offset:{L_H + 4 * k}')
    A(f'ds_write_b32 v12, v18 offset:{L_HF}')
    A('s_branch L_h_join')

    A.label('L_h_noln')
    A.label('L_h_q')
    A('s_cmp_eq_u32 s30, 1')
    A('s_cbranch_scc0 L_h_join')
    A('s_lshl_b32 s39, s31, 10')
    A(f's_add_u32 s39, s39, {QX}')
    A('v_lshlrev_b32 v22, 3, v1')
    A('s_waitcnt lgkmcnt(0)')
    A('s_cmp_eq_u32 s33, 0')
    A('s_cselect_b32 s79, s78, s79')
    A('s_add_u32 s79, s79, 1')
    A(f's_mov_b32 s70, {SPIN_MAX}')
    lds_wait('L_go', L_GO, 's_cmp_eq_u32', 0, 14, 12, 4)
    PB = 64

    def qpoll(p):
        A(f'buffer_load_dwordx4 v[{PB + 4 * p}:{PB + 4 * p + 3}], v11, s[48:51], s39 offen sc1')
    for p in range(npoll - 1):
        qpoll(p)
        A(f's_sleep {qsleep}')
    A.label('L_qp')
    for p in range(npoll):
        qpoll((p + npoll - 1) % npoll)
        r = PB + 4 * p
        A(f's_waitcnt vmcnt({npoll - 1})')
        A(f'v_xor_b32 v14, s79, v{r + 1}')
        A(f'v_xor_b32 v15, s79, v{r + 3}')
        A(f'v_mov_b32 v16, v{r}')
        A('v_or_b32 v14, v14, v15')
        A(f'v_mov_b32 v17, v{r + 2}')
        A('v_cmp_ne_u32 vcc, 0, v14')
        A('s_cbranch_vccz L_qp_done')
        A('s_mov_b64 exec, vcc')
    A('s_sub_u32 s70, s70, 1')
    A('s_cmp_lg_u32 s70, 0')
    A('s_cbranch_scc1 L_qp')
    A.label('L_qp_done')
    A('s_mov_b64 exec, -1')
    A(f'ds_write_b64 v22, v[16:17] offset:{L_Q}')
    A('v_mov_b32 v14, 1')
    A('v_mov_b32 v15, s79')
    A(f'ds_write_b64 v12, v[14:15] offset:{L_FLAG}')
    stampit(1)

    A.label('L_h_join')
    make_sel()
    A('v_lshrrev_b32 v5, 3, v2')
    A('v_lshl_add_u32 v5, v5, 2, v3')
    A('v_and_b32 v7, 7, v2')
    A(f's_mul_i32 s74, s31, {8 * S1}')
    A('s_lshr_b32 s64, s32, 2')
    A('s_lshl_b32 s64, s64, 4')
    A('s_add_u32 s69, s74, s64')
    A('s_lshl_b32 s64, s32, 7')
    A('s_add_u32 s74, s74, s64')
    lds_wait('L_h_qf', L_FLAG, 's_cmp_eq_u32', 0, 14, 12, 8)
    A(f'ds_read_b32 v14, v12 offset:{L_TAG}')
    A('s_waitcnt lgkmcnt(0)')
    A('v_readfirstlane_b32 s79, v14')
    stampit(2)

    pc = [0]

    def paced(ins):
        if pc[0] >= hpace:
            A(f's_waitcnt vmcnt({hpace - 1})')
        A(ins)
        pc[0] += 1

    A(f's_mul_i32 s64, s31, {SP}')
    A(f's_add_u32 s36, s64, {POOLR}')
    A('s_add_u32 s60, s28, s36')
    A('s_addc_u32 s61, s29, 0')
    A('s_lshl_b32 s64, s32, 2')
    A('s_add_u32 s64, s64, s30')
    A('s_cmp_lg_u32 s64, 3')
    A('s_cbranch_scc1 L_nopool')
    A('s_and_b32 s64, s31, 3')
    A('s_lshl_b32 s64, s64, 3')
    A(f's_lshl_b32 s64, {4 * pd}, s64')
    A(f's_sub_u32 s64, {(128 - LIM) * 0x01010101}, s64')
    A('v_mov_b32 v14, s64')
    A('v_mov_b32 v15, s64')
    A('v_mov_b32 v16, s79')
    A('s_mov_b64 exec, 1')
    A('buffer_store_dwordx2 v[14:15], v12, s[48:51], s36 offen sc1')
    A('s_waitcnt vmcnt(0)')
    A('buffer_store_dword v16, v12, s[48:51], s36 offen offset:128 sc1')
    A('s_mov_b64 exec, -1')
    A.label('L_nopool')

    WO = 104
    W8 = 3
    A('s_mov_b32 s52, s12')
    A('s_mov_b32 s53, s13')
    A(f's_mov_b32 s54, {4096 * 1152}')
    A('s_mov_b32 s55, 0x20000')
    A('v_mul_u32_u24 v30, 1152, v5')
    A('v_lshl_add_u32 v30, v7, 4, v30')

    def wo_loads(ts, emit, tagl):
        A(f's_mul_i32 s64, s35, {32 * 1152}')
        A(f's_add_u32 s64, s64, {ts[0] * 8 * 1152}')
        A('s_lshl_b32 s65, s30, 8')
        A('s_add_u32 s65, s65, s64')
        for t in ts:
            for bl in range(2):
                r = WO + bl * 16 + t * 4
                emit(f'buffer_load_dwordx4 v[{r}:{r + 3}], v30, s[52:55], s65 offen offset:{128 * bl} {wopol}')
            if t != ts[-1]:
                A(f's_add_u32 s65, s65, {8 * 1152}')
        A(f's_cmp_lg_u32 s30, {W8}')
        A(f's_cbranch_scc1 L_nowo8{tagl}')
        for t in ts:
            r = WO + 32 + t * 4
            emit(f'buffer_load_dwordx4 v[{r}:{r + 3}], v30, s[52:55], s64 offen offset:1024 {wopol}')
            if t != ts[-1]:
                A(f's_add_u32 s64, s64, {8 * 1152}')
        A.label(f'L_nowo8{tagl}')
    ne = woearly if wolate else 4
    if ne:
        wo_loads(list(range(ne)), paced, 'a')


    A('s_lshl_b32 s80, s73, 5')
    A('s_mul_i32 s64, s33, 576')
    A('s_add_u32 s80, s80, s64')
    G = 176
    A('v_and_b32 v17, 1, v3')
    A('v_lshrrev_b32 v18, 1, v3')
    A('v_lshl_add_u32 v17, v17, 1, v18')
    A('v_lshl_add_u32 v17, v17, 3, v7')
    A('v_lshlrev_b32 v24, 2, v17')
    A('v_add_u32 v17, s80, v17')
    A('v_lshlrev_b32 v25, 1, v17')
    A('s_cmp_lg_u32 s3, 2')
    A('s_cbranch_scc1 L_nob')
    PW = 64
    W1, B1, W2 = 152, 170, 188
    U = 206
    A('s_mul_i32 s64, s30, 2304')
    A('v_add_u32 v15, s64, v11')
    A('v_add_u32 v16, s64, v23')
    for k, base in enumerate((16, 18, 20)):
        r = PW + 12 * k
        paced(f'global_load_dwordx4 v[{r}:{r + 3}], v15, s[{base}:{base + 1}] {bpol}')
        paced(f'global_load_dwordx4 v[{r + 4}:{r + 7}], v15, s[{base}:{base + 1}] offset:1024 {bpol}')
        paced(f'global_load_dword v{r + 8}, v16, s[{base}:{base + 1}] offset:2048 {bpol}')
    paced('buffer_load_ushort v26, v25, s[40:43], 0 offen')
    paced('global_load_ushort v27, v12, s[22:23]')
    lds_wait('L_h_hf', L_HF, 's_cmp_eq_u32', 0, 14, 12, 8)
    c0 = -2.0 * math.sqrt(2.0 / math.pi) * LOG2E
    A(f's_mov_b32 s66, {f32(c0 * 0.044715)}')
    A(f'v_mov_b32 v17, {f32(c0)}')
    A('s_lshl_b32 s64, s80, 1')
    A(f's_add_u32 s64, s64, {L_H}')
    A('v_mov_b32 v18, s64')
    A('s_lshl_b32 s64, s30, 7')
    A(f's_add_u32 s64, s64, {L_BP}')
    A('v_mov_b32 v19, s64')
    A('s_waitcnt vmcnt(0)')
    for k, dst in enumerate((W1, B1, W2)):
        for n in range(9):
            A(f'v_lshlrev_b32 v{dst + 2 * n}, 16, v{PW + 12 * k + n}')
            A(f'v_and_b32 v{dst + 2 * n + 1}, 0xffff0000, v{PW + 12 * k + n}')
    A('s_mov_b32 s70, 0')
    if prio:
        A('s_setprio 0')
    A.label('L_bloop')
    A('ds_read_u16 v20, v18')
    A('v_add_u32 v18, 2, v18')
    A('s_waitcnt lgkmcnt(0)')
    A('v_lshlrev_b32 v20, 16, v20')
    V2 = U + 18
    for n in range(18): A(f'v_mul_f32 v{U + n}, v20, v{W1 + n}')
    for n in range(18): A(f'v_cvt_pk_bf16_f32 v{U + n}, 0, v{U + n}')
    for n in range(18): A(f'v_add_f32 v{U + n}, v{U + n}, v{B1 + n}')
    for n in range(18): A(f'v_cvt_pk_bf16_f32 v{U + n}, 0, v{U + n}')
    for n in range(18): A(f'v_mul_f32 v{V2 + n}, v{U + n}, v{U + n}')
    for n in range(18): A(f'v_fma_f32 v{V2 + n}, v{V2 + n}, s66, v17')
    for n in range(18): A(f'v_mul_f32 v{V2 + n}, v{V2 + n}, v{U + n}')
    for n in range(18): A(f'v_exp_f32 v{V2 + n}, v{V2 + n}')
    for n in range(18): A(f'v_add_f32 v{V2 + n}, 1.0, v{V2 + n}')
    for n in range(18): A(f'v_rcp_f32 v{V2 + n}, v{V2 + n}')
    for n in range(18): A(f'v_mul_f32 v{U + n}, v{U + n}, v{V2 + n}')
    for n in range(18): A(f'v_cvt_pk_bf16_f32 v{U + n}, 0, v{U + n}')
    A(f'v_mul_f32 v21, v{U}, v{W2}')
    A(f'v_mul_f32 v22, v{U + 1}, v{W2 + 1}')
    for n in range(2, 18, 2):
        A(f'v_fmac_f32 v21, v{U + n}, v{W2 + n}')
        A(f'v_fmac_f32 v22, v{U + n + 1}, v{W2 + n + 1}')
    A('v_add_f32 v21, v21, v22')
    allred_row(21)
    allred_g('v_add_f32', 21, 22)
    A('ds_write_b32 v19, v21')
    A('v_add_u32 v19, 4, v19')
    A('s_add_u32 s70, s70, 1')
    A('s_cmp_lt_u32 s70, 32')
    A('s_cbranch_scc1 L_bloop')
    if prio:
        A('s_setprio 2')
    A('v_mov_b32 v14, 1')
    A('s_mov_b64 exec, 1')
    A(f'ds_add_u32 v12, v14 offset:{L_BC}')
    A('s_mov_b64 exec, -1')
    lds_wait('L_h_bc', L_BC, 's_cmp_lt_u32', 4, 14, 12, 8)
    for w in range(4):
        A(f'ds_read_b32 v{G + w}, v24 offset:{L_BP + 128 * w}')
    A('s_waitcnt lgkmcnt(0)')
    A(f'v_add_f32 v{G}, v{G}, v{G + 1}')
    A(f'v_add_f32 v{G + 2}, v{G + 2}, v{G + 3}')
    A(f'v_add_f32 v{G}, v{G}, v{G + 2}')
    A('v_lshlrev_b32 v26, 16, v26')
    A('v_lshlrev_b32 v27, 16, v27')
    A(f'v_cvt_pk_bf16_f32 v{G}, 0, v{G}')
    A(f'v_add_f32 v27, v{G}, v27')
    A('v_cvt_pk_bf16_f32 v27, 0, v27')
    A.label('L_nob')

    A('s_mov_b32 s56, s24')
    A('s_mov_b32 s57, s25')
    A('s_mov_b32 s58, 2304')
    A('s_mov_b32 s59, 0x20000')
    A(f'v_mul_u32_u24 v20, {S1}, v7')
    A('v_lshl_add_u32 v19, v5, 4, v20')
    A('v_lshlrev_b32 v21, 4, v7')
    A('v_lshl_add_u32 v21, v3, 7, v21')
    A('v_lshlrev_b32 v22, 3, v1')
    A('v_lshrrev_b32 v31, 3, v1')
    A(f'v_mul_u32_u24 v31, {S2}, v31')
    A('v_lshl_add_u32 v31, v7, 4, v31')
    A(f's_mul_i32 s77, s2, {S2}')
    A(f's_add_u32 s77, s77, {L2A}')
    A('s_lshl_b32 s64, s30, 9')
    A('s_add_u32 s76, s77, s64')
    A('s_lshl_b32 s64, s33, 2')
    A('s_add_u32 s64, s64, s30')
    A(f's_mul_i32 s81, s64, {32 * S2}')
    A('s_lshl_b32 s64, s73, 7')
    A('s_add_u32 s81, s81, s64')
    A(f's_add_u32 s81, s81, {L2A}')
    A(f's_add_u32 s82, s81, {8 * S2}')
    A(f's_add_u32 s46, s81, {16 * S2}')
    A(f's_add_u32 s47, s81, {24 * S2}')
    GS = (81, 82, 46, 47)
    A('s_and_b32 s78, s79, 0xff')
    A('s_movk_i32 s75, 0xff')
    A('v_mov_b32 v28, s78')
    A('v_mov_b32 v29, 1')
    if warm:
        A('s_cmp_lg_u32 s30, 3')
        A('s_cbranch_scc1 L_nowarm1')
        A('buffer_load_dwordx4 v[200:203], v19, s[48:51], s74 offen sc1')
        A(f'buffer_load_dwordx4 v[204:207], v20, s[48:51], s69 offen offset:{L1ML} sc1')
        A.label('L_nowarm1')
        A('s_cmp_lg_u32 s3, 2')
        A('s_cbranch_scc1 L_nowarm2')
        for k in range(4):
            A(f'buffer_load_dwordx4 v[{208 + 4 * k}:{211 + 4 * k}], v31, s[48:51], s{GS[k]} offen sc1')
        A.label('L_nowarm2')

    A('s_cmp_lg_u32 s30, 2')
    A('s_cbranch_scc1 L_nodisp')
    SC, SF, SOWN, SOWNC, SN, SZ = 66, 68, 69, 70, 71, 37
    A('v_lshlrev_b32 v16, 12, v1')
    A('s_lshl_b32 s64, s32, 20')
    A(f's_add_u32 s64, s64, {ns * 16384}')
    A('s_cmp_eq_u32 s3, 1')
    A(f's_cselect_b32 s65, {pd * 16384}, 0')
    A('s_sub_u32 s64, s64, s65')
    A('v_add_u32 v14, s64, v16')
    A(f's_mov_b64 exec, {(1 << (4 * npre)) - 1}')
    A(f'ds_write_b32 v23, v14 offset:{L_QT}')
    A('s_mov_b64 exec, -1')
    A(f's_mov_b32 s{SN}, {4 * npre}')
    A(f's_mov_b32 s83, {SPIN_MAX}')
    A.label('L_prdy')
    A('buffer_load_dword v14, v12, s[48:51], s36 offen offset:128 sc1')
    A('s_sub_u32 s83, s83, 1')
    A('s_waitcnt vmcnt(0)')
    A('v_readfirstlane_b32 s64, v14')
    A('s_cmp_eq_u32 s83, 0')
    A('s_cbranch_scc1 L_dend')
    A('s_cmp_eq_u32 s64, s79')
    A('s_cbranch_scc1 L_prdy_ok')
    A('s_sleep 64')
    A('s_branch L_prdy')
    A.label('L_prdy_ok')
    A(f's_lshl_b32 s{SOWN}, s32, 3')
    A(f's_mov_b32 s{SF}, s{SOWN}')
    A(f's_sub_u32 s{SOWNC}, 64, s{SOWN}')
    A('s_mov_b32 s62, 0x80808080')
    A('s_mov_b32 s63, 0x80808080')
    A(f's_mov_b32 s{SZ}, {first}')
    lds_wait('L_dw0', L_TK, 's_cmp_eq_u32', 0, 14, 12, 16)
    A.label('L_dloop')
    A(f's_sub_u32 s83, s{SN}, {theta}')
    lds_wait('L_dw', L_TK, 's_cmp_lt_u32', 's83', 14, 12, dsleep)
    A.label('L_drty')
    A(f's_mov_b32 s38, s{SZ}')
    A('s_mov_b32 s39, 0')
    A(f's_lshl_b64 s[38:39], s[38:39], s{SF}')
    A(f's_mov_b64 s[{SC}:{SC + 1}], s[38:39]')
    A(f's_atomic_add_x2 s[{SC}:{SC + 1}], s[60:61], 0 glc')
    A(f's_lshl_b32 s83, s{SF}, 17')
    A(f's_lshl_b32 s64, s{SN}, 2')
    A('v_add_u32 v15, s64, v23')
    A('s_waitcnt lgkmcnt(0)')
    A(f's_lshr_b64 s[64:65], s[{SC}:{SC + 1}], s{SF}')
    A('s_and_b32 s64, s64, 0xff')
    A('s_cmp_ge_u32 s64, 128')
    A('s_cbranch_scc1 L_dfail')
    A('s_lshl_b32 s65, s64, 12')
    A('s_add_u32 s65, s65, s83')
    A(f's_add_u32 s65, s65, {((ns + npre) * 16384 - (128 - LIM) * 4096) & 0xffffffff}')
    A('v_add_u32 v14, s65, v16')
    A('s_sub_u32 s65, 128, s64')
    A(f's_min_u32 s65, s65, s{SZ}')
    A('s_bfm_b64 exec, s65, 0')
    A(f'ds_write_b32 v15, v14 offset:{L_QT}')
    A('s_mov_b64 exec, -1')
    A(f's_add_u32 s{SN}, s{SN}, s65')
    A.label('L_dfail')
    A(f's_add_u32 s{SC}, s38, s{SC}')
    A(f's_addc_u32 s{SC + 1}, s39, s{SC + 1}')
    A(f's_andn2_b64 s[38:39], s[62:63], s[{SC}:{SC + 1}]')
    A(f's_lshr_b64 s[44:45], s[38:39], s{SOWN}')
    A(f's_lshl_b64 s[38:39], s[38:39], s{SOWNC}')
    A('s_or_b64 s[38:39], s[38:39], s[44:45]')
    A('s_cbranch_scc0 L_dend')
    A('s_ff1_i32_b64 s65, s[38:39]')
    A(f's_add_u32 s65, s65, s{SOWN}')
    A(f's_and_b32 s{SF}, s65, 56')
    A(f's_lshr_b64 s[38:39], s[{SC}:{SC + 1}], s{SF}')
    A('s_and_b32 s38, s38, 0xff')
    A(f's_cmp_lt_u32 s38, {128 - big}')
    A(f's_cselect_b32 s{SZ}, 4, {small}')
    if huge < 99:
        A(f's_cmp_lt_u32 s38, {128 - huge}')
        A(f's_cselect_b32 s{SZ}, 8, s{SZ}')
    A('s_cmp_ge_u32 s64, 128')
    A('s_cbranch_scc1 L_drty')
    A(f's_cmp_lt_u32 s{SN}, 160')
    A('s_cbranch_scc1 L_dloop')
    A.label('L_dend')
    A(f's_lshl_b32 s64, s{SN}, 2')
    A('v_add_u32 v15, s64, v23')
    A(f'v_mov_b32 v14, {KVOOB}')
    A('s_mov_b64 exec, 15')
    A(f'ds_write_b32 v15, v14 offset:{L_QT}')
    A('s_mov_b64 exec, -1')
    A(f'v_mov_b32 v14, s{SN}')
    A(f'ds_write_b32 v12, v14 offset:{L_EN}')
    A.label('L_nodisp')
    if wolate in (1, 2):
        lds_wait('L_ww0', L_TK, 's_cmp_eq_u32', 0, 14, 12, 32)
        A('s_add_u32 s65, s30, 1')
        A('s_and_b32 s65, s65, 3')
        if wolate == 2:
            A('s_mov_b32 s65, 3')
        A.label('L_ww')
        A(f'ds_read_b64 v[14:15], v12 offset:{L_TK}')
        A('s_waitcnt lgkmcnt(0)')
        A('v_readfirstlane_b32 s64, v14')
        A('v_readfirstlane_b32 s83, v15')
        A(f's_add_u32 s64, s64, {wooff}')
        A('s_cmp_eq_u32 s83, 0')
        A('s_cbranch_scc1 L_wws')
        A('s_add_u32 s83, s83, s65')
        A('s_cmp_gt_u32 s64, s83')
        A('s_cbranch_scc1 L_wwd')
        A.label('L_wws')
        A('s_sleep 1')
        A('s_branch L_ww')
        A.label('L_wwd')
        A('s_waitcnt vmcnt(0)')
        wo_loads(list(range(ne, 4)), A, 'b')
    else:
        A('s_waitcnt vmcnt(0) lgkmcnt(0)')
    A(f's_mov_b32 s80, {SPIN_MAX}')
    if reh:
        A('s_cmp_lg_u32 s30, 3')
        A('s_cbranch_scc1 L_b3')
        A('s_mov_b32 s80, 1')
        A('v_mov_b32 v29, 0')
        A('s_mov_b32 s83, s73')
        A('s_mov_b64 s[72:73], s[76:77]')
        A('s_mov_b32 s76, s50')
        A('s_mov_b32 s77, s50')
        A('s_branch L_reh')
        A.label('L_rehd')
        A(f's_mov_b32 s80, {SPIN_MAX}')
        A('v_mov_b32 v29, 1')
        A('s_mov_b64 s[76:77], s[72:73]')
        A('s_mov_b32 s73, s83')
        A('s_waitcnt vmcnt(0) lgkmcnt(0)')
        A.label('L_b3')
    A('s_barrier')
    if wolate == 3:
        wo_loads(list(range(ne, 4)), A, 'b')
    stampit(3)
    leakit(4, 0)

    P1, O, W = 200, 232, 236
    A('s_cmp_lg_u32 s30, 3')
    A('s_cbranch_scc1 L_ow')
    A.label('L_reh')
    A('s_mov_b32 s70, s80')
    def poll1(p):
        r = P1 + 8 * p
        A(f'buffer_load_dwordx4 v[{r}:{r + 3}], v20, s[48:51], s69 offen offset:{L1ML} sc1')
        A(f'buffer_load_dwordx4 v[{r + 4}:{r + 7}], v19, s[48:51], s74 offen sc1')
    assert np1 <= 4
    for p in range(np1 - 1):
        poll1(p)
        A(f's_sleep {ps1}')
    A.label('L_p1')
    for p in range(np1):
        poll1((p + np1 - 1) % np1)
        r = P1 + 8 * p
        A(f's_waitcnt vmcnt({2 * (np1 - 1)})')
        for t in range(4):
            A(f'v_xor_b32 v{O + t}, s78, v{r + 4 + t}')
        A(f'v_xor_b32 v17, s79, v{r + 1}')
        A(f'v_xor_b32 v18, s79, v{r + 3}')
        A(f'v_or3_b32 v14, v{O}, v{O + 1}, v{O + 2}')
        A(f'v_or_b32 v14, v14, v{O + 3}')
        A(f'v_mov_b32 v15, v{r}')
        A('v_and_b32 v14, 0xff, v14')
        A('v_or3_b32 v14, v14, v17, v18')
        A(f'v_mov_b32 v16, v{r + 2}')
        A('v_cmp_ne_u32 vcc, 0, v14')
        A('s_cbranch_vccz L_p1_done')
        A('s_mov_b64 exec, vcc')
    A('s_sub_u32 s70, s70, 1')
    A('s_cmp_lg_u32 s70, 0')
    A('s_cbranch_scc1 L_p1')
    A.label('L_p1_done')
    A('s_mov_b64 exec, -1')
    if stamp == 1:
        stampit(4)
    A(f'v_max_f32_dpp v17, v15, v15 quad_perm:[1,0,3,2] {DPP}')
    for m in ('quad_perm:[2,3,0,1]', 'row_half_mirror'):
        A.nop(2)
        A(f'v_max_f32_dpp v17, v17, v17 {m} {DPP}')
    A('v_sub_f32 v15, v15, v17')
    A('v_exp_f32 v15, v15')
    A.nop(1)
    A('v_mul_f32 v16, v15, v16')
    for t in range(4):
        A(f'v_mul_f32 v{O + t}, v15, v{O + t}')
    for m in ('quad_perm:[1,0,3,2]', 'quad_perm:[2,3,0,1]', 'row_half_mirror'):
        for q in (16, O, O + 1, O + 2, O + 3):
            A(f'v_add_f32_dpp v{q}, v{q}, v{q} {m} {DPP}')
    A('v_rcp_f32 v16, v16')
    A.nop(1)
    for t in range(4):
        A(f'v_mul_f32 v{O + t}, v{O + t}, v16')
    A(f'v_cvt_pk_bf16_f32 v{W}, v{O}, v{O + 1}')
    A(f'v_cvt_pk_bf16_f32 v{W + 1}, v{O + 2}, v{O + 3}')
    A(f'ds_write_b64 v22, v[{W}:{W + 1}] offset:{L_OW}')
    A(f'ds_write_b32 v12, v29 offset:{L_OF}')
    A('s_branch L_proj')
    A.label('L_ow')
    A(f'ds_read_b32 v14, v12 offset:{L_OF}')
    A(f'ds_read_b64 v[{W}:{W + 1}], v22 offset:{L_OW}')
    A('s_waitcnt lgkmcnt(0)')
    A('v_cmp_eq_u32 vcc, 0, v14')
    A('s_cbranch_vccnz L_ow')
    if stamp == 1:
        stampit(4)
    if wolate:
        A('s_waitcnt vmcnt(0)')
    A.label('L_proj')
    DX, DY, DZ = 240, 244, 248
    build_b(HB, W, 0)
    for t in range(4):
        if t < 3:
            build_b(HB + 4 * (t + 1), W + (t + 1) // 2, (t + 1) & 1)
        for bl, D in ((0, DX), (1, DY)):
            r = WO + bl * 16 + t * 4
            c = '0' if t == 0 else f'v[{D}:{D + 3}]'
            A(f'v_mfma_f32_16x16x32_bf16 v[{D}:{D + 3}], v[{r}:{r + 3}], v[{HB + 4 * t}:{HB + 4 * t + 3}], {c}')
    A(f's_cmp_lg_u32 s30, {W8}')
    A('s_cbranch_scc1 L_nob8a')
    for t in range(4):
        r = WO + 32 + t * 4
        c = '0' if t == 0 else f'v[{DZ}:{DZ + 3}]'
        A(f'v_mfma_f32_16x16x32_bf16 v[{DZ}:{DZ + 3}], v[{r}:{r + 3}], v[{HB + 4 * t}:{HB + 4 * t + 3}], {c}')
    A.label('L_nob8a')
    A.nop(6)
    for r in range(4):
        A(f'v_permlane32_swap_b32 v{DX + r}, v{DY + r}')
    A.nop(1)
    for r in range(4):
        A(f'v_add_f32_dpp v{DX + r}, v{DY + r}, v{DX + r} row_ror:8 {DPP}')
    for r in range(4):
        A(f'v_bfi_b32 v{DX + r}, s75, v28, v{DX + r}')
    A('s_mov_b32 exec_lo, 0x00ff00ff')
    A('s_mov_b32 exec_hi, 0x00ff00ff')
    A(f'buffer_store_dwordx4 v[{DX}:{DX + 3}], v21, s[48:51], s76 offen sc1')
    A('s_mov_b64 exec, -1')
    A(f's_cmp_lg_u32 s30, {W8}')
    A('s_cbranch_scc1 L_nob8b')
    for r in range(4):
        A(f'v_permlane32_swap_b32 v{DZ + r}, v{DY + r}')
    A.nop(1)
    for r in range(4):
        A(f'v_add_f32_dpp v{DZ + r}, v{DY + r}, v{DZ + r} row_ror:8 {DPP}')
    for r in range(4):
        A(f'v_bfi_b32 v{DZ + r}, s75, v28, v{DZ + r}')
    A('s_mov_b64 exec, 0x00ff00ff')
    A(f'buffer_store_dwordx4 v[{DZ}:{DZ + 3}], v21, s[48:51], s77 offen offset:2048 sc1')
    A('s_mov_b64 exec, -1')
    A.label('L_nob8b')
    if stamp == 1:
        stampit(5)
    A('s_cmp_lg_u32 s3, 2')
    A('s_cbranch_scc1 L_hend')
    P2 = 64
    assert np2 <= 2
    A('s_mov_b32 s70, s80')
    for k in range(4):
        A(f's_mov_b64 s[{60 + 2 * k}:{61 + 2 * k}], -1')
    assert np2 <= 4

    def poll2(p, masked):
        for k in range(4):
            r = P2 + 16 * p + 4 * k
            if masked and np2 == 1:
                A(f's_mov_b64 exec, s[{60 + 2 * k}:{61 + 2 * k}]')
                A(f's_cbranch_execz L_gs{k}')
            elif masked:
                A(f's_or_b64 exec, s[{60 + 2 * k}:{61 + 2 * k}], 1')
            A(f'buffer_load_dwordx4 v[{r}:{r + 3}], v31, s[48:51], s{GS[k]} offen sc1')
            if masked and np2 == 1:
                A.label(f'L_gs{k}')
    for p in range(np2 - 1):
        poll2(p, False)
        A(f's_sleep {ps2}')
    A.label('L_ga')
    for p in range(np2):
        poll2((p + np2 - 1) % np2, True)
        A(f's_waitcnt vmcnt({4 * (np2 - 1)})')
        for k in range(4):
            r = P2 + 16 * p + 4 * k
            A(f's_mov_b64 exec, s[{60 + 2 * k}:{61 + 2 * k}]')
            A(f's_cbranch_execz L_gc{p}_{k}')
            for q in range(4):
                A(f'v_xor_b32 v{G + 4 * k + q}, s78, v{r + q}')
            A(f'v_or3_b32 v17, v{G + 4 * k}, v{G + 4 * k + 1}, v{G + 4 * k + 2}')
            A(f'v_or_b32 v17, v17, v{G + 4 * k + 3}')
            A('v_and_b32 v17, 0xff, v17')
            A(f'v_cmp_ne_u32 s[{60 + 2 * k}:{61 + 2 * k}], 0, v17')
            A.label(f'L_gc{p}_{k}')
        A('s_or_b64 s[38:39], s[60:61], s[62:63]')
        A('s_or_b64 s[38:39], s[38:39], s[64:65]')
        A('s_or_b64 s[38:39], s[38:39], s[66:67]')
        A('s_cbranch_scc0 L_ga_done')
    A('s_sub_u32 s70, s70, 1')
    A('s_cmp_lg_u32 s70, 0')
    A('s_cbranch_scc1 L_ga')
    A.label('L_ga_done')
    A('s_mov_b64 exec, -1')
    if stamp == 1:
        stampit(2)
    for r in range(4):
        A(f'v_add_f32 v{G + r}, v{G + r}, v{G + 4 + r}')
        A(f'v_add_f32 v{G + 8 + r}, v{G + 8 + r}, v{G + 12 + r}')
    for r in range(4):
        A(f'v_add_f32 v{G + r}, v{G + r}, v{G + 8 + r}')
    A('s_lshl_b32 s64, s30, 8')
    A(f'v_permlane32_swap_b32 v{G}, v{G + 1}')
    A(f'v_permlane32_swap_b32 v{G + 2}, v{G + 3}')
    A(f'v_add_f32 v{G}, v{G}, v{G + 1}')
    A(f'v_add_f32 v{G + 2}, v{G + 2}, v{G + 3}')
    A('v_add_u32 v17, s64, v23')
    A.nop(1)
    A(f'v_permlane16_swap_b32 v{G}, v{G + 2}')
    A(f'v_add_f32 v{G}, v{G}, v{G + 2}')
    A.nop(2)
    A(f'v_add_f32_dpp v{G}, v{G}, v{G} row_ror:8 {DPP}')
    A(f'ds_write_b32 v17, v{G} offset:{L_P2}')
    A('s_mov_b64 exec, 1')
    A(f'ds_add_rtn_u32 v14, v12, v29 offset:{L_F2}')
    A('s_mov_b64 exec, -1')
    for w in range(4):
        A(f'ds_read_b32 v{G + 4 + w}, v23 offset:{L_P2 + 256 * w}')
    A('s_waitcnt lgkmcnt(0)')
    A('v_readfirstlane_b32 s64, v14')
    A(f'v_add_f32 v{G}, v{G + 4}, v{G + 5}')
    A(f'v_add_f32 v{G + 1}, v{G + 6}, v{G + 7}')
    A('s_cmp_lg_u32 s64, 3')
    A('s_cbranch_scc1 L_hend')
    A(f'v_add_f32 v{G}, v{G}, v{G + 1}')
    A(f'v_cvt_pk_bf16_f32 v{G}, 0, v{G}')
    A(f'v_add_f32 v{G}, v26, v{G}')
    A(f'v_cvt_pk_bf16_f32 v{G}, 0, v{G}')
    A(f'v_add_f32 v{G}, v{G}, v27')
    A(f'v_cvt_pk_bf16_f32 v{G}, v{G}, v{G}')
    A('s_mov_b32 exec_lo, 0x00ff00ff')
    A('s_mov_b32 exec_hi, 0x00ff00ff')
    A(f'buffer_store_short v{G}, v25, s[56:59], 0 offen {outpol}')
    A('s_cmp_lg_u32 s73, 0')
    A('s_cbranch_scc1 L_noep')
    A('v_mov_b32 v17, s79')
    A('s_lshl_b32 s64, s33, 2')
    A(f's_add_u32 s64, s64, {EPOCH}')
    A('s_mov_b64 exec, 1')
    A('buffer_store_dword v17, v12, s[48:51], s64 offen')
    A.label('L_noep')
    A('s_mov_b64 exec, -1')
    if stamp == 1:
        stampit(6)
    leakit(1)
    A.label('L_hend')
    if reh:
        A('s_cmp_eq_u32 s80, 1')
        A('s_cbranch_scc1 L_rehd')
    if stamp:
        for _ in range(2): A('s_sleep 127')
    stamp_store()
    A.label('L_end')
    A('s_endpgm')
    if leak:
        A.L += ['.globl post_kernel', '.p2align 8', '.type post_kernel,@function', 'post_kernel:']
        A('s_cmp_ge_u32 s2, 1')
        A('s_cbranch_scc1 L_pend')
        A('s_load_dwordx2 s[4:5], s[0:1], 96')
        A('s_memrealtime s[8:9]')
        A(f's_mov_b32 s6, {EPOCH + 64}')
        A('s_waitcnt lgkmcnt(0)')
        A('s_load_dword s7, s[4:5], s6')
        A('s_waitcnt lgkmcnt(0)')
        A(f's_sub_u32 s7, s7, {lbase}')
        A('s_min_u32 s7, s7, 5000')
        A('s_mul_i32 s7, s7, 10')
        A.label('L_pspin')
        A('s_memrealtime s[10:11]')
        A('s_waitcnt lgkmcnt(0)')
        A('s_sub_u32 s10, s10, s8')
        A('s_cmp_lt_u32 s10, s7')
        A('s_cbranch_scc1 L_pspin')
        A.label('L_pend')
        A('s_endpgm')
    A.L.append('.section .rodata,"a"')
    A.L.append('.p2align 6')
    A.L.append(f'.amdhsa_kernel {KN}_kernel')
    A('.amdhsa_next_free_vgpr 256')
    A('.amdhsa_next_free_sgpr 102')
    A('.amdhsa_accum_offset 256')
    A('.amdhsa_group_segment_fixed_size 0')
    A('.amdhsa_kernarg_size 104')
    A('.amdhsa_user_sgpr_count 2')
    A('.amdhsa_user_sgpr_kernarg_segment_ptr 1')
    A('.amdhsa_system_sgpr_workgroup_id_x 1')
    A.L.append('.end_amdhsa_kernel')
    if leak:
        A.L += ['.p2align 6', '.amdhsa_kernel post_kernel', '  .amdhsa_next_free_vgpr 16', '  .amdhsa_next_free_sgpr 32', '  .amdhsa_accum_offset 16',
                '  .amdhsa_group_segment_fixed_size 0', '  .amdhsa_kernarg_size 104', '  .amdhsa_user_sgpr_count 2', '  .amdhsa_user_sgpr_kernarg_segment_ptr 1',
                '  .amdhsa_system_sgpr_workgroup_id_x 1', '.end_amdhsa_kernel']
    return A.text()


if __name__ == '__main__':
    out = sys.argv[1] if len(sys.argv) > 1 else 'cdna_kernels/' + KN + '.s'
    kw = {}
    for a in sys.argv[2:]:
        k, v = a.split('=')
        kw[k] = int(v) if v.lstrip('-').isdigit() else v
    open(out, 'w').write(gen(**kw))
    print('wrote', out)
```

```python
import struct, sys, math

KN = 'parallel_sum__gqa_block_cached__mixer_token_mlp__decode'


def f32(x):
    return '0x%08x' % struct.unpack('<I', struct.pack('<f', x))[0]


HEADER = open('cdna_kernels/' + KN + '.s.ref').read().split('; Override launch')[0]

LOG2E = 1.4426950408889634
S1 = 1280
L1ML = 1024
S2 = 2304
L2A = 256 * S1
POOLR = L2A + 256 * S2
SP = 768
QX = POOLR + 32 * SP
EPOCH = QX + 32768
WS_SIZE = EPOCH + 256
STAMP_OFF = 8 << 20
SPIN_MAX = 200000
KVOOB = 0x800000
L_Q = 0
L_FLAG, L_TAG, L_CNT, L_HF, L_TK, L_FIN, L_BC, L_OF, L_F2, L_EN, L_GO, L_SF = 512, 516, 520, 524, 528, 548, 536, 540, 544, 532, 552, 556
L_QT = 576
L_ZEND = 1280
L_BP = 1280
L_OW = 1792
L_P2 = 2304
L_XN = 3328
L_H = 5632
L_MG = 7936
L_WQ = 14336
NK = 5
L_KR = L_WQ
L_SC = L_KR + 4 * NK * 4096
SCW = 66 * 128
L_SIZE = L_SC + 4 * SCW


DOC = """; ---------------------------------------------------------------------------------------------
; ---------------------------------------------------------------------------------------------"""


class Asm:
    def __init__(self):
        self.L = []

    def __call__(self, s):
        self.L.append('  ' + s)

    def label(self, s):
        self.L.append(s + ':')

    def nop(self, n):
        while n > 0:
            k = min(n, 16)
            self('s_nop %d' % (k - 1))
            n -= k

    def text(self):
        return '\n'.join(self.L) + '\n'


DPP = 'row_mask:0xf bank_mask:0xf'


def gen(kvpol='nt', wqpol='nt', wopol='nt', stamp=0, prog=0, nS=60, pd=3, npre=1, theta=2, big=12, small=2, first=4, huge=99,
        qsleep=20, bpol='', hpace=2, npoll=1, ps1=6, ps2=6, np1=2, np2=2, dsleep=1, warm=1, outpol='', leak=0, lbase=0,
        go=20, swz=1, lg=4, prio=1, gate=4, kspread=0, reh=0, galt=0):
    wolate = woearly = wooff = cpf = kfirst = 0
    NH = 8
    pv = pd
    ns = nS + 1
    LIM = (64 - ns - npre) * 4
    assert 0 < LIM and LIM + 4 * pd <= 56 and lg < NK and theta <= 4 * npre
    GATE = gate
    assert gate + galt <= 8
    GQ = lambda q: GATE + (galt if q & 1 else 0)
    A = Asm()
    A.L.append(HEADER.rstrip('\n'))
    if leak:
        A.L.append(f'; @launch kernel={KN}_kernel grid=(256,1,1) block=(512,1,1) lds={L_SIZE}')
        A.L.append('; @launch kernel=post_kernel grid=(1,1,1) block=(64,1,1) lds=0')
    else:
        A.L.append(f'; @launch grid=(256,1,1) block=(512,1,1) lds={L_SIZE}')
    A.L.append(DOC)
    A.L.append('.amdgcn_target "amdgcn-amd-amdhsa--gfx950"')
    A.L.append('.text')
    A.L.append(f'.globl {KN}_kernel')
    A.L.append('.p2align 8')
    A.L.append(f'.type {KN}_kernel,@function')
    A.label(f'{KN}_kernel')
    ws_size = (STAMP_OFF + 65536 + 131072) if stamp else WS_SIZE

    def stampit(k):
        if stamp:
            A(f's_memrealtime s[{84 + 2 * k}:{85 + 2 * k}]')

    def stamp_store():
        if not stamp:
            return
        A('s_waitcnt lgkmcnt(0) vmcnt(0)')
        A('s_getreg_b32 s64, hwreg(HW_REG_XCC_ID)')
        A('s_lshl_b32 s65, s2, 3')
        A('s_add_u32 s65, s65, s30')
        A('s_lshl_b32 s65, s65, 5')
        A(f's_add_u32 s65, s65, {STAMP_OFF}')
        A('s_mov_b64 exec, 1')
        A('v_mov_b32 v4, 0')
        for k in range(7):
            A(f'v_mov_b32 v5, s{84 + 2 * k}')
            A(f'buffer_store_dword v5, v4, s[48:51], s65 offen offset:{4 * k}')
        A('v_mov_b32 v5, s64')
        A(f'buffer_store_dword v5, v4, s[48:51], s65 offen offset:28')
        A('s_waitcnt vmcnt(0)')

    lk = [0]

    def leakit(k, wave=None):
        if leak != k:
            return
        lk[0] += 1
        A('s_cmp_lg_u32 s2, 2')
        A(f's_cbranch_scc1 L_lk{lk[0]}')
        if wave is not None:
            A(f's_cmp_lg_u32 s30, {wave}')
            A(f's_cbranch_scc1 L_lk{lk[0]}')
        A('s_memrealtime s[96:97]')
        A('s_waitcnt lgkmcnt(0)')
        A('s_sub_u32 s96, s96, s100')
        A('v_mov_b32 v254, s96')
        A('v_mov_b32 v31, 0')
        A(f's_mov_b32 s96, {EPOCH + 64}')
        A('s_mov_b64 exec, 1')
        A('buffer_store_dword v254, v31, s[48:51], s96 offen')
        A('s_mov_b64 exec, -1')
        A('s_waitcnt vmcnt(0)')
        A.label(f'L_lk{lk[0]}')

    SEL = 40

    def make_sel():
        A('v_and_b32 v4, 7, v2')
        A('v_lshrrev_b32 v5, 1, v4')
        A('v_and_b32 v6, 1, v4')
        A('v_mov_b32 v7, 0x0c0c0100')
        A('v_mov_b32 v8, 0x01000c0c')
        A('v_cmp_eq_u32 vcc, 1, v6')
        A('v_mov_b32 v9, 0x0c0c0302')
        A('v_mov_b32 v10, 0x03020c0c')
        A('v_cndmask_b32 v7, v7, v8, vcc')
        A('v_cndmask_b32 v9, v9, v10, vcc')
        A('v_mov_b32 v8, 0x0c0c0c0c')
        for d in range(4):
            A(f'v_cmp_eq_u32 vcc, {d}, v5')
            A.nop(2)
            A(f'v_cndmask_b32 v{SEL + d}, v8, v7, vcc')
            A(f'v_cndmask_b32 v{SEL + 4 + d}, v8, v9, vcc')

    def build_b(dst, src, odd):
        for d in range(4):
            A(f'v_perm_b32 v{dst + d}, v{src}, v{src}, v{SEL + 4 * odd + d}')

    def swapred(sw, op, v, t):
        A(f'v_mov_b32 v{t}, v{v}')
        A.nop(2)
        A(f'{sw} v{v}, v{t}')
        A(f'{op} v{v}, v{v}, v{t}')

    def allred_g(op, v, t):
        swapred('v_permlane16_swap_b32', op, v, t)
        swapred('v_permlane32_swap_b32', op, v, t)

    def allred_row(v):
        for m in ('quad_perm:[1,0,3,2]', 'quad_perm:[2,3,0,1]', 'row_half_mirror', 'row_mirror'):
            A.nop(2)
            A(f'v_add_f32_dpp v{v}, v{v}, v{v} {m} {DPP}')

    def lds_wait(lab, off, cmp, val, vt, vz, sleep):
        A.label(lab)
        A(f'ds_read_b32 v{vt}, v{vz} offset:{off}')
        A('s_waitcnt lgkmcnt(0)')
        A(f'v_readfirstlane_b32 s64, v{vt}')
        A('s_nop 0')
        A(f'{cmp} s64, {val}')
        if sleep:
            A(f's_cbranch_scc0 {lab}_ok')
            A(f's_sleep {sleep}')
            A(f's_branch {lab}')
            A.label(lab + '_ok')
        else:
            A(f's_cbranch_scc1 {lab}')

    if kfirst:
        A('s_load_dwordx16 s[4:19], s[0:1], 0')
    A('s_cmp_ge_u32 s2, 256')
    A('s_cbranch_scc1 L_end')
    if stamp:
        for k in range(7):
            A(f's_mov_b64 s[{84 + 2 * k}:{85 + 2 * k}], 0')
    stampit(0)
    if leak:
        A('s_memrealtime s[100:101]')
    if not kfirst:
        A('s_load_dwordx16 s[4:19], s[0:1], 0')
        A('s_load_dwordx8 s[20:27], s[0:1], 64')
        A('s_load_dwordx2 s[28:29], s[0:1], 96')
    A('v_lshrrev_b32 v1, 6, v0')
    A('v_and_b32 v2, 15, v0')
    A('v_readfirstlane_b32 s30, v1')
    A('v_and_b32 v1, 63, v0')
    A('v_lshrrev_b32 v3, 4, v1')
    A('s_lshr_b32 s31, s2, 3')
    A('s_and_b32 s32, s2, 7')
    A(f's_mov_b32 s50, {ws_size}')
    A('s_mov_b32 s51, 0x20000')
    A('s_cmp_lt_u32 s30, 4')
    A('s_cbranch_scc1 L_helper')

    RING, Q, BS, S, ACC, PK = 64, 48, 32, 24, 20, 16
    VV, VZ, VONE = 13, 14, 15
    M2, LS, AL, T0, T1, PUB = 4, 5, 6, 7, 8, 9
    KF, DV, RA, RT, MX, SN, SH, SCA, SCB, LIST = 32, 20, 4, 16, 8, 28, 48, 12, 11, 0
    TK1, TK2 = 28, 29
    VR = RING + 16 * NH
    SV, SK, SCNT, SKI, SKP, SKB, SKE, STAG, SO, SPR, SLN, SIX, SREM = 38, 39, 52, 53, 54, 55, 57, 56, 58, 59, 62, 63, 69
    A('s_sub_u32 s37, s30, 4')
    if prio:
        A('s_setprio 1')
    A('s_lshl_b32 s64, s31, 23')
    A(f's_lshl_b32 s{SV}, s32, 20')
    A('s_lshl_b32 s65, s37, 12')
    A(f's_add_u32 s{SV}, s{SV}, s65')
    A(f's_mov_b32 s{SK}, s{SV}')
    A(f's_mov_b32 s42, {KVOOB}')
    A('s_mov_b32 s43, 0x20000')
    A(f's_mov_b32 s46, {KVOOB}')
    A('s_mov_b32 s47, 0x20000')
    A(f'v_lshlrev_b32 v{VV}, 4, v1')
    A('s_sub_u32 s65, s32, s31')
    A(f's_and_b32 s{SPR}, s65, 3')
    A('s_waitcnt lgkmcnt(0)')
    A('s_add_u32 s44, s8, s64')
    A('s_addc_u32 s45, s9, 0')
    A('s_add_u32 s40, s6, s64')
    A('s_addc_u32 s41, s7, 0')
    A('s_mov_b32 s48, s28')
    A('s_mov_b32 s49, s29')
    A(f's_cmp_eq_u32 s{SPR}, 0')
    A('s_cbranch_scc0 L_nobx0')
    A('s_barrier')
    A.label('L_nobx0')

    def vload(reg, q, so, gated=True):
        if gated:
            A(f's_waitcnt vmcnt({GQ(q)})')
        A(f'buffer_load_dwordx4 v[{reg + 4 * q}:{reg + 4 * q + 3}], v{VV}, s[44:47], s{so} offen offset:{q * 1024} {kvpol}')

    def khalf(half):
        if half == 0:
            A(f's_mov_b32 m0, s{SKI}')
            A(f's_add_u32 s{SKI}, s{SKI}, 0x1000')
        for q in (2 * half, 2 * half + 1):
            A(f's_waitcnt vmcnt({GQ(q)})')
            A(f'buffer_load_dwordx4 v{DV + q}, s[40:43], s{SK} offen offset:{q * 1024} {kvpol} lds')
        if half:
            A(f's_add_u32 s{SK}, s{SK}, 0x4000')
            A(f's_cmp_eq_u32 s{SKI}, s{SKE}')
            A(f's_cselect_b32 s{SKI}, s{SKB}, s{SKI}')

    for n in range(4 * NH):
        if n == 4 * (NH - pv):
            A(f's_cmp_eq_u32 s{SPR}, 0')
            A('s_cbranch_scc1 L_v0e')
        vload(RING + 16 * (n // 4), n & 3, SV, n > GATE)
        if n & 3 == 3:
            A(f's_add_u32 s{SV}, s{SV}, 0x4000')
        if n == GATE:
            A(f's_cmp_eq_u32 s{SPR}, 0')
            A('s_cbranch_scc1 L_nobx')
            A('s_barrier')
            A.label('L_nobx')
            A(f'v_mov_b32 v{VZ}, 0')
            A(f'v_mov_b32 v{VONE}, 1')
            A(f'v_lshlrev_b32 v{RT}, 2, v3')
            A(f'v_xor_b32 v{RT}, v{RT}, v2')
            A(f'v_lshlrev_b32 v{RT}, 4, v{RT}')
            A(f'v_lshl_add_u32 v{DV}, v3, 8, v{RT}')
            for q in range(1, 4):
                A(f'v_xor_b32 v{DV + q}, {16 * q}, v{DV}')
            A(f'v_and_b32 v{RT}, 3, v2')
            A(f'v_lshlrev_b32 v{RT}, 10, v{RT}')
            A(f'v_lshrrev_b32 v{RT + 1}, 2, v2')
            A(f'v_lshl_add_u32 v{RT}, v{RT + 1}, 8, v{RT}')
            A(f'v_xor_b32 v{RT + 1}, v3, v2')
            A(f'v_lshl_add_u32 v{RA}, v{RT + 1}, 4, v{RT}')
            for q in range(1, 4):
                A(f'v_xor_b32 v{RA + q}, {64 * q}, v{RA}')
            A(f's_mul_i32 s{SKB}, s37, {NK * 4096}')
            A(f's_add_u32 s{SKB}, s{SKB}, {L_KR}')
            A(f's_add_u32 s{SKE}, s{SKB}, {NK * 4096}')
            A(f's_mov_b32 s{SKI}, s{SKB}')
            A(f's_mov_b32 s{SKP}, s{SKB}')
            A(f'v_lshrrev_b32 v{RT}, 3, v2')
            A(f'v_lshl_add_u32 v{RT + 1}, v{RT}, 2, v3')
            A(f's_mul_i32 s64, s37, {SCW}')
            A(f's_add_u32 s64, s64, {L_SC}')
            A(f'v_lshl_add_u32 v{SCA}, v{RT + 1}, 4, s64')
            A(f'v_add_u32 v{SCB}, 128, v{SCA}')
            A(f'v_lshlrev_b32 v{RT}, 8, v{RT}')
            A(f'v_lshl_add_u32 v{PUB}, v3, 4, v{RT}')
            A(f'v_mov_b32 v{MX}, {f32(-3.0e38)}')
            for r in range(4):
                A(f'v_mov_b32 v{S + r}, v{MX}')
            A(f's_mov_b32 s66, {f32(128 ** -0.5)}')
            A(f's_mov_b32 s67, {f32(LOG2E)}')
            A('s_mov_b32 s60, 0x01010101')
            A('s_mov_b32 s61, 0x01010101')
            A(f's_cmp_eq_u32 s{SPR}, 0')
            A(f's_cselect_b32 s{SCNT}, {nS - pd - lg}, {nS - lg}')
            A('s_mov_b32 s71, 0')
    A.label('L_v0e')
    stampit(1)
    A(f's_cmp_lg_u32 s{SPR}, 0')
    A('s_cbranch_scc1 L_sf_ok')
    lds_wait('L_sf', L_SF, 's_cmp_lt_u32', 4, RT, VZ, 0)
    A.label('L_sf_ok')
    assert go >= 2 * NH
    for n in range(2 * lg):
        if 2 * NH + n == go:
            A(f'ds_write_b32 v{VZ}, v{VONE} offset:{L_GO}')
        khalf(n & 1)
    A.label('L_qw')
    A(f'ds_read_b64 v[{RT}:{RT + 1}], v{VZ} offset:{L_FLAG}')
    for q in range(4):
        A(f'ds_read_b128 v[{Q + 4 * q}:{Q + 4 * q + 3}], v{PUB} offset:{L_Q + 64 * q}')
    A('s_waitcnt lgkmcnt(0)')
    A(f'v_readfirstlane_b32 s64, v{RT}')
    A(f'v_readfirstlane_b32 s{STAG}, v{RT + 1}')
    A('s_cmp_eq_u32 s64, 0')
    A('s_cbranch_scc1 L_qw')
    stampit(2)

    def kfinish():
        A(f'v_max3_f32 v{MX}, v{MX}, v{S}, v{S + 1}')
        A(f'v_max3_f32 v{MX}, v{MX}, v{S + 2}, v{S + 3}')
        A('s_mov_b64 exec, s[60:61]')
        A(f'ds_write_b128 v{SCA}, v[{S}:{S + 3}]')
        A('s_mov_b64 exec, -1')
        A(f'v_add_u32 v{SCA}, 128, v{SCA}')

    def kreads():
        for q in range(4):
            A(f'v_add_u32 v{RT + q}, s{SKP}, v{RA + q}')
        for q in range(4):
            A(f'ds_read_b128 v[{KF + 4 * q}:{KF + 4 * q + 3}], v{RT + q}')
        A(f's_add_u32 s{SKP}, s{SKP}, 0x1000')
        A(f's_cmp_eq_u32 s{SKP}, s{SKE}')
        A(f's_cselect_b32 s{SKP}, s{SKB}, s{SKP}')

    def kmfma():
        for q in range(4):
            if stamp and q == 0:
                A('s_waitcnt lgkmcnt(0)')
            A(f's_waitcnt lgkmcnt({3 - q})')
            c = '0' if q == 0 else f'v[{S}:{S + 3}]'
            A(f'v_mfma_f32_16x16x32_bf16 v[{S}:{S + 3}], v[{KF + 4 * q}:{KF + 4 * q + 3}], v[{Q + 4 * q}:{Q + 4 * q + 3}], {c}')

    def progstamp(shift):
        if prog == 1:
            A('s_memrealtime s[98:99]')
            A(f's_lshr_b32 m0, s71, {shift}')
            A('s_add_u32 s71, s71, 1')
            A('s_waitcnt lgkmcnt(0)')
            A('v_writelane_b32 v10, s98, m0')

    A.label('L_kloop')
    if prog == 1:
        A('s_min_u32 s71, s71, 63')
    progstamp(2)
    if kspread:
        def kl1(q):
            A(f's_waitcnt vmcnt({GQ(q)})')
            A(f'buffer_load_dwordx4 v{DV + q}, s[40:43], s{SK} offen offset:{q * 1024} {kvpol} lds')
        A(f's_mov_b32 m0, s{SKI}')
        A(f's_add_u32 s{SKI}, s{SKI}, 0x1000')
        kl1(0)
        kfinish()
        kl1(1)
        kreads()
        kl1(2)
        kmfma()
        kl1(3)
        A(f's_add_u32 s{SK}, s{SK}, 0x4000')
        A(f's_cmp_eq_u32 s{SKI}, s{SKE}')
        A(f's_cselect_b32 s{SKI}, s{SKB}, s{SKI}')
    else:
        khalf(0)
        kfinish()
        kreads()
        khalf(1)
        kmfma()
    A(f's_sub_u32 s{SCNT}, s{SCNT}, 1')
    A(f's_cmp_lg_u32 s{SCNT}, 0')
    A('s_cbranch_scc1 L_kloop')
    outst = []
    for t in range(lg):
        outst += [('K', t)] * 4

    def younger(tag):
        last = max(i for i, t in enumerate(outst) if t == tag)
        return len(outst) - 1 - last

    vq = [(u, q) for u in range(3) for q in range(4)]

    def vstart(n):
        for _ in range(n):
            u, q = vq.pop(0)
            vload(VR + 16 * u, q, SV)
            if q == 3:
                A(f's_add_u32 s{SV}, s{SV}, 0x4000')
            outst.append(('V', u))

    for t in range(lg):
        vstart(2)
        A(f's_waitcnt vmcnt({younger(("K", t))})')
        A.nop(3)
        kfinish()
        kreads()
        kmfma()
    vstart(2)
    A.nop(4)
    kfinish()
    stampit(5)
    A(f's_cmp_eq_u32 s{SPR}, 0')
    A(f's_cselect_b32 s64, {NH - pv}, {NH}')
    nb = nS - NH - 3 - NH
    assert nb % 4 == 1
    A(f's_mov_b32 s{SCNT}, {(nb + 3) // 4}')
    A('s_lshl_b32 s64, s64, 7')
    A(f'v_add_u32 v{SCA}, s64, v{SCB}')
    A(f'ds_read_b128 v[{SN}:{SN + 3}], v{SCA}')
    A(f'ds_read_b128 v[{SH}:{SH + 3}], v{SCB}')
    allred_g('v_max_f32', MX, T0)
    A(f'v_cvt_pk_bf16_f32 v{RT}, 0, v{MX}')
    A(f'v_mul_f32 v{RT}, s66, v{RT}')
    A(f'v_cvt_pk_bf16_f32 v{RT}, 0, v{RT}')
    A(f'v_mul_f32 v{RT}, s67, v{RT}')
    vstart(1)
    if prog:
        A(f'v_mov_b32 v{RT + 1}, v10')
    make_sel()
    if prog:
        A(f'v_mov_b32 v10, v{RT + 1}')
        A('s_mov_b32 s71, 16')
    A(f'v_mov_b32 v{M2}, v{RT}')
    for r in range(4):
        A(f'v_mov_b32 v{ACC + r}, 0')
    A(f'v_mov_b32 v{LS}, 0')
    vstart(len(vq))

    def vbody(reg, src, nxt, hooks=(None, None, None, None), waits=None):
        if hooks[0]:
            hooks[0]()
        A('s_waitcnt lgkmcnt(0)')
        for n in range(4):
            A(f'v_cvt_pk_bf16_f32 v{S + n}, 0, v{src + n}')
        if nxt:
            A(f'ds_read_b128 v[{src}:{src + 3}], v{nxt[0]} offset:{nxt[1]}')
        for n in range(4):
            A(f'v_mul_f32 v{S + n}, s66, v{S + n}')
        for n in range(4):
            A(f'v_cvt_pk_bf16_f32 v{S + n}, 0, v{S + n}')
        for n in range(4):
            A(f'v_fma_f32 v{S + n}, v{S + n}, s67, -v{M2}')
        for n in range(4):
            A(f'v_exp_f32 v{S + n}, v{S + n}')
        if hooks[1]:
            hooks[1]()
        A(f'v_cvt_pk_bf16_f32 v{PK}, v{S}, v{S + 1}')
        A(f'v_cvt_pk_bf16_f32 v{PK + 1}, v{S + 2}, v{S + 3}')
        build_b(BS, PK, 0)
        build_b(BS + 4, PK, 1)
        A(f'v_add_f32 v{T0}, v{S}, v{S + 1}')
        A(f'v_add_f32 v{T1}, v{S + 2}, v{S + 3}')
        if hooks[2]:
            hooks[2]()
        for n in range(4):
            v = reg + n * 4
            b = BS + 4 * (n & 1)
            if waits:
                A(f's_waitcnt vmcnt({waits[n]})')
            A(f'v_mfma_f32_16x16x32_bf16 v[{ACC}:{ACC + 3}], v[{v}:{v + 3}], v[{b}:{b + 3}], v[{ACC}:{ACC + 3}]')
            if n < 2:
                build_b(b, PK + 1, n & 1)
            elif n == 2:
                A(f'v_add_f32 v{LS}, v{LS}, v{T0}')
                A(f'v_add_f32 v{LS}, v{LS}, v{T1}')
        if hooks[3]:
            hooks[3]()

    for u in range(NH):
        dst = VR + 16 * ((u + 3) % 4)
        ld = lambda q: (lambda: vload(dst, q, SV))
        vbody(VR + 16 * (u % 4), SN, (SCA, (u + 1) * 128), (ld(0), None, ld(1), None))
        if u >= NH - pv:
            A(f's_cmp_eq_u32 s{SPR}, 0')
            A(f's_cbranch_scc0 L_hb{u}')
            vload(dst, 2, SV)
            vload(dst, 3, SV)
            A(f's_branch L_he{u}')
            A.label(f'L_hb{u}')
        vbody(RING + 16 * u, SH, (SCB, (u + 1) * 128) if u + 1 < NH else None, (ld(2), None, ld(3), None))
        A.label(f'L_he{u}')
        A(f's_add_u32 s{SV}, s{SV}, 0x4000')
    A(f'v_add_u32 v{SCA}, {NH * 128}, v{SCA}')
    A(f'v_lshrrev_b32 v{T0}, 3, v2')
    A(f'v_lshl_add_u32 v{T0}, v{T0}, 2, v3')
    A(f'v_lshlrev_b32 v{T0}, 7, v{T0}')
    A(f'v_and_b32 v{T1}, 7, v2')
    A(f'v_lshl_add_u32 v{PUB}, v{T1}, 4, v{T0}')
    VKT = LIST
    A(f'v_and_b32 v{AL}, 3, v2')
    A(f'v_lshlrev_b32 v{AL}, 10, v{AL}')
    A(f'v_lshrrev_b32 v{VKT}, 2, v2')
    A(f'v_lshl_add_u32 v{AL}, v{VKT}, 8, v{AL}')
    A(f'v_lshl_add_u32 v{VKT}, v3, 4, v{AL}')
    A(f'v_lshrrev_b32 v{AL}, 3, v2')
    A(f'v_lshlrev_b32 v{AL}, 8, v{AL}')
    A(f'v_lshl_add_u32 v{AL}, v3, 4, v{AL}')
    A(f'ds_read_b128 v[{Q}:{Q + 3}], v{AL} offset:{L_Q}')
    A('v_lshlrev_b32 v3, 1, v2')
    A(f's_mul_i32 s68, s2, {S1}')
    A('v_lshlrev_b32 v11, 3, v1')
    A('s_lshl_b32 s64, s37, 9')
    A('v_add_u32 v18, s64, v11')
    A('s_lshl_b32 s64, s37, 10')
    A(f'v_add_u32 v19, s64, v{VV}')

    A.label('L_vt0')
    progstamp(0)
    for u in range(4):
        dst = VR + 16 * ((u + 3) % 4)
        ld = lambda q: (lambda: vload(dst, q, SV))
        vbody(VR + 16 * u, SN, (SCA, 128 * (u + 1)), (ld(0), ld(1), ld(2), ld(3)))
        A(f's_add_u32 s{SV}, s{SV}, 0x4000')
        if u == 0:
            A(f's_sub_u32 s{SCNT}, s{SCNT}, 1')
            A(f's_cmp_eq_u32 s{SCNT}, 0')
            A('s_cbranch_scc1 L_vsw')
    A(f'v_add_u32 v{SCA}, 512, v{SCA}')
    A('s_branch L_vt0')

    def kloads(slot, so, qs=range(4), gated=False):
        for q in qs:
            r = RING + slot * 32 + q * 4
            if gated:
                A(f's_waitcnt vmcnt({GATE})')
            A(f'buffer_load_dwordx4 v[{r}:{r + 3}], v{VKT}, s[40:43], s{so} offen offset:{q * 64} {kvpol}')

    def vloads(slot, so):
        for q in range(4):
            vload(RING + slot * 32 + 16, q, so, False)

    A.label('L_vsw')
    SNX = SO
    kl = lambda qs: (lambda: kloads(0, SV, qs, True))
    vl = lambda q: (lambda: vload(RING + 16, q, SV))
    vbody(VR + 16, SN, (SCA, 256), (kl((0,)), None, kl((1,)), None), (13, 12, 11, 10))
    vbody(VR + 32, SN, (SCA, 384), (kl((2,)), None, kl((3,)), None), (11, 10, 9, 8))
    vbody(VR + 48, SN, None, (vl(0), vl(1), vl(2), vl(3)), (10, 9, 8, 7))
    stampit(6)
    A('s_mov_b64 exec, 1')
    A(f'ds_add_rtn_u32 v{TK1}, v{VZ}, v{VONE} offset:{L_TK}')
    A('s_mov_b64 exec, -1')

    def qk(slot, wk):
        A(f's_waitcnt vmcnt({wk})')
        for q in range(4):
            k = RING + slot * 32 + q * 4
            c = '0' if q == 0 else f'v[{S}:{S + 3}]'
            A(f'v_mfma_f32_16x16x32_bf16 v[{S}:{S + 3}], v[{k}:{k + 3}], v[{Q + 4 * q}:{Q + 4 * q + 3}], {c}')

    def softmax_pv(slot, prepv):
        for n in range(4):
            A(f'v_cvt_pk_bf16_f32 v{S + n}, 0, v{S + n}')
        for n in range(4):
            A(f'v_mul_f32 v{S + n}, s66, v{S + n}')
        for n in range(4):
            A(f'v_cvt_pk_bf16_f32 v{S + n}, 0, v{S + n}')
        A(f'v_max3_f32 v{T0}, v{S}, v{S + 1}, v{S + 2}')
        A(f'v_max_f32 v{T0}, v{T0}, v{S + 3}')
        allred_g('v_max_f32', T0, T1)
        A(f'v_mul_f32 v{T0}, s67, v{T0}')
        A(f'v_max_f32 v{T0}, v{T0}, v{M2}')
        A(f'v_sub_f32 v{AL}, v{M2}, v{T0}')
        A(f'v_mov_b32 v{M2}, v{T0}')
        A(f'v_exp_f32 v{AL}, v{AL}')
        for n in range(4):
            A(f'v_fma_f32 v{S + n}, v{S + n}, s67, -v{M2}')
        for n in range(4):
            A(f'v_exp_f32 v{S + n}, v{S + n}')
        for r in range(4):
            A(f'v_mul_f32 v{ACC + r}, v{AL}, v{ACC + r}')
        A(f'v_cvt_pk_bf16_f32 v{PK}, v{S}, v{S + 1}')
        A(f'v_cvt_pk_bf16_f32 v{PK + 1}, v{S + 2}, v{S + 3}')
        build_b(BS, PK, 0)
        A(f'v_fma_f32 v{LS}, v{LS}, v{AL}, v{S}')
        A(f'v_add_f32 v{T0}, v{S + 1}, v{S + 2}')
        for n in range(4):
            if n + 1 < 4:
                build_b(BS + 4 * ((n + 1) & 1), PK + (n + 1) // 2, (n + 1) & 1)
            else:
                A(f'v_add_f32 v{LS}, v{LS}, v{S + 3}')
                A(f'v_add_f32 v{LS}, v{LS}, v{T0}')
            if n == 0:
                prepv()
            v = RING + slot * 32 + 16 + n * 4
            b = BS + 4 * (n & 1)
            A(f'v_mfma_f32_16x16x32_bf16 v[{ACC}:{ACC + 3}], v[{v}:{v + 3}], v[{b}:{b + 3}], v[{ACC}:{ACC + 3}]')

    A.label('L_sloop')
    for k in (0, 1):
        A('s_mov_b64 exec, 1')
        A('s_waitcnt lgkmcnt(0)')
        A(f'v_lshlrev_b32 v{TK1}, 2, v{TK1}')
        A.label(f'L_qt{k}')
        A(f'ds_read_b32 v{TK2}, v{TK1} offset:{L_QT}')
        A('s_waitcnt lgkmcnt(0)')
        A(f'v_readfirstlane_b32 s64, v{TK2}')
        A('s_nop 0')
        A('s_cmp_eq_u32 s64, 0')
        A(f's_cbranch_scc1 L_qt{k}')
        A('s_mov_b64 exec, -1')
        A(f's_mov_b32 s{SNX}, s64')
        A('s_waitcnt vmcnt(4)')
        kloads(1 - k, SNX)
        qk(k, 8)
        A.nop(8)

        def prepv():
            A(f's_cmp_eq_u32 s{SNX}, {KVOOB}')
            A('s_waitcnt vmcnt(4)')
            A(f's_cbranch_scc1 L_pv{k}')
            vloads(1 - k, SNX)
            A('s_mov_b64 exec, 1')
            A(f'ds_add_rtn_u32 v{TK1}, v{VZ}, v{VONE} offset:{L_TK}')
            A('s_mov_b64 exec, -1')
            A.label(f'L_pv{k}')
        softmax_pv(k, prepv)
        A(f's_cmp_eq_u32 s{SNX}, {KVOOB}')
        if k == 0:
            A('s_cbranch_scc1 L_sdone')
        else:
            A('s_cbranch_scc0 L_sloop')

    A.label('L_sdone')
    stampit(3)
    allred_g('v_add_f32', LS, T1)
    A(f'ds_write_b64 v18, v[{M2}:{M2 + 1}] offset:{L_MG + 4096}')
    A(f'ds_write_b128 v19, v[{ACC}:{ACC + 3}] offset:{L_MG}')
    A('s_mov_b64 exec, 1')
    A(f'ds_add_rtn_u32 v{T1}, v{VZ}, v{VONE} offset:{L_FIN}')
    A('s_mov_b64 exec, -1')
    for w in range(4):
        A(f'ds_read_b64 v[{BS + 2 * w}:{BS + 2 * w + 1}], v11 offset:{L_MG + 4096 + 512 * w}')
    for w in range(4):
        A(f'ds_read_b128 v[{Q + 4 * w}:{Q + 4 * w + 3}], v{VV} offset:{L_MG + 1024 * w}')
    A(f's_and_b32 s64, s{STAG}, 0xff')
    A('s_movk_i32 s65, 0xff')
    A(f'v_mov_b32 v{PK}, s64')
    A(f'v_mov_b32 v{T0}, s{STAG}')
    A('s_waitcnt lgkmcnt(4)' if not stamp else 's_waitcnt lgkmcnt(0)')
    A(f'v_readfirstlane_b32 s64, v{T1}')
    A(f'v_max_f32 v{M2}, v{BS}, v{BS + 2}')
    A('s_cmp_lg_u32 s64, 3')
    A('s_cbranch_scc1 L_send')
    A(f'v_max3_f32 v{M2}, v{M2}, v{BS + 4}, v{BS + 6}')
    for w in range(4):
        A(f'v_sub_f32 v{S + w}, v{BS + 2 * w}, v{M2}')
    for w in range(4):
        A(f'v_exp_f32 v{S + w}, v{S + w}')
    A(f'v_mov_b32 v{LS}, s{STAG}')
    A(f'v_mul_f32 v{AL}, v{S}, v{BS + 1}')
    for w in range(1, 4):
        A(f'v_fmac_f32 v{AL}, v{S + w}, v{BS + 2 * w + 1}')
    A('s_mov_b64 exec, 0x0101')
    A(f'buffer_store_dwordx4 v[{M2}:{M2 + 3}], v3, s[48:51], s68 offen offset:{L1ML} sc1')
    A('s_mov_b64 exec, -1')
    A('s_waitcnt lgkmcnt(0)')
    for r in range(4):
        A(f'v_mul_f32 v{ACC + r}, v{S}, v{Q + r}')
    for w in range(1, 4):
        for r in range(4):
            A(f'v_fmac_f32 v{ACC + r}, v{S + w}, v{Q + 4 * w + r}')
    for r in range(4):
        A(f'v_bfi_b32 v{ACC + r}, s65, v{PK}, v{ACC + r}')
    A(f'buffer_store_dwordx4 v[{ACC}:{ACC + 3}], v{PUB}, s[48:51], s68 offen sc1')
    stampit(4)
    if stamp:
        A.label('L_send')
        A('s_barrier')
        for _ in range(2): A('s_sleep 127')
    else:
        A('s_barrier')
        A.label('L_send')
    if prog:
        A('s_mov_b32 m0, 31')
        A('s_nop 0')
        A('v_writelane_b32 v10, s71, m0')
        A('s_lshl_b32 s65, s2, 2')
        A('s_add_u32 s65, s65, s37')
        A('s_lshl_b32 s65, s65, 7')
        A(f's_add_u32 s65, s65, {STAMP_OFF + 65536}')
        A('v_lshlrev_b32 v11, 2, v1')
        A('s_mov_b32 exec_hi, 0')
        A('buffer_store_dword v10, v11, s[48:51], s65 offen')
        A('s_mov_b64 exec, -1')
    stamp_store()
    A('s_endpgm')

    A.label('L_helper')
    if kfirst:
        A('s_load_dwordx8 s[20:27], s[0:1], 64')
        A('s_load_dwordx2 s[28:29], s[0:1], 96')
    A('s_setprio 2')
    HB = 48
    X, E = 64, 80
    A('v_lshlrev_b32 v11, 4, v1')
    A('v_mov_b32 v12, 0')
    A('v_lshlrev_b32 v23, 2, v1')
    for z in range(L_FLAG, L_ZEND, 256):
        A(f'ds_write_b32 v23, v12 offset:{z}')
    A('s_lshr_b32 s33, s31, 4')
    A('s_and_b32 s34, s31, 15')
    A('s_and_b32 s35, s2, 127')
    A('s_sub_u32 s64, s32, s31')
    A('s_and_b32 s64, s64, 7')
    A('s_lshr_b32 s65, s64, 2')
    A('s_lshl_b32 s72, s31, 1')
    A('s_add_u32 s72, s72, s65')
    A('s_lshl_b32 s73, s65, 4')
    A('s_add_u32 s73, s73, s34')
    A('s_and_b32 s64, s64, 3')
    A('s_cmp_lt_u32 s73, 18')
    A('s_cselect_b32 s3, 2, 0')
    A('s_cmp_eq_u32 s64, 2')
    A('s_cselect_b32 s3, s3, 0')
    A('s_cmp_eq_u32 s64, 0')
    A('s_cselect_b32 s3, 1, s3')
    A('v_mul_u32_u24 v13, 36, v1')
    A('s_mov_b32 s42, 2304')
    A('s_mov_b32 s43, 0x20000')
    A(f's_mov_b32 s46, {576 * 8192}')
    A('s_mov_b32 s47, 0x20000')
    A('v_lshrrev_b32 v14, 3, v1')
    A('v_lshlrev_b32 v14, 13, v14')
    A('v_and_b32 v15, 7, v1')
    if swz:
        A('v_lshrrev_b32 v16, 3, v1')
        A('v_and_b32 v16, 2, v16')
        A('v_xor_b32 v15, v15, v16')
    A('v_lshl_add_u32 v14, v15, 4, v14')
    A('v_xor_b32 v31, 64, v14')
    A(f's_mul_i32 s38, s30, {144 * 8192}')
    A('s_lshl_b32 s64, s72, 7')
    A('s_add_u32 s38, s38, s64')
    A(f's_mul_i32 s37, s30, {144 * 128}')
    A(f's_add_u32 s37, s37, {L_WQ}')
    A('s_lshl_b32 s64, s30, 2')
    A('s_add_u32 s64, s64, s3')
    A('s_cmp_eq_u32 s64, 2')
    A('s_cselect_b32 s70, 1, 0')
    A('s_cmp_eq_u32 s3, 1')
    A('s_cselect_b32 s70, 1, s70')
    A('s_waitcnt lgkmcnt(0)')
    A('s_mov_b32 s48, s28')
    A('s_mov_b32 s49, s29')
    A('s_mov_b32 s40, s4')
    A('s_mov_b32 s41, s5')
    A('s_mov_b32 s44, s10')
    A('s_mov_b32 s45, s11')
    A(f's_mov_b32 s64, {EPOCH}')
    A('s_load_dwordx2 s[78:79], s[28:29], s64')
    A('s_cmp_eq_u32 s70, 0')
    A('s_cbranch_scc1 L_h_x')
    A(f'buffer_load_dwordx4 v[{X}:{X + 3}], v13, s[40:43], 0 offen')
    A(f'buffer_load_dwordx4 v[{X + 4}:{X + 7}], v13, s[40:43], 0 offen offset:16')
    A(f'buffer_load_dword v{X + 8}, v13, s[40:43], 0 offen offset:32')
    A('s_cmp_lg_u32 s3, 1')
    A('s_cbranch_scc1 L_h_x')
    for n in range(18):
        A('s_mov_b32 m0, s37')
        A('s_add_u32 s37, s37, 1024')
        A(f'buffer_load_dwordx4 v{31 if (swz and n & 1) else 14}, s[44:47], s38 offen {wqpol} lds')
        A('s_add_u32 s38, s38, 0x10000')
    A.label('L_h_x')
    A('s_barrier')
    if cpf:
        A('s_cmp_lg_u32 s30, 3')
        A('s_cbranch_scc1 L_nocpf')
        A(f's_cmp_ge_u32 s31, {cpf}')
        A('s_cbranch_scc1 L_nocpf')
        A('s_cmp_eq_u32 s3, 1')
        A('s_cbranch_scc1 L_nocpf')
        A('s_getpc_b64 s[64:65]')
        A.label('L_pcref')
        A(f's_sub_u32 s64, s64, L_pcref-{KN}_kernel')
        A('s_subb_u32 s65, s65, 0')
        A('v_lshlrev_b32 v32, 7, v1')
        A(f'v_min_u32 v33, L_end-{KN}_kernel, v32')
        A('global_load_dword v36, v33, s[64:65]')
        for n in range(1, 3):
            A(f'v_add_u32 v32, 0x2000, v32')
            A(f'v_min_u32 v{33 + n}, L_end-{KN}_kernel, v32')
            A(f'global_load_dword v{36 + n}, v{33 + n}, s[64:65]')
        A.label('L_nocpf')
    A('s_cmp_eq_u32 s70, 0')
    A('s_cbranch_scc1 L_h_noln')

    def layernorm(src, dst):
        D = E + 18
        a, b, c = E + 36, E + 37, E + 38
        for k in range(9):
            A(f'v_lshlrev_b32 v{E + 2 * k}, 16, v{src + k}')
            A(f'v_and_b32 v{E + 2 * k + 1}, 0xffff0000, v{src + k}')
        A(f'v_add_f32 v{a}, v{E}, v{E + 1}')
        A(f'v_add_f32 v{b}, v{E + 2}, v{E + 3}')
        for n in range(4, 18, 2):
            A(f'v_add_f32 v{a}, v{a}, v{E + n}')
            A(f'v_add_f32 v{b}, v{b}, v{E + n + 1}')
        A(f'v_add_f32 v{a}, v{a}, v{b}')
        allred_row(a)
        swapred('v_permlane16_swap_b32', 'v_add_f32', a, b)
        A(f'v_mul_f32 v{a}, {f32(1.0 / 576)}, v{a}')
        for n in range(18):
            A(f'v_sub_f32 v{D + n}, v{E + n}, v{a}')
        A(f'v_mul_f32 v{b}, v{D}, v{D}')
        A(f'v_mul_f32 v{c}, v{D + 1}, v{D + 1}')
        for n in range(2, 18, 2):
            A(f'v_fmac_f32 v{b}, v{D + n}, v{D + n}')
            A(f'v_fmac_f32 v{c}, v{D + n + 1}, v{D + n + 1}')
        A(f'v_add_f32 v{b}, v{b}, v{c}')
        A(f'v_cvt_pk_bf16_f32 v{a}, 0, v{a}')
        allred_row(b)
        swapred('v_permlane16_swap_b32', 'v_add_f32', b, c)
        A(f'v_mul_f32 v{b}, {f32(1.0 / 576)}, v{b}')
        A(f'v_cvt_pk_bf16_f32 v{b}, 0, v{b}')
        A(f'v_add_f32 v{b}, {f32(1e-5)}, v{b}')
        A(f'v_cvt_pk_bf16_f32 v{b}, 0, v{b}')
        A(f'v_sqrt_f32 v{b}, v{b}')
        A(f'v_sub_f32 v{D}, v{E}, v{a}')
        A(f'v_cvt_pk_bf16_f32 v{b}, 0, v{b}')
        A(f'v_rcp_f32 v{b}, v{b}')
        for n in range(1, 18):
            A(f'v_sub_f32 v{D + n}, v{E + n}, v{a}')
        for n in range(18):
            A(f'v_cvt_pk_bf16_f32 v{D + n}, 0, v{D + n}')
        for n in range(18):
            A(f'v_mul_f32 v{D + n}, v{D + n}, v{b}')
        for k in range(9):
            A(f'v_cvt_pk_bf16_f32 v{dst + k}, v{D + 2 * k}, v{D + 2 * k + 1}')

    A('v_and_b32 v15, 1, v2')
    A('v_mul_u32_u24 v15, 1152, v15')
    A('v_lshl_add_u32 v15, v3, 4, v15')
    A('v_lshrrev_b32 v16, 2, v2')
    A('v_lshl_add_u32 v16, v3, 3, v16')
    A('v_lshlrev_b32 v16, 7, v16')
    A('v_and_b32 v17, 3, v1')
    A('v_lshl_add_u32 v16, v17, 3, v16')
    A('s_lshl_b32 s64, s30, 5')
    A('v_add_u32 v16, s64, v16')
    if swz:
        A('v_lshlrev_b32 v17, 2, v1')
        A('v_and_b32 v17, 0x60, v17')
        A('v_xor_b32 v16, v16, v17')
    A('v_add_u32 v20, 0x8000, v16')
    A('v_lshlrev_b32 v17, 2, v2')
    A('v_lshl_add_u32 v17, v3, 14, v17')
    A('s_lshl_b32 s39, s72, 8')
    A('s_lshl_b32 s64, s30, 6')
    A('s_add_u32 s39, s39, s64')
    A(f's_add_u32 s39, s39, {QX}')
    A('s_cmp_eq_u32 s3, 1')
    A('s_cbranch_scc1 L_h_wx')
    A('s_waitcnt vmcnt(0)')
    A.label('L_h_wx')
    A('s_waitcnt vmcnt(18)')
    if stamp == 2: stampit(4)
    layernorm(X, X)
    A('v_mov_b32 v18, 1')
    A('s_cmp_lg_u32 s3, 1')
    A('s_cbranch_scc1 L_h_ln2')
    for k in range(9):
        A(f'ds_write_b32 v13, v{X + k} offset:{L_XN + 4 * k}')
    QA, QB, QD = 120, 192, 76
    A('s_waitcnt lgkmcnt(0)')
    for t in range(18):
        A(f'ds_read_b128 v[{QA + 4 * t}:{QA + 4 * t + 3}], v15 offset:{L_XN + 64 * t}')
        if t == 8:
            A('s_waitcnt lgkmcnt(0)')
    if stamp == 2: stampit(5)
    A('s_waitcnt vmcnt(0)')
    A('s_mov_b64 exec, 1')
    A(f'ds_add_u32 v12, v18 offset:{L_CNT}')
    A('s_mov_b64 exec, -1')
    lds_wait('L_h_sync', L_CNT, 's_cmp_lt_u32', 4, 18, 12, 0)
    if stamp == 2:
        stampit(6)
        A('s_waitcnt lgkmcnt(0)')
    for t0 in (0, 6, 12):
        for t in range(t0, t0 + 6):
            r = QB + 4 * (t % 12)
            for h in range(2):
                off = L_WQ + 4096 * t + 512 * h
                base, off = (16, off) if off < 32768 else (20, off - 32768)
                A(f'ds_read_b64_tr_b16 v[{r + 2 * h}:{r + 2 * h + 1}], v{base} offset:{off}')
        for t in range(t0, t0 + 6):
            r = QB + 4 * (t % 12)
            A(f's_waitcnt lgkmcnt({2 * (t0 + 5 - t)})')
            c = '0' if t == 0 else f'v[{QD}:{QD + 3}]'
            A(f'v_mfma_f32_16x16x32_bf16 v[{QD}:{QD + 3}], v[{QA + 4 * t}:{QA + 4 * t + 3}], v[{r}:{r + 3}], {c}')
    A('v_mov_b32 v18, 1')
    A('s_mov_b64 exec, 1')
    A(f'ds_add_u32 v12, v18 offset:{L_SF}')
    A('s_mov_b64 exec, -1')
    A('s_add_u32 s64, s78, 1')
    A('s_add_u32 s65, s79, 1')
    A('v_cmp_eq_u32 vcc, 1, v3')
    A('v_mov_b32 v19, s64')
    A('v_mov_b32 v21, s65')
    A.nop(4)
    A('v_cndmask_b32 v19, v19, v21, vcc')
    A(f'v_cndmask_b32 v18, v{QD}, v{QD + 1}, vcc')
    A.nop(2)
    A(f'v_mov_b32_dpp v21, v18 quad_perm:[1,0,3,2] {DPP}')
    A('v_cvt_pk_bf16_f32 v18, v18, v21')
    A('s_mov_b64 exec, 0x55555555')
    A('buffer_store_dwordx2 v[18:19], v17, s[48:51], s39 offen sc1')
    A('s_mov_b64 exec, -1')
    stampit(1)
    A('s_branch L_h_q')
    A.label('L_h_ln2')
    layernorm(X, X)
    for k in range(9):
        A(f'ds_write_b32 v13, v{X + k} offset:{L_H + 4 * k}')
    A(f'ds_write_b32 v12, v18 offset:{L_HF}')
    A('s_branch L_h_join')

    A.label('L_h_noln')
    A.label('L_h_q')
    A('s_cmp_eq_u32 s30, 1')
    A('s_cbranch_scc0 L_h_join')
    A('s_lshl_b32 s39, s31, 10')
    A(f's_add_u32 s39, s39, {QX}')
    A('v_lshlrev_b32 v22, 3, v1')
    A('s_waitcnt lgkmcnt(0)')
    A('s_cmp_eq_u32 s33, 0')
    A('s_cselect_b32 s79, s78, s79')
    A('s_add_u32 s79, s79, 1')
    A(f's_mov_b32 s70, {SPIN_MAX}')
    lds_wait('L_go', L_GO, 's_cmp_eq_u32', 0, 14, 12, 4)
    PB = 64

    def qpoll(p):
        A(f'buffer_load_dwordx4 v[{PB + 4 * p}:{PB + 4 * p + 3}], v11, s[48:51], s39 offen sc1')
    for p in range(npoll - 1):
        qpoll(p)
        A(f's_sleep {qsleep}')
    A.label('L_qp')
    for p in range(npoll):
        qpoll((p + npoll - 1) % npoll)
        r = PB + 4 * p
        A(f's_waitcnt vmcnt({npoll - 1})')
        A(f'v_xor_b32 v14, s79, v{r + 1}')
        A(f'v_xor_b32 v15, s79, v{r + 3}')
        A(f'v_mov_b32 v16, v{r}')
        A('v_or_b32 v14, v14, v15')
        A(f'v_mov_b32 v17, v{r + 2}')
        A('v_cmp_ne_u32 vcc, 0, v14')
        A('s_cbranch_vccz L_qp_done')
        A('s_mov_b64 exec, vcc')
    A('s_sub_u32 s70, s70, 1')
    A('s_cmp_lg_u32 s70, 0')
    A('s_cbranch_scc1 L_qp')
    A.label('L_qp_done')
    A('s_mov_b64 exec, -1')
    A(f'ds_write_b64 v22, v[16:17] offset:{L_Q}')
    A('v_mov_b32 v14, 1')
    A('v_mov_b32 v15, s79')
    A(f'ds_write_b64 v12, v[14:15] offset:{L_FLAG}')
    stampit(1)

    A.label('L_h_join')
    make_sel()
    A('v_lshrrev_b32 v5, 3, v2')
    A('v_lshl_add_u32 v5, v5, 2, v3')
    A('v_and_b32 v7, 7, v2')
    A(f's_mul_i32 s74, s31, {8 * S1}')
    A('s_lshr_b32 s64, s32, 2')
    A('s_lshl_b32 s64, s64, 4')
    A('s_add_u32 s69, s74, s64')
    A('s_lshl_b32 s64, s32, 7')
    A('s_add_u32 s74, s74, s64')
    lds_wait('L_h_qf', L_FLAG, 's_cmp_eq_u32', 0, 14, 12, 8)
    A(f'ds_read_b32 v14, v12 offset:{L_TAG}')
    A('s_waitcnt lgkmcnt(0)')
    A('v_readfirstlane_b32 s79, v14')
    stampit(2)

    pc = [0]

    def paced(ins):
        if pc[0] >= hpace:
            A(f's_waitcnt vmcnt({hpace - 1})')
        A(ins)
        pc[0] += 1

    A(f's_mul_i32 s64, s31, {SP}')
    A(f's_add_u32 s36, s64, {POOLR}')
    A('s_add_u32 s60, s28, s36')
    A('s_addc_u32 s61, s29, 0')
    A('s_lshl_b32 s64, s32, 2')
    A('s_add_u32 s64, s64, s30')
    A('s_cmp_lg_u32 s64, 3')
    A('s_cbranch_scc1 L_nopool')
    A('s_and_b32 s64, s31, 3')
    A('s_lshl_b32 s64, s64, 3')
    A(f's_lshl_b32 s64, {4 * pd}, s64')
    A(f's_sub_u32 s64, {(128 - LIM) * 0x01010101}, s64')
    A('v_mov_b32 v14, s64')
    A('v_mov_b32 v15, s64')
    A('v_mov_b32 v16, s79')
    A('s_mov_b64 exec, 1')
    A('buffer_store_dwordx2 v[14:15], v12, s[48:51], s36 offen sc1')
    A('s_waitcnt vmcnt(0)')
    A('buffer_store_dword v16, v12, s[48:51], s36 offen offset:128 sc1')
    A('s_mov_b64 exec, -1')
    A.label('L_nopool')

    WO = 104
    W8 = 3
    A('s_mov_b32 s52, s12')
    A('s_mov_b32 s53, s13')
    A(f's_mov_b32 s54, {4096 * 1152}')
    A('s_mov_b32 s55, 0x20000')
    A('v_mul_u32_u24 v30, 1152, v5')
    A('v_lshl_add_u32 v30, v7, 4, v30')

    def wo_loads(ts, emit, tagl):
        A(f's_mul_i32 s64, s35, {32 * 1152}')
        A(f's_add_u32 s64, s64, {ts[0] * 8 * 1152}')
        A('s_lshl_b32 s65, s30, 8')
        A('s_add_u32 s65, s65, s64')
        for t in ts:
            for bl in range(2):
                r = WO + bl * 16 + t * 4
                emit(f'buffer_load_dwordx4 v[{r}:{r + 3}], v30, s[52:55], s65 offen offset:{128 * bl} {wopol}')
            if t != ts[-1]:
                A(f's_add_u32 s65, s65, {8 * 1152}')
        A(f's_cmp_lg_u32 s30, {W8}')
        A(f's_cbranch_scc1 L_nowo8{tagl}')
        for t in ts:
            r = WO + 32 + t * 4
            emit(f'buffer_load_dwordx4 v[{r}:{r + 3}], v30, s[52:55], s64 offen offset:1024 {wopol}')
            if t != ts[-1]:
                A(f's_add_u32 s64, s64, {8 * 1152}')
        A.label(f'L_nowo8{tagl}')
    ne = woearly if wolate else 4
    if ne:
        wo_loads(list(range(ne)), paced, 'a')


    A('s_lshl_b32 s80, s73, 5')
    A('s_mul_i32 s64, s33, 576')
    A('s_add_u32 s80, s80, s64')
    G = 176
    A('v_and_b32 v17, 1, v3')
    A('v_lshrrev_b32 v18, 1, v3')
    A('v_lshl_add_u32 v17, v17, 1, v18')
    A('v_lshl_add_u32 v17, v17, 3, v7')
    A('v_lshlrev_b32 v24, 2, v17')
    A('v_add_u32 v17, s80, v17')
    A('v_lshlrev_b32 v25, 1, v17')
    A('s_cmp_lg_u32 s3, 2')
    A('s_cbranch_scc1 L_nob')
    PW = 64
    W1, B1, W2 = 152, 170, 188
    U = 206
    A('s_mul_i32 s64, s30, 2304')
    A('v_add_u32 v15, s64, v11')
    A('v_add_u32 v16, s64, v23')
    for k, base in enumerate((16, 18, 20)):
        r = PW + 12 * k
        paced(f'global_load_dwordx4 v[{r}:{r + 3}], v15, s[{base}:{base + 1}] {bpol}')
        paced(f'global_load_dwordx4 v[{r + 4}:{r + 7}], v15, s[{base}:{base + 1}] offset:1024 {bpol}')
        paced(f'global_load_dword v{r + 8}, v16, s[{base}:{base + 1}] offset:2048 {bpol}')
    paced('buffer_load_ushort v26, v25, s[40:43], 0 offen')
    paced('global_load_ushort v27, v12, s[22:23]')
    lds_wait('L_h_hf', L_HF, 's_cmp_eq_u32', 0, 14, 12, 8)
    c0 = -2.0 * math.sqrt(2.0 / math.pi) * LOG2E
    A(f's_mov_b32 s66, {f32(c0 * 0.044715)}')
    A(f'v_mov_b32 v17, {f32(c0)}')
    A('s_lshl_b32 s64, s80, 1')
    A(f's_add_u32 s64, s64, {L_H}')
    A('v_mov_b32 v18, s64')
    A('s_lshl_b32 s64, s30, 7')
    A(f's_add_u32 s64, s64, {L_BP}')
    A('v_mov_b32 v19, s64')
    A('s_waitcnt vmcnt(0)')
    for k, dst in enumerate((W1, B1, W2)):
        for n in range(9):
            A(f'v_lshlrev_b32 v{dst + 2 * n}, 16, v{PW + 12 * k + n}')
            A(f'v_and_b32 v{dst + 2 * n + 1}, 0xffff0000, v{PW + 12 * k + n}')
    A('s_mov_b32 s70, 0')
    if prio:
        A('s_setprio 0')
    A.label('L_bloop')
    A('ds_read_u16 v20, v18')
    A('v_add_u32 v18, 2, v18')
    A('s_waitcnt lgkmcnt(0)')
    A('v_lshlrev_b32 v20, 16, v20')
    V2 = U + 18
    for n in range(18): A(f'v_mul_f32 v{U + n}, v20, v{W1 + n}')
    for n in range(18): A(f'v_cvt_pk_bf16_f32 v{U + n}, 0, v{U + n}')
    for n in range(18): A(f'v_add_f32 v{U + n}, v{U + n}, v{B1 + n}')
    for n in range(18): A(f'v_cvt_pk_bf16_f32 v{U + n}, 0, v{U + n}')
    for n in range(18): A(f'v_mul_f32 v{V2 + n}, v{U + n}, v{U + n}')
    for n in range(18): A(f'v_fma_f32 v{V2 + n}, v{V2 + n}, s66, v17')
    for n in range(18): A(f'v_mul_f32 v{V2 + n}, v{V2 + n}, v{U + n}')
    for n in range(18): A(f'v_exp_f32 v{V2 + n}, v{V2 + n}')
    for n in range(18): A(f'v_add_f32 v{V2 + n}, 1.0, v{V2 + n}')
    for n in range(18): A(f'v_rcp_f32 v{V2 + n}, v{V2 + n}')
    for n in range(18): A(f'v_mul_f32 v{U + n}, v{U + n}, v{V2 + n}')
    for n in range(18): A(f'v_cvt_pk_bf16_f32 v{U + n}, 0, v{U + n}')
    A(f'v_mul_f32 v21, v{U}, v{W2}')
    A(f'v_mul_f32 v22, v{U + 1}, v{W2 + 1}')
    for n in range(2, 18, 2):
        A(f'v_fmac_f32 v21, v{U + n}, v{W2 + n}')
        A(f'v_fmac_f32 v22, v{U + n + 1}, v{W2 + n + 1}')
    A('v_add_f32 v21, v21, v22')
    allred_row(21)
    allred_g('v_add_f32', 21, 22)
    A('ds_write_b32 v19, v21')
    A('v_add_u32 v19, 4, v19')
    A('s_add_u32 s70, s70, 1')
    A('s_cmp_lt_u32 s70, 32')
    A('s_cbranch_scc1 L_bloop')
    if prio:
        A('s_setprio 2')
    A('v_mov_b32 v14, 1')
    A('s_mov_b64 exec, 1')
    A(f'ds_add_u32 v12, v14 offset:{L_BC}')
    A('s_mov_b64 exec, -1')
    lds_wait('L_h_bc', L_BC, 's_cmp_lt_u32', 4, 14, 12, 8)
    for w in range(4):
        A(f'ds_read_b32 v{G + w}, v24 offset:{L_BP + 128 * w}')
    A('s_waitcnt lgkmcnt(0)')
    A(f'v_add_f32 v{G}, v{G}, v{G + 1}')
    A(f'v_add_f32 v{G + 2}, v{G + 2}, v{G + 3}')
    A(f'v_add_f32 v{G}, v{G}, v{G + 2}')
    A('v_lshlrev_b32 v26, 16, v26')
    A('v_lshlrev_b32 v27, 16, v27')
    A(f'v_cvt_pk_bf16_f32 v{G}, 0, v{G}')
    A(f'v_add_f32 v27, v{G}, v27')
    A('v_cvt_pk_bf16_f32 v27, 0, v27')
    A.label('L_nob')

    A('s_mov_b32 s56, s24')
    A('s_mov_b32 s57, s25')
    A('s_mov_b32 s58, 2304')
    A('s_mov_b32 s59, 0x20000')
    A(f'v_mul_u32_u24 v20, {S1}, v7')
    A('v_lshl_add_u32 v19, v5, 4, v20')
    A('v_lshlrev_b32 v21, 4, v7')
    A('v_lshl_add_u32 v21, v3, 7, v21')
    A('v_lshlrev_b32 v22, 3, v1')
    A('v_lshrrev_b32 v31, 3, v1')
    A(f'v_mul_u32_u24 v31, {S2}, v31')
    A('v_lshl_add_u32 v31, v7, 4, v31')
    A(f's_mul_i32 s77, s2, {S2}')
    A(f's_add_u32 s77, s77, {L2A}')
    A('s_lshl_b32 s64, s30, 9')
    A('s_add_u32 s76, s77, s64')
    A('s_lshl_b32 s64, s33, 2')
    A('s_add_u32 s64, s64, s30')
    A(f's_mul_i32 s81, s64, {32 * S2}')
    A('s_lshl_b32 s64, s73, 7')
    A('s_add_u32 s81, s81, s64')
    A(f's_add_u32 s81, s81, {L2A}')
    A(f's_add_u32 s82, s81, {8 * S2}')
    A(f's_add_u32 s46, s81, {16 * S2}')
    A(f's_add_u32 s47, s81, {24 * S2}')
    GS = (81, 82, 46, 47)
    A('s_and_b32 s78, s79, 0xff')
    A('s_movk_i32 s75, 0xff')
    A('v_mov_b32 v28, s78')
    A('v_mov_b32 v29, 1')
    if warm:
        A('s_cmp_lg_u32 s30, 3')
        A('s_cbranch_scc1 L_nowarm1')
        A('buffer_load_dwordx4 v[200:203], v19, s[48:51], s74 offen sc1')
        A(f'buffer_load_dwordx4 v[204:207], v20, s[48:51], s69 offen offset:{L1ML} sc1')
        A.label('L_nowarm1')
        A('s_cmp_lg_u32 s3, 2')
        A('s_cbranch_scc1 L_nowarm2')
        for k in range(4):
            A(f'buffer_load_dwordx4 v[{208 + 4 * k}:{211 + 4 * k}], v31, s[48:51], s{GS[k]} offen sc1')
        A.label('L_nowarm2')

    A('s_cmp_lg_u32 s30, 2')
    A('s_cbranch_scc1 L_nodisp')
    SC, SF, SOWN, SOWNC, SN, SZ = 66, 68, 69, 70, 71, 37
    A('v_lshlrev_b32 v16, 12, v1')
    A('s_lshl_b32 s64, s32, 20')
    A(f's_add_u32 s64, s64, {ns * 16384}')
    A('s_cmp_eq_u32 s3, 1')
    A(f's_cselect_b32 s65, {pd * 16384}, 0')
    A('s_sub_u32 s64, s64, s65')
    A('v_add_u32 v14, s64, v16')
    A(f's_mov_b64 exec, {(1 << (4 * npre)) - 1}')
    A(f'ds_write_b32 v23, v14 offset:{L_QT}')
    A('s_mov_b64 exec, -1')
    A(f's_mov_b32 s{SN}, {4 * npre}')
    A(f's_mov_b32 s83, {SPIN_MAX}')
    A.label('L_prdy')
    A('buffer_load_dword v14, v12, s[48:51], s36 offen offset:128 sc1')
    A('s_sub_u32 s83, s83, 1')
    A('s_waitcnt vmcnt(0)')
    A('v_readfirstlane_b32 s64, v14')
    A('s_cmp_eq_u32 s83, 0')
    A('s_cbranch_scc1 L_dend')
    A('s_cmp_eq_u32 s64, s79')
    A('s_cbranch_scc1 L_prdy_ok')
    A('s_sleep 64')
    A('s_branch L_prdy')
    A.label('L_prdy_ok')
    A(f's_lshl_b32 s{SOWN}, s32, 3')
    A(f's_mov_b32 s{SF}, s{SOWN}')
    A(f's_sub_u32 s{SOWNC}, 64, s{SOWN}')
    A('s_mov_b32 s62, 0x80808080')
    A('s_mov_b32 s63, 0x80808080')
    A(f's_mov_b32 s{SZ}, {first}')
    lds_wait('L_dw0', L_TK, 's_cmp_eq_u32', 0, 14, 12, 16)
    A.label('L_dloop')
    A(f's_sub_u32 s83, s{SN}, {theta}')
    lds_wait('L_dw', L_TK, 's_cmp_lt_u32', 's83', 14, 12, dsleep)
    A.label('L_drty')
    A(f's_mov_b32 s38, s{SZ}')
    A('s_mov_b32 s39, 0')
    A(f's_lshl_b64 s[38:39], s[38:39], s{SF}')
    A(f's_mov_b64 s[{SC}:{SC + 1}], s[38:39]')
    A(f's_atomic_add_x2 s[{SC}:{SC + 1}], s[60:61], 0 glc')
    A(f's_lshl_b32 s83, s{SF}, 17')
    A(f's_lshl_b32 s64, s{SN}, 2')
    A('v_add_u32 v15, s64, v23')
    A('s_waitcnt lgkmcnt(0)')
    A(f's_lshr_b64 s[64:65], s[{SC}:{SC + 1}], s{SF}')
    A('s_and_b32 s64, s64, 0xff')
    A('s_cmp_ge_u32 s64, 128')
    A('s_cbranch_scc1 L_dfail')
    A('s_lshl_b32 s65, s64, 12')
    A('s_add_u32 s65, s65, s83')
    A(f's_add_u32 s65, s65, {((ns + npre) * 16384 - (128 - LIM) * 4096) & 0xffffffff}')
    A('v_add_u32 v14, s65, v16')
    A('s_sub_u32 s65, 128, s64')
    A(f's_min_u32 s65, s65, s{SZ}')
    A('s_bfm_b64 exec, s65, 0')
    A(f'ds_write_b32 v15, v14 offset:{L_QT}')
    A('s_mov_b64 exec, -1')
    A(f's_add_u32 s{SN}, s{SN}, s65')
    A.label('L_dfail')
    A(f's_add_u32 s{SC}, s38, s{SC}')
    A(f's_addc_u32 s{SC + 1}, s39, s{SC + 1}')
    A(f's_andn2_b64 s[38:39], s[62:63], s[{SC}:{SC + 1}]')
    A(f's_lshr_b64 s[44:45], s[38:39], s{SOWN}')
    A(f's_lshl_b64 s[38:39], s[38:39], s{SOWNC}')
    A('s_or_b64 s[38:39], s[38:39], s[44:45]')
    A('s_cbranch_scc0 L_dend')
    A('s_ff1_i32_b64 s65, s[38:39]')
    A(f's_add_u32 s65, s65, s{SOWN}')
    A(f's_and_b32 s{SF}, s65, 56')
    A(f's_lshr_b64 s[38:39], s[{SC}:{SC + 1}], s{SF}')
    A('s_and_b32 s38, s38, 0xff')
    A(f's_cmp_lt_u32 s38, {128 - big}')
    A(f's_cselect_b32 s{SZ}, 4, {small}')
    if huge < 99:
        A(f's_cmp_lt_u32 s38, {128 - huge}')
        A(f's_cselect_b32 s{SZ}, 8, s{SZ}')
    A('s_cmp_ge_u32 s64, 128')
    A('s_cbranch_scc1 L_drty')
    A(f's_cmp_lt_u32 s{SN}, 160')
    A('s_cbranch_scc1 L_dloop')
    A.label('L_dend')
    A(f's_lshl_b32 s64, s{SN}, 2')
    A('v_add_u32 v15, s64, v23')
    A(f'v_mov_b32 v14, {KVOOB}')
    A('s_mov_b64 exec, 15')
    A(f'ds_write_b32 v15, v14 offset:{L_QT}')
    A('s_mov_b64 exec, -1')
    A(f'v_mov_b32 v14, s{SN}')
    A(f'ds_write_b32 v12, v14 offset:{L_EN}')
    A.label('L_nodisp')
    if wolate in (1, 2):
        lds_wait('L_ww0', L_TK, 's_cmp_eq_u32', 0, 14, 12, 32)
        A('s_add_u32 s65, s30, 1')
        A('s_and_b32 s65, s65, 3')
        if wolate == 2:
            A('s_mov_b32 s65, 3')
        A.label('L_ww')
        A(f'ds_read_b64 v[14:15], v12 offset:{L_TK}')
        A('s_waitcnt lgkmcnt(0)')
        A('v_readfirstlane_b32 s64, v14')
        A('v_readfirstlane_b32 s83, v15')
        A(f's_add_u32 s64, s64, {wooff}')
        A('s_cmp_eq_u32 s83, 0')
        A('s_cbranch_scc1 L_wws')
        A('s_add_u32 s83, s83, s65')
        A('s_cmp_gt_u32 s64, s83')
        A('s_cbranch_scc1 L_wwd')
        A.label('L_wws')
        A('s_sleep 1')
        A('s_branch L_ww')
        A.label('L_wwd')
        A('s_waitcnt vmcnt(0)')
        wo_loads(list(range(ne, 4)), A, 'b')
    else:
        A('s_waitcnt vmcnt(0) lgkmcnt(0)')
    A(f's_mov_b32 s80, {SPIN_MAX}')
    if reh:
        A('s_cmp_lg_u32 s30, 3')
        A('s_cbranch_scc1 L_b3')
        A('s_mov_b32 s80, 1')
        A('v_mov_b32 v29, 0')
        A('s_mov_b32 s83, s73')
        A('s_mov_b64 s[72:73], s[76:77]')
        A('s_mov_b32 s76, s50')
        A('s_mov_b32 s77, s50')
        A('s_branch L_reh')
        A.label('L_rehd')
        A(f's_mov_b32 s80, {SPIN_MAX}')
        A('v_mov_b32 v29, 1')
        A('s_mov_b64 s[76:77], s[72:73]')
        A('s_mov_b32 s73, s83')
        A('s_waitcnt vmcnt(0) lgkmcnt(0)')
        A.label('L_b3')
    A('s_barrier')
    if wolate == 3:
        wo_loads(list(range(ne, 4)), A, 'b')
    stampit(3)
    leakit(4, 0)

    P1, O, W = 200, 232, 236
    A('s_cmp_lg_u32 s30, 3')
    A('s_cbranch_scc1 L_ow')
    A.label('L_reh')
    A('s_mov_b32 s70, s80')
    def poll1(p):
        r = P1 + 8 * p
        A(f'buffer_load_dwordx4 v[{r}:{r + 3}], v20, s[48:51], s69 offen offset:{L1ML} sc1')
        A(f'buffer_load_dwordx4 v[{r + 4}:{r + 7}], v19, s[48:51], s74 offen sc1')
    assert np1 <= 4
    for p in range(np1 - 1):
        poll1(p)
        A(f's_sleep {ps1}')
    A.label('L_p1')
    for p in range(np1):
        poll1((p + np1 - 1) % np1)
        r = P1 + 8 * p
        A(f's_waitcnt vmcnt({2 * (np1 - 1)})')
        for t in range(4):
            A(f'v_xor_b32 v{O + t}, s78, v{r + 4 + t}')
        A(f'v_xor_b32 v17, s79, v{r + 1}')
        A(f'v_xor_b32 v18, s79, v{r + 3}')
        A(f'v_or3_b32 v14, v{O}, v{O + 1}, v{O + 2}')
        A(f'v_or_b32 v14, v14, v{O + 3}')
        A(f'v_mov_b32 v15, v{r}')
        A('v_and_b32 v14, 0xff, v14')
        A('v_or3_b32 v14, v14, v17, v18')
        A(f'v_mov_b32 v16, v{r + 2}')
        A('v_cmp_ne_u32 vcc, 0, v14')
        A('s_cbranch_vccz L_p1_done')
        A('s_mov_b64 exec, vcc')
    A('s_sub_u32 s70, s70, 1')
    A('s_cmp_lg_u32 s70, 0')
    A('s_cbranch_scc1 L_p1')
    A.label('L_p1_done')
    A('s_mov_b64 exec, -1')
    if stamp == 1:
        stampit(4)
    A(f'v_max_f32_dpp v17, v15, v15 quad_perm:[1,0,3,2] {DPP}')
    for m in ('quad_perm:[2,3,0,1]', 'row_half_mirror'):
        A.nop(2)
        A(f'v_max_f32_dpp v17, v17, v17 {m} {DPP}')
    A('v_sub_f32 v15, v15, v17')
    A('v_exp_f32 v15, v15')
    A.nop(1)
    A('v_mul_f32 v16, v15, v16')
    for t in range(4):
        A(f'v_mul_f32 v{O + t}, v15, v{O + t}')
    for m in ('quad_perm:[1,0,3,2]', 'quad_perm:[2,3,0,1]', 'row_half_mirror'):
        for q in (16, O, O + 1, O + 2, O + 3):
            A(f'v_add_f32_dpp v{q}, v{q}, v{q} {m} {DPP}')
    A('v_rcp_f32 v16, v16')
    A.nop(1)
    for t in range(4):
        A(f'v_mul_f32 v{O + t}, v{O + t}, v16')
    A(f'v_cvt_pk_bf16_f32 v{W}, v{O}, v{O + 1}')
    A(f'v_cvt_pk_bf16_f32 v{W + 1}, v{O + 2}, v{O + 3}')
    A(f'ds_write_b64 v22, v[{W}:{W + 1}] offset:{L_OW}')
    A(f'ds_write_b32 v12, v29 offset:{L_OF}')
    A('s_branch L_proj')
    A.label('L_ow')
    A(f'ds_read_b32 v14, v12 offset:{L_OF}')
    A(f'ds_read_b64 v[{W}:{W + 1}], v22 offset:{L_OW}')
    A('s_waitcnt lgkmcnt(0)')
    A('v_cmp_eq_u32 vcc, 0, v14')
    A('s_cbranch_vccnz L_ow')
    if stamp == 1:
        stampit(4)
    if wolate:
        A('s_waitcnt vmcnt(0)')
    A.label('L_proj')
    DX, DY, DZ = 240, 244, 248
    build_b(HB, W, 0)
    for t in range(4):
        if t < 3:
            build_b(HB + 4 * (t + 1), W + (t + 1) // 2, (t + 1) & 1)
        for bl, D in ((0, DX), (1, DY)):
            r = WO + bl * 16 + t * 4
            c = '0' if t == 0 else f'v[{D}:{D + 3}]'
            A(f'v_mfma_f32_16x16x32_bf16 v[{D}:{D + 3}], v[{r}:{r + 3}], v[{HB + 4 * t}:{HB + 4 * t + 3}], {c}')
    A(f's_cmp_lg_u32 s30, {W8}')
    A('s_cbranch_scc1 L_nob8a')
    for t in range(4):
        r = WO + 32 + t * 4
        c = '0' if t == 0 else f'v[{DZ}:{DZ + 3}]'
        A(f'v_mfma_f32_16x16x32_bf16 v[{DZ}:{DZ + 3}], v[{r}:{r + 3}], v[{HB + 4 * t}:{HB + 4 * t + 3}], {c}')
    A.label('L_nob8a')
    A.nop(6)
    for r in range(4):
        A(f'v_permlane32_swap_b32 v{DX + r}, v{DY + r}')
    A.nop(1)
    for r in range(4):
        A(f'v_add_f32_dpp v{DX + r}, v{DY + r}, v{DX + r} row_ror:8 {DPP}')
    for r in range(4):
        A(f'v_bfi_b32 v{DX + r}, s75, v28, v{DX + r}')
    A('s_mov_b32 exec_lo, 0x00ff00ff')
    A('s_mov_b32 exec_hi, 0x00ff00ff')
    A(f'buffer_store_dwordx4 v[{DX}:{DX + 3}], v21, s[48:51], s76 offen sc1')
    A('s_mov_b64 exec, -1')
    A(f's_cmp_lg_u32 s30, {W8}')
    A('s_cbranch_scc1 L_nob8b')
    for r in range(4):
        A(f'v_permlane32_swap_b32 v{DZ + r}, v{DY + r}')
    A.nop(1)
    for r in range(4):
        A(f'v_add_f32_dpp v{DZ + r}, v{DY + r}, v{DZ + r} row_ror:8 {DPP}')
    for r in range(4):
        A(f'v_bfi_b32 v{DZ + r}, s75, v28, v{DZ + r}')
    A('s_mov_b64 exec, 0x00ff00ff')
    A(f'buffer_store_dwordx4 v[{DZ}:{DZ + 3}], v21, s[48:51], s77 offen offset:2048 sc1')
    A('s_mov_b64 exec, -1')
    A.label('L_nob8b')
    if stamp == 1:
        stampit(5)
    A('s_cmp_lg_u32 s3, 2')
    A('s_cbranch_scc1 L_hend')
    P2 = 64
    assert np2 <= 2
    A('s_mov_b32 s70, s80')
    for k in range(4):
        A(f's_mov_b64 s[{60 + 2 * k}:{61 + 2 * k}], -1')
    assert np2 <= 4

    def poll2(p, masked):
        for k in range(4):
            r = P2 + 16 * p + 4 * k
            if masked and np2 == 1:
                A(f's_mov_b64 exec, s[{60 + 2 * k}:{61 + 2 * k}]')
                A(f's_cbranch_execz L_gs{k}')
            elif masked:
                A(f's_or_b64 exec, s[{60 + 2 * k}:{61 + 2 * k}], 1')
            A(f'buffer_load_dwordx4 v[{r}:{r + 3}], v31, s[48:51], s{GS[k]} offen sc1')
            if masked and np2 == 1:
                A.label(f'L_gs{k}')
    for p in range(np2 - 1):
        poll2(p, False)
        A(f's_sleep {ps2}')
    A.label('L_ga')
    for p in range(np2):
        poll2((p + np2 - 1) % np2, True)
        A(f's_waitcnt vmcnt({4 * (np2 - 1)})')
        for k in range(4):
            r = P2 + 16 * p + 4 * k
            A(f's_mov_b64 exec, s[{60 + 2 * k}:{61 + 2 * k}]')
            A(f's_cbranch_execz L_gc{p}_{k}')
            for q in range(4):
                A(f'v_xor_b32 v{G + 4 * k + q}, s78, v{r + q}')
            A(f'v_or3_b32 v17, v{G + 4 * k}, v{G + 4 * k + 1}, v{G + 4 * k + 2}')
            A(f'v_or_b32 v17, v17, v{G + 4 * k + 3}')
            A('v_and_b32 v17, 0xff, v17')
            A(f'v_cmp_ne_u32 s[{60 + 2 * k}:{61 + 2 * k}], 0, v17')
            A.label(f'L_gc{p}_{k}')
        A('s_or_b64 s[38:39], s[60:61], s[62:63]')
        A('s_or_b64 s[38:39], s[38:39], s[64:65]')
        A('s_or_b64 s[38:39], s[38:39], s[66:67]')
        A('s_cbranch_scc0 L_ga_done')
    A('s_sub_u32 s70, s70, 1')
    A('s_cmp_lg_u32 s70, 0')
    A('s_cbranch_scc1 L_ga')
    A.label('L_ga_done')
    A('s_mov_b64 exec, -1')
    if stamp == 1:
        stampit(2)
    for r in range(4):
        A(f'v_add_f32 v{G + r}, v{G + r}, v{G + 4 + r}')
        A(f'v_add_f32 v{G + 8 + r}, v{G + 8 + r}, v{G + 12 + r}')
    for r in range(4):
        A(f'v_add_f32 v{G + r}, v{G + r}, v{G + 8 + r}')
    A('s_lshl_b32 s64, s30, 8')
    A(f'v_permlane32_swap_b32 v{G}, v{G + 1}')
    A(f'v_permlane32_swap_b32 v{G + 2}, v{G + 3}')
    A(f'v_add_f32 v{G}, v{G}, v{G + 1}')
    A(f'v_add_f32 v{G + 2}, v{G + 2}, v{G + 3}')
    A('v_add_u32 v17, s64, v23')
    A.nop(1)
    A(f'v_permlane16_swap_b32 v{G}, v{G + 2}')
    A(f'v_add_f32 v{G}, v{G}, v{G + 2}')
    A.nop(2)
    A(f'v_add_f32_dpp v{G}, v{G}, v{G} row_ror:8 {DPP}')
    A(f'ds_write_b32 v17, v{G} offset:{L_P2}')
    A('s_mov_b64 exec, 1')
    A(f'ds_add_rtn_u32 v14, v12, v29 offset:{L_F2}')
    A('s_mov_b64 exec, -1')
    for w in range(4):
        A(f'ds_read_b32 v{G + 4 + w}, v23 offset:{L_P2 + 256 * w}')
    A('s_waitcnt lgkmcnt(0)')
    A('v_readfirstlane_b32 s64, v14')
    A(f'v_add_f32 v{G}, v{G + 4}, v{G + 5}')
    A(f'v_add_f32 v{G + 1}, v{G + 6}, v{G + 7}')
    A('s_cmp_lg_u32 s64, 3')
    A('s_cbranch_scc1 L_hend')
    A(f'v_add_f32 v{G}, v{G}, v{G + 1}')
    A(f'v_cvt_pk_bf16_f32 v{G}, 0, v{G}')
    A(f'v_add_f32 v{G}, v26, v{G}')
    A(f'v_cvt_pk_bf16_f32 v{G}, 0, v{G}')
    A(f'v_add_f32 v{G}, v{G}, v27')
    A(f'v_cvt_pk_bf16_f32 v{G}, v{G}, v{G}')
    A('s_mov_b32 exec_lo, 0x00ff00ff')
    A('s_mov_b32 exec_hi, 0x00ff00ff')
    A(f'buffer_store_short v{G}, v25, s[56:59], 0 offen {outpol}')
    A('s_cmp_lg_u32 s73, 0')
    A('s_cbranch_scc1 L_noep')
    A('v_mov_b32 v17, s79')
    A('s_lshl_b32 s64, s33, 2')
    A(f's_add_u32 s64, s64, {EPOCH}')
    A('s_mov_b64 exec, 1')
    A('buffer_store_dword v17, v12, s[48:51], s64 offen')
    A.label('L_noep')
    A('s_mov_b64 exec, -1')
    if stamp == 1:
        stampit(6)
    leakit(1)
    A.label('L_hend')
    if reh:
        A('s_cmp_eq_u32 s80, 1')
        A('s_cbranch_scc1 L_rehd')
    if stamp:
        for _ in range(2): A('s_sleep 127')
    stamp_store()
    A.label('L_end')
    A('s_endpgm')
    if leak:
        A.L += ['.globl post_kernel', '.p2align 8', '.type post_kernel,@function', 'post_kernel:']
        A('s_cmp_ge_u32 s2, 1')
        A('s_cbranch_scc1 L_pend')
        A('s_load_dwordx2 s[4:5], s[0:1], 96')
        A('s_memrealtime s[8:9]')
        A(f's_mov_b32 s6, {EPOCH + 64}')
        A('s_waitcnt lgkmcnt(0)')
        A('s_load_dword s7, s[4:5], s6')
        A('s_waitcnt lgkmcnt(0)')
        A(f's_sub_u32 s7, s7, {lbase}')
        A('s_min_u32 s7, s7, 5000')
        A('s_mul_i32 s7, s7, 10')
        A.label('L_pspin')
        A('s_memrealtime s[10:11]')
        A('s_waitcnt lgkmcnt(0)')
        A('s_sub_u32 s10, s10, s8')
        A('s_cmp_lt_u32 s10, s7')
        A('s_cbranch_scc1 L_pspin')
        A.label('L_pend')
        A('s_endpgm')
    A.L.append('.section .rodata,"a"')
    A.L.append('.p2align 6')
    A.L.append(f'.amdhsa_kernel {KN}_kernel')
    A('.amdhsa_next_free_vgpr 256')
    A('.amdhsa_next_free_sgpr 102')
    A('.amdhsa_accum_offset 256')
    A('.amdhsa_group_segment_fixed_size 0')
    A('.amdhsa_kernarg_size 104')
    A('.amdhsa_user_sgpr_count 2')
    A('.amdhsa_user_sgpr_kernarg_segment_ptr 1')
    A('.amdhsa_system_sgpr_workgroup_id_x 1')
    A.L.append('.end_amdhsa_kernel')
    if leak:
        A.L += ['.p2align 6', '.amdhsa_kernel post_kernel', '  .amdhsa_next_free_vgpr 16', '  .amdhsa_next_free_sgpr 32', '  .amdhsa_accum_offset 16',
                '  .amdhsa_group_segment_fixed_size 0', '  .amdhsa_kernarg_size 104', '  .amdhsa_user_sgpr_count 2', '  .amdhsa_user_sgpr_kernarg_segment_ptr 1',
                '  .amdhsa_system_sgpr_workgroup_id_x 1', '.end_amdhsa_kernel']
    return A.text()


if __name__ == '__main__':
    out = sys.argv[1] if len(sys.argv) > 1 else 'cdna_kernels/' + KN + '.s'
    kw = {}
    for a in sys.argv[2:]:
        k, v = a.split('=')
        kw[k] = int(v) if v.lstrip('-').isdigit() else v
    open(out, 'w').write(gen(**kw))
    print('wrote', out)
```
